```python
import torch

def _softmax(x, axis=-1):
    return torch.softmax(x, dim=axis)
def _gelu(x):
    return torch.nn.functional.gelu(x, approximate="tanh")
def _silu(x):
    return torch.nn.functional.silu(x)
def _sigmoid(x):
    return torch.sigmoid(x)
def _layernorm(x, axis=-1, eps=1e-5):
    m = x.mean(dim=axis, keepdim=True)
    v = x.var(dim=axis, keepdim=True, unbiased=False)
    return (x - m) / torch.sqrt(v + eps)
def _scatter_add(tgt, idx, src, axis=0):
    return tgt.clone().index_add_(axis, idx, src)
def _segment_sum(src, seg, n):
    out = torch.zeros((n,) + src.shape[1:], dtype=src.dtype)
    return out.index_add_(0, seg, src)
def _pad(x, pw):
    flat = tuple(v for pair in reversed(pw) for v in pair)
    return torch.nn.functional.pad(x, flat)

kernel_name = 'recurrent_scan__softmax_full_mha__moe_arch_mod__prompt'

def setup_inputs():

    _w = (lambda a: (lambda t: t.to(torch.bfloat16) if t.is_floating_point() else t)(torch.as_tensor(a)))
    def _A_setup():
        B, S, D = 1, 2048, 512
        return {
            "x": _w((lambda *s: torch.randn(*s, dtype=torch.bfloat16) * 0.05)(B, S, D)),
            "wqkv": _w((lambda *s: torch.randn(*s, dtype=torch.bfloat16) * 0.05)(D, 3 * D)),
            "wo": _w((lambda *s: torch.randn(*s, dtype=torch.bfloat16) * 0.05)(D, D)),
        }
    _A_in = _A_setup()

    def _B_setup():
        B, S, D, F, C = 1, 2048, 512, 1792, 2
        return {
            "x": _w((lambda *s: torch.randn(*s, dtype=torch.bfloat16) * 0.05)(B, S, D)),
            "w_r": _w((lambda *s: torch.randn(*s, dtype=torch.bfloat16) * 0.05)(D)),
            "w_gate": _w((lambda *s: torch.randn(*s, dtype=torch.bfloat16) * 0.05)(D, F)),
            "w_up": _w((lambda *s: torch.randn(*s, dtype=torch.bfloat16) * 0.05)(D, F)),
            "w_down": _w((lambda *s: torch.randn(*s, dtype=torch.bfloat16) * 0.05)(F, D)),
        }
    _B_in = _B_setup()

    return {
        "A_x": _A_in["x"],
        "A_wqkv": _A_in["wqkv"],
        "A_wo": _A_in["wo"],
        "B_x": _B_in["x"],
        "B_w_r": _B_in["w_r"],
        "B_w_gate": _B_in["w_gate"],
        "B_w_up": _B_in["w_up"],
        "B_w_down": _B_in["w_down"],
    }

def reference(A_x, A_wqkv, A_wo, B_x, B_w_r, B_w_gate, B_w_up, B_w_down):
    def _A_ref(x, wqkv, wo):
        B, S, D = x.shape
        H = 32; Dh = D // H
        qkv = (lambda x, *d: x.permute(*d))((x @ wqkv).reshape(B, S, 3, H, Dh), 2, 0, 3, 1, 4)
        q, k, v = qkv[0], qkv[1], qkv[2]
        scale = Dh ** -0.5
        scores = torch.einsum("bhqd,bhkd->bhqk", q, k) * scale
        p = _softmax(scores, axis=-1)
        o = torch.einsum("bhqk,bhkd->bhqd", p, v)
        return (lambda x, *d: x.permute(*d))(o, 0, 2, 1, 3).reshape(B, S, D) @ wo

    def _B_ref(x, w_r, w_gate, w_up, w_down):
        B, S, D = x.shape
        C = 2
        r = x @ w_r
        idx = torch.argsort(-r, axis=-1)[:, :C]
        idx_e = (lambda x, n, axis: torch.repeat_interleave(x, n, dim=axis))(idx.reshape(B, C, 1), D, axis=2)
        x_sel = (lambda x, i, axis: torch.take_along_dim(x, i, dim=axis))(x, idx_e, axis=1)
        g = _silu(x_sel @ w_gate)
        u = x_sel @ w_up
        y = (g * u) @ w_down
        r_sel = _sigmoid((lambda x, i, axis: torch.take_along_dim(x, i, dim=axis))(r, idx, axis=1))
        y = y * r_sel.reshape(B, C, 1)
        b_off = (torch.arange(B) * S).reshape(B, 1)
        flat_idx = (idx + b_off).reshape(B * C)
        zero = (x * 0.0).reshape(B * S, D)
        upd = _scatter_add(zero, flat_idx, y.reshape(B * C, D), axis=0)
        return x + upd.reshape(B, S, D)

    x = A_x
    xn = _layernorm(x, axis=-1)
    s = _A_ref(xn, A_wqkv, A_wo)
    g = _silu(_B_ref(xn, B_w_r, B_w_gate, B_w_up, B_w_down))
    return x + s * g
```

```python
import re

TRANS = ("v_exp_", "v_log_", "v_rcp_", "v_rsq_", "v_sqrt_", "v_sin_", "v_cos_")


def _regs(tok):
    tok = tok.strip()
    tok = tok.lstrip("-")
    if tok.startswith("abs(") and tok.endswith(")"):
        tok = tok[4:-1]
    if tok.startswith("|") and tok.endswith("|"):
        tok = tok[1:-1]
    m = re.fullmatch(r"([vsa])(\d+)", tok)
    if m:
        return {m.group(1) + m.group(2)}
    m = re.fullmatch(r"([vsa])\[(\d+):(\d+)\]", tok)
    if m:
        return {m.group(1) + str(i) for i in range(int(m.group(2)), int(m.group(3)) + 1)}
    if tok in ("vcc", "vcc_lo", "vcc_hi"):
        return {"vcc"}
    if tok in ("exec", "exec_lo", "exec_hi"):
        return {"exec"}
    if tok == "m0":
        return {"m0"}
    return set()


class Ins:
    def __init__(self, text):
        self.text = text
        t = text.split(";")[0].strip()
        self.label = None
        self.op = None
        self.directive = False
        if not t:
            self.directive = True
            return
        if t.endswith(":"):
            self.label = t[:-1]
            return
        if t.startswith("."):
            self.directive = True
            return
        parts = t.split(None, 1)
        self.op = op = parts[0]
        rest = parts[1] if len(parts) > 1 else ""
        ops, depth, cur = [], 0, ""
        for ch in rest:
            if ch in "[(":
                depth += 1
            if ch in "])":
                depth -= 1
            if ch == "," and depth == 0:
                ops.append(cur.strip())
                cur = ""
            else:
                cur += ch
        if cur.strip():
            ops.append(cur.strip())
        mods = ""
        if ops:
            last = ops[-1].split(None, 1)
            ops[-1] = last[0]
            mods = last[1] if len(last) > 1 else ""
        self.ops, self.mods = ops, mods
        R = [_regs(o) for o in ops]
        self.w, self.r = set(), set()
        self.valu = op.startswith("v_")
        self.mfma = op.startswith("v_mfma") or op.startswith("v_smfmac")
        self.trans = op.startswith(TRANS)
        self.dot = op.startswith("v_dot")
        self.salu = op.startswith("s_")
        self.ds = op.startswith("ds_")
        self.vmem = op.startswith(("buffer_", "global_", "flat_"))
        self.dpp = "_dpp" in op or any(k in mods for k in ("row_", "quad_perm", "wave_"))
        self.sdwa_dst = ("dst_sel:" in mods and "dst_sel:DWORD" not in mods)
        self.perml = op.startswith("v_permlane")
        self.ldsdma = self.vmem and (re.search(r"\blds\b", mods) is not None or "load_lds" in op)
        self.srcA = self.srcB = self.srcC = set()
        self.passes = 0
        self.store_data = set()
        U = lambda xs: set().union(*xs) if xs else set()
        if self.mfma:
            self.w = R[0]
            self.srcA, self.srcB = R[1], R[2]
            if op.startswith("v_smfmac"):
                self.srcC = R[0]
                self.srcB = R[2] | R[3]
            else:
                self.srcC = R[3]
            self.r = self.srcA | self.srcB | self.srcC
            self.passes = 8 if "32x32" in op else (4 if "16x16" in op else 2)
        elif self.valu:
            if op.startswith("v_permlane") and "swap" in op:
                self.w = R[0] | R[1]
                self.r = R[0] | R[1]
            elif op.startswith("v_nop"):
                pass
            else:
                self.w = set(R[0])
                self.r = U(R[1:])
                if op.startswith(("v_fmac", "v_dot2c", "v_pk_fmac", "v_writelane")) or "UNUSED_PRESERVE" in mods or self.dpp:
                    self.r |= R[0]
                if op.startswith(("v_add_co", "v_sub_co", "v_addc_co", "v_subb_co", "v_div_scale", "v_mad_u64")):
                    self.w |= R[1]
                    self.r = U(R[2:])
                if op.startswith("v_cmpx"):
                    self.w |= {"exec"}
                if op.startswith("v_div_fmas"):
                    self.r |= {"vcc"}
        elif self.ds:
            if op.startswith(("ds_read", "ds_bpermute", "ds_permute", "ds_swizzle")) or "_rtn" in op:
                self.w = R[0]
                self.r = U(R[1:])
            else:
                self.r = U(R)
        elif self.vmem:
            if self.ldsdma:
                self.r = U(R) | {"m0"}
            elif "load" in op:
                self.w = R[0]
                self.r = U(R[1:])
            elif op.startswith("buffer_store") or op.startswith("buffer_atomic"):
                self.r = U(R)
                if "x3" in op or "x4" in op:
                    self.store_data = R[0]
                if "atomic" in op and re.search(r"\bsc0\b", mods):
                    self.w = R[0]
            elif op.startswith("global_store"):
                self.r = U(R)
                if "x3" in op or "x4" in op:
                    self.store_data = R[1]
            else:
                self.r = U(R)
        elif self.salu:
            if op.startswith(("s_cmp", "s_cbranch", "s_branch", "s_waitcnt", "s_barrier", "s_nop", "s_sleep", "s_setprio",
                              "s_endpgm", "s_bitcmp")):
                self.r = U(R)
            else:
                self.w = set(R[0]) if R else set()
                self.r = U(R[1:])
                if "saveexec" in op:
                    self.w |= {"exec"}
        self.states = 1
        if op == "s_nop":
            self.states = int(ops[0], 0) + 1

    @property
    def real(self):
        return self.op is not None


def need(p, c):
    n = 0
    why = ""

    def req(k, w):
        nonlocal n, why
        if k > n:
            n, why = k, w

    pv = {x for x in p.w if x[0] in "va" and x not in ("vcc",)}
    ps = {x for x in p.w if x[0] == "s" or x == "vcc"}
    if p.mfma:
        full = {2: 5, 4: 8, 8: 12}[p.passes]
        if c.mfma:
            if p.w & (c.srcA | c.srcB):
                req(full, "mfma D -> mfma A/B")
            if p.w & c.srcC:
                same = (p.w == c.srcC and p.passes == c.passes)
                req((2 if p.passes == 2 else 0) if same else {2: 4, 4: 6, 8: 10}[p.passes], "mfma D -> mfma C overlap")
            elif p.w & c.w:
                req(0, "")
        elif c.valu or c.vmem or c.ds:
            if p.w & (c.r | c.w):
                req(full, "mfma D -> valu/mem")
            if c.valu and (p.srcC & c.w):
                req({2: 1, 4: 3, 8: 7}[p.passes], "mfma C WAR valu")
    elif p.valu:
        if c.mfma and (pv & c.r):
            req(3 if p.dot else 2, "valu -> mfma")
        if c.mfma and "exec" in p.w:
            req(4, "valu exec -> mfma")
        if p.dot and (c.valu or c.vmem or c.ds) and (pv & (c.r | c.w)):
            if not (c.op == p.op and not (pv & (set().union(*[_regs(o) for o in c.ops[1:3]])))):
                req(3, "dot -> other")
        if p.trans and c.valu and not c.trans and (pv & c.r):
            req(1, "trans -> valu")
        if (p.sdwa_dst or p.op.startswith("v_pk_")) and c.valu and (pv & (c.r | c.w)):
            req(1, "sdwa dst -> valu")
        if c.valu and c.dpp and (pv & c.r):
            req(2, "valu -> dpp")
        if c.valu and c.dpp and "exec" in p.w:
            req(5, "valu exec -> dpp")
        if c.perml and (pv & c.r):
            req(2, "valu -> permlane")
        if c.op and c.op.startswith(("v_readlane", "v_readfirstlane")) and (pv & c.r):
            req(1, "valu -> readlane")
        if ps:
            if c.valu and (ps & c.r):
                if c.op.startswith(("v_readlane", "v_writelane")) and (ps & _regs(c.ops[2])):
                    req(4, "valu sgpr -> lane select")
                elif c.op.startswith("v_div_fmas"):
                    req(4, "vcc -> div_fmas")
                else:
                    req(2, "valu sgpr -> valu const")
            if c.vmem and (ps & c.r):
                req(5, "valu sgpr -> vmem")
            if c.salu and (ps & c.r):
                req(1, "valu sgpr -> salu (pad)")
    if p.salu and "m0" in p.w and c.ldsdma:
        req(1, "m0 -> lds dma")
    if p.store_data and (p.store_data & c.w):
        req(2 if c.valu else 1, "wide store data WAR")
    return n, why


class Asm:
    def __init__(self):
        self.lines = []

    def __call__(self, text):
        for ln in text.split("\n"):
            s = ln.strip()
            if not s:
                continue
            if s.startswith(";") or s.split(";")[0].strip().endswith(":") or s.startswith("."):
                self.lines.append(s)
            else:
                self.lines.append("    " + s)

    def text(self):
        return "\n".join(self.lines) + "\n"


def fix_hazards(text, fix=True, verbose=False):
    ins = [Ins(l) for l in text.split("\n")]
    log = []
    MAXW = 13
    changed = True
    while changed:
        changed = False
        labels = {x.label: i for i, x in enumerate(ins) if x.label}
        branchers = {}
        for i, x in enumerate(ins):
            if x.real and (x.op.startswith("s_cbranch") or x.op == "s_branch"):
                branchers.setdefault(labels[x.ops[0]], []).append(i)

        def worst(i):
            c = ins[i]
            best = (0, "", None)
            stack = [(i - 1, 0)]
            seen = set()
            while stack:
                j, d = stack.pop()
                while j >= 0 and d < MAXW:
                    if (j, d) in seen:
                        break
                    seen.add((j, d))
                    x = ins[j]
                    if x.label:
                        for b in branchers.get(j, []):
                            stack.append((b, d))
                        k = j - 1
                        while k >= 0 and not ins[k].real and not ins[k].label:
                            k -= 1
                        if k >= 0 and ins[k].real and ins[k].op in ("s_branch", "s_endpgm"):
                            break
                        j -= 1
                        continue
                    if not x.real:
                        j -= 1
                        continue
                    n, why = need(x, c)
                    if n - d > best[0]:
                        best = (n - d, why, x.text.strip())
                    d += x.states
                    j -= 1
            return best

        for i, c in enumerate(ins):
            if not c.real:
                continue
            short, why, prod = worst(i)
            if short > 0:
                log.append((short, why, prod, c.text.strip()))
                if fix:
                    ins.insert(i, Ins(f"    s_nop {short - 1}"))
                    changed = True
                    break
        if not fix:
            break
    if verbose:
        for l in log:
            print("hazard pad", l)
    return "\n".join(x.text for x in ins), log
```

```python
import sys
import struct
from asmlib import Asm, fix_hazards

NAME = "recurrent_scan__softmax_full_mha__moe_arch_mod__prompt"

WS_KV = 0
WS_OF = 4 << 20
WS_FLAG = 6 << 20
WS_CAND = (6 << 20) + 0x10000
WS_STAT = (6 << 20) + 0x20000
WS_P1 = (6 << 20) + 0x80000
WS_P2 = (6 << 20) + 0xC0000
WS_DBG = 8 << 20
WS_SIZE = 268435456
F1, F2, F3, F4, F5 = 0, 16, 32, 64, 72

L_WK, L_WV, L_RING = 0, 32768, 65536
L_WQ = L_RING + 3 * 16384
L_OWNKV = 144 * 1024 - 16384 - 32768 - 49152 - 49152
L_Q = 32768
L_GU = 112 * 1024
L_DN = 104 * 1024
L_CMB = 128 * 1024
L_OST = 0
L_SST = 32768
L_MISC = 152 * 1024
L_WR = L_MISC
L_ZERO = L_MISC + 1024
L_CTR = L_MISC + 2048
L_STAT = L_MISC + 2304
L_SFR = L_MISC + 3328
L_KEY = L_MISC + 5376
L_XS = L_MISC + 5440
L_Y = L_MISC + 6144
LDS_BYTES = 163840
assert L_OWNKV == 0

CQ = 0.25 * 1.4426950408889634
LOG2E = 1.4426950408889634


def f32(x):
    return "0x%08x" % struct.unpack("<I", struct.pack("<f", x))[0]


class Cfg:
    stamps = False
    L = 2
    rot = 1
    spin_max = 200000
    verbose = False
    force_slow = False
    prio = 1
    iters = 5


def gen(cfg):
    a = Asm()
    L = cfg.L
    sP, sJ, sWV, sT, sC0 = "s3", "s4", "s5", "s6", "s7"
    SX, SW, SWS, SAUX = "s[32:35]", "s[36:39]", "s[40:43]", "s[44:47]"
    sONE = "s48"

    def srd(base, ptr, size):
        a(f"""s_mov_b32 s{base}, s{ptr}
              s_mov_b32 s{base+1}, s{ptr+1}
              s_mov_b32 s{base+2}, {size}
              s_mov_b32 s{base+3}, 0x20000""")

    def stamp(i):
        if cfg.stamps:
            a(f"s_memtime s[78:79]\ns_waitcnt lgkmcnt(0)\ns_mov_b32 s{80+i}, s78")

    def dump_stamps():
        if cfg.stamps:
            a(f"""s_mul_i32 s78, s2, 12
                  s_add_u32 s78, s78, {sWV}
                  s_lshl_b32 s78, s78, 6
                  s_add_u32 s78, s78, {WS_DBG}
                  v_mov_b32 v0, 0""")
            for g in range(4):
                for i in range(4):
                    a(f"v_mov_b32 v{4+i}, s{80+4*g+i}")
                a(f"buffer_store_dwordx4 v[4:7], v0, {SWS}, s78 offen offset:{16*g}")
                a("s_nop 1")
            a("s_waitcnt vmcnt(0)")

    def signal(line_sgpr, vz, vone):
        a(f"""s_mov_b64 exec, 1
              buffer_atomic_add v{vone}, v{vz}, {SWS}, {line_sgpr} offen sc1
              s_mov_b64 exec, -1""")

    def poll(line_sgpr, target, tag, vz, vt, sleep=2, srd_=None):
        a(f"""s_mov_b32 s56, 0
              s_mov_b64 exec, 1
        L_poll_{tag}:
              buffer_load_dword v{vt}, v{vz}, {srd_ or SWS}, {line_sgpr} offen sc1
              s_waitcnt vmcnt(0)
              v_readfirstlane_b32 s30, v{vt}
              s_add_u32 s56, s56, 1
              s_cmp_ge_u32 s30, {target}
              s_cbranch_scc1 L_polld_{tag}
              s_sleep {sleep}
              s_cmp_lt_u32 s56, {cfg.spin_max}
              s_cbranch_scc1 L_poll_{tag}
        L_polld_{tag}:
              s_mov_b64 exec, -1""")

    def rowmax_u32(dst, src):
        a(f"v_max_u32_dpp v{dst}, v{src}, v{src} row_ror:8 row_mask:0xf bank_mask:0xf")
        for r in (4, 2, 1):
            a(f"v_max_u32_dpp v{dst}, v{dst}, v{dst} row_ror:{r} row_mask:0xf bank_mask:0xf")

    def wavemax_u32(sdst, src, tmp, rows):
        rowmax_u32(tmp, src)
        a(f"v_readlane_b32 {sdst}, v{tmp}, 0")
        for r in range(1, rows):
            a(f"v_readlane_b32 s30, v{tmp}, {16*r}\ns_max_u32 {sdst}, {sdst}, s30")

    def tr_addr(dst, lane, t1, t2, rowshift=3):
        a(f"""v_lshrrev_b32 v{t1}, 5, v{lane}
              v_bfe_u32 v{t2}, v{lane}, 2, 2
              v_lshl_add_u32 v{t1}, v{t1}, {rowshift}, v{t2}
              v_lshlrev_b32 v{t1}, 6, v{t1}
              v_bfe_u32 v{t2}, v{lane}, 4, 1
              v_lshl_add_u32 v{t1}, v{t2}, 5, v{t1}
              v_and_b32 v{t2}, 3, v{lane}
              v_lshl_add_u32 v{dst}, v{t2}, 3, v{t1}""")

    def read_w(dst, addr, off, second=256):
        a(f"""ds_read_b64_tr_b16 v[{dst}:{dst+1}], v{addr} offset:{off}
              ds_read_b64_tr_b16 v[{dst+2}:{dst+3}], v{addr} offset:{off + second}""")

    def mfma32(d, A, B, c=None):
        cs = "0" if c is None else f"v[{c}:{c+15}]"
        a(f"v_mfma_f32_32x32x16_bf16 v[{d}:{d+15}], v[{A}:{A+3}], v[{B}:{B+3}], {cs}")

    def mfma16(d, A, B, c=None):
        cs = "0" if c is None else f"v[{c}:{c+3}]"
        a(f"v_mfma_f32_16x16x32_bf16 v[{d}:{d+3}], v[{A}:{A+3}], v[{B}:{B+3}], {cs}")

    def rnd(dst, src):
        a(f"v_cvt_pk_bf16_f32 v{dst}, 0, {src}")

    def split3(dst, src, t):
        a(f"""v_and_b32 v{t}, 0xffff0000, v{src}
              v_sub_f32 v{t+1}, v{src}, v{t}
              v_and_b32 v{t+2}, 0xffff0000, v{t+1}
              v_sub_f32 v{t+1}, v{t+1}, v{t+2}
              v_lshrrev_b32 v{t}, 16, v{t}
              v_or_b32 v{dst}, v{t}, v{t+2}
              v_lshrrev_b32 v{dst+1}, 16, v{t+1}""")

    a(f""".amdgcn_target "amdgcn-amd-amdhsa--gfx950"
.text
.globl {NAME}_kernel
.p2align 8
.type {NAME}_kernel,@function
{NAME}_kernel:
    s_cmp_ge_u32 s2, 256
    s_cbranch_scc1 L_exit
    s_load_dwordx16 s[8:23], s[0:1], 0
    s_load_dwordx4 s[24:27], s[0:1], 64
    s_load_dwordx2 s[28:29], s[0:1], 80""")
    if cfg.stamps:
        for i in range(16):
            a(f"s_mov_b32 s{80+i}, 0")
        a("s_memtime s[78:79]")
    a(f"""v_lshrrev_b32 v1, 6, v0
    v_and_b32 v0, 63, v0                 ; lane
    s_lshr_b32 {sP}, s2, 4
    v_readfirstlane_b32 {sWV}, v1
    s_and_b32 {sJ}, s2, 7
    s_lshl_b32 {sJ}, {sJ}, 1
    s_bfe_u32 s30, s2, 0x10003
    s_or_b32 {sJ}, {sJ}, s30
    s_add_u32 {sC0}, {sP}, {sJ}
    s_and_b32 {sC0}, {sC0}, {7 if cfg.rot else 0}
    s_and_b32 {sT}, {sWV}, 3
    s_mov_b32 {sONE}, 0x3f803f80
    s_cmp_ge_u32 {sWV}, 4
    s_cbranch_scc1 L_compute""")

    hZ, hONE, hT = 17, 18, 19
    a(f"""v_lshrrev_b32 v1, 2, v0
    s_lshl_b32 s30, {sT}, 4
    v_add_u32 v1, s30, v1
    v_mul_u32_u24 v1, 3072, v1
    v_and_b32 v2, 3, v0
    v_lshl_add_u32 v1, v2, 4, v1
    s_lshl_b32 s30, {sP}, 6
    v_add_u32 v14, s30, v1
    v_lshrrev_b32 v1, 3, v0
    v_lshrrev_b32 v2, 4, v0
    v_and_b32 v3, 7, v0
    v_xor_b32 v4, v3, v2
    v_xor_b32 v5, 4, v4
    s_lshl_b32 s30, {sJ}, 17
    s_lshl_b32 s31, {sT}, 15
    s_add_u32 s30, s30, s31
    v_lshl_add_u32 v6, v1, 10, s30
    v_lshl_add_u32 v10, v4, 4, v6
    v_lshl_add_u32 v11, v5, 4, v6
    v_add_u32 v12, {2*7168}, v10
    v_add_u32 v13, {3*7168}, v11
    v_add_u32 v11, 7168, v11
    s_lshl_b32 s57, {sT}, 12
    s_lshl_b32 s49, {sT}, 10
    s_waitcnt lgkmcnt(0)""")
    if cfg.stamps:
        a("s_mov_b32 s80, s78")
    srd(36, 10, 1572864)
    srd(32, 8, 2097152)

    def kc(n, dst):
        a(f"s_add_u32 {dst}, {sC0}, {n}\ns_and_b32 {dst}, {dst}, 7")

    def issue_w(n):
        kc(n, "s50")
        a(f"""s_mul_i32 s51, s50, {64*3072}
              s_add_u32 m0, s49, {L_WK + n*4096}
              s_add_u32 s52, s51, 1024
              buffer_load_dwordx4 v14, {SW}, s52 offen lds
              s_add_u32 m0, s49, {L_WV + n*4096}
              s_add_u32 s53, s51, 2048
              buffer_load_dwordx4 v14, {SW}, s53 offen lds""")

    def issue(item):
        if item < 8:
            n = item
            kc(n, "s50")
            a(f"""s_add_u32 m0, s57, {L_RING + (n % 5)*16384}
                  s_lshl_b32 s50, s50, 7""")
            for q in range(4):
                a(f"buffer_load_dwordx4 v{10+q}, {SX}, s50 offen offset:{1024*q} lds")
            if n < 7:
                issue_w(n + 1)
        else:
            for n in range(4 * (item - 8), 4 * (item - 8) + 4):
                kc(n, "s50")
                a(f"""s_add_u32 m0, s49, {L_WQ + n*4096}
                      s_mul_i32 s51, s50, {64*3072}
                      buffer_load_dwordx4 v14, {SW}, s51 offen lds""")

    cnt = lambda item: 6 if item < 7 else 4
    issue_w(0)
    for it in range(L):
        issue(it)
    srd(40, 28, WS_SIZE)
    a(f"""v_mov_b32 v{hZ}, 0
    v_mov_b32 v{hONE}, 1
    s_waitcnt vmcnt({sum(cnt(i) for i in range(L))})
    s_barrier""")
    for n in range(8):
        pend = sum(cnt(i) for i in range(n + 1, min(n + L, 10)))
        a(f"s_waitcnt vmcnt({pend})")
        a(f"s_barrier                             ; B{n}")
        if n in (0, 3, 7):
            stamp({0: 1, 3: 2, 7: 3}[n])
        if n + L < 10:
            issue(n + L)
    hXP, hXN, hG = 136, 144, 152
    hOA = 20
    a(f"""s_lshr_b32 s58, {sP}, 2
    s_and_b32 s59, {sP}, 3
    s_lshl_b32 s60, {sJ}, 2
    s_add_u32 s60, s60, s58
    v_lshrrev_b32 v1, 4, v0
    s_lshl_b32 s30, {sT}, 3
    v_add_u32 v22, s30, v1
    s_lshl_b32 s30, s60, 15
    s_lshl_b32 s31, s59, 8
    s_add_u32 s30, s30, s31
    v_lshl_add_u32 v1, v22, 10, s30
    v_and_b32 v2, 15, v0
    v_lshl_add_u32 v{hOA}, v2, 4, v1
    v_add_u32 v{hOA+1}, 4096, v{hOA}
    buffer_load_dwordx4 v[{hXP}:{hXP+3}], v{hOA}, {SX}, 0 offen
    buffer_load_dwordx4 v[{hXP+4}:{hXP+7}], v{hOA+1}, {SX}, 0 offen
    s_lshl_b32 s30, s58, 5
    v_add_lshl_u32 v1, v22, s30, 3
    v_add_u32 v23, {L_STAT}, v1
    s_waitcnt vmcnt(0)
    s_barrier""")
    stamp(4)
    a(f"""ds_read_b64 v[24:25], v23
    ds_read_b64 v[26:27], v23 offset:32
    s_waitcnt lgkmcnt(0)
    v_rcp_f32 v25, v25
    v_rcp_f32 v27, v27""")
    for i in range(8):
        m, rs = (24, 25) if i < 4 else (26, 27)
        a(f"""v_lshlrev_b32 v28, 16, v{hXP+i}
              v_and_b32 v29, 0xffff0000, v{hXP+i}
              v_sub_f32 v28, v28, v{m}
              v_sub_f32 v29, v29, v{m}
              v_cvt_pk_bf16_f32 v28, 0, v28
              v_cvt_pk_bf16_f32 v29, 0, v29
              v_mul_f32 v28, v28, v{rs}
              v_mul_f32 v29, v29, v{rs}
              v_cvt_pk_bf16_f32 v{hXN+i}, v28, v29""")

    def gate():
        for i in range(8):
            g0, g1 = hG + 2 * i, hG + 2 * i + 1
            a(f"""v_lshlrev_b32 v28, 16, v{hXN+i}
                  v_and_b32 v29, 0xffff0000, v{hXN+i}
                  v_mul_f32 v{g0}, {f32(-LOG2E)}, v28
                  v_mul_f32 v{g1}, {f32(-LOG2E)}, v29
                  v_exp_f32 v{g0}, v{g0}
                  v_exp_f32 v{g1}, v{g1}
                  v_add_f32 v{g0}, 1.0, v{g0}
                  v_add_f32 v{g1}, 1.0, v{g1}
                  v_rcp_f32 v{g0}, v{g0}
                  v_rcp_f32 v{g1}, v{g1}
                  v_mul_f32 v{g0}, v{g0}, v28
                  v_mul_f32 v{g1}, v{g1}, v29
                  v_cvt_pk_bf16_f32 v{g0}, 0, v{g0}
                  v_cvt_pk_bf16_f32 v{g1}, 0, v{g1}""")
    gate()
    tr_addr(30, 0, 1, 2)
    a(f"""v_lshrrev_b32 v31, 2, v0
    v_and_b32 v1, 3, v0
    v_lshlrev_b32 v32, 4, v1             ; piece
    v_lshl_add_u32 v33, v31, 10, v32
    s_lshl_b32 s30, s59, 8
    v_add_u32 v33, s30, v33
    s_lshr_b32 s61, s2, 3
    s_and_b32 s62, s2, 7""")
    srd(36, 12, 524288)
    a("s_barrier")
    stamp(5)
    a("s_barrier")
    a(f"""s_setprio 3
    s_cmp_eq_u32 {sT}, 1
    s_cbranch_scc1 L_h1
    s_cmp_eq_u32 {sT}, 2
    s_cbranch_scc1 L_h2
    s_cmp_eq_u32 {sT}, 3
    s_cbranch_scc1 L_h3""")

    def wo_dma_ct3(h0, h1, tag):
        a(f"""s_mov_b32 s50, {h0*16384 + 192}
              s_mov_b32 s51, {(96 + h0)*1024}
        L_wo3_{tag}:
              s_mov_b32 m0, s51
              s_add_u32 s51, s51, 1024
              buffer_load_dwordx4 v33, {SW}, s50 offen lds
              s_add_u32 s50, s50, 16384
              s_cmp_lt_u32 s51, {(96 + h1)*1024}
              s_cbranch_scc1 L_wo3_{tag}""")

    a(f"""s_mov_b32 s50, 0
    s_mov_b32 s51, 0
L_wo:
    s_mov_b32 m0, s51
    s_add_u32 s52, s50, 64
    buffer_load_dwordx4 v33, {SW}, s50 offen lds
    s_add_u32 m0, s51, 32768
    s_add_u32 s53, s50, 128
    buffer_load_dwordx4 v33, {SW}, s52 offen lds
    s_add_u32 m0, s51, 65536
    s_add_u32 s51, s51, 1024
    buffer_load_dwordx4 v33, {SW}, s53 offen lds
    s_add_u32 s50, s50, 16384
    s_waitcnt vmcnt(9)
    s_cmp_lt_u32 s51, 32768
    s_cbranch_scc1 L_wo""")
    wo_dma_ct3(0, 8, "h0")
    stamp(6)
    a("s_branch L_h_tail")

    a(f"""L_h1:
    v_lshlrev_b32 v1, 4, v0
    v_add_u32 v2, {L_STAT}, v1
    ds_read_b128 v[4:7], v2
    v_lshlrev_b32 v2, 2, v0
    v_add_u32 v3, {L_KEY}, v2
    ds_read_b32 v8, v3
    s_lshl_b32 s50, {sP}, 13
    s_add_u32 s63, s50, {WS_STAT}
    s_lshl_b32 s50, {sJ}, 9
    s_add_u32 s50, s50, s63
    s_lshl_b32 s51, {sP}, 9
    s_add_u32 s64, s51, {WS_CAND}
    s_lshl_b32 s51, {sJ}, 5
    s_add_u32 s51, s51, s64
    v_lshlrev_b32 v3, 3, v0
    s_waitcnt lgkmcnt(0)
    v_lshrrev_b32 v4, 16, v4
    v_lshrrev_b32 v6, 16, v6
    v_or_b32 v4, v4, v5
    v_or_b32 v5, v6, v7
    buffer_store_dwordx2 v[4:5], v3, {SWS}, s50 offen sc1
    s_mov_b64 exec, 0xff
    buffer_store_dword v8, v2, {SWS}, s51 offen sc1
    s_mov_b64 exec, -1
    s_lshl_b32 s65, {sP}, 7
    s_add_u32 s65, s65, {WS_FLAG + F2*128}
    s_waitcnt vmcnt(0)""")
    signal("s65", hZ, hONE)
    WFR = 40
    a(f"""s_cmpk_lt_u32 s2, 0xe0
    s_cbranch_scc0 L_h1_nogu
    v_mul_u32_u24 v1, 3584, v31
    v_add_u32 v34, v1, v32
    s_mul_i32 s50, s62, {64*3584}
    s_lshl_b32 s51, s61, 7
    s_add_u32 s50, s50, s51""")
    for mtx in range(2):
        srd(44, 18 + 2 * mtx, 1835008)
        for s in range(4):
            for ct in range(2):
                a(f"""s_mov_b32 m0, {L_GU + ((2*mtx + ct)*4 + s)*1024}
                      s_add_u32 s51, s50, {s*16*3584 + ct*64}
                      buffer_load_dwordx4 v34, {SAUX}, s51 offen lds""")
    a(f"""v_add_u32 v35, {L_GU}, v30
    s_waitcnt vmcnt(0)""")
    for b in range(16):
        read_w(WFR + 4 * b, 35, b * 1024)
        if b in (6, 13):
            a("s_waitcnt lgkmcnt(0)")
    a("""s_waitcnt lgkmcnt(0)
L_h1_nogu:""")
    wo_dma_ct3(16, 32, "h1")
    poll("s65", 16, "f2", hZ, hT, sleep=8)
    stamp(6)
    a(f"""buffer_load_dwordx2 v[4:5], v3, {SWS}, s64 offen sc1
    s_waitcnt vmcnt(0)""")
    wavemax_u32("s66", 4, 6, 4)
    a(f"""v_cmp_eq_u32 vcc, s66, v4
    v_cndmask_b32 v4, v4, v5, vcc""")
    wavemax_u32("s67", 4, 6, 4)
    a(f"""v_mov_b32 v4, s66
    v_mov_b32 v5, s67
    v_mov_b32 v6, {L_CTR}
    ds_write_b64 v6, v[4:5] offset:8      ; mailbox
    s_cmpk_lt_u32 s2, 0xe0
    s_cbranch_scc0 L_h_tail
    v_cmp_gt_u32 vcc, 32, v0
    v_cndmask_b32 v4, v5, v4, vcc
    v_and_b32 v4, 0x7ff, v4
    v_sub_u32 v4, 0x7ff, v4
    v_lshlrev_b32 v5, 2, v4
    v_and_b32 v6, 31, v0
    v_lshlrev_b32 v6, 2, v6
    v_lshl_add_u32 v6, v4, 10, v6
    s_lshl_b32 s50, s62, 7
    buffer_load_dword v7, v5, {SWS}, s63 offen sc1
    buffer_load_dword v8, v6, {SX}, s50 offen
    v_add_u32 v2, {L_XS}, v2
    v_and_b32 v1, 1, v0
    v_lshrrev_b32 v6, 5, v0
    v_lshlrev_b32 v6, 4, v6
    v_lshl_add_u32 v6, v1, 7, v6
    v_add_u32 v6, {L_XS}, v6
    s_waitcnt vmcnt(0)
    v_and_b32 v9, 0xffff0000, v7
    v_rcp_f32 v9, v9
    v_lshlrev_b32 v7, 16, v7
    v_lshlrev_b32 v28, 16, v8
    v_and_b32 v29, 0xffff0000, v8
    v_sub_f32 v28, v28, v7
    v_sub_f32 v29, v29, v7
    v_cvt_pk_bf16_f32 v28, 0, v28
    v_cvt_pk_bf16_f32 v29, 0, v29
    v_mul_f32 v28, v28, v9
    v_mul_f32 v29, v29, v9
    v_cvt_pk_bf16_f32 v28, v28, v29
    ds_write_b32 v2, v28
    s_waitcnt lgkmcnt(0)""")
    stamp(7)
    XSF, AC0, AC1 = 120, 104, 24
    for s in range(4):
        a(f"ds_read_b128 v[{XSF+4*s}:{XSF+4*s+3}], v6 offset:{32*s}")
    a("s_waitcnt lgkmcnt(0)")
    for mtx in range(2):
        for s in range(4):
            mfma32(AC0, XSF + 4 * s, WFR + 4 * ((2 * mtx) * 4 + s), None if s == 0 else AC0)
            mfma32(AC1, XSF + 4 * s, WFR + 4 * ((2 * mtx + 1) * 4 + s), None if s == 0 else AC1)
        a(f"""v_cndmask_b32 v{8+2*mtx}, v{AC1}, v{AC0}, vcc
              v_cndmask_b32 v{9+2*mtx}, v{AC1+1}, v{AC0+1}, vcc""")
    a(f"""s_lshl_b32 s50, s2, 10
    s_add_u32 s50, s50, {WS_P1}
    v_lshlrev_b32 v1, 4, v0
    buffer_store_dwordx4 v[8:11], v1, {SWS}, s50 offen sc1
    s_lshl_b32 s65, s61, 7
    s_add_u32 s65, s65, {WS_FLAG + F3*128}
    s_waitcnt vmcnt(0)""")
    signal("s65", hZ, hONE)
    stamp(8)
    a("s_branch L_h_tail")

    a(f"""L_h2:
    s_cmpk_lt_u32 s2, 0xe0
    s_cbranch_scc0 L_h2_nodn
    v_lshl_add_u32 v34, v31, 10, v32
    s_lshl_b32 s50, s61, 16
    s_lshl_b32 s51, s62, 7
    s_add_u32 s50, s50, s51""")
    srd(44, 22, 1835008)
    for s in range(4):
        for ct in range(2):
            a(f"""s_mov_b32 m0, {L_DN + (ct*4 + s)*1024}
                  s_add_u32 s51, s50, {s*16384 + ct*64}
                  buffer_load_dwordx4 v34, {SAUX}, s51 offen lds""")
    a(f"""v_add_u32 v35, {L_DN}, v30
    s_waitcnt vmcnt(0)""")
    for b in range(8):
        read_w(WFR + 4 * b, 35, b * 1024)
        if b == 6:
            a("s_waitcnt lgkmcnt(0)")
    a("""s_waitcnt lgkmcnt(0)
L_h2_nodn:""")
    wo_dma_ct3(8, 16, "h2")
    a(f"""s_cmpk_lt_u32 s2, 0xe0
    s_cbranch_scc0 L_h_tail
    s_lshl_b32 s65, s61, 7
    s_add_u32 s65, s65, {WS_FLAG + F3*128}""")
    poll("s65", 8, "f3", hZ, hT, sleep=16)
    stamp(6)
    a(f"""s_lshl_b32 s50, s61, 13
    s_add_u32 s50, s50, {WS_P1}
    s_add_u32 s51, s50, 4096
    v_lshlrev_b32 v1, 4, v0""")
    for k in range(8):
        a(f"buffer_load_dwordx4 v[{72+4*k}:{75+4*k}], v1, {SWS}, {'s50' if k < 4 else 's51'} offen offset:{1024*(k & 3)} sc1")
    a(f"""v_lshlrev_b32 v2, 1, v0
    v_add_u32 v2, {L_XS + 256}, v2
    v_and_b32 v1, 1, v0
    v_lshrrev_b32 v6, 5, v0
    v_lshlrev_b32 v6, 4, v6
    v_lshl_add_u32 v6, v1, 7, v6
    v_add_u32 v6, {L_XS + 256}, v6
    v_cmp_gt_u32 vcc, 32, v0
    s_waitcnt vmcnt(0)""")
    for k in range(1, 8):
        a(f"""v_pk_add_f32 v[72:73], v[72:73], v[{72+4*k}:{73+4*k}]
              v_pk_add_f32 v[74:75], v[74:75], v[{74+4*k}:{75+4*k}]""")
    for i in range(4):
        rnd(72 + i, f"v{72+i}")
    a(f"""v_mul_f32 v76, {f32(-LOG2E)}, v72
    v_mul_f32 v77, {f32(-LOG2E)}, v73
    v_exp_f32 v76, v76
    v_exp_f32 v77, v77
    v_add_f32 v76, 1.0, v76
    v_add_f32 v77, 1.0, v77
    v_rcp_f32 v76, v76
    v_rcp_f32 v77, v77
    v_mul_f32 v76, v76, v72
    v_mul_f32 v77, v77, v73
    v_cvt_pk_bf16_f32 v76, 0, v76
    v_cvt_pk_bf16_f32 v77, 0, v77
    v_mul_f32 v76, v76, v74
    v_mul_f32 v77, v77, v75
    v_cvt_pk_bf16_f32 v76, v76, v77
    ds_write_b16 v2, v76
    ds_write_b16_d16_hi v2, v76 offset:128
    s_waitcnt lgkmcnt(0)""")
    for s in range(4):
        a(f"ds_read_b128 v[{XSF+4*s}:{XSF+4*s+3}], v6 offset:{32*s}")
    a("s_waitcnt lgkmcnt(0)")
    for s in range(4):
        mfma32(AC0, XSF + 4 * s, WFR + 4 * s, None if s == 0 else AC0)
        mfma32(AC1, XSF + 4 * s, WFR + 4 * (4 + s), None if s == 0 else AC1)
    a(f"""s_lshl_b32 s50, s61, 11
    s_lshl_b32 s51, s62, 8
    s_add_u32 s50, s50, s51
    s_add_u32 s50, s50, {WS_P2}
    s_add_u32 s51, s50, {28*2048}
    s_lshr_b32 s65, s62, 1
    s_lshl_b32 s65, s65, 7
    s_add_u32 s65, s65, {WS_FLAG + F4*128}
    v_lshlrev_b32 v1, 2, v0
    v_cndmask_b32 v8, v{AC1}, v{AC0}, vcc
    v_cndmask_b32 v9, v{AC1+1}, v{AC0+1}, vcc
    buffer_store_dword v8, v1, {SWS}, s50 offen sc1
    buffer_store_dword v9, v1, {SWS}, s51 offen sc1
    s_waitcnt vmcnt(0)""")
    signal("s65", hZ, hONE)
    stamp(8)
    a("s_branch L_h_tail")

    def key_tok(dst, key):
        a(f"s_and_b32 {dst}, {key}, 0x7ff\ns_sub_u32 {dst}, 0x7ff, {dst}")

    a(f"""L_h3:
    v_mov_b32 v6, {L_CTR}
    s_mov_b32 s56, 0
L_h3_mb:
    s_sleep 16
    ds_read_b64 v[4:5], v6 offset:8
    s_add_u32 s56, s56, 1
    s_waitcnt lgkmcnt(0)
    v_readfirstlane_b32 s66, v4
    v_readfirstlane_b32 s67, v5
    s_cmp_ge_u32 s56, {cfg.spin_max}
    s_cbranch_scc1 L_h_tail
    s_cmp_eq_u32 s66, 0
    s_cbranch_scc1 L_h3_mb
    s_lshl_b32 s65, s59, 7
    s_add_u32 s65, s65, {WS_FLAG + F4*128}
    s_mov_b32 s68, 0
    v_lshlrev_b32 v3, 3, v0
L_h3_sel:""")
    key_tok("s50", "s66")
    a(f"""s_lshr_b32 s50, s50, 5
    s_cmp_lg_u32 s50, s60
    s_cbranch_scc1 L_h3_next""")
    poll("s65", 56, "f4", hZ, hT, sleep=16)
    stamp(6)
    a(f"""s_mul_i32 s50, s68, {28*2048}
    s_lshl_b32 s51, s59, 9
    s_add_u32 s50, s50, s51
    s_add_u32 s50, s50, {WS_P2}""")
    for k in range(28):
        a(f"buffer_load_dwordx2 v[{40+2*k}:{41+2*k}], v3, {SWS}, s50 offen offset:{2048*(k & 1)} sc1")
        if k & 1:
            a("s_add_u32 s50, s50, 4096")
    a(f"""s_and_b32 s51, s66, 0xffff0000
    s_xor_b32 s52, s51, 0x80000000
    s_xor_b32 s53, s51, 0xffff0000
    s_bitcmp1_b32 s51, 31
    s_cselect_b32 s51, s52, s53
    v_mov_b32 v4, {f32(-LOG2E)}
    v_mul_f32 v4, s51, v4
    v_exp_f32 v4, v4
    s_lshl_b32 s51, s68, 9
    s_add_u32 s51, s51, {L_Y}
    v_add_u32 v7, s51, v3
    v_add_f32 v4, 1.0, v4
    v_rcp_f32 v4, v4
    s_waitcnt vmcnt(0)
    v_cvt_pk_bf16_f32 v4, 0, v4""")
    for k in range(1, 28):
        a(f"v_pk_add_f32 v[40:41], v[40:41], v[{40+2*k}:{41+2*k}]")
    a(f"""v_cvt_pk_bf16_f32 v40, 0, v40
    v_cvt_pk_bf16_f32 v41, 0, v41
    v_mul_f32 v40, v40, v4
    v_mul_f32 v41, v41, v4
    v_cvt_pk_bf16_f32 v40, 0, v40
    v_cvt_pk_bf16_f32 v41, 0, v41
    ds_write_b64 v7, v[40:41]
L_h3_next:
    s_mov_b32 s66, s67
    s_add_u32 s68, s68, 1
    s_cmp_lt_u32 s68, 2
    s_cbranch_scc1 L_h3_sel""")
    stamp(8)

    a(f"""L_h_tail:
    s_waitcnt vmcnt(0) lgkmcnt(0)
    s_barrier                             ; T1""")
    stamp(9)
    a(f"""v_mov_b32 v6, {L_CTR}
    ds_read_b64 v[4:5], v6 offset:8
    v_and_b32 v1, 15, v0
    v_lshlrev_b32 v7, 5, v1
    v_add_u32 v7, {L_Y}, v7
    s_mov_b32 s68, 0
    s_mov_b32 s69, 0
    s_waitcnt lgkmcnt(0)
    v_readfirstlane_b32 s66, v4
    v_readfirstlane_b32 s67, v5
L_ht_sel:""")
    key_tok("s50", "s66")
    a(f"""s_lshr_b32 s51, s50, 5
    s_cmp_lg_u32 s51, s60
    s_cbranch_scc1 L_ht_next
    s_mov_b32 s69, 1
    s_and_b32 s50, s50, 31
    ds_read_b128 v[8:11], v7
    ds_read_b128 v[12:15], v7 offset:16
    s_sub_u32 s51, s50, 4
    v_cmp_eq_u32 s[52:53], s50, v22
    v_cmp_eq_u32 s[54:55], s51, v22
    s_waitcnt lgkmcnt(0)""")
    for q in range(2):
        for i in range(4):
            r = hXN + 4 * q + i
            a(f"""v_lshlrev_b32 v28, 16, v{r}
                  v_and_b32 v29, 0xffff0000, v{r}
                  v_add_f32 v28, v28, v{8+2*i}
                  v_add_f32 v29, v29, v{9+2*i}
                  v_cvt_pk_bf16_f32 v28, v28, v29
                  v_cndmask_b32 v{r}, v{r}, v28, s[{52+2*q}:{53+2*q}]""")
    a(f"""L_ht_next:
    v_add_u32 v7, 512, v7
    s_mov_b32 s66, s67
    s_add_u32 s68, s68, 1
    s_cmp_lt_u32 s68, 2
    s_cbranch_scc1 L_ht_sel
    s_cmp_eq_u32 s69, 0
    s_cbranch_scc1 L_ht_nopatch""")
    gate()
    a("L_ht_nopatch:")
    XU = 40
    for i in range(8):
        a(f"v_lshlrev_b32 v{XU+2*i}, 16, v{hXP+i}\nv_and_b32 v{XU+2*i+1}, 0xffff0000, v{hXP+i}")
    srd(44, 24, 2097152)
    a(f"""v_and_b32 v2, 7, v22
    v_xor_b32 v2, v1, v2
    v_lshlrev_b32 v3, 8, v22
    v_lshl_add_u32 v4, v2, 4, v3
    v_xor_b32 v5, 64, v4                  ; q = 1: row + 4
    s_barrier                             ; T2
    s_barrier                             ; T3
    s_barrier                             ; T4
    s_barrier                             ; T5
    ds_read_b128 v[8:11], v4 offset:{L_SST}
    ds_read_b128 v[12:15], v5 offset:{L_SST + 1024}""")
    for q in range(2):
        a(f"s_waitcnt lgkmcnt({1-q})")
        for i in range(4):
            e = 8 * q + 2 * i
            a(f"""v_lshlrev_b32 v28, 16, v{8+4*q+i}
                  v_and_b32 v29, 0xffff0000, v{8+4*q+i}
                  v_fma_f32 v28, v28, v{hG+e}, v{XU+e}
                  v_fma_f32 v29, v29, v{hG+e+1}, v{XU+e+1}
                  v_cvt_pk_bf16_f32 v{8+4*q+i}, v28, v29""")
        a(f"buffer_store_dwordx4 v[{8+4*q}:{11+4*q}], v{hOA+q}, {SAUX}, 0 offen")
    stamp(14)
    if cfg.stamps:
        a("s_waitcnt vmcnt(0)")
    stamp(15)
    dump_stamps()
    a("s_endpgm")

    vXA, vWA = 144, 148
    vM, vRS, vDEN = 149, 150, 151
    vLANE, vL16 = 152, 153
    vT0 = 154
    CS = 160
    MF = 164
    t = vT0
    a(f"""L_compute:
    v_mov_b32 v{vLANE}, v0
    v_lshlrev_b32 v{vL16}, 4, v0
    v_and_b32 v1, 31, v0
    v_lshrrev_b32 v2, 5, v0              ; half
    v_bfe_u32 v3, v0, 1, 3
    v_xor_b32 v3, v3, v2
    s_lshl_b32 s30, {sT}, 12
    s_add_u32 s30, s30, {L_RING}
    v_lshl_add_u32 v4, v1, 7, s30""")
    for s in range(4):
        a(f"v_xor_b32 v5, {2*s}, v3\nv_lshl_add_u32 v{vXA+s}, v5, 4, v4")
    tr_addr(vWA, 0, 3, 4)
    a(f"""v_lshrrev_b32 v3, 2, v0
    v_xor_b32 v3, v3, v0
    v_and_b32 v3, 4, v3
    v_cmp_eq_u32 vcc, 0, v3
    v_mov_b32 v4, {sONE}""")
    for i in range(4):
        a(f"v_cndmask_b32 v{CS+i}, 0, v4, vcc")
    a("s_waitcnt lgkmcnt(0)")
    if cfg.stamps:
        a("s_mov_b32 s80, s78")
    srd(40, 28, WS_SIZE)
    a(f"""s_cmp_ge_u32 {sWV}, 8
    s_cbranch_scc1 L_bwave""")

    X, WK, WV, AK, AV, ASX, SQ0, SQ1, RB = 0, 16, 32, 48, 64, 80, 84, 88, 96
    for r in list(range(X + 12, X + 16)) + list(range(WK + 12, WK + 16)) + list(range(WV + 12, WV + 16)) + list(range(AK, SQ1 + 4)):
        a(f"v_mov_b32 v{r}, 0")
    srd(44, 26, 256)
    a(f"""v_mov_b32 v{t}, 0
    v_mov_b32 v{t+1}, 1
    s_lshl_b32 s30, s2, 2
    s_add_u32 s30, s30, {sT}
    s_cmp_lg_u32 s30, 1
    s_cbranch_scc1 L_a_noclear
    v_lshlrev_b32 v{t+2}, 7, v{vLANE}
    s_mov_b32 s30, {WS_FLAG}
    s_mov_b32 s31, {WS_FLAG + 8192}
    buffer_store_dword v{t}, v{t+2}, {SWS}, s30 offen sc1
    buffer_store_dword v{t}, v{t+2}, {SWS}, s31 offen sc1
    s_waitcnt vmcnt(0)
    s_mov_b64 exec, 1
    buffer_store_dword v{t+1}, v{t}, {SAUX}, 0 offen sc1
    s_mov_b64 exec, -1
L_a_noclear:
    s_barrier                             ; Ba""")

    def rdw(s, nxt):
        read_w(WK + 4 * s, vWA, L_WK + s * 1024 + (4096 if nxt else 0))
        read_w(WV + 4 * s, vWA, L_WV + s * 1024 + (4096 if nxt else 0))

    def rdx(s):
        a(f"ds_read_b128 v[{X+4*s}:{X+4*s+3}], v{vXA+s}")

    def sq(s, half):
        d = SQ1 if half else SQ0
        r = X + 4 * s + 2 * half
        a(f"v_mfma_f32_4x4x4_16b_bf16 v[{d}:{d+3}], v[{r}:{r+1}], v[{r}:{r+1}], v[{d}:{d+3}]")

    def M(s):
        mfma32(AK, WK + 4 * s, X + 4 * s, AK)
        sq(s, 0)
        mfma32(AV, X + 4 * s, WV + 4 * s, AV)
        sq(s, 1)
        mfma16(ASX, CS, X + 4 * s, ASX)

    for s in range(3):
        rdw(s, False)
    a("""s_mov_b32 s50, 0
    s_mov_b32 s52, 16384
    s_waitcnt lgkmcnt(0)
L_a_loop:
    s_barrier""")
    for s in range(3):
        rdx(s)
    M(3)
    a("s_waitcnt lgkmcnt(3)")
    rdx(3)
    rdw(3, False)
    a("s_waitcnt lgkmcnt(7)")
    M(0)
    rdw(0, True)
    a("s_waitcnt lgkmcnt(10)")
    M(1)
    rdw(1, True)
    a("s_waitcnt lgkmcnt(8)")
    M(2)
    rdw(2, True)
    a(f"""s_add_u32 s50, s50, 1
    s_cmp_eq_u32 s50, 5
    s_cselect_b32 s51, {(-65536) & 0xffffffff}, s52
    v_add_u32 v{vWA}, 4096, v{vWA}""")
    for s in range(4):
        a(f"v_add_u32 v{vXA+s}, s51, v{vXA+s}")
    a("""s_cmp_lt_u32 s50, 7
    s_cbranch_scc1 L_a_loop
    s_barrier                             ; B7""")
    stamp(3)
    SFK, SFV = 112, 116
    for s in range(3):
        rdx(s)
    M(3)
    a("s_waitcnt lgkmcnt(3)")
    rdx(3)
    rdw(3, False)
    a(f"""v_add_u32 v{t+2}, {L_SFR}, v{vL16}
    ds_read_b128 v[{SFK}:{SFK+3}], v{t+2}
    ds_read_b128 v[{SFV}:{SFV+3}], v{t+2} offset:1024""")
    for s in range(4):
        a(f"s_waitcnt lgkmcnt({9 - s})")
        sq(s, 0)
        mfma16(ASX, CS, X + 4 * s, ASX)
        sq(s, 1)
    a("""s_mov_b32 s52, 0xaaaaaaaa
    s_mov_b32 s53, 0xaaaaaaaa
    s_mov_b32 s54, 0xcccccccc
    s_mov_b32 s55, 0xcccccccc""")
    st = [f"v_add_f32 v{SQ0+i}, v{SQ0+i}, v{SQ1+i}" for i in range(4)]
    st += [f"v_cndmask_b32 v{SQ0}, v{SQ0}, v{SQ0+1}, s[52:53]",
           f"v_cndmask_b32 v{SQ0+2}, v{SQ0+2}, v{SQ0+3}, s[52:53]",
           f"v_mul_f32 v{t+2}, {f32(1/512)}, v{ASX}",
           f"v_cndmask_b32 v{SQ0}, v{SQ0}, v{SQ0+2}, s[54:55]",
           f"v_mov_b32 v{t+3}, v{SQ0}",
           f"v_cvt_pk_bf16_f32 v{vM}, 0, v{t+2}",
           f"v_cvt_pk_bf16_f32 v{MF}, -v{t+2}, -v{t+2}",
           f"v_permlane32_swap_b32 v{t+3}, v{SQ0}",
           f"v_add_f32 v{t+3}, v{t+3}, v{SQ0}",
           f"v_mul_f32 v{t+3}, {f32(1/512)}, v{t+3}",
           f"v_fma_f32 v{t+3}, -v{t+2}, v{t+2}, v{t+3}",
           f"v_max_f32 v{t+3}, 0, v{t+3}",
           f"v_cvt_pk_bf16_f32 v{t+3}, 0, v{t+3}",
           f"v_add_f32 v{t+3}, {f32(1e-5)}, v{t+3}",
           f"v_cvt_pk_bf16_f32 v{t+3}, 0, v{t+3}",
           f"v_sqrt_f32 v{t+3}, v{t+3}",
           f"v_mov_b32 v{MF+1}, v{MF}",
           f"v_cvt_pk_bf16_f32 v{vDEN}, 0, v{t+3}",
           f"v_rcp_f32 v{vRS}, v{vDEN}",
           f"v_mov_b32 v{MF+2}, v{MF}",
           f"v_mov_b32 v{MF+3}, v{MF}"]
    RF, OF_ = 120, 124
    st += [f"v_and_b32 v{t+2}, 0xffff0000, v{vRS}",
           f"v_sub_f32 v{t+3}, v{vRS}, v{t+2}",
           f"v_and_b32 v{t+4}, 0xffff0000, v{t+3}",
           f"v_sub_f32 v{t+3}, v{t+3}, v{t+4}",
           f"v_lshrrev_b32 v{t+2}, 16, v{t+2}",
           f"v_or_b32 v{RF}, v{t+2}, v{t+4}",
           f"v_lshrrev_b32 v{RF+1}, 16, v{t+3}"]
    pre = [f"v_cmp_gt_u32 vcc, 32, v{vLANE}", f"v_mov_b32 v{OF_}, {sONE}", f"v_mov_b32 v{RF+2}, 0", f"v_mov_b32 v{RF+3}, 0",
           f"v_cndmask_b32 v{OF_}, 0, v{OF_}, vcc", f"v_mov_b32 v{OF_+2}, 0", f"v_mov_b32 v{OF_+3}, 0", f"v_mov_b32 v{OF_+1}, v{OF_}"]
    st = pre + st
    big = []
    for s in range(4):
        big.append((AK, WK + 4 * s, X + 4 * s))
    for s in range(4):
        big.append((AV, X + 4 * s, WV + 4 * s))
    a("s_waitcnt lgkmcnt(0)")
    per = 5
    k = 0
    for n, (d, A_, B_) in enumerate(big):
        mfma32(d, A_, B_, d)
        for ins in st[k:k + per]:
            a(ins)
        k += per
    for ins in st[k:]:
        a(ins)
    mfma32(AK, SFK, MF, AK)
    mfma32(AV, MF, SFV, AV)
    mfma32(RB, RF, OF_)
    a(f"""s_lshl_b32 s50, {sP}, 18
    s_lshl_b32 s30, {sJ}, 13
    s_add_u32 s50, s50, s30
    s_lshl_b32 s30, {sT}, 11
    s_add_u32 s50, s50, s30
    s_add_u32 s51, s50, 0x20000
    v_and_b32 v{t+2}, 0x33, v{vLANE}
    v_bfe_u32 v{t+3}, v{vLANE}, 2, 1
    v_lshl_add_u32 v{t+2}, v{t+3}, 3, v{t+2}
    v_bfe_u32 v{t+3}, v{vLANE}, 3, 1
    v_lshl_add_u32 v{t+2}, v{t+3}, 2, v{t+2}
    v_lshlrev_b32 v{t+2}, 4, v{t+2}""")
    for i in range(16):
        a(f"v_mul_f32 v{AK+i}, v{vRS}, v{AK+i}")
    for i in range(8):
        a(f"v_cvt_pk_bf16_f32 v{X+i}, v{AK+2*i}, v{AK+2*i+1}")
    a(f"""buffer_store_dwordx4 v[{X}:{X+3}], v{t+2}, {SWS}, s50 offen sc1
    buffer_store_dwordx4 v[{X+4}:{X+7}], v{t+2}, {SWS}, s51 offen sc1
    v_and_b32 v{t+3}, 0x2f, v{vLANE}
    v_lshlrev_b32 v{t+3}, 4, v{t+3}
    v_bfe_u32 v{t+4}, v{vLANE}, 4, 1
    v_lshl_add_u32 v{t+5}, v{t+4}, 13, v{t+3}
    v_lshl_add_u32 v{t+3}, v{t+4}, 17, v{t+3}""")
    for i in range(16):
        a(f"v_mul_f32 v{AV+i}, v{RB+i}, v{AV+i}")
    for i in range(8):
        a(f"v_cvt_pk_bf16_f32 v{X+8+i}, v{AV+2*i}, v{AV+2*i+1}")
    a(f"""buffer_store_dwordx4 v[{X+8}:{X+11}], v{t+3}, {SWS}, s50 offen offset:1024 sc1
    buffer_store_dwordx4 v[{X+12}:{X+15}], v{t+3}, {SWS}, s50 offen offset:1280 sc1""")
    stamp(2)
    a(f"""v_add_u32 v{t+2}, s30, v{t+2}
    v_add_u32 v{t+5}, s30, v{t+5}
    ds_write_b128 v{t+2}, v[{X}:{X+3}] offset:{L_OWNKV}
    ds_write_b128 v{t+2}, v[{X+4}:{X+7}] offset:{L_OWNKV + 8192}
    ds_write_b128 v{t+5}, v[{X+8}:{X+11}] offset:{L_OWNKV + 1024}
    ds_write_b128 v{t+5}, v[{X+12}:{X+15}] offset:{L_OWNKV + 1280}
    v_and_b32 v{t+4}, 31, v{vLANE}
    s_lshl_b32 s30, {sT}, 5
    v_add_lshl_u32 v{t+4}, v{t+4}, s30, 3
    v_add_u32 v{t+4}, {L_STAT}, v{t+4}
    v_mov_b32 v{t+2}, v{vM}
    v_mov_b32 v{t+3}, v{vDEN}
    ds_write_b64 v{t+4}, v[{t+2}:{t+3}]
    s_waitcnt lgkmcnt(0)
    s_barrier                             ; B8""")
    stamp(4)
    a(f"""v_mov_b32 v{t+2}, {L_CTR}
    s_lshl_b32 s57, {sP}, 7
    s_add_u32 s57, s57, {WS_FLAG + F1*128}
    s_waitcnt vmcnt(0)
    s_mov_b64 exec, 1
    ds_add_rtn_u32 v{t+3}, v{t+2}, v{t+1}
    s_mov_b64 exec, -1
    s_waitcnt lgkmcnt(0)
    v_readfirstlane_b32 s30, v{t+3}
    s_cmp_lg_u32 s30, 3
    s_cbranch_scc1 L_attn_pre""")
    stamp(1)
    signal("s57", t, t + 1)
    poll("s57", 16, "f1", t, t + 3, sleep=1)
    a("s_branch L_attn_pre")

    XF, WF, WF1, ACC, EF, EF1 = 0, 80, 88, 96, 112, 120
    ASK, ASV, AR = 128, 132, 136
    a(f"""L_bwave:
    s_cmp_lg_u32 {sT}, 0
    s_cbranch_scc1 L_b_noinit""")
    srd(44, 16, 1024)
    a(f"""v_lshrrev_b32 v1, 3, v0
    v_add_u32 v1, {sC0}, v1
    v_and_b32 v1, 7, v1
    v_lshlrev_b32 v1, 7, v1
    v_and_b32 v3, 7, v0
    v_lshl_add_u32 v1, v3, 4, v1
    s_mov_b32 m0, {L_WR}
    v_mov_b32 v4, 0
    buffer_load_dwordx4 v1, {SAUX}, 0 offen lds
    v_mov_b32 v5, 0
    v_mov_b32 v6, 0
    v_mov_b32 v7, 0
    v_add_u32 v1, {L_ZERO}, v{vL16}
    ds_write_b128 v1, v[4:7]
    ds_write_b128 v1, v[4:7] offset:256
    s_waitcnt lgkmcnt(0)
L_b_noinit:""")
    srd(44, 26, 256)
    a(f"""s_lshl_b32 s30, {sT}, 10
    v_add_u32 v{t}, s30, v{vWA}
    v_lshrrev_b32 v1, 5, v0
    v_lshlrev_b32 v1, 4, v1
    v_add_u32 v2, {L_WR}, v1
    v_add_u32 v1, {L_ZERO}, v1
    v_cndmask_b32 v{t+1}, v1, v2, vcc
    s_barrier                             ; Ba""")

    def ssum(n):
        read_w(WF, t, L_WK + n * 4096)
        read_w(WF + 4, t, L_WV + n * 4096)

    def ssum2(n):
        mfma16(ASK, CS, WF, None if n == 0 else ASK)
        mfma16(ASV, CS, WF + 4, None if n == 0 else ASV)

    ssum(0)
    a("s_waitcnt lgkmcnt(0)")
    ssum2(0)
    for n in range(7):
        a(f"s_barrier                             ; B{n}")
        ssum(n + 1)
        if n < 5:
            for s in range(4):
                r = XF + 16 * n + 4 * s
                if n < 4:
                    a(f"ds_read_b128 v[{r}:{r+3}], v{vXA+s} offset:{n*16384}")
                else:
                    a(f"v_add_u32 v{t+2}, 65536, v{vXA+s}\nds_read_b128 v[{r}:{r+3}], v{t+2}")
        if n == 5:
            a(f"""s_cmp_lg_u32 {sT}, 0
            s_cbranch_scc1 L_b_noclr
            v_mov_b32 v{t+2}, 0
            s_mov_b64 exec, 1
            buffer_load_dword v{t+5}, v{t+2}, {SAUX}, 0 offen sc1
            s_mov_b64 exec, -1
        L_b_noclr:""")
        a("s_waitcnt lgkmcnt(0)")
        ssum2(n + 1)
    a(f"""v_cmp_gt_u32 vcc, 32, v{vLANE}
    v_and_b32 v{EF}, 31, v{vLANE}
    v_lshrrev_b32 v{EF+1}, 5, v{vLANE}
    v_lshlrev_b32 v{EF+1}, 10, v{EF+1}
    v_lshl_add_u32 v{EF}, v{EF}, 4, v{EF+1}
    s_lshr_b32 s30, {sT}, 1
    s_lshl_b32 s30, s30, 9
    s_and_b32 s31, {sT}, 1
    s_lshl_b32 s31, s31, 3
    s_add_u32 s30, s30, s31
    s_add_u32 s30, s30, {L_SFR}
    v_add_u32 v{EF}, s30, v{EF}
    v_cndmask_b32 v{EF+1}, v{ASV}, v{ASK}, vcc""")
    split3(EF + 2, EF + 1, t + 2)
    a(f"""ds_write_b64 v{EF}, v[{EF+2}:{EF+3}]
    s_waitcnt lgkmcnt(0)
    s_barrier                             ; B7
    s_cmp_lg_u32 {sT}, 0
    s_cbranch_scc1 L_b_clrd
    s_waitcnt vmcnt(0)
    v_readfirstlane_b32 s30, v{t+5}
    v_mov_b32 v{t+2}, 0
    s_cmp_lg_u32 s30, 0
    s_cbranch_scc1 L_b_clrd""")
    poll("0", 1, "clr", t + 2, t + 5, sleep=1, srd_=SAUX)
    a(f"""L_b_clrd:
    v_add_u32 v{vWA}, {L_WQ}, v{vWA}
    v_and_b32 v{t+4}, 31, v{vLANE}
    s_lshl_b32 s30, {sT}, 5
    v_add_u32 v{t}, s30, v{t+4}
    v_lshlrev_b32 v{t+4}, 3, v{t}
    v_add_u32 v{t+4}, {L_STAT}, v{t+4}
    v_add_u32 v{t+2}, {L_WR}, v{vL16}
    v_mov_b32 v{MF}, {sONE}
    v_mov_b32 v{MF+1}, {sONE}
    v_mov_b32 v{MF+2}, {sONE}
    v_mov_b32 v{MF+3}, {sONE}
    s_barrier                             ; B8""")
    stamp(4)
    a(f"""ds_read_b128 v[{EF1}:{EF1+3}], v{t+2}
    ds_read_b64 v[{t+2}:{t+3}], v{t+4}""")

    def qreads(g):
        wb = WF if g % 2 == 0 else WF1
        eb = EF if g % 2 == 0 else EF1
        for s in range(2):
            read_w(wb + 4 * s, vWA, (2 * g + s) * 1024)
            a(f"ds_read_b128 v[{eb+4*s}:{eb+4*s+3}], v{t+1} offset:{(2*g + s)*32}")
    qreads(0)
    a("s_waitcnt lgkmcnt(6)")
    mfma16(ASV, MF, EF1)
    a(f"""v_mov_b32 v{vM}, v{t+2}
    v_rcp_f32 v{vRS}, v{t+3}""")
    for g in range(16):
        wb = WF if g % 2 == 0 else WF1
        eb = EF if g % 2 == 0 else EF1
        n, h = g >> 1, g & 1
        a("s_waitcnt lgkmcnt(0)")
        for s in range(2):
            x = XF + 16 * (n if n < 5 else n - 5) + 4 * (2 * h + s)
            first = (g == 0 and s == 0)
            mfma32(ACC, wb + 4 * s, x, None if first else ACC)
            if s == 0:
                if g + 1 < 16:
                    qreads(g + 1)
                if n in (2, 3, 4):
                    for s2 in range(2):
                        r = XF + 16 * (n - 2) + 4 * (2 * h + s2)
                        a(f"ds_read_b128 v[{r}:{r+3}], v{vXA + 2*h + s2} offset:{(n - 2)*16384}")
            mfma16(ASK, CS, wb + 4 * s, None if first else ASK)
            mfma16(AR, eb + 4 * s, x, None if first else AR)
    for r in (8, 4, 2, 1):
        a(f"v_add_f32_dpp v{ASV}, v{ASV}, v{ASV} row_ror:{r} row_mask:0xf bank_mask:0xf")
    a(f"""v_cvt_pk_bf16_f32 v{MF}, -v{vM}, -v{vM}
    v_cndmask_b32 v{MF}, 0, v{MF}, vcc
    v_mov_b32 v{EF+2}, 0
    v_mov_b32 v{EF+3}, 0
    v_mov_b32 v{MF+1}, v{MF}""")
    split3(EF, ASK, t + 2)
    mfma32(ACC, EF, MF, ACC)
    a(f"""v_fma_f32 v{AR}, -v{vM}, v{ASV}, v{AR}
    v_mul_f32 v{AR}, v{vRS}, v{AR}
    v_cvt_pk_bf16_f32 v{AR}, 0, v{AR}
    v_ashrrev_i32 v{AR+1}, 31, v{AR}
    v_or_b32 v{AR+1}, 0x80000000, v{AR+1}
    v_xor_b32 v{AR}, v{AR}, v{AR+1}
    v_and_b32 v{AR}, 0xffff0000, v{AR}
    s_lshl_b32 s30, {sJ}, 7
    s_sub_u32 s30, 0x7ff, s30
    v_sub_u32 v{AR+1}, s30, v{t}
    v_or_b32 v{AR}, v{AR}, v{AR+1}
    v_mul_f32 v{t+2}, {f32(CQ)}, v{vRS}
    s_lshl_b32 s30, {sT}, 10
    v_add_u32 v{t+3}, s30, v{vL16}""")
    for i in range(16):
        a(f"v_mul_f32 v{ACC+i}, v{t+2}, v{ACC+i}")
    for i in range(8):
        a(f"v_cvt_pk_bf16_f32 v{WF+i}, v{ACC+2*i}, v{ACC+2*i+1}")
    a(f"""ds_write_b128 v{t+3}, v[{WF}:{WF+3}] offset:{L_Q}
    ds_write_b128 v{t+3}, v[{WF+4}:{WF+7}] offset:{L_Q + 4096}""")
    wavemax_u32("s50", AR, AR + 1, 2)
    a(f"""v_cmp_eq_u32 vcc, s50, v{AR}
    v_cndmask_b32 v{AR}, v{AR}, v{EF+2}, vcc""")
    wavemax_u32("s51", AR, AR + 1, 2)
    a(f"""s_lshl_b32 s30, {sT}, 3
    s_add_u32 s30, s30, {L_KEY}
    v_mov_b32 v{AR}, s50
    v_mov_b32 v{AR+1}, s51
    v_mov_b32 v{AR+2}, s30
    ds_write_b64 v{AR+2}, v[{AR}:{AR+1}]""")
    stamp(1)

    SA, SB, O0, O1, Q0, Q1, RING = 0, 16, 32, 48, 64, 68, 72
    vIDX = 144
    sHH, sQP, sKH = "s58", "s59", "s60"
    sVM = "s[62:63]"

    def slot(s):
        b = RING + 24 * s
        return dict(K=[b, b + 12], V=[[b + 4, b + 8], [b + 16, b + 20]])

    def ones(s):
        for k in range(2):
            for i in range(8):
                a(f"v_mov_b32 v{slot(s)['V'][k][0] + i}, {sONE}")

    def exp(r):
        a(f"v_exp_f32 v{r}, v{r}")

    def smf(o, v, p):
        a(f"v_smfmac_f32_32x32x32_bf16 v[{o}:{o+15}], v[{v}:{v+3}], v[{p}:{p+7}], v{vIDX}")

    def qk(sreg, k, q):
        mfma32(sreg, k, q)

    def step(cur, oth, ocur, ooth, vprev1, knext, qoth, vcur0, h1=None, h2=None, before_qk=None):
        exp(cur); exp(cur + 1)
        if vprev1 is not None:
            smf(ooth, vprev1, oth + 8)
        if h1:
            h1()
        for i in range(2, 5):
            exp(cur + i)
        if before_qk:
            before_qk()
        qk(oth, knext, qoth)
        for i in range(5, 10):
            exp(cur + i)
        smf(ocur, vcur0, cur)
        if h2:
            h2()
        for i in range(10, 16):
            exp(cur + i)

    def gl_addr():
        a("""s_add_u32 s61, s61, 8192
             s_and_b32 s61, s61, 0x1ffff""")

    def gl_k(s):
        S = slot(s)
        a(f"""s_add_u32 s65, s61, s64
              buffer_load_dwordx4 v[{S['K'][0]}:{S['K'][0]+3}], v{vL16}, {SWS}, s65 offen sc1
              buffer_load_dwordx4 v[{S['K'][1]}:{S['K'][1]+3}], v{vL16}, {SWS}, s65 offen offset:2048 sc1""")

    def gl_v(s):
        S = slot(s)
        a(f"s_mov_b64 exec, {sVM}")
        for k in range(2):
            for i in range(2):
                r = S["V"][k][i]
                a(f"buffer_load_dwordx4 v[{r}:{r+3}], v{vL16}, {SWS}, s65 offen offset:{2048*k + 1024 + 256*i} sc1")
        a("s_mov_b64 exec, -1")

    def pair(s, prev, nxt, load=None, last_h2=None):
        S = slot(s)
        step(SA, SB, O0, O1, None if prev is None else slot(prev)["V"][1][1], S["K"][0], Q1, S["V"][0][0],
             h1=(lambda: gl_k(load)) if load is not None else None, h2=(lambda: gl_v(load)) if load is not None else None)
        step(SB, SA, O1, O0, S["V"][0][1], S["K"][1], Q0, S["V"][0][0], h1=gl_addr if load is not None else None)
        step(SA, SB, O0, O1, S["V"][0][1], S["K"][1], Q1, S["V"][1][0])
        step(SB, SA, O1, O0, S["V"][1][1], slot(nxt)["K"][0], Q0, S["V"][1][0], h1=lambda: a("s_waitcnt vmcnt(6)"), h2=last_h2)

    a(f"""L_attn_pre:
    s_sub_u32 s30, {sWV}, 4
    s_lshr_b32 {sHH}, s30, 2
    s_bfe_u32 {sQP}, s30, 0x10001
    s_and_b32 {sKH}, s30, 1
    s_mov_b32 s62, 0xffff
    s_mov_b32 s63, 0xffff
    s_lshl_b32 s30, {sHH}, 12
    s_lshl_b32 s31, {sQP}, 11
    s_add_u32 s30, s30, s31
    v_add_u32 v{t}, s30, v{vL16}
    s_lshl_b32 s30, {sHH}, 13
    s_lshl_b32 s31, {sKH}, 12
    s_add_u32 s30, s30, s31
    v_add_u32 v{t+1}, s30, v{vL16}
    s_lshl_b32 s64, {sP}, 1
    s_add_u32 s64, s64, {sHH}
    s_lshl_b32 s64, s64, 17
    s_lshl_b32 s61, {sJ}, 13
    s_add_u32 s61, s61, s31
    v_mov_b32 v{vIDX}, 0xdddddddd""")
    for s in range(3):
        ones(s)
    for i in range(32):
        a(f"v_mov_b32 v{O0+i}, 0")
    gl_addr()
    a("""s_waitcnt lgkmcnt(0)
    s_barrier                             ; B10""")
    stamp(5)
    S2 = slot(2)
    a(f"""ds_read_b128 v[{Q0}:{Q0+3}], v{t} offset:{L_Q}
    ds_read_b128 v[{S2['K'][0]}:{S2['K'][0]+3}], v{t+1} offset:{L_OWNKV}
    ds_read_b128 v[{Q1}:{Q1+3}], v{t} offset:{L_Q + 1024}
    ds_read_b128 v[{S2['K'][1]}:{S2['K'][1]+3}], v{t+1} offset:{L_OWNKV + 2048}
    s_mov_b64 exec, {sVM}""")
    for k in range(2):
        for i in range(2):
            r = S2["V"][k][i]
            a(f"ds_read_b128 v[{r}:{r+3}], v{t+1} offset:{L_OWNKV + 2048*k + 1024 + 256*i}")
    a("s_mov_b64 exec, -1")
    gl_k(0)
    gl_v(0)
    gl_addr()
    a("s_waitcnt lgkmcnt(0)")
    qk(SA, S2["K"][0], Q0)
    a("s_barrier                             ; B11")
    gl_k(1)
    gl_v(1)
    gl_addr()
    if cfg.prio:
        a("s_setprio 3")
    a(f"s_mov_b32 s66, {cfg.iters}")
    pair(2, None, 0)
    stamp(6)
    a(".p2align 3\nL_attn:")

    def loop_ctl():
        a("s_sub_u32 s66, s66, 1")
    for s in range(3):
        pair(s, (s + 2) % 3, (s + 1) % 3, load=(s + 2) % 3, last_h2=loop_ctl if s == 2 else None)
        if cfg.prio and s < 2:
            a(f"""s_cmp_lg_u32 s66, 1
            s_cbranch_scc1 L_np{s}
            s_setprio {1 - s}
        L_np{s}:""")
    if cfg.prio:
        a("""s_cmp_lg_u32 s66, 1
        s_cbranch_scc1 L_np2
        s_setprio 2
    L_np2:""")
    a("""s_cmp_lg_u32 s66, 0
    s_cbranch_scc1 L_attn""")
    smf(O1, slot(2)["V"][1][1], SB + 8)
    stamp(7)

    a(f"""s_sub_u32 s30, {sWV}, 4
    s_mul_i32 s31, s30, 2304
    s_xor_b32 s30, s30, 1
    s_mul_i32 s30, s30, 2304
    s_add_u32 s31, s31, {L_CMB}
    s_add_u32 s30, s30, {L_CMB}
    v_add_u32 v{t}, s31, v{vL16}
    v_add_u32 v{t+1}, s30, v{vL16}
    v_lshlrev_b32 v{t+4}, 2, v{vLANE}
    v_add_u32 v{t+2}, s31, v{t+4}
    v_add_u32 v{t+3}, s30, v{t+4}
    s_cmp_eq_u32 {sKH}, 0
    s_cbranch_scc1 L_cmb0
    ds_write_b128 v{t}, v[{O0}:{O0+3}]
    ds_write_b128 v{t}, v[{O0+4}:{O0+7}] offset:1024
    ds_write_b32 v{t+2}, v{O0+8} offset:2048""")
    for i in range(9):
        a(f"v_mov_b32 v{O0+i}, v{O1+i}")
    for i in range(4):
        a(f"v_mov_b32 v{Q0+i}, v{Q1+i}")
    a(f"""s_branch L_cmb1
L_cmb0:
    ds_write_b128 v{t}, v[{O1}:{O1+3}]
    ds_write_b128 v{t}, v[{O1+4}:{O1+7}] offset:1024
    ds_write_b32 v{t+2}, v{O1+8} offset:2048
L_cmb1:
    s_waitcnt lgkmcnt(0)
    s_barrier                             ; T1""")
    stamp(9)
    a(f"""ds_read_b128 v[0:3], v{t+1}
    ds_read_b128 v[4:7], v{t+1} offset:1024
    ds_read_b32 v8, v{t+3} offset:2048
    s_lshl_b32 s30, {sJ}, 2
    s_lshl_b32 s31, {sQP}, 1
    s_add_u32 s30, s30, s31
    s_add_u32 s30, s30, {sKH}
    s_lshl_b32 s30, s30, 15
    s_lshr_b32 s31, s64, 7               ; head * 1024
    s_add_u32 s30, s30, s31
    s_add_u32 s67, s30, {WS_OF}
    s_waitcnt lgkmcnt(0)""")
    for i in range(9):
        a(f"v_add_f32 v{O0+i}, v{i}, v{O0+i}")
    a(f"""v_maximum3_f32 v0, |v{O0}|, |v{O0+1}|, |v{O0+2}|
    v_maximum3_f32 v1, |v{O0+3}|, |v{O0+4}|, |v{O0+5}|
    v_maximum3_f32 v0, |v{O0+6}|, |v{O0+7}|, v0
    v_cmp_nle_f32 vcc, {f32(2.0**-40)}, v{O0+8}
    v_maximum3_f32 v0, v0, v1, v1
    s_mov_b64 s[50:51], vcc
    v_cmp_nge_f32 vcc, {f32(2.0**40)}, v{O0+8}
    v_rcp_f32 v9, v{O0+8}
    s_or_b64 s[50:51], s[50:51], vcc
    v_cmp_nge_f32 vcc, {f32(2.0**120)}, v0
    s_nop 0
    s_or_b64 s[50:51], s[50:51], vcc""")
    a("s_branch L_slow" if cfg.force_slow else "s_cbranch_scc1 L_slow")
    a("L_norm:")
    for i in range(8):
        a(f"v_mul_f32 v{O0+i}, v9, v{O0+i}")
    for i in range(4):
        a(f"v_cvt_pk_bf16_f32 v{160+i}, v{O0+2*i}, v{O0+2*i+1}")
    a(f"buffer_store_dwordx4 v[160:163], v{vL16}, {SWS}, s67 offen sc1")
    stamp(10)
    WOF, PACC, OFR = 0, 128, 144
    a(f"""s_lshr_b32 s30, {sP}, 2
    s_lshl_b32 s31, {sJ}, 2
    s_add_u32 s30, s30, s31
    s_lshl_b32 s30, s30, 15
    s_sub_u32 s31, {sWV}, 4
    s_lshl_b32 s31, s31, 12
    s_add_u32 s68, s30, s31
    s_add_u32 s68, s68, {WS_OF}
    s_add_u32 s69, s31, {L_OST}
    s_cmp_ge_u32 {sWV}, 8
    s_cbranch_scc1 L_tail_b
    v_lshrrev_b32 v{t}, 5, v{vLANE}
    v_bfe_u32 v{t+1}, v{vLANE}, 2, 2
    v_lshl_add_u32 v{t}, v{t}, 2, v{t+1}
    v_lshlrev_b32 v{t}, 6, v{t}           ; (4*half + r) * 64
    v_and_b32 v{t+1}, 1, v{vLANE}
    v_lshl_add_u32 v{t}, v{t+1}, 5, v{t}
    v_bfe_u32 v{t+1}, v{vLANE}, 4, 1
    v_lshl_add_u32 v{t}, v{t+1}, 4, v{t}
    v_bfe_u32 v{t+1}, v{vLANE}, 1, 1
    v_lshl_add_u32 v{t}, v{t+1}, 3, v{t}
    s_lshl_b32 s30, {sT}, 15
    v_add_u32 v{t}, s30, v{t}
    s_waitcnt vmcnt(1)""")
    for hd in range(32):
        read_w(WOF + 4 * hd, t, hd * 1024, second=512)
        if hd % 6 == 5:
            a("s_waitcnt lgkmcnt(2)")
    a(f"""v_and_b32 v{t}, 31, v{vLANE}
    v_lshrrev_b32 v{t+1}, 5, v{vLANE}
    s_lshl_b32 s30, {sT}, 2
    v_lshl_add_u32 v{t+1}, v{t+1}, 1, s30
    v_and_b32 v{t+2}, 7, v{t}
    v_xor_b32 v{t+1}, v{t+1}, v{t+2}
    v_lshlrev_b32 v{t}, 8, v{t}
    v_lshl_add_u32 v164, v{t+1}, 4, v{t}
    v_xor_b32 v165, 16, v164
    v_mov_b32 v166, v{vL16}
    s_waitcnt vmcnt(0)
    s_barrier                             ; T2
    s_waitcnt lgkmcnt(0)
    s_barrier                             ; T3""")
    stamp(11)

    def stage_o(addr):
        a("s_mov_b32 m0, s69\ns_nop 0")
        for i in range(4):
            a(f"buffer_load_dwordx4 v{addr}, {SWS}, s68 offen offset:{1024*i} sc1 lds")
        a("""s_waitcnt vmcnt(0)
        s_barrier                             ; T4""")
    stage_o(166)
    stamp(12)
    for hd in range(3):
        a(f"ds_read_b128 v[{OFR+4*hd}:{OFR+4*hd+3}], v166 offset:{L_OST + hd*1024}")
    for hd in range(32):
        if hd + 3 < 32:
            r = OFR + 4 * ((hd + 3) % 4)
            a(f"ds_read_b128 v[{r}:{r+3}], v166 offset:{L_OST + (hd+3)*1024}")
        a(f"s_waitcnt lgkmcnt({min(3, 31 - hd)})")
        mfma32(PACC, WOF + 4 * hd, OFR + 4 * (hd % 4), None if hd == 0 else PACC)
    for i in range(8):
        a(f"v_cvt_pk_bf16_f32 v{i}, v{PACC+2*i}, v{PACC+2*i+1}")
    a(f"""ds_write_b128 v164, v[0:3] offset:{L_SST}
    ds_write_b128 v165, v[4:7] offset:{L_SST}
    s_waitcnt lgkmcnt(0)
    s_barrier                             ; T5""")
    stamp(13)
    dump_stamps()
    a("s_endpgm")

    a(f"""L_tail_b:
    v_mov_b32 v{t}, 0
    v_mov_b32 v{t+1}, 1
    s_lshl_b32 s57, {sJ}, 7
    s_add_u32 s57, s57, {WS_FLAG + F5*128}
    s_waitcnt vmcnt(0)
    s_barrier                             ; T2
    s_cmp_lg_u32 {sT}, 0
    s_cbranch_scc1 L_tail_b3""")
    signal("s57", t, t + 1)
    poll("s57", 16, "f5", t, t + 3, sleep=1)
    a("""L_tail_b3:
    s_barrier                             ; T3""")
    stamp(11)
    stage_o(vL16)
    stamp(12)
    dump_stamps()
    a("s_endpgm")

    K_, V_ = slot(0)["K"][0], slot(0)["V"][0]
    a(f"""L_slow:
    s_waitcnt vmcnt(0)
    v_mov_b32 v{t}, 0xff800000
    s_mov_b32 s61, 0
L_slow1:
    s_add_u32 s65, s61, s64
    buffer_load_dwordx4 v[{K_}:{K_+3}], v{vL16}, {SWS}, s65 offen sc1
    s_add_u32 s61, s61, 2048
    s_waitcnt vmcnt(0)""")
    qk(SA, K_, Q0)
    for i in range(8):
        a(f"v_max3_f32 v{t}, v{SA+2*i}, v{SA+2*i+1}, v{t}")
    a(f"""s_cmp_lt_u32 s61, 0x20000
    s_cbranch_scc1 L_slow1
    v_mov_b32 v{t+1}, v{t}
    v_permlane32_swap_b32 v{t}, v{t+1}
    v_max_f32 v{t}, v{t}, v{t+1}""")
    for i in range(16):
        a(f"v_sub_f32 v{SB+i}, 0, v{t}\nv_mov_b32 v{O0+i}, 0")
    a(f"""s_mov_b32 s61, 0
L_slow2:
    s_add_u32 s65, s61, s64
    buffer_load_dwordx4 v[{K_}:{K_+3}], v{vL16}, {SWS}, s65 offen sc1
    s_mov_b64 exec, {sVM}
    buffer_load_dwordx4 v[{V_[0]}:{V_[0]+3}], v{vL16}, {SWS}, s65 offen offset:1024 sc1
    buffer_load_dwordx4 v[{V_[1]}:{V_[1]+3}], v{vL16}, {SWS}, s65 offen offset:1280 sc1
    s_mov_b64 exec, -1
    s_add_u32 s61, s61, 2048
    s_waitcnt vmcnt(0)""")
    mfma32(SA, K_, Q0, SB)
    for i in range(16):
        exp(SA + i)
    smf(O0, V_[0], SA)
    smf(O0, V_[1], SA + 8)
    a(f"""s_cmp_lt_u32 s61, 0x20000
    s_cbranch_scc1 L_slow2
    s_nop 11
    v_rcp_f32 v9, v{O0+8}
    s_branch L_norm""")
    return finish(a, cfg)


def finish(a, cfg):
    a("L_exit:\ns_endpgm")
    body, log = fix_hazards(a.text(), fix=True, verbose=cfg.verbose)
    head = open("cdna_kernels/" + NAME + ".s.ref").read().split("; Override launch")[0]
    head += f"; @launch grid=(256,1,1) block=(768,1,1) lds={LDS_BYTES}\n"
    tail = f""".section .rodata,"a"
.p2align 6
.amdhsa_kernel {NAME}_kernel
  .amdhsa_next_free_vgpr 168
  .amdhsa_next_free_sgpr 102
  .amdhsa_accum_offset 168
  .amdhsa_group_segment_fixed_size 0
  .amdhsa_kernarg_size 88
  .amdhsa_user_sgpr_count 2
  .amdhsa_user_sgpr_kernarg_segment_ptr 1
  .amdhsa_system_sgpr_workgroup_id_x 1
  .amdhsa_float_denorm_mode_32 3
.end_amdhsa_kernel
"""
    return head + body + tail


if __name__ == "__main__":
    cfg = Cfg()
    out = sys.argv[1]
    for kv in sys.argv[2:]:
        k, v = kv.split("=")
        setattr(cfg, k, eval(v))
    open(out, "w").write(gen(cfg))
```

```python
import sys
import struct
from asmlib import Asm, fix_hazards

NAME = "recurrent_scan__softmax_full_mha__moe_arch_mod__prompt"

WS_KV = 0
WS_OF = 4 << 20
WS_FLAG = 6 << 20
WS_CAND = (6 << 20) + 0x10000
WS_STAT = (6 << 20) + 0x20000
WS_P1 = (6 << 20) + 0x80000
WS_P2 = (6 << 20) + 0xC0000
WS_DBG = 8 << 20
WS_SIZE = 268435456
F1, F2, F3, F4, F5 = 0, 16, 32, 64, 72

L_WK, L_WV, L_RING = 0, 32768, 65536
L_WQ = L_RING + 3 * 16384
L_OWNKV = 144 * 1024 - 16384 - 32768 - 49152 - 49152
L_Q = 32768
L_GU = 112 * 1024
L_DN = 104 * 1024
L_CMB = 128 * 1024
L_OST = 0
L_SST = 32768
L_MISC = 152 * 1024
L_WR = L_MISC
L_ZERO = L_MISC + 1024
L_CTR = L_MISC + 2048
L_STAT = L_MISC + 2304
L_SFR = L_MISC + 3328
L_KEY = L_MISC + 5376
L_XS = L_MISC + 5440
L_Y = L_MISC + 6144
LDS_BYTES = 163840
assert L_OWNKV == 0

CQ = 0.25 * 1.4426950408889634
LOG2E = 1.4426950408889634


def f32(x):
    return "0x%08x" % struct.unpack("<I", struct.pack("<f", x))[0]


class Cfg:
    stamps = False
    L = 2
    rot = 1
    spin_max = 200000
    verbose = False
    force_slow = False
    prio = 1
    probe = None
    clk = 's_memtime'
    iters = 5


def gen(cfg):
    a = Asm()
    L = cfg.L
    sP, sJ, sWV, sT, sC0 = "s3", "s4", "s5", "s6", "s7"
    SX, SW, SWS, SAUX = "s[32:35]", "s[36:39]", "s[40:43]", "s[44:47]"
    sONE = "s48"

    def srd(base, ptr, size):
        a(f"""s_mov_b32 s{base}, s{ptr}
              s_mov_b32 s{base+1}, s{ptr+1}
              s_mov_b32 s{base+2}, {size}
              s_mov_b32 s{base+3}, 0x20000""")

    def stamp(i):
        if cfg.probe and cfg.probe[0] == i:
            a("s_memrealtime s[98:99]\ns_waitcnt lgkmcnt(0)")
        if cfg.stamps:
            a(f"{cfg.clk} s[78:79]\ns_waitcnt lgkmcnt(0)\ns_mov_b32 s{80+i}, s78")

    def dump_stamps():
        if cfg.stamps:
            a(f"""s_mul_i32 s78, s2, 12
                  s_add_u32 s78, s78, {sWV}
                  s_lshl_b32 s78, s78, 6
                  s_add_u32 s78, s78, {WS_DBG}
                  v_mov_b32 v0, 0""")
            for g in range(4):
                for i in range(4):
                    a(f"v_mov_b32 v{4+i}, s{80+4*g+i}")
                a(f"buffer_store_dwordx4 v[4:7], v0, {SWS}, s78 offen offset:{16*g}")
                a("s_nop 1")
            a("s_waitcnt vmcnt(0)")

    def signal(line_sgpr, vz, vone):
        a(f"""s_mov_b64 exec, 1
              buffer_atomic_add v{vone}, v{vz}, {SWS}, {line_sgpr} offen sc1
              s_mov_b64 exec, -1""")

    def poll(line_sgpr, target, tag, vz, vt, sleep=2, srd_=None):
        a(f"""s_mov_b32 s56, 0
              s_mov_b64 exec, 1
        L_poll_{tag}:
              buffer_load_dword v{vt}, v{vz}, {srd_ or SWS}, {line_sgpr} offen sc1
              s_waitcnt vmcnt(0)
              v_readfirstlane_b32 s30, v{vt}
              s_add_u32 s56, s56, 1
              s_cmp_ge_u32 s30, {target}
              s_cbranch_scc1 L_polld_{tag}
              s_sleep {sleep}
              s_cmp_lt_u32 s56, {cfg.spin_max}
              s_cbranch_scc1 L_poll_{tag}
        L_polld_{tag}:
              s_mov_b64 exec, -1""")

    def rowmax_u32(dst, src):
        a(f"v_max_u32_dpp v{dst}, v{src}, v{src} row_ror:8 row_mask:0xf bank_mask:0xf")
        for r in (4, 2, 1):
            a(f"v_max_u32_dpp v{dst}, v{dst}, v{dst} row_ror:{r} row_mask:0xf bank_mask:0xf")

    def wavemax_u32(sdst, src, tmp, rows):
        rowmax_u32(tmp, src)
        a(f"v_readlane_b32 {sdst}, v{tmp}, 0")
        for r in range(1, rows):
            a(f"v_readlane_b32 s30, v{tmp}, {16*r}\ns_max_u32 {sdst}, {sdst}, s30")

    def tr_addr(dst, lane, t1, t2, rowshift=3):
        a(f"""v_lshrrev_b32 v{t1}, 5, v{lane}
              v_bfe_u32 v{t2}, v{lane}, 2, 2
              v_lshl_add_u32 v{t1}, v{t1}, {rowshift}, v{t2}
              v_lshlrev_b32 v{t1}, 6, v{t1}
              v_bfe_u32 v{t2}, v{lane}, 4, 1
              v_lshl_add_u32 v{t1}, v{t2}, 5, v{t1}
              v_and_b32 v{t2}, 3, v{lane}
              v_lshl_add_u32 v{dst}, v{t2}, 3, v{t1}""")

    def read_w(dst, addr, off, second=256):
        a(f"""ds_read_b64_tr_b16 v[{dst}:{dst+1}], v{addr} offset:{off}
              ds_read_b64_tr_b16 v[{dst+2}:{dst+3}], v{addr} offset:{off + second}""")

    def mfma32(d, A, B, c=None):
        cs = "0" if c is None else f"v[{c}:{c+15}]"
        a(f"v_mfma_f32_32x32x16_bf16 v[{d}:{d+15}], v[{A}:{A+3}], v[{B}:{B+3}], {cs}")

    def mfma16(d, A, B, c=None):
        cs = "0" if c is None else f"v[{c}:{c+3}]"
        a(f"v_mfma_f32_16x16x32_bf16 v[{d}:{d+3}], v[{A}:{A+3}], v[{B}:{B+3}], {cs}")

    def rnd(dst, src):
        a(f"v_cvt_pk_bf16_f32 v{dst}, 0, {src}")

    def split3(dst, src, t):
        a(f"""v_and_b32 v{t}, 0xffff0000, v{src}
              v_sub_f32 v{t+1}, v{src}, v{t}
              v_and_b32 v{t+2}, 0xffff0000, v{t+1}
              v_sub_f32 v{t+1}, v{t+1}, v{t+2}
              v_lshrrev_b32 v{t}, 16, v{t}
              v_or_b32 v{dst}, v{t}, v{t+2}
              v_lshrrev_b32 v{dst+1}, 16, v{t+1}""")

    a(f""".amdgcn_target "amdgcn-amd-amdhsa--gfx950"
.text
.globl {NAME}_kernel
.p2align 8
.type {NAME}_kernel,@function
{NAME}_kernel:
    s_cmp_ge_u32 s2, 256
    s_cbranch_scc1 L_exit
    s_load_dwordx16 s[8:23], s[0:1], 0
    s_load_dwordx4 s[24:27], s[0:1], 64
    s_load_dwordx2 s[28:29], s[0:1], 80""")
    if cfg.probe:
        a("s_memrealtime s[96:97]\ns_memrealtime s[98:99]")
    if cfg.stamps:
        for i in range(16):
            a(f"s_mov_b32 s{80+i}, 0")
        a(f"{cfg.clk} s[78:79]")
    a(f"""v_lshrrev_b32 v1, 6, v0
    v_and_b32 v0, 63, v0                 ; lane
    s_lshr_b32 {sP}, s2, 4
    v_readfirstlane_b32 {sWV}, v1
    s_and_b32 {sJ}, s2, 7
    s_lshl_b32 {sJ}, {sJ}, 1
    s_bfe_u32 s30, s2, 0x10003
    s_or_b32 {sJ}, {sJ}, s30
    s_add_u32 {sC0}, {sP}, {sJ}
    s_and_b32 {sC0}, {sC0}, {7 if cfg.rot else 0}
    s_and_b32 {sT}, {sWV}, 3
    s_mov_b32 {sONE}, 0x3f803f80
    s_cmp_ge_u32 {sWV}, 4
    s_cbranch_scc1 L_compute""")

    hZ, hONE, hT = 17, 18, 19
    a(f"""v_lshrrev_b32 v1, 2, v0
    s_lshl_b32 s30, {sT}, 4
    v_add_u32 v1, s30, v1
    v_mul_u32_u24 v1, 3072, v1
    v_and_b32 v2, 3, v0
    v_lshl_add_u32 v1, v2, 4, v1
    s_lshl_b32 s30, {sP}, 6
    v_add_u32 v14, s30, v1
    v_lshrrev_b32 v1, 3, v0
    v_lshrrev_b32 v2, 4, v0
    v_and_b32 v3, 7, v0
    v_xor_b32 v4, v3, v2
    v_xor_b32 v5, 4, v4
    s_lshl_b32 s30, {sJ}, 17
    s_lshl_b32 s31, {sT}, 15
    s_add_u32 s30, s30, s31
    v_lshl_add_u32 v6, v1, 10, s30
    v_lshl_add_u32 v10, v4, 4, v6
    v_lshl_add_u32 v11, v5, 4, v6
    v_add_u32 v12, {2*7168}, v10
    v_add_u32 v13, {3*7168}, v11
    v_add_u32 v11, 7168, v11
    s_lshl_b32 s57, {sT}, 12
    s_lshl_b32 s49, {sT}, 10
    s_waitcnt lgkmcnt(0)""")
    if cfg.stamps:
        a("s_mov_b32 s80, s78")
    srd(36, 10, 1572864)
    srd(32, 8, 2097152)

    def kc(n, dst):
        a(f"s_add_u32 {dst}, {sC0}, {n}\ns_and_b32 {dst}, {dst}, 7")

    def issue_w(n):
        kc(n, "s50")
        a(f"""s_mul_i32 s51, s50, {64*3072}
              s_add_u32 m0, s49, {L_WK + n*4096}
              s_add_u32 s52, s51, 1024
              buffer_load_dwordx4 v14, {SW}, s52 offen lds
              s_add_u32 m0, s49, {L_WV + n*4096}
              s_add_u32 s53, s51, 2048
              buffer_load_dwordx4 v14, {SW}, s53 offen lds""")

    def issue(item):
        if item < 8:
            n = item
            kc(n, "s50")
            a(f"""s_add_u32 m0, s57, {L_RING + (n % 5)*16384}
                  s_lshl_b32 s50, s50, 7""")
            for q in range(4):
                a(f"buffer_load_dwordx4 v{10+q}, {SX}, s50 offen offset:{1024*q} lds")
            if n < 7:
                issue_w(n + 1)
        else:
            for n in range(4 * (item - 8), 4 * (item - 8) + 4):
                kc(n, "s50")
                a(f"""s_add_u32 m0, s49, {L_WQ + n*4096}
                      s_mul_i32 s51, s50, {64*3072}
                      buffer_load_dwordx4 v14, {SW}, s51 offen lds""")

    cnt = lambda item: 6 if item < 7 else 4
    issue_w(0)
    for it in range(L):
        issue(it)
    srd(40, 28, WS_SIZE)
    a(f"""v_mov_b32 v{hZ}, 0
    v_mov_b32 v{hONE}, 1
    s_waitcnt vmcnt({sum(cnt(i) for i in range(L))})
    s_barrier""")
    for n in range(8):
        pend = sum(cnt(i) for i in range(n + 1, min(n + L, 10)))
        a(f"s_waitcnt vmcnt({pend})")
        a(f"s_barrier                             ; B{n}")
        if n in (0, 3, 7):
            stamp({0: 1, 3: 2, 7: 3}[n])
        if n + L < 10:
            issue(n + L)
    hXP, hXN, hG = 136, 144, 152
    hOA = 20
    a(f"""s_lshr_b32 s58, {sP}, 2
    s_and_b32 s59, {sP}, 3
    s_lshl_b32 s60, {sJ}, 2
    s_add_u32 s60, s60, s58
    v_lshrrev_b32 v1, 4, v0
    s_lshl_b32 s30, {sT}, 3
    v_add_u32 v22, s30, v1
    s_lshl_b32 s30, s60, 15
    s_lshl_b32 s31, s59, 8
    s_add_u32 s30, s30, s31
    v_lshl_add_u32 v1, v22, 10, s30
    v_and_b32 v2, 15, v0
    v_lshl_add_u32 v{hOA}, v2, 4, v1
    v_add_u32 v{hOA+1}, 4096, v{hOA}
    buffer_load_dwordx4 v[{hXP}:{hXP+3}], v{hOA}, {SX}, 0 offen
    buffer_load_dwordx4 v[{hXP+4}:{hXP+7}], v{hOA+1}, {SX}, 0 offen
    s_lshl_b32 s30, s58, 5
    v_add_lshl_u32 v1, v22, s30, 3
    v_add_u32 v23, {L_STAT}, v1
    s_waitcnt vmcnt(0)
    s_barrier""")
    stamp(4)
    a(f"""ds_read_b64 v[24:25], v23
    ds_read_b64 v[26:27], v23 offset:32
    s_waitcnt lgkmcnt(0)
    v_rcp_f32 v25, v25
    v_rcp_f32 v27, v27""")
    for i in range(8):
        m, rs = (24, 25) if i < 4 else (26, 27)
        a(f"""v_lshlrev_b32 v28, 16, v{hXP+i}
              v_and_b32 v29, 0xffff0000, v{hXP+i}
              v_sub_f32 v28, v28, v{m}
              v_sub_f32 v29, v29, v{m}
              v_cvt_pk_bf16_f32 v28, 0, v28
              v_cvt_pk_bf16_f32 v29, 0, v29
              v_mul_f32 v28, v28, v{rs}
              v_mul_f32 v29, v29, v{rs}
              v_cvt_pk_bf16_f32 v{hXN+i}, v28, v29""")

    def gate():
        for i in range(8):
            g0, g1 = hG + 2 * i, hG + 2 * i + 1
            a(f"""v_lshlrev_b32 v28, 16, v{hXN+i}
                  v_and_b32 v29, 0xffff0000, v{hXN+i}
                  v_mul_f32 v{g0}, {f32(-LOG2E)}, v28
                  v_mul_f32 v{g1}, {f32(-LOG2E)}, v29
                  v_exp_f32 v{g0}, v{g0}
                  v_exp_f32 v{g1}, v{g1}
                  v_add_f32 v{g0}, 1.0, v{g0}
                  v_add_f32 v{g1}, 1.0, v{g1}
                  v_rcp_f32 v{g0}, v{g0}
                  v_rcp_f32 v{g1}, v{g1}
                  v_mul_f32 v{g0}, v{g0}, v28
                  v_mul_f32 v{g1}, v{g1}, v29
                  v_cvt_pk_bf16_f32 v{g0}, 0, v{g0}
                  v_cvt_pk_bf16_f32 v{g1}, 0, v{g1}""")
    gate()
    tr_addr(30, 0, 1, 2)
    a(f"""v_lshrrev_b32 v31, 2, v0
    v_and_b32 v1, 3, v0
    v_lshlrev_b32 v32, 4, v1             ; piece
    v_lshl_add_u32 v33, v31, 10, v32
    s_lshl_b32 s30, s59, 8
    v_add_u32 v33, s30, v33
    s_lshr_b32 s61, s2, 3
    s_and_b32 s62, s2, 7""")
    srd(36, 12, 524288)
    a("s_barrier")
    stamp(5)
    a("s_barrier")
    a(f"""s_setprio 3
    s_cmp_eq_u32 {sT}, 1
    s_cbranch_scc1 L_h1
    s_cmp_eq_u32 {sT}, 2
    s_cbranch_scc1 L_h2
    s_cmp_eq_u32 {sT}, 3
    s_cbranch_scc1 L_h3""")

    def wo_dma_ct3(h0, h1, tag):
        a(f"""s_mov_b32 s50, {h0*16384 + 192}
              s_mov_b32 s51, {(96 + h0)*1024}
        L_wo3_{tag}:
              s_mov_b32 m0, s51
              s_add_u32 s51, s51, 1024
              buffer_load_dwordx4 v33, {SW}, s50 offen lds
              s_add_u32 s50, s50, 16384
              s_cmp_lt_u32 s51, {(96 + h1)*1024}
              s_cbranch_scc1 L_wo3_{tag}""")

    a(f"""s_mov_b32 s50, 0
    s_mov_b32 s51, 0
L_wo:
    s_mov_b32 m0, s51
    s_add_u32 s52, s50, 64
    buffer_load_dwordx4 v33, {SW}, s50 offen lds
    s_add_u32 m0, s51, 32768
    s_add_u32 s53, s50, 128
    buffer_load_dwordx4 v33, {SW}, s52 offen lds
    s_add_u32 m0, s51, 65536
    s_add_u32 s51, s51, 1024
    buffer_load_dwordx4 v33, {SW}, s53 offen lds
    s_add_u32 s50, s50, 16384
    s_waitcnt vmcnt(9)
    s_cmp_lt_u32 s51, 32768
    s_cbranch_scc1 L_wo""")
    wo_dma_ct3(0, 8, "h0")
    stamp(6)
    a("s_branch L_h_tail")

    a(f"""L_h1:
    v_lshlrev_b32 v1, 4, v0
    v_add_u32 v2, {L_STAT}, v1
    ds_read_b128 v[4:7], v2
    v_lshlrev_b32 v2, 2, v0
    v_add_u32 v3, {L_KEY}, v2
    ds_read_b32 v8, v3
    s_lshl_b32 s50, {sP}, 13
    s_add_u32 s63, s50, {WS_STAT}
    s_lshl_b32 s50, {sJ}, 9
    s_add_u32 s50, s50, s63
    s_lshl_b32 s51, {sP}, 9
    s_add_u32 s64, s51, {WS_CAND}
    s_lshl_b32 s51, {sJ}, 5
    s_add_u32 s51, s51, s64
    v_lshlrev_b32 v3, 3, v0
    s_waitcnt lgkmcnt(0)
    v_lshrrev_b32 v4, 16, v4
    v_lshrrev_b32 v6, 16, v6
    v_or_b32 v4, v4, v5
    v_or_b32 v5, v6, v7
    buffer_store_dwordx2 v[4:5], v3, {SWS}, s50 offen sc1
    s_mov_b64 exec, 0xff
    buffer_store_dword v8, v2, {SWS}, s51 offen sc1
    s_mov_b64 exec, -1
    s_lshl_b32 s65, {sP}, 7
    s_add_u32 s65, s65, {WS_FLAG + F2*128}
    s_waitcnt vmcnt(0)""")
    signal("s65", hZ, hONE)
    WFR = 40
    a(f"""s_cmpk_lt_u32 s2, 0xe0
    s_cbranch_scc0 L_h1_nogu
    v_mul_u32_u24 v1, 3584, v31
    v_add_u32 v34, v1, v32
    s_mul_i32 s50, s62, {64*3584}
    s_lshl_b32 s51, s61, 7
    s_add_u32 s50, s50, s51""")
    for mtx in range(2):
        srd(44, 18 + 2 * mtx, 1835008)
        for s in range(4):
            for ct in range(2):
                a(f"""s_mov_b32 m0, {L_GU + ((2*mtx + ct)*4 + s)*1024}
                      s_add_u32 s51, s50, {s*16*3584 + ct*64}
                      buffer_load_dwordx4 v34, {SAUX}, s51 offen lds""")
    a(f"""v_add_u32 v35, {L_GU}, v30
    s_waitcnt vmcnt(0)""")
    for b in range(16):
        read_w(WFR + 4 * b, 35, b * 1024)
        if b in (6, 13):
            a("s_waitcnt lgkmcnt(0)")
    a("""s_waitcnt lgkmcnt(0)
L_h1_nogu:""")
    wo_dma_ct3(16, 32, "h1")
    poll("s65", 16, "f2", hZ, hT, sleep=8)
    stamp(6)
    a(f"""buffer_load_dwordx2 v[4:5], v3, {SWS}, s64 offen sc1
    s_waitcnt vmcnt(0)""")
    wavemax_u32("s66", 4, 6, 4)
    a(f"""v_cmp_eq_u32 vcc, s66, v4
    v_cndmask_b32 v4, v4, v5, vcc""")
    wavemax_u32("s67", 4, 6, 4)
    a(f"""v_mov_b32 v4, s66
    v_mov_b32 v5, s67
    v_mov_b32 v6, {L_CTR}
    ds_write_b64 v6, v[4:5] offset:8      ; mailbox
    s_cmpk_lt_u32 s2, 0xe0
    s_cbranch_scc0 L_h_tail
    v_cmp_gt_u32 vcc, 32, v0
    v_cndmask_b32 v4, v5, v4, vcc
    v_and_b32 v4, 0x7ff, v4
    v_sub_u32 v4, 0x7ff, v4
    v_lshlrev_b32 v5, 2, v4
    v_and_b32 v6, 31, v0
    v_lshlrev_b32 v6, 2, v6
    v_lshl_add_u32 v6, v4, 10, v6
    s_lshl_b32 s50, s62, 7
    buffer_load_dword v7, v5, {SWS}, s63 offen sc1
    buffer_load_dword v8, v6, {SX}, s50 offen
    v_add_u32 v2, {L_XS}, v2
    v_and_b32 v1, 1, v0
    v_lshrrev_b32 v6, 5, v0
    v_lshlrev_b32 v6, 4, v6
    v_lshl_add_u32 v6, v1, 7, v6
    v_add_u32 v6, {L_XS}, v6
    s_waitcnt vmcnt(0)
    v_and_b32 v9, 0xffff0000, v7
    v_rcp_f32 v9, v9
    v_lshlrev_b32 v7, 16, v7
    v_lshlrev_b32 v28, 16, v8
    v_and_b32 v29, 0xffff0000, v8
    v_sub_f32 v28, v28, v7
    v_sub_f32 v29, v29, v7
    v_cvt_pk_bf16_f32 v28, 0, v28
    v_cvt_pk_bf16_f32 v29, 0, v29
    v_mul_f32 v28, v28, v9
    v_mul_f32 v29, v29, v9
    v_cvt_pk_bf16_f32 v28, v28, v29
    ds_write_b32 v2, v28
    s_waitcnt lgkmcnt(0)""")
    stamp(7)
    XSF, AC0, AC1 = 120, 104, 24
    for s in range(4):
        a(f"ds_read_b128 v[{XSF+4*s}:{XSF+4*s+3}], v6 offset:{32*s}")
    a("s_waitcnt lgkmcnt(0)")
    for mtx in range(2):
        for s in range(4):
            mfma32(AC0, XSF + 4 * s, WFR + 4 * ((2 * mtx) * 4 + s), None if s == 0 else AC0)
            mfma32(AC1, XSF + 4 * s, WFR + 4 * ((2 * mtx + 1) * 4 + s), None if s == 0 else AC1)
        a(f"""v_cndmask_b32 v{8+2*mtx}, v{AC1}, v{AC0}, vcc
              v_cndmask_b32 v{9+2*mtx}, v{AC1+1}, v{AC0+1}, vcc""")
    a(f"""s_lshl_b32 s50, s2, 10
    s_add_u32 s50, s50, {WS_P1}
    v_lshlrev_b32 v1, 4, v0
    buffer_store_dwordx4 v[8:11], v1, {SWS}, s50 offen sc1
    s_lshl_b32 s65, s61, 7
    s_add_u32 s65, s65, {WS_FLAG + F3*128}
    s_waitcnt vmcnt(0)""")
    signal("s65", hZ, hONE)
    stamp(8)
    a("s_branch L_h_tail")

    a(f"""L_h2:
    s_cmpk_lt_u32 s2, 0xe0
    s_cbranch_scc0 L_h2_nodn
    v_lshl_add_u32 v34, v31, 10, v32
    s_lshl_b32 s50, s61, 16
    s_lshl_b32 s51, s62, 7
    s_add_u32 s50, s50, s51""")
    srd(44, 22, 1835008)
    for s in range(4):
        for ct in range(2):
            a(f"""s_mov_b32 m0, {L_DN + (ct*4 + s)*1024}
                  s_add_u32 s51, s50, {s*16384 + ct*64}
                  buffer_load_dwordx4 v34, {SAUX}, s51 offen lds""")
    a(f"""v_add_u32 v35, {L_DN}, v30
    s_waitcnt vmcnt(0)""")
    for b in range(8):
        read_w(WFR + 4 * b, 35, b * 1024)
        if b == 6:
            a("s_waitcnt lgkmcnt(0)")
    a("""s_waitcnt lgkmcnt(0)
L_h2_nodn:""")
    wo_dma_ct3(8, 16, "h2")
    a(f"""s_cmpk_lt_u32 s2, 0xe0
    s_cbranch_scc0 L_h_tail
    s_lshl_b32 s65, s61, 7
    s_add_u32 s65, s65, {WS_FLAG + F3*128}""")
    poll("s65", 8, "f3", hZ, hT, sleep=16)
    stamp(6)
    a(f"""s_lshl_b32 s50, s61, 13
    s_add_u32 s50, s50, {WS_P1}
    s_add_u32 s51, s50, 4096
    v_lshlrev_b32 v1, 4, v0""")
    for k in range(8):
        a(f"buffer_load_dwordx4 v[{72+4*k}:{75+4*k}], v1, {SWS}, {'s50' if k < 4 else 's51'} offen offset:{1024*(k & 3)} sc1")
    a(f"""v_lshlrev_b32 v2, 1, v0
    v_add_u32 v2, {L_XS + 256}, v2
    v_and_b32 v1, 1, v0
    v_lshrrev_b32 v6, 5, v0
    v_lshlrev_b32 v6, 4, v6
    v_lshl_add_u32 v6, v1, 7, v6
    v_add_u32 v6, {L_XS + 256}, v6
    v_cmp_gt_u32 vcc, 32, v0
    s_waitcnt vmcnt(0)""")
    for k in range(1, 8):
        a(f"""v_pk_add_f32 v[72:73], v[72:73], v[{72+4*k}:{73+4*k}]
              v_pk_add_f32 v[74:75], v[74:75], v[{74+4*k}:{75+4*k}]""")
    for i in range(4):
        rnd(72 + i, f"v{72+i}")
    a(f"""v_mul_f32 v76, {f32(-LOG2E)}, v72
    v_mul_f32 v77, {f32(-LOG2E)}, v73
    v_exp_f32 v76, v76
    v_exp_f32 v77, v77
    v_add_f32 v76, 1.0, v76
    v_add_f32 v77, 1.0, v77
    v_rcp_f32 v76, v76
    v_rcp_f32 v77, v77
    v_mul_f32 v76, v76, v72
    v_mul_f32 v77, v77, v73
    v_cvt_pk_bf16_f32 v76, 0, v76
    v_cvt_pk_bf16_f32 v77, 0, v77
    v_mul_f32 v76, v76, v74
    v_mul_f32 v77, v77, v75
    v_cvt_pk_bf16_f32 v76, v76, v77
    ds_write_b16 v2, v76
    ds_write_b16_d16_hi v2, v76 offset:128
    s_waitcnt lgkmcnt(0)""")
    for s in range(4):
        a(f"ds_read_b128 v[{XSF+4*s}:{XSF+4*s+3}], v6 offset:{32*s}")
    a("s_waitcnt lgkmcnt(0)")
    for s in range(4):
        mfma32(AC0, XSF + 4 * s, WFR + 4 * s, None if s == 0 else AC0)
        mfma32(AC1, XSF + 4 * s, WFR + 4 * (4 + s), None if s == 0 else AC1)
    a(f"""s_lshl_b32 s50, s61, 11
    s_lshl_b32 s51, s62, 8
    s_add_u32 s50, s50, s51
    s_add_u32 s50, s50, {WS_P2}
    s_add_u32 s51, s50, {28*2048}
    s_lshr_b32 s65, s62, 1
    s_lshl_b32 s65, s65, 7
    s_add_u32 s65, s65, {WS_FLAG + F4*128}
    v_lshlrev_b32 v1, 2, v0
    v_cndmask_b32 v8, v{AC1}, v{AC0}, vcc
    v_cndmask_b32 v9, v{AC1+1}, v{AC0+1}, vcc
    buffer_store_dword v8, v1, {SWS}, s50 offen sc1
    buffer_store_dword v9, v1, {SWS}, s51 offen sc1
    s_waitcnt vmcnt(0)""")
    signal("s65", hZ, hONE)
    stamp(8)
    a("s_branch L_h_tail")

    def key_tok(dst, key):
        a(f"s_and_b32 {dst}, {key}, 0x7ff\ns_sub_u32 {dst}, 0x7ff, {dst}")

    a(f"""L_h3:
    v_mov_b32 v6, {L_CTR}
    s_mov_b32 s56, 0
L_h3_mb:
    s_sleep 16
    ds_read_b64 v[4:5], v6 offset:8
    s_add_u32 s56, s56, 1
    s_waitcnt lgkmcnt(0)
    v_readfirstlane_b32 s66, v4
    v_readfirstlane_b32 s67, v5
    s_cmp_ge_u32 s56, {cfg.spin_max}
    s_cbranch_scc1 L_h_tail
    s_cmp_eq_u32 s66, 0
    s_cbranch_scc1 L_h3_mb
    s_lshl_b32 s65, s59, 7
    s_add_u32 s65, s65, {WS_FLAG + F4*128}
    s_mov_b32 s68, 0
    v_lshlrev_b32 v3, 3, v0
L_h3_sel:""")
    key_tok("s50", "s66")
    a(f"""s_lshr_b32 s50, s50, 5
    s_cmp_lg_u32 s50, s60
    s_cbranch_scc1 L_h3_next""")
    poll("s65", 56, "f4", hZ, hT, sleep=16)
    stamp(6)
    a(f"""s_mul_i32 s50, s68, {28*2048}
    s_lshl_b32 s51, s59, 9
    s_add_u32 s50, s50, s51
    s_add_u32 s50, s50, {WS_P2}""")
    for k in range(28):
        a(f"buffer_load_dwordx2 v[{40+2*k}:{41+2*k}], v3, {SWS}, s50 offen offset:{2048*(k & 1)} sc1")
        if k & 1:
            a("s_add_u32 s50, s50, 4096")
    a(f"""s_and_b32 s51, s66, 0xffff0000
    s_xor_b32 s52, s51, 0x80000000
    s_xor_b32 s53, s51, 0xffff0000
    s_bitcmp1_b32 s51, 31
    s_cselect_b32 s51, s52, s53
    v_mov_b32 v4, {f32(-LOG2E)}
    v_mul_f32 v4, s51, v4
    v_exp_f32 v4, v4
    s_lshl_b32 s51, s68, 9
    s_add_u32 s51, s51, {L_Y}
    v_add_u32 v7, s51, v3
    v_add_f32 v4, 1.0, v4
    v_rcp_f32 v4, v4
    s_waitcnt vmcnt(0)
    v_cvt_pk_bf16_f32 v4, 0, v4""")
    for k in range(1, 28):
        a(f"v_pk_add_f32 v[40:41], v[40:41], v[{40+2*k}:{41+2*k}]")
    a(f"""v_cvt_pk_bf16_f32 v40, 0, v40
    v_cvt_pk_bf16_f32 v41, 0, v41
    v_mul_f32 v40, v40, v4
    v_mul_f32 v41, v41, v4
    v_cvt_pk_bf16_f32 v40, 0, v40
    v_cvt_pk_bf16_f32 v41, 0, v41
    ds_write_b64 v7, v[40:41]
L_h3_next:
    s_mov_b32 s66, s67
    s_add_u32 s68, s68, 1
    s_cmp_lt_u32 s68, 2
    s_cbranch_scc1 L_h3_sel""")
    stamp(8)

    a(f"""L_h_tail:
    s_waitcnt vmcnt(0) lgkmcnt(0)
    s_barrier                             ; T1""")
    stamp(9)
    a(f"""v_mov_b32 v6, {L_CTR}
    ds_read_b64 v[4:5], v6 offset:8
    v_and_b32 v1, 15, v0
    v_lshlrev_b32 v7, 5, v1
    v_add_u32 v7, {L_Y}, v7
    s_mov_b32 s68, 0
    s_mov_b32 s69, 0
    s_waitcnt lgkmcnt(0)
    v_readfirstlane_b32 s66, v4
    v_readfirstlane_b32 s67, v5
L_ht_sel:""")
    key_tok("s50", "s66")
    a(f"""s_lshr_b32 s51, s50, 5
    s_cmp_lg_u32 s51, s60
    s_cbranch_scc1 L_ht_next
    s_mov_b32 s69, 1
    s_and_b32 s50, s50, 31
    ds_read_b128 v[8:11], v7
    ds_read_b128 v[12:15], v7 offset:16
    s_sub_u32 s51, s50, 4
    v_cmp_eq_u32 s[52:53], s50, v22
    v_cmp_eq_u32 s[54:55], s51, v22
    s_waitcnt lgkmcnt(0)""")
    for q in range(2):
        for i in range(4):
            r = hXN + 4 * q + i
            a(f"""v_lshlrev_b32 v28, 16, v{r}
                  v_and_b32 v29, 0xffff0000, v{r}
                  v_add_f32 v28, v28, v{8+2*i}
                  v_add_f32 v29, v29, v{9+2*i}
                  v_cvt_pk_bf16_f32 v28, v28, v29
                  v_cndmask_b32 v{r}, v{r}, v28, s[{52+2*q}:{53+2*q}]""")
    a(f"""L_ht_next:
    v_add_u32 v7, 512, v7
    s_mov_b32 s66, s67
    s_add_u32 s68, s68, 1
    s_cmp_lt_u32 s68, 2
    s_cbranch_scc1 L_ht_sel
    s_cmp_eq_u32 s69, 0
    s_cbranch_scc1 L_ht_nopatch""")
    gate()
    a("L_ht_nopatch:")
    XU = 40
    for i in range(8):
        a(f"v_lshlrev_b32 v{XU+2*i}, 16, v{hXP+i}\nv_and_b32 v{XU+2*i+1}, 0xffff0000, v{hXP+i}")
    srd(44, 24, 2097152)
    a(f"""v_and_b32 v2, 7, v22
    v_xor_b32 v2, v1, v2
    v_lshlrev_b32 v3, 8, v22
    v_lshl_add_u32 v4, v2, 4, v3
    v_xor_b32 v5, 64, v4                  ; q = 1: row + 4
    s_barrier                             ; T2
    s_barrier                             ; T3
    s_barrier                             ; T4
    s_barrier                             ; T5
    ds_read_b128 v[8:11], v4 offset:{L_SST}
    ds_read_b128 v[12:15], v5 offset:{L_SST + 1024}""")
    for q in range(2):
        a(f"s_waitcnt lgkmcnt({1-q})")
        for i in range(4):
            e = 8 * q + 2 * i
            a(f"""v_lshlrev_b32 v28, 16, v{8+4*q+i}
                  v_and_b32 v29, 0xffff0000, v{8+4*q+i}
                  v_fma_f32 v28, v28, v{hG+e}, v{XU+e}
                  v_fma_f32 v29, v29, v{hG+e+1}, v{XU+e+1}
                  v_cvt_pk_bf16_f32 v{8+4*q+i}, v28, v29""")
        a(f"buffer_store_dwordx4 v[{8+4*q}:{11+4*q}], v{hOA+q}, {SAUX}, 0 offen")
    stamp(14)
    if cfg.stamps:
        a("s_waitcnt vmcnt(0)")
    stamp(15)
    if cfg.probe:
        a(f"""s_sub_u32 s98, s98, s96
        s_mul_i32 s98, s98, {cfg.probe[2]}
        s_add_u32 s98, s98, {cfg.probe[1]}
        s_min_u32 s98, s98, 100000
    L_probe:
        s_sleep 4
        s_memrealtime s[100:101]
        s_waitcnt lgkmcnt(0)
        s_sub_u32 s100, s100, s96
        s_cmp_lt_u32 s100, s98
        s_cbranch_scc1 L_probe""")
    dump_stamps()
    a("s_endpgm")

    vXA, vWA = 144, 148
    vM, vRS, vDEN = 149, 150, 151
    vLANE, vL16 = 152, 153
    vT0 = 154
    CS = 160
    MF = 164
    t = vT0
    a(f"""L_compute:
    v_mov_b32 v{vLANE}, v0
    v_lshlrev_b32 v{vL16}, 4, v0
    v_and_b32 v1, 31, v0
    v_lshrrev_b32 v2, 5, v0              ; half
    v_bfe_u32 v3, v0, 1, 3
    v_xor_b32 v3, v3, v2
    s_lshl_b32 s30, {sT}, 12
    s_add_u32 s30, s30, {L_RING}
    v_lshl_add_u32 v4, v1, 7, s30""")
    for s in range(4):
        a(f"v_xor_b32 v5, {2*s}, v3\nv_lshl_add_u32 v{vXA+s}, v5, 4, v4")
    tr_addr(vWA, 0, 3, 4)
    a(f"""v_lshrrev_b32 v3, 2, v0
    v_xor_b32 v3, v3, v0
    v_and_b32 v3, 4, v3
    v_cmp_eq_u32 vcc, 0, v3
    v_mov_b32 v4, {sONE}""")
    for i in range(4):
        a(f"v_cndmask_b32 v{CS+i}, 0, v4, vcc")
    a("s_waitcnt lgkmcnt(0)")
    if cfg.stamps:
        a("s_mov_b32 s80, s78")
    srd(40, 28, WS_SIZE)
    a(f"""s_cmp_ge_u32 {sWV}, 8
    s_cbranch_scc1 L_bwave""")

    X, WK, WV, AK, AV, ASX, SQ0, SQ1, RB = 0, 16, 32, 48, 64, 80, 84, 88, 96
    for r in list(range(X + 12, X + 16)) + list(range(WK + 12, WK + 16)) + list(range(WV + 12, WV + 16)) + list(range(AK, SQ1 + 4)):
        a(f"v_mov_b32 v{r}, 0")
    srd(44, 26, 256)
    a(f"""v_mov_b32 v{t}, 0
    v_mov_b32 v{t+1}, 1
    s_lshl_b32 s30, s2, 2
    s_add_u32 s30, s30, {sT}
    s_cmp_lg_u32 s30, 1
    s_cbranch_scc1 L_a_noclear
    v_lshlrev_b32 v{t+2}, 7, v{vLANE}
    s_mov_b32 s30, {WS_FLAG}
    s_mov_b32 s31, {WS_FLAG + 8192}
    buffer_store_dword v{t}, v{t+2}, {SWS}, s30 offen sc1
    buffer_store_dword v{t}, v{t+2}, {SWS}, s31 offen sc1
    s_waitcnt vmcnt(0)
    s_mov_b64 exec, 1
    buffer_store_dword v{t+1}, v{t}, {SAUX}, 0 offen sc1
    s_mov_b64 exec, -1
L_a_noclear:
    s_barrier                             ; Ba""")

    def rdw(s, nxt):
        read_w(WK + 4 * s, vWA, L_WK + s * 1024 + (4096 if nxt else 0))
        read_w(WV + 4 * s, vWA, L_WV + s * 1024 + (4096 if nxt else 0))

    def rdx(s):
        a(f"ds_read_b128 v[{X+4*s}:{X+4*s+3}], v{vXA+s}")

    def sq(s, half):
        d = SQ1 if half else SQ0
        r = X + 4 * s + 2 * half
        a(f"v_mfma_f32_4x4x4_16b_bf16 v[{d}:{d+3}], v[{r}:{r+1}], v[{r}:{r+1}], v[{d}:{d+3}]")

    def M(s):
        mfma32(AK, WK + 4 * s, X + 4 * s, AK)
        sq(s, 0)
        mfma32(AV, X + 4 * s, WV + 4 * s, AV)
        sq(s, 1)
        mfma16(ASX, CS, X + 4 * s, ASX)

    for s in range(3):
        rdw(s, False)
    a("""s_mov_b32 s50, 0
    s_mov_b32 s52, 16384
    s_waitcnt lgkmcnt(0)
L_a_loop:
    s_barrier""")
    for s in range(3):
        rdx(s)
    M(3)
    a("s_waitcnt lgkmcnt(3)")
    rdx(3)
    rdw(3, False)
    a("s_waitcnt lgkmcnt(7)")
    M(0)
    rdw(0, True)
    a("s_waitcnt lgkmcnt(10)")
    M(1)
    rdw(1, True)
    a("s_waitcnt lgkmcnt(8)")
    M(2)
    rdw(2, True)
    a(f"""s_add_u32 s50, s50, 1
    s_cmp_eq_u32 s50, 5
    s_cselect_b32 s51, {(-65536) & 0xffffffff}, s52
    v_add_u32 v{vWA}, 4096, v{vWA}""")
    for s in range(4):
        a(f"v_add_u32 v{vXA+s}, s51, v{vXA+s}")
    a("""s_cmp_lt_u32 s50, 7
    s_cbranch_scc1 L_a_loop
    s_barrier                             ; B7""")
    stamp(3)
    SFK, SFV = 112, 116
    for s in range(3):
        rdx(s)
    M(3)
    a("s_waitcnt lgkmcnt(3)")
    rdx(3)
    rdw(3, False)
    a(f"""v_add_u32 v{t+2}, {L_SFR}, v{vL16}
    ds_read_b128 v[{SFK}:{SFK+3}], v{t+2}
    ds_read_b128 v[{SFV}:{SFV+3}], v{t+2} offset:1024""")
    for s in range(4):
        a(f"s_waitcnt lgkmcnt({9 - s})")
        sq(s, 0)
        mfma16(ASX, CS, X + 4 * s, ASX)
        sq(s, 1)
    a("""s_mov_b32 s52, 0xaaaaaaaa
    s_mov_b32 s53, 0xaaaaaaaa
    s_mov_b32 s54, 0xcccccccc
    s_mov_b32 s55, 0xcccccccc""")
    st = [f"v_add_f32 v{SQ0+i}, v{SQ0+i}, v{SQ1+i}" for i in range(4)]
    st += [f"v_cndmask_b32 v{SQ0}, v{SQ0}, v{SQ0+1}, s[52:53]",
           f"v_cndmask_b32 v{SQ0+2}, v{SQ0+2}, v{SQ0+3}, s[52:53]",
           f"v_mul_f32 v{t+2}, {f32(1/512)}, v{ASX}",
           f"v_cndmask_b32 v{SQ0}, v{SQ0}, v{SQ0+2}, s[54:55]",
           f"v_mov_b32 v{t+3}, v{SQ0}",
           f"v_cvt_pk_bf16_f32 v{vM}, 0, v{t+2}",
           f"v_cvt_pk_bf16_f32 v{MF}, -v{t+2}, -v{t+2}",
           f"v_permlane32_swap_b32 v{t+3}, v{SQ0}",
           f"v_add_f32 v{t+3}, v{t+3}, v{SQ0}",
           f"v_mul_f32 v{t+3}, {f32(1/512)}, v{t+3}",
           f"v_fma_f32 v{t+3}, -v{t+2}, v{t+2}, v{t+3}",
           f"v_max_f32 v{t+3}, 0, v{t+3}",
           f"v_cvt_pk_bf16_f32 v{t+3}, 0, v{t+3}",
           f"v_add_f32 v{t+3}, {f32(1e-5)}, v{t+3}",
           f"v_cvt_pk_bf16_f32 v{t+3}, 0, v{t+3}",
           f"v_sqrt_f32 v{t+3}, v{t+3}",
           f"v_mov_b32 v{MF+1}, v{MF}",
           f"v_cvt_pk_bf16_f32 v{vDEN}, 0, v{t+3}",
           f"v_rcp_f32 v{vRS}, v{vDEN}",
           f"v_mov_b32 v{MF+2}, v{MF}",
           f"v_mov_b32 v{MF+3}, v{MF}"]
    RF, OF_ = 120, 124
    st += [f"v_and_b32 v{t+2}, 0xffff0000, v{vRS}",
           f"v_sub_f32 v{t+3}, v{vRS}, v{t+2}",
           f"v_and_b32 v{t+4}, 0xffff0000, v{t+3}",
           f"v_sub_f32 v{t+3}, v{t+3}, v{t+4}",
           f"v_lshrrev_b32 v{t+2}, 16, v{t+2}",
           f"v_or_b32 v{RF}, v{t+2}, v{t+4}",
           f"v_lshrrev_b32 v{RF+1}, 16, v{t+3}"]
    pre = [f"v_cmp_gt_u32 vcc, 32, v{vLANE}", f"v_mov_b32 v{OF_}, {sONE}", f"v_mov_b32 v{RF+2}, 0", f"v_mov_b32 v{RF+3}, 0",
           f"v_cndmask_b32 v{OF_}, 0, v{OF_}, vcc", f"v_mov_b32 v{OF_+2}, 0", f"v_mov_b32 v{OF_+3}, 0", f"v_mov_b32 v{OF_+1}, v{OF_}"]
    st = pre + st
    big = []
    for s in range(4):
        big.append((AK, WK + 4 * s, X + 4 * s))
    for s in range(4):
        big.append((AV, X + 4 * s, WV + 4 * s))
    a("s_waitcnt lgkmcnt(0)")
    per = 5
    k = 0
    for n, (d, A_, B_) in enumerate(big):
        mfma32(d, A_, B_, d)
        for ins in st[k:k + per]:
            a(ins)
        k += per
    for ins in st[k:]:
        a(ins)
    mfma32(AK, SFK, MF, AK)
    mfma32(AV, MF, SFV, AV)
    mfma32(RB, RF, OF_)
    a(f"""s_lshl_b32 s50, {sP}, 18
    s_lshl_b32 s30, {sJ}, 13
    s_add_u32 s50, s50, s30
    s_lshl_b32 s30, {sT}, 11
    s_add_u32 s50, s50, s30
    s_add_u32 s51, s50, 0x20000
    v_and_b32 v{t+2}, 0x33, v{vLANE}
    v_bfe_u32 v{t+3}, v{vLANE}, 2, 1
    v_lshl_add_u32 v{t+2}, v{t+3}, 3, v{t+2}
    v_bfe_u32 v{t+3}, v{vLANE}, 3, 1
    v_lshl_add_u32 v{t+2}, v{t+3}, 2, v{t+2}
    v_lshlrev_b32 v{t+2}, 4, v{t+2}""")
    for i in range(16):
        a(f"v_mul_f32 v{AK+i}, v{vRS}, v{AK+i}")
    for i in range(8):
        a(f"v_cvt_pk_bf16_f32 v{X+i}, v{AK+2*i}, v{AK+2*i+1}")
    a(f"""buffer_store_dwordx4 v[{X}:{X+3}], v{t+2}, {SWS}, s50 offen sc1
    buffer_store_dwordx4 v[{X+4}:{X+7}], v{t+2}, {SWS}, s51 offen sc1
    v_and_b32 v{t+3}, 0x2f, v{vLANE}
    v_lshlrev_b32 v{t+3}, 4, v{t+3}
    v_bfe_u32 v{t+4}, v{vLANE}, 4, 1
    v_lshl_add_u32 v{t+5}, v{t+4}, 13, v{t+3}
    v_lshl_add_u32 v{t+3}, v{t+4}, 17, v{t+3}""")
    for i in range(16):
        a(f"v_mul_f32 v{AV+i}, v{RB+i}, v{AV+i}")
    for i in range(8):
        a(f"v_cvt_pk_bf16_f32 v{X+8+i}, v{AV+2*i}, v{AV+2*i+1}")
    a(f"""buffer_store_dwordx4 v[{X+8}:{X+11}], v{t+3}, {SWS}, s50 offen offset:1024 sc1
    buffer_store_dwordx4 v[{X+12}:{X+15}], v{t+3}, {SWS}, s50 offen offset:1280 sc1""")
    stamp(2)
    a(f"""v_add_u32 v{t+2}, s30, v{t+2}
    v_add_u32 v{t+5}, s30, v{t+5}
    ds_write_b128 v{t+2}, v[{X}:{X+3}] offset:{L_OWNKV}
    ds_write_b128 v{t+2}, v[{X+4}:{X+7}] offset:{L_OWNKV + 8192}
    ds_write_b128 v{t+5}, v[{X+8}:{X+11}] offset:{L_OWNKV + 1024}
    ds_write_b128 v{t+5}, v[{X+12}:{X+15}] offset:{L_OWNKV + 1280}
    v_and_b32 v{t+4}, 31, v{vLANE}
    s_lshl_b32 s30, {sT}, 5
    v_add_lshl_u32 v{t+4}, v{t+4}, s30, 3
    v_add_u32 v{t+4}, {L_STAT}, v{t+4}
    v_mov_b32 v{t+2}, v{vM}
    v_mov_b32 v{t+3}, v{vDEN}
    ds_write_b64 v{t+4}, v[{t+2}:{t+3}]
    s_waitcnt lgkmcnt(0)
    s_barrier                             ; B8""")
    stamp(4)
    a(f"""v_mov_b32 v{t+2}, {L_CTR}
    s_lshl_b32 s57, {sP}, 7
    s_add_u32 s57, s57, {WS_FLAG + F1*128}
    s_waitcnt vmcnt(0)
    s_mov_b64 exec, 1
    ds_add_rtn_u32 v{t+3}, v{t+2}, v{t+1}
    s_mov_b64 exec, -1
    s_waitcnt lgkmcnt(0)
    v_readfirstlane_b32 s30, v{t+3}
    s_cmp_lg_u32 s30, 3
    s_cbranch_scc1 L_attn_pre""")
    stamp(1)
    signal("s57", t, t + 1)
    poll("s57", 16, "f1", t, t + 3, sleep=1)
    a("s_branch L_attn_pre")

    XF, WF, WF1, ACC, EF, EF1 = 0, 80, 88, 96, 112, 120
    ASK, ASV, AR = 128, 132, 136
    a(f"""L_bwave:
    s_cmp_lg_u32 {sT}, 0
    s_cbranch_scc1 L_b_noinit""")
    srd(44, 16, 1024)
    a(f"""v_lshrrev_b32 v1, 3, v0
    v_add_u32 v1, {sC0}, v1
    v_and_b32 v1, 7, v1
    v_lshlrev_b32 v1, 7, v1
    v_and_b32 v3, 7, v0
    v_lshl_add_u32 v1, v3, 4, v1
    s_mov_b32 m0, {L_WR}
    v_mov_b32 v4, 0
    buffer_load_dwordx4 v1, {SAUX}, 0 offen lds
    v_mov_b32 v5, 0
    v_mov_b32 v6, 0
    v_mov_b32 v7, 0
    v_add_u32 v1, {L_ZERO}, v{vL16}
    ds_write_b128 v1, v[4:7]
    ds_write_b128 v1, v[4:7] offset:256
    s_waitcnt lgkmcnt(0)
L_b_noinit:""")
    srd(44, 26, 256)
    a(f"""s_lshl_b32 s30, {sT}, 10
    v_add_u32 v{t}, s30, v{vWA}
    v_lshrrev_b32 v1, 5, v0
    v_lshlrev_b32 v1, 4, v1
    v_add_u32 v2, {L_WR}, v1
    v_add_u32 v1, {L_ZERO}, v1
    v_cndmask_b32 v{t+1}, v1, v2, vcc
    s_barrier                             ; Ba""")

    def ssum(n):
        read_w(WF, t, L_WK + n * 4096)
        read_w(WF + 4, t, L_WV + n * 4096)

    def ssum2(n):
        mfma16(ASK, CS, WF, None if n == 0 else ASK)
        mfma16(ASV, CS, WF + 4, None if n == 0 else ASV)

    ssum(0)
    a("s_waitcnt lgkmcnt(0)")
    ssum2(0)
    for n in range(7):
        a(f"s_barrier                             ; B{n}")
        ssum(n + 1)
        if n < 5:
            for s in range(4):
                r = XF + 16 * n + 4 * s
                if n < 4:
                    a(f"ds_read_b128 v[{r}:{r+3}], v{vXA+s} offset:{n*16384}")
                else:
                    a(f"v_add_u32 v{t+2}, 65536, v{vXA+s}\nds_read_b128 v[{r}:{r+3}], v{t+2}")
        if n == 5:
            a(f"""s_cmp_lg_u32 {sT}, 0
            s_cbranch_scc1 L_b_noclr
            v_mov_b32 v{t+2}, 0
            s_mov_b64 exec, 1
            buffer_load_dword v{t+5}, v{t+2}, {SAUX}, 0 offen sc1
            s_mov_b64 exec, -1
        L_b_noclr:""")
        a("s_waitcnt lgkmcnt(0)")
        ssum2(n + 1)
    a(f"""v_cmp_gt_u32 vcc, 32, v{vLANE}
    v_and_b32 v{EF}, 31, v{vLANE}
    v_lshrrev_b32 v{EF+1}, 5, v{vLANE}
    v_lshlrev_b32 v{EF+1}, 10, v{EF+1}
    v_lshl_add_u32 v{EF}, v{EF}, 4, v{EF+1}
    s_lshr_b32 s30, {sT}, 1
    s_lshl_b32 s30, s30, 9
    s_and_b32 s31, {sT}, 1
    s_lshl_b32 s31, s31, 3
    s_add_u32 s30, s30, s31
    s_add_u32 s30, s30, {L_SFR}
    v_add_u32 v{EF}, s30, v{EF}
    v_cndmask_b32 v{EF+1}, v{ASV}, v{ASK}, vcc""")
    split3(EF + 2, EF + 1, t + 2)
    a(f"""ds_write_b64 v{EF}, v[{EF+2}:{EF+3}]
    s_waitcnt lgkmcnt(0)
    s_barrier                             ; B7
    s_cmp_lg_u32 {sT}, 0
    s_cbranch_scc1 L_b_clrd
    s_waitcnt vmcnt(0)
    v_readfirstlane_b32 s30, v{t+5}
    v_mov_b32 v{t+2}, 0
    s_cmp_lg_u32 s30, 0
    s_cbranch_scc1 L_b_clrd""")
    poll("0", 1, "clr", t + 2, t + 5, sleep=1, srd_=SAUX)
    a(f"""L_b_clrd:
    v_add_u32 v{vWA}, {L_WQ}, v{vWA}
    v_and_b32 v{t+4}, 31, v{vLANE}
    s_lshl_b32 s30, {sT}, 5
    v_add_u32 v{t}, s30, v{t+4}
    v_lshlrev_b32 v{t+4}, 3, v{t}
    v_add_u32 v{t+4}, {L_STAT}, v{t+4}
    v_add_u32 v{t+2}, {L_WR}, v{vL16}
    v_mov_b32 v{MF}, {sONE}
    v_mov_b32 v{MF+1}, {sONE}
    v_mov_b32 v{MF+2}, {sONE}
    v_mov_b32 v{MF+3}, {sONE}
    s_barrier                             ; B8""")
    stamp(4)
    a(f"""ds_read_b128 v[{EF1}:{EF1+3}], v{t+2}
    ds_read_b64 v[{t+2}:{t+3}], v{t+4}""")

    def qreads(g):
        wb = WF if g % 2 == 0 else WF1
        eb = EF if g % 2 == 0 else EF1
        for s in range(2):
            read_w(wb + 4 * s, vWA, (2 * g + s) * 1024)
            a(f"ds_read_b128 v[{eb+4*s}:{eb+4*s+3}], v{t+1} offset:{(2*g + s)*32}")
    qreads(0)
    a("s_waitcnt lgkmcnt(6)")
    mfma16(ASV, MF, EF1)
    a(f"""v_mov_b32 v{vM}, v{t+2}
    v_rcp_f32 v{vRS}, v{t+3}""")
    for g in range(16):
        wb = WF if g % 2 == 0 else WF1
        eb = EF if g % 2 == 0 else EF1
        n, h = g >> 1, g & 1
        a("s_waitcnt lgkmcnt(0)")
        for s in range(2):
            x = XF + 16 * (n if n < 5 else n - 5) + 4 * (2 * h + s)
            first = (g == 0 and s == 0)
            mfma32(ACC, wb + 4 * s, x, None if first else ACC)
            if s == 0:
                if g + 1 < 16:
                    qreads(g + 1)
                if n in (2, 3, 4):
                    for s2 in range(2):
                        r = XF + 16 * (n - 2) + 4 * (2 * h + s2)
                        a(f"ds_read_b128 v[{r}:{r+3}], v{vXA + 2*h + s2} offset:{(n - 2)*16384}")
            mfma16(ASK, CS, wb + 4 * s, None if first else ASK)
            mfma16(AR, eb + 4 * s, x, None if first else AR)
    for r in (8, 4, 2, 1):
        a(f"v_add_f32_dpp v{ASV}, v{ASV}, v{ASV} row_ror:{r} row_mask:0xf bank_mask:0xf")
    a(f"""v_cvt_pk_bf16_f32 v{MF}, -v{vM}, -v{vM}
    v_cndmask_b32 v{MF}, 0, v{MF}, vcc
    v_mov_b32 v{EF+2}, 0
    v_mov_b32 v{EF+3}, 0
    v_mov_b32 v{MF+1}, v{MF}""")
    split3(EF, ASK, t + 2)
    mfma32(ACC, EF, MF, ACC)
    a(f"""v_fma_f32 v{AR}, -v{vM}, v{ASV}, v{AR}
    v_mul_f32 v{AR}, v{vRS}, v{AR}
    v_cvt_pk_bf16_f32 v{AR}, 0, v{AR}
    v_ashrrev_i32 v{AR+1}, 31, v{AR}
    v_or_b32 v{AR+1}, 0x80000000, v{AR+1}
    v_xor_b32 v{AR}, v{AR}, v{AR+1}
    v_and_b32 v{AR}, 0xffff0000, v{AR}
    s_lshl_b32 s30, {sJ}, 7
    s_sub_u32 s30, 0x7ff, s30
    v_sub_u32 v{AR+1}, s30, v{t}
    v_or_b32 v{AR}, v{AR}, v{AR+1}
    v_mul_f32 v{t+2}, {f32(CQ)}, v{vRS}
    s_lshl_b32 s30, {sT}, 10
    v_add_u32 v{t+3}, s30, v{vL16}""")
    for i in range(16):
        a(f"v_mul_f32 v{ACC+i}, v{t+2}, v{ACC+i}")
    for i in range(8):
        a(f"v_cvt_pk_bf16_f32 v{WF+i}, v{ACC+2*i}, v{ACC+2*i+1}")
    a(f"""ds_write_b128 v{t+3}, v[{WF}:{WF+3}] offset:{L_Q}
    ds_write_b128 v{t+3}, v[{WF+4}:{WF+7}] offset:{L_Q + 4096}""")
    wavemax_u32("s50", AR, AR + 1, 2)
    a(f"""v_cmp_eq_u32 vcc, s50, v{AR}
    v_cndmask_b32 v{AR}, v{AR}, v{EF+2}, vcc""")
    wavemax_u32("s51", AR, AR + 1, 2)
    a(f"""s_lshl_b32 s30, {sT}, 3
    s_add_u32 s30, s30, {L_KEY}
    v_mov_b32 v{AR}, s50
    v_mov_b32 v{AR+1}, s51
    v_mov_b32 v{AR+2}, s30
    ds_write_b64 v{AR+2}, v[{AR}:{AR+1}]""")
    stamp(1)

    SA, SB, O0, O1, Q0, Q1, RING = 0, 16, 32, 48, 64, 68, 72
    vIDX = 144
    sHH, sQP, sKH = "s58", "s59", "s60"
    sVM = "s[62:63]"

    def slot(s):
        b = RING + 24 * s
        return dict(K=[b, b + 12], V=[[b + 4, b + 8], [b + 16, b + 20]])

    def ones(s):
        for k in range(2):
            for i in range(8):
                a(f"v_mov_b32 v{slot(s)['V'][k][0] + i}, {sONE}")

    def exp(r):
        a(f"v_exp_f32 v{r}, v{r}")

    def smf(o, v, p):
        a(f"v_smfmac_f32_32x32x32_bf16 v[{o}:{o+15}], v[{v}:{v+3}], v[{p}:{p+7}], v{vIDX}")

    def qk(sreg, k, q):
        mfma32(sreg, k, q)

    def step(cur, oth, ocur, ooth, vprev1, knext, qoth, vcur0, h1=None, h2=None, before_qk=None):
        exp(cur); exp(cur + 1)
        if vprev1 is not None:
            smf(ooth, vprev1, oth + 8)
        if h1:
            h1()
        for i in range(2, 5):
            exp(cur + i)
        if before_qk:
            before_qk()
        qk(oth, knext, qoth)
        for i in range(5, 10):
            exp(cur + i)
        smf(ocur, vcur0, cur)
        if h2:
            h2()
        for i in range(10, 16):
            exp(cur + i)

    def gl_addr():
        a("""s_add_u32 s61, s61, 8192
             s_and_b32 s61, s61, 0x1ffff""")

    def gl_k(s):
        S = slot(s)
        a(f"""s_add_u32 s65, s61, s64
              buffer_load_dwordx4 v[{S['K'][0]}:{S['K'][0]+3}], v{vL16}, {SWS}, s65 offen sc1
              buffer_load_dwordx4 v[{S['K'][1]}:{S['K'][1]+3}], v{vL16}, {SWS}, s65 offen offset:2048 sc1""")

    def gl_v(s):
        S = slot(s)
        a(f"s_mov_b64 exec, {sVM}")
        for k in range(2):
            for i in range(2):
                r = S["V"][k][i]
                a(f"buffer_load_dwordx4 v[{r}:{r+3}], v{vL16}, {SWS}, s65 offen offset:{2048*k + 1024 + 256*i} sc1")
        a("s_mov_b64 exec, -1")

    def pair(s, prev, nxt, load=None, last_h2=None):
        S = slot(s)
        step(SA, SB, O0, O1, None if prev is None else slot(prev)["V"][1][1], S["K"][0], Q1, S["V"][0][0],
             h1=(lambda: gl_k(load)) if load is not None else None, h2=(lambda: gl_v(load)) if load is not None else None)
        step(SB, SA, O1, O0, S["V"][0][1], S["K"][1], Q0, S["V"][0][0], h1=gl_addr if load is not None else None)
        step(SA, SB, O0, O1, S["V"][0][1], S["K"][1], Q1, S["V"][1][0])
        step(SB, SA, O1, O0, S["V"][1][1], slot(nxt)["K"][0], Q0, S["V"][1][0], h1=lambda: a("s_waitcnt vmcnt(6)"), h2=last_h2)

    a(f"""L_attn_pre:
    s_sub_u32 s30, {sWV}, 4
    s_lshr_b32 {sHH}, s30, 2
    s_bfe_u32 {sQP}, s30, 0x10001
    s_and_b32 {sKH}, s30, 1
    s_mov_b32 s62, 0xffff
    s_mov_b32 s63, 0xffff
    s_lshl_b32 s30, {sHH}, 12
    s_lshl_b32 s31, {sQP}, 11
    s_add_u32 s30, s30, s31
    v_add_u32 v{t}, s30, v{vL16}
    s_lshl_b32 s30, {sHH}, 13
    s_lshl_b32 s31, {sKH}, 12
    s_add_u32 s30, s30, s31
    v_add_u32 v{t+1}, s30, v{vL16}
    s_lshl_b32 s64, {sP}, 1
    s_add_u32 s64, s64, {sHH}
    s_lshl_b32 s64, s64, 17
    s_lshl_b32 s61, {sJ}, 13
    s_add_u32 s61, s61, s31
    v_mov_b32 v{vIDX}, 0xdddddddd""")
    for s in range(3):
        ones(s)
    for i in range(32):
        a(f"v_mov_b32 v{O0+i}, 0")
    gl_addr()
    a("""s_waitcnt lgkmcnt(0)
    s_barrier                             ; B10""")
    stamp(5)
    S2 = slot(2)
    a(f"""ds_read_b128 v[{Q0}:{Q0+3}], v{t} offset:{L_Q}
    ds_read_b128 v[{S2['K'][0]}:{S2['K'][0]+3}], v{t+1} offset:{L_OWNKV}
    ds_read_b128 v[{Q1}:{Q1+3}], v{t} offset:{L_Q + 1024}
    ds_read_b128 v[{S2['K'][1]}:{S2['K'][1]+3}], v{t+1} offset:{L_OWNKV + 2048}
    s_mov_b64 exec, {sVM}""")
    for k in range(2):
        for i in range(2):
            r = S2["V"][k][i]
            a(f"ds_read_b128 v[{r}:{r+3}], v{t+1} offset:{L_OWNKV + 2048*k + 1024 + 256*i}")
    a("s_mov_b64 exec, -1")
    gl_k(0)
    gl_v(0)
    gl_addr()
    a("s_waitcnt lgkmcnt(0)")
    qk(SA, S2["K"][0], Q0)
    a("s_barrier                             ; B11")
    gl_k(1)
    gl_v(1)
    gl_addr()
    if cfg.prio:
        a("s_setprio 3")
    a(f"s_mov_b32 s66, {cfg.iters}")
    pair(2, None, 0)
    stamp(6)
    a(".p2align 3\nL_attn:")

    def loop_ctl():
        a("s_sub_u32 s66, s66, 1")
    for s in range(3):
        pair(s, (s + 2) % 3, (s + 1) % 3, load=(s + 2) % 3, last_h2=loop_ctl if s == 2 else None)
        if cfg.prio and s < 2:
            a(f"""s_cmp_lg_u32 s66, 1
            s_cbranch_scc1 L_np{s}
            s_setprio {1 - s}
        L_np{s}:""")
    if cfg.prio:
        a("""s_cmp_lg_u32 s66, 1
        s_cbranch_scc1 L_np2
        s_setprio 2
    L_np2:""")
    a("""s_cmp_lg_u32 s66, 0
    s_cbranch_scc1 L_attn""")
    smf(O1, slot(2)["V"][1][1], SB + 8)
    stamp(7)

    a(f"""s_sub_u32 s30, {sWV}, 4
    s_mul_i32 s31, s30, 2304
    s_xor_b32 s30, s30, 1
    s_mul_i32 s30, s30, 2304
    s_add_u32 s31, s31, {L_CMB}
    s_add_u32 s30, s30, {L_CMB}
    v_add_u32 v{t}, s31, v{vL16}
    v_add_u32 v{t+1}, s30, v{vL16}
    v_lshlrev_b32 v{t+4}, 2, v{vLANE}
    v_add_u32 v{t+2}, s31, v{t+4}
    v_add_u32 v{t+3}, s30, v{t+4}
    s_cmp_eq_u32 {sKH}, 0
    s_cbranch_scc1 L_cmb0
    ds_write_b128 v{t}, v[{O0}:{O0+3}]
    ds_write_b128 v{t}, v[{O0+4}:{O0+7}] offset:1024
    ds_write_b32 v{t+2}, v{O0+8} offset:2048""")
    for i in range(9):
        a(f"v_mov_b32 v{O0+i}, v{O1+i}")
    for i in range(4):
        a(f"v_mov_b32 v{Q0+i}, v{Q1+i}")
    a(f"""s_branch L_cmb1
L_cmb0:
    ds_write_b128 v{t}, v[{O1}:{O1+3}]
    ds_write_b128 v{t}, v[{O1+4}:{O1+7}] offset:1024
    ds_write_b32 v{t+2}, v{O1+8} offset:2048
L_cmb1:
    s_waitcnt lgkmcnt(0)
    s_barrier                             ; T1""")
    stamp(9)
    a(f"""ds_read_b128 v[0:3], v{t+1}
    ds_read_b128 v[4:7], v{t+1} offset:1024
    ds_read_b32 v8, v{t+3} offset:2048
    s_lshl_b32 s30, {sJ}, 2
    s_lshl_b32 s31, {sQP}, 1
    s_add_u32 s30, s30, s31
    s_add_u32 s30, s30, {sKH}
    s_lshl_b32 s30, s30, 15
    s_lshr_b32 s31, s64, 7               ; head * 1024
    s_add_u32 s30, s30, s31
    s_add_u32 s67, s30, {WS_OF}
    s_waitcnt lgkmcnt(0)""")
    for i in range(9):
        a(f"v_add_f32 v{O0+i}, v{i}, v{O0+i}")
    a(f"""v_maximum3_f32 v0, |v{O0}|, |v{O0+1}|, |v{O0+2}|
    v_maximum3_f32 v1, |v{O0+3}|, |v{O0+4}|, |v{O0+5}|
    v_maximum3_f32 v0, |v{O0+6}|, |v{O0+7}|, v0
    v_cmp_nle_f32 vcc, {f32(2.0**-40)}, v{O0+8}
    v_maximum3_f32 v0, v0, v1, v1
    s_mov_b64 s[50:51], vcc
    v_cmp_nge_f32 vcc, {f32(2.0**40)}, v{O0+8}
    v_rcp_f32 v9, v{O0+8}
    s_or_b64 s[50:51], s[50:51], vcc
    v_cmp_nge_f32 vcc, {f32(2.0**120)}, v0
    s_nop 0
    s_or_b64 s[50:51], s[50:51], vcc""")
    a("s_branch L_slow" if cfg.force_slow else "s_cbranch_scc1 L_slow")
    a("L_norm:")
    for i in range(8):
        a(f"v_mul_f32 v{O0+i}, v9, v{O0+i}")
    for i in range(4):
        a(f"v_cvt_pk_bf16_f32 v{160+i}, v{O0+2*i}, v{O0+2*i+1}")
    a(f"buffer_store_dwordx4 v[160:163], v{vL16}, {SWS}, s67 offen sc1")
    stamp(10)
    WOF, PACC, OFR = 0, 128, 144
    a(f"""s_lshr_b32 s30, {sP}, 2
    s_lshl_b32 s31, {sJ}, 2
    s_add_u32 s30, s30, s31
    s_lshl_b32 s30, s30, 15
    s_sub_u32 s31, {sWV}, 4
    s_lshl_b32 s31, s31, 12
    s_add_u32 s68, s30, s31
    s_add_u32 s68, s68, {WS_OF}
    s_add_u32 s69, s31, {L_OST}
    s_cmp_ge_u32 {sWV}, 8
    s_cbranch_scc1 L_tail_b
    v_lshrrev_b32 v{t}, 5, v{vLANE}
    v_bfe_u32 v{t+1}, v{vLANE}, 2, 2
    v_lshl_add_u32 v{t}, v{t}, 2, v{t+1}
    v_lshlrev_b32 v{t}, 6, v{t}           ; (4*half + r) * 64
    v_and_b32 v{t+1}, 1, v{vLANE}
    v_lshl_add_u32 v{t}, v{t+1}, 5, v{t}
    v_bfe_u32 v{t+1}, v{vLANE}, 4, 1
    v_lshl_add_u32 v{t}, v{t+1}, 4, v{t}
    v_bfe_u32 v{t+1}, v{vLANE}, 1, 1
    v_lshl_add_u32 v{t}, v{t+1}, 3, v{t}
    s_lshl_b32 s30, {sT}, 15
    v_add_u32 v{t}, s30, v{t}
    s_waitcnt vmcnt(1)""")
    for hd in range(32):
        read_w(WOF + 4 * hd, t, hd * 1024, second=512)
        if hd % 6 == 5:
            a("s_waitcnt lgkmcnt(2)")
    a(f"""v_and_b32 v{t}, 31, v{vLANE}
    v_lshrrev_b32 v{t+1}, 5, v{vLANE}
    s_lshl_b32 s30, {sT}, 2
    v_lshl_add_u32 v{t+1}, v{t+1}, 1, s30
    v_and_b32 v{t+2}, 7, v{t}
    v_xor_b32 v{t+1}, v{t+1}, v{t+2}
    v_lshlrev_b32 v{t}, 8, v{t}
    v_lshl_add_u32 v164, v{t+1}, 4, v{t}
    v_xor_b32 v165, 16, v164
    v_mov_b32 v166, v{vL16}
    s_waitcnt vmcnt(0)
    s_barrier                             ; T2
    s_waitcnt lgkmcnt(0)
    s_barrier                             ; T3""")
    stamp(11)

    def stage_o(addr):
        a("s_mov_b32 m0, s69\ns_nop 0")
        for i in range(4):
            a(f"buffer_load_dwordx4 v{addr}, {SWS}, s68 offen offset:{1024*i} sc1 lds")
        a("""s_waitcnt vmcnt(0)
        s_barrier                             ; T4""")
    stage_o(166)
    stamp(12)
    for hd in range(3):
        a(f"ds_read_b128 v[{OFR+4*hd}:{OFR+4*hd+3}], v166 offset:{L_OST + hd*1024}")
    for hd in range(32):
        if hd + 3 < 32:
            r = OFR + 4 * ((hd + 3) % 4)
            a(f"ds_read_b128 v[{r}:{r+3}], v166 offset:{L_OST + (hd+3)*1024}")
        a(f"s_waitcnt lgkmcnt({min(3, 31 - hd)})")
        mfma32(PACC, WOF + 4 * hd, OFR + 4 * (hd % 4), None if hd == 0 else PACC)
    for i in range(8):
        a(f"v_cvt_pk_bf16_f32 v{i}, v{PACC+2*i}, v{PACC+2*i+1}")
    a(f"""ds_write_b128 v164, v[0:3] offset:{L_SST}
    ds_write_b128 v165, v[4:7] offset:{L_SST}
    s_waitcnt lgkmcnt(0)
    s_barrier                             ; T5""")
    stamp(13)
    dump_stamps()
    a("s_endpgm")

    a(f"""L_tail_b:
    v_mov_b32 v{t}, 0
    v_mov_b32 v{t+1}, 1
    s_lshl_b32 s57, {sJ}, 7
    s_add_u32 s57, s57, {WS_FLAG + F5*128}
    s_waitcnt vmcnt(0)
    s_barrier                             ; T2
    s_cmp_lg_u32 {sT}, 0
    s_cbranch_scc1 L_tail_b3""")
    signal("s57", t, t + 1)
    poll("s57", 16, "f5", t, t + 3, sleep=1)
    a("""L_tail_b3:
    s_barrier                             ; T3""")
    stamp(11)
    stage_o(vL16)
    stamp(12)
    dump_stamps()
    a("s_endpgm")

    K_, V_ = slot(0)["K"][0], slot(0)["V"][0]
    a(f"""L_slow:
    s_waitcnt vmcnt(0)
    v_mov_b32 v{t}, 0xff800000
    s_mov_b32 s61, 0
L_slow1:
    s_add_u32 s65, s61, s64
    buffer_load_dwordx4 v[{K_}:{K_+3}], v{vL16}, {SWS}, s65 offen sc1
    s_add_u32 s61, s61, 2048
    s_waitcnt vmcnt(0)""")
    qk(SA, K_, Q0)
    for i in range(8):
        a(f"v_max3_f32 v{t}, v{SA+2*i}, v{SA+2*i+1}, v{t}")
    a(f"""s_cmp_lt_u32 s61, 0x20000
    s_cbranch_scc1 L_slow1
    v_mov_b32 v{t+1}, v{t}
    v_permlane32_swap_b32 v{t}, v{t+1}
    v_max_f32 v{t}, v{t}, v{t+1}""")
    for i in range(16):
        a(f"v_sub_f32 v{SB+i}, 0, v{t}\nv_mov_b32 v{O0+i}, 0")
    a(f"""s_mov_b32 s61, 0
L_slow2:
    s_add_u32 s65, s61, s64
    buffer_load_dwordx4 v[{K_}:{K_+3}], v{vL16}, {SWS}, s65 offen sc1
    s_mov_b64 exec, {sVM}
    buffer_load_dwordx4 v[{V_[0]}:{V_[0]+3}], v{vL16}, {SWS}, s65 offen offset:1024 sc1
    buffer_load_dwordx4 v[{V_[1]}:{V_[1]+3}], v{vL16}, {SWS}, s65 offen offset:1280 sc1
    s_mov_b64 exec, -1
    s_add_u32 s61, s61, 2048
    s_waitcnt vmcnt(0)""")
    mfma32(SA, K_, Q0, SB)
    for i in range(16):
        exp(SA + i)
    smf(O0, V_[0], SA)
    smf(O0, V_[1], SA + 8)
    a(f"""s_cmp_lt_u32 s61, 0x20000
    s_cbranch_scc1 L_slow2
    s_nop 11
    v_rcp_f32 v9, v{O0+8}
    s_branch L_norm""")
    return finish(a, cfg)


def finish(a, cfg):
    a("L_exit:\ns_endpgm")
    body, log = fix_hazards(a.text(), fix=True, verbose=cfg.verbose)
    head = open("cdna_kernels/" + NAME + ".s.ref").read().split("; Override launch")[0]
    head += f"; @launch grid=(256,1,1) block=(768,1,1) lds={LDS_BYTES}\n"
    tail = f""".section .rodata,"a"
.p2align 6
.amdhsa_kernel {NAME}_kernel
  .amdhsa_next_free_vgpr 168
  .amdhsa_next_free_sgpr 102
  .amdhsa_accum_offset 168
  .amdhsa_group_segment_fixed_size 0
  .amdhsa_kernarg_size 88
  .amdhsa_user_sgpr_count 2
  .amdhsa_user_sgpr_kernarg_segment_ptr 1
  .amdhsa_system_sgpr_workgroup_id_x 1
  .amdhsa_float_denorm_mode_32 3
.end_amdhsa_kernel
"""
    return head + body + tail


if __name__ == "__main__":
    cfg = Cfg()
    out = sys.argv[1]
    for kv in sys.argv[2:]:
        k, v = kv.split("=")
        setattr(cfg, k, eval(v))
    open(out, "w").write(gen(cfg))
```

```python
import sys
import struct
from asmlib import Asm, fix_hazards

NAME = "recurrent_scan__softmax_full_mha__moe_arch_mod__prompt"

WS_KV = 0
WS_OF = 4 << 20
WS_FLAG = 6 << 20
WS_CAND = (6 << 20) + 0x10000
WS_STAT = (6 << 20) + 0x20000
WS_P1 = (6 << 20) + 0x80000
WS_P2 = (6 << 20) + 0xC0000
WS_DBG = 8 << 20
WS_SIZE = 268435456
F1, F2, F3, F4, F5, FX, FL = 0, 16, 32, 64, 72, 88, 104

L_WK, L_WV, L_RING = 0, 32768, 65536
L_WQ = L_RING + 3 * 16384
L_OWNKV = 0
L_Q = 32768
L_WO = 65536
L_GU = 128 * 1024
L_DN = 144 * 1024
L_CMB = 0
L_OST = L_WO
L_SST = 56 * 1024
L_MISC = 152 * 1024
L_WR = L_MISC
L_ZERO = L_MISC + 1024
L_CTR = L_MISC + 2048
L_STAT = L_MISC + 2304
L_SFR = L_MISC + 3328
L_KEY = L_MISC + 5376
L_XS = L_MISC + 5440
L_Y = L_MISC + 6144
LDS_BYTES = 163840

CQ = 0.25 * 1.4426950408889634
LOG2E = 1.4426950408889634


def f32(x):
    return "0x%08x" % struct.unpack("<I", struct.pack("<f", x))[0]


class Cfg:
    stamps = False
    L = 2
    rot = 7
    rotp = 1
    rotx = 1
    wq1 = 2
    ntx = ''
    spin_max = 200000
    verbose = False
    force_slow = False
    prio = 1
    x1 = 0
    pxor = 0
    local = 1
    wo_win = 6
    gu_win = 4
    nocold = 0
    ntw = ''
    probe = None
    clk = 's_memtime'
    iters = 3


def gen(cfg):
    a = Asm()
    L = cfg.L
    sP, sJ, sWV, sT, sC0 = "s3", "s4", "s5", "s6", "s7"
    SX, SW, SWS, SAUX = "s[32:35]", "s[36:39]", "s[40:43]", "s[44:47]"
    sONE = "s48"

    def srd(base, ptr, size):
        a(f"""s_mov_b32 s{base}, s{ptr}
              s_mov_b32 s{base+1}, s{ptr+1}
              s_mov_b32 s{base+2}, {size}
              s_mov_b32 s{base+3}, 0x20000""")

    def stamp(i):
        if cfg.probe and cfg.probe[0] == i:
            a("s_memrealtime s[98:99]\ns_waitcnt lgkmcnt(0)")
        if cfg.stamps:
            a(f"{cfg.clk} s[78:79]\ns_waitcnt lgkmcnt(0)\ns_mov_b32 s{80+i}, s78")

    def dump_stamps():
        if cfg.stamps:
            a(f"""s_mul_i32 s78, s2, 12
                  s_add_u32 s78, s78, {sWV}
                  s_lshl_b32 s78, s78, 6
                  s_add_u32 s78, s78, {WS_DBG}
                  v_mov_b32 v0, 0""")
            for g in range(4):
                for i in range(4):
                    a(f"v_mov_b32 v{4+i}, s{80+4*g+i}")
                a(f"buffer_store_dwordx4 v[4:7], v0, {SWS}, s78 offen offset:{16*g}")
                a("s_nop 1")
            a("s_waitcnt vmcnt(0)")

    def signal(line_sgpr, vz, vone):
        a(f"""s_mov_b64 exec, 1
              buffer_atomic_add v{vone}, v{vz}, {SWS}, {line_sgpr} offen sc1
              s_mov_b64 exec, -1""")

    def poll(line_sgpr, target, tag, vz, vt, sleep=2, srd_=None):
        a(f"""s_mov_b32 s56, 0
              s_mov_b64 exec, 1
        L_poll_{tag}:
              buffer_load_dword v{vt}, v{vz}, {srd_ or SWS}, {line_sgpr} offen sc1
              s_waitcnt vmcnt(0)
              v_readfirstlane_b32 s30, v{vt}
              s_add_u32 s56, s56, 1
              s_cmp_ge_u32 s30, {target}
              s_cbranch_scc1 L_polld_{tag}
              s_sleep {sleep}
              s_cmp_lt_u32 s56, {cfg.spin_max}
              s_cbranch_scc1 L_poll_{tag}
        L_polld_{tag}:
              s_mov_b64 exec, -1""")

    def rowmax_u32(dst, src):
        a(f"v_max_u32_dpp v{dst}, v{src}, v{src} row_ror:8 row_mask:0xf bank_mask:0xf")
        for r in (4, 2, 1):
            a(f"v_max_u32_dpp v{dst}, v{dst}, v{dst} row_ror:{r} row_mask:0xf bank_mask:0xf")

    def wavemax_u32(sdst, src, tmp, rows):
        rowmax_u32(tmp, src)
        a(f"v_readlane_b32 {sdst}, v{tmp}, 0")
        for r in range(1, rows):
            a(f"v_readlane_b32 s30, v{tmp}, {16*r}\ns_max_u32 {sdst}, {sdst}, s30")

    def tr_addr(dst, lane, t1, t2, rowshift=3):
        a(f"""v_lshrrev_b32 v{t1}, 5, v{lane}
              v_bfe_u32 v{t2}, v{lane}, 2, 2
              v_lshl_add_u32 v{t1}, v{t1}, {rowshift}, v{t2}
              v_lshlrev_b32 v{t1}, 6, v{t1}
              v_bfe_u32 v{t2}, v{lane}, 4, 1
              v_lshl_add_u32 v{t1}, v{t2}, 5, v{t1}
              v_and_b32 v{t2}, 3, v{lane}
              v_lshl_add_u32 v{dst}, v{t2}, 3, v{t1}""")

    def read_w(dst, addr, off, second=256):
        a(f"""ds_read_b64_tr_b16 v[{dst}:{dst+1}], v{addr} offset:{off}
              ds_read_b64_tr_b16 v[{dst+2}:{dst+3}], v{addr} offset:{off + second}""")

    def mfma32(d, A, B, c=None):
        cs = "0" if c is None else f"v[{c}:{c+15}]"
        a(f"v_mfma_f32_32x32x16_bf16 v[{d}:{d+15}], v[{A}:{A+3}], v[{B}:{B+3}], {cs}")

    def mfma16(d, A, B, c=None):
        cs = "0" if c is None else f"v[{c}:{c+3}]"
        a(f"v_mfma_f32_16x16x32_bf16 v[{d}:{d+3}], v[{A}:{A+3}], v[{B}:{B+3}], {cs}")

    def rnd(dst, src):
        a(f"v_cvt_pk_bf16_f32 v{dst}, 0, {src}")

    def split3(dst, src, t):
        a(f"""v_and_b32 v{t}, 0xffff0000, v{src}
              v_sub_f32 v{t+1}, v{src}, v{t}
              v_and_b32 v{t+2}, 0xffff0000, v{t+1}
              v_sub_f32 v{t+1}, v{t+1}, v{t+2}
              v_lshrrev_b32 v{t}, 16, v{t}
              v_or_b32 v{dst}, v{t}, v{t+2}
              v_lshrrev_b32 v{dst+1}, 16, v{t+1}""")

    a(f""".amdgcn_target "amdgcn-amd-amdhsa--gfx950"
.text
.globl {NAME}_kernel
.p2align 8
.type {NAME}_kernel,@function
{NAME}_kernel:
    s_cmp_ge_u32 s2, 256
    s_cbranch_scc1 L_exit
    s_load_dwordx16 s[8:23], s[0:1], 0
    s_load_dwordx4 s[24:27], s[0:1], 64
    s_load_dwordx2 s[28:29], s[0:1], 80""")
    if cfg.probe:
        a("s_memrealtime s[96:97]\ns_memrealtime s[98:99]")
    if cfg.stamps:
        for i in range(16):
            a(f"s_mov_b32 s{80+i}, 0")
        a(f"{cfg.clk} s[78:79]")
    a(f"""v_lshrrev_b32 v1, 6, v0
    v_and_b32 v0, 63, v0                 ; lane
    s_lshr_b32 {sP}, s2, 4
    s_xor_b32 {sP}, {sP}, {cfg.pxor}
    v_readfirstlane_b32 {sWV}, v1
    s_and_b32 {sJ}, s2, 7
    s_lshl_b32 {sJ}, {sJ}, 1
    s_bfe_u32 s30, s2, 0x10003
    s_or_b32 {sJ}, {sJ}, s30
    s_lshl_b32 {sC0}, {sP}, 1
    s_add_u32 {sC0}, {sC0}, s30
    s_lshl_b32 {sC0}, {sC0}, 1
    s_lshr_b32 s30, {sP}, {cfg.rotp}
    s_add_u32 {sC0}, {sC0}, s30
    s_and_b32 s30, s2, {cfg.rotx}
    s_add_u32 {sC0}, {sC0}, s30
    s_and_b32 {sC0}, {sC0}, {cfg.rot}
    s_and_b32 {sT}, {sWV}, 3
    s_mov_b32 {sONE}, 0x3f803f80
    s_cmp_ge_u32 {sWV}, 4
    s_cbranch_scc1 L_compute""")

    hZ, hONE, hT = 17, 18, 19
    a(f"""v_lshrrev_b32 v1, 2, v0
    s_lshl_b32 s30, {sT}, 4
    v_add_u32 v1, s30, v1
    v_mul_u32_u24 v1, 3072, v1
    v_and_b32 v2, 3, v0
    v_lshl_add_u32 v1, v2, 4, v1
    s_lshl_b32 s30, {sP}, 6
    v_add_u32 v14, s30, v1
    v_lshrrev_b32 v1, 3, v0
    v_lshrrev_b32 v2, 4, v0
    v_and_b32 v3, 7, v0
    v_xor_b32 v4, v3, v2
    v_xor_b32 v5, 4, v4
    s_lshl_b32 s30, {sJ}, 17
    s_lshl_b32 s31, {sT}, 15
    s_add_u32 s30, s30, s31
    v_lshl_add_u32 v6, v1, 10, s30
    v_lshl_add_u32 v10, v4, 4, v6
    v_lshl_add_u32 v11, v5, 4, v6
    v_add_u32 v12, {2*7168}, v10
    v_add_u32 v13, {3*7168}, v11
    v_add_u32 v11, 7168, v11
    s_lshl_b32 s57, {sT}, 12
    s_lshl_b32 s49, {sT}, 10
    s_waitcnt lgkmcnt(0)""")
    if cfg.stamps:
        a("s_mov_b32 s80, s78")
    srd(36, 10, 1572864)
    srd(32, 8, 2097152)

    def kc(n, dst):
        a(f"s_add_u32 {dst}, {sC0}, {n}\ns_and_b32 {dst}, {dst}, 7")

    def issue_w(n):
        kc(n, "s50")
        a(f"""s_mul_i32 s51, s50, {64*3072}
              s_add_u32 m0, s49, {L_WK + n*4096}
              s_add_u32 s52, s51, 1024
              buffer_load_dwordx4 v14, {SW}, s52 offen lds
              s_add_u32 m0, s49, {L_WV + n*4096}
              s_add_u32 s53, s51, 2048
              buffer_load_dwordx4 v14, {SW}, s53 offen lds""")

    def issue(item):
        if item < 8:
            n = item
            kc(n, "s50")
            a(f"""s_add_u32 m0, s57, {L_RING + (n % 5)*16384}
                  s_lshl_b32 s50, s50, 7""")
            for q in range(4):
                a(f"buffer_load_dwordx4 v{10+q}, {SX}, s50 offen offset:{1024*q} {cfg.ntx} lds")
            if n < 7:
                issue_w(n + 1)
        else:
            for n in (range(cfg.wq1) if item == 8 else range(cfg.wq1, 8)):
                kc(n, "s50")
                a(f"""s_add_u32 m0, s49, {L_WQ + n*4096}
                      s_mul_i32 s51, s50, {64*3072}
                      buffer_load_dwordx4 v14, {SW}, s51 offen lds""")

    cnt = lambda item: 6 if item < 7 else (4 if item == 7 else cfg.wq1)
    issue_w(0)
    for it in range(L):
        issue(it)
    srd(40, 28, WS_SIZE)
    a(f"""v_mov_b32 v{hZ}, 0
    v_mov_b32 v{hONE}, 1
    s_waitcnt vmcnt({sum(cnt(i) for i in range(L))})
    s_barrier""")
    issued = L
    for n in range(8):
        pend = sum(cnt(i) for i in range(n + 1, issued))
        a(f"s_waitcnt vmcnt({pend})")
        a(f"s_barrier                             ; B{n}")
        if n in (0, 1, 3, 7):
            stamp({0: 1, 1: 10, 3: 2, 7: 3}[n])
        if issued < 8:
            issue(issued)
            issued += 1
            if issued == 8:
                issue(8)
                issued += 1
    hXP, hXN, hG = 136, 144, 152
    hOA = 20
    a(f"""s_lshr_b32 s58, {sP}, 3
    s_and_b32 s59, {sP}, 7
    s_lshl_b32 s60, {sJ}, 1
    s_add_u32 s60, s60, s58
    v_lshrrev_b32 v1, 3, v0
    s_lshl_b32 s30, {sT}, 4
    v_add_u32 v22, s30, v1
    s_lshl_b32 s30, s60, 16
    s_lshl_b32 s31, s59, 7
    s_add_u32 s30, s30, s31
    v_lshl_add_u32 v1, v22, 10, s30
    v_and_b32 v2, 7, v0
    v_lshl_add_u32 v{hOA}, v2, 4, v1
    v_add_u32 v{hOA+1}, 8192, v{hOA}
    s_lshl_b32 s30, s58, 6
    v_add_lshl_u32 v1, v22, s30, 3
    v_add_u32 v23, {L_STAT}, v1
    s_barrier""")
    stamp(4)
    issue(9)
    a(f"""buffer_load_dwordx4 v[{hXP}:{hXP+3}], v{hOA}, {SX}, 0 offen
    buffer_load_dwordx4 v[{hXP+4}:{hXP+7}], v{hOA+1}, {SX}, 0 offen
    ds_read_b64 v[24:25], v23
    ds_read_b64 v[26:27], v23 offset:64
    s_waitcnt lgkmcnt(0)
    v_rcp_f32 v25, v25
    v_rcp_f32 v27, v27
    s_waitcnt vmcnt(0)
    s_barrier""")
    stamp(11)
    for i in range(8):
        m, rs = (24, 25) if i < 4 else (26, 27)
        a(f"""v_lshlrev_b32 v28, 16, v{hXP+i}
              v_and_b32 v29, 0xffff0000, v{hXP+i}
              v_sub_f32 v28, v28, v{m}
              v_sub_f32 v29, v29, v{m}
              v_cvt_pk_bf16_f32 v28, 0, v28
              v_cvt_pk_bf16_f32 v29, 0, v29
              v_mul_f32 v28, v28, v{rs}
              v_mul_f32 v29, v29, v{rs}
              v_cvt_pk_bf16_f32 v{hXN+i}, v28, v29""")

    def gate():
        for i in range(8):
            g0, g1 = hG + 2 * i, hG + 2 * i + 1
            a(f"""v_lshlrev_b32 v28, 16, v{hXN+i}
                  v_and_b32 v29, 0xffff0000, v{hXN+i}
                  v_mul_f32 v{g0}, {f32(-LOG2E)}, v28
                  v_mul_f32 v{g1}, {f32(-LOG2E)}, v29
                  v_exp_f32 v{g0}, v{g0}
                  v_exp_f32 v{g1}, v{g1}
                  v_add_f32 v{g0}, 1.0, v{g0}
                  v_add_f32 v{g1}, 1.0, v{g1}
                  v_rcp_f32 v{g0}, v{g0}
                  v_rcp_f32 v{g1}, v{g1}
                  v_mul_f32 v{g0}, v{g0}, v28
                  v_mul_f32 v{g1}, v{g1}, v29
                  v_cvt_pk_bf16_f32 v{g0}, 0, v{g0}
                  v_cvt_pk_bf16_f32 v{g1}, 0, v{g1}""")
    gate()
    tr_addr(30, 0, 1, 2)
    a(f"""v_lshrrev_b32 v31, 2, v0
    v_and_b32 v1, 3, v0
    v_lshlrev_b32 v32, 4, v1             ; piece
    v_lshl_add_u32 v33, v31, 10, v32
    s_lshl_b32 s30, s59, 7
    v_add_u32 v33, s30, v33
    s_lshr_b32 s61, s2, 3
    s_and_b32 s62, s2, 7""")
    srd(36, 12, 0 if cfg.nocold & 2 else 524288)
    a("s_barrier")
    stamp(5)
    a(f"""s_barrier
    s_setprio 3
    s_cmp_eq_u32 {sT}, 1
    s_cbranch_scc1 L_h1
    s_cmp_eq_u32 {sT}, 2
    s_cbranch_scc1 L_h2
    s_cmp_eq_u32 {sT}, 3
    s_cbranch_scc1 L_h3""")

    def mailbox(tag):
        a(f"""v_mov_b32 v6, {L_CTR}
              s_mov_b32 s56, 0
        L_mb_{tag}:
              s_sleep 8
              ds_read_b64 v[4:5], v6 offset:8
              s_add_u32 s56, s56, 1
              s_waitcnt lgkmcnt(0)
              v_readfirstlane_b32 s66, v4
              v_readfirstlane_b32 s67, v5
              s_cmp_ge_u32 s56, {cfg.spin_max}
              s_cbranch_scc1 L_mbd_{tag}
              s_cmp_eq_u32 s66, 0
              s_cbranch_scc1 L_mb_{tag}
        L_mbd_{tag}:""")

    a(f"""s_getreg_b32 s50, hwreg(HW_REG_XCC_ID, 0, 4)
    s_or_b32 s50, s50, 0x100
    v_mov_b32 v8, s50
    s_lshl_b32 s63, {sJ}, 7
    s_add_u32 s63, s63, {WS_FLAG + FX*128}
    s_lshl_b32 s51, {sP}, 2
    s_add_u32 s51, s51, s63
    s_mov_b64 exec, 1
    buffer_store_dword v8, v{hZ}, {SWS}, s51 offen sc1
    s_mov_b64 exec, -1""")
    mailbox("h0")
    a(f"""s_mov_b32 s54, 0
L_wo:
    s_add_u32 s50, s54, s60
    s_and_b32 s50, s50, 31
    s_lshl_b32 s51, s50, 10
    s_lshl_b32 s50, s50, 14
    s_add_u32 m0, s51, {L_WO}
    s_add_u32 s52, s50, 64
    buffer_load_dwordx4 v33, {SW}, s50 offen lds
    s_add_u32 m0, s51, {L_WO + 32768}
    s_add_u32 s54, s54, 1
    buffer_load_dwordx4 v33, {SW}, s52 offen lds
    s_waitcnt vmcnt({cfg.wo_win})
    s_cmp_lt_u32 s54, 32
    s_cbranch_scc1 L_wo
    v_lshlrev_b32 v9, 2, v0
    s_mov_b32 s56, 0
    s_mov_b64 exec, 0xffff
L_xid:
    buffer_load_dword v10, v9, {SWS}, s63 offen sc1
    s_add_u32 s56, s56, 1
    s_waitcnt vmcnt(0)
    v_cmp_eq_u32 vcc, 0, v10
    s_cmp_ge_u32 s56, {cfg.spin_max}
    s_cbranch_scc1 L_xidd
    s_cbranch_vccnz L_xid
L_xidd:
    v_cmp_ne_u32 vcc, v8, v10
    s_mov_b64 exec, -1
    s_cmp_eq_u64 vcc, 0
    s_cselect_b32 s50, {cfg.local}, 0
    v_mov_b32 v10, s50
    ds_write_b32 v6, v10 offset:16""")
    stamp(6)
    a("s_branch L_h_tail")

    a(f"""L_h1:
    v_lshlrev_b32 v1, 4, v0
    v_add_u32 v2, {L_STAT}, v1
    ds_read_b128 v[4:7], v2
    v_lshlrev_b32 v2, 2, v0
    v_add_u32 v3, {L_KEY}, v2
    ds_read_b32 v8, v3
    s_lshl_b32 s50, {sP}, 13
    s_add_u32 s63, s50, {WS_STAT}
    s_lshl_b32 s50, {sJ}, 9
    s_add_u32 s50, s50, s63
    s_lshl_b32 s51, {sP}, 9
    s_add_u32 s64, s51, {WS_CAND}
    s_lshl_b32 s51, {sJ}, 5
    s_add_u32 s51, s51, s64
    v_lshlrev_b32 v3, 3, v0
    s_waitcnt lgkmcnt(0)
    v_lshrrev_b32 v4, 16, v4
    v_lshrrev_b32 v6, 16, v6
    v_or_b32 v4, v4, v5
    v_or_b32 v5, v6, v7
    buffer_store_dwordx2 v[4:5], v3, {SWS}, s50 offen sc1
    s_mov_b64 exec, 0xff
    buffer_store_dword v8, v2, {SWS}, s51 offen sc1
    s_mov_b64 exec, -1
    s_lshl_b32 s65, {sP}, 7
    s_add_u32 s65, s65, {WS_FLAG + F2*128}
    s_waitcnt vmcnt(0)""")
    signal("s65", hZ, hONE)
    WFR = 40
    a(f"""s_cmpk_lt_u32 s2, 0xe0
    s_cbranch_scc0 L_h1_nogu
    v_mul_u32_u24 v1, 3584, v31
    v_add_u32 v34, v1, v32
    s_mul_i32 s50, s62, {64*3584}
    s_lshl_b32 s51, s61, 7
    s_add_u32 s50, s50, s51""")
    for mtx in range(2):
        srd(44, 18 + 2 * mtx, 1835008)
        for s in range(4):
            for ct in range(2):
                a(f"""s_mov_b32 m0, {L_GU + ((2*mtx + ct)*4 + s)*1024}
                      s_add_u32 s51, s50, {s*16*3584 + ct*64}
                      {'s_nop 0' if cfg.nocold & 1 else f'buffer_load_dwordx4 v34, {SAUX}, s51 offen {cfg.ntw} lds'}""")
            a(f"s_waitcnt vmcnt({cfg.gu_win})")
    a(f"""v_add_u32 v35, {L_GU}, v30
    s_waitcnt vmcnt(0)""")
    for b in range(16):
        read_w(WFR + 4 * b, 35, b * 1024)
        if b in (6, 13):
            a("s_waitcnt lgkmcnt(0)")
    a("""s_waitcnt lgkmcnt(0)
L_h1_nogu:""")
    poll("s65", 16, "f2", hZ, hT, sleep=8)
    stamp(6)
    a(f"""buffer_load_dwordx2 v[4:5], v3, {SWS}, s64 offen sc1
    s_waitcnt vmcnt(0)""")
    wavemax_u32("s66", 4, 6, 4)
    a(f"""v_cmp_eq_u32 vcc, s66, v4
    v_cndmask_b32 v4, v4, v5, vcc""")
    wavemax_u32("s67", 4, 6, 4)
    a(f"""v_mov_b32 v4, s66
    v_mov_b32 v5, s67
    v_mov_b32 v6, {L_CTR}
    ds_write_b64 v6, v[4:5] offset:8      ; mailbox
    s_cmpk_lt_u32 s2, 0xe0
    s_cbranch_scc0 L_h_tail
    v_cmp_gt_u32 vcc, 32, v0
    v_cndmask_b32 v4, v5, v4, vcc
    v_and_b32 v4, 0x7ff, v4
    v_sub_u32 v4, 0x7ff, v4
    v_lshlrev_b32 v5, 2, v4
    v_and_b32 v6, 31, v0
    v_lshlrev_b32 v6, 2, v6
    v_lshl_add_u32 v6, v4, 10, v6
    s_lshl_b32 s50, s62, 7
    buffer_load_dword v7, v5, {SWS}, s63 offen sc1
    buffer_load_dword v8, v6, {SX}, s50 offen
    v_add_u32 v2, {L_XS}, v2
    v_and_b32 v1, 1, v0
    v_lshrrev_b32 v6, 5, v0
    v_lshlrev_b32 v6, 4, v6
    v_lshl_add_u32 v6, v1, 7, v6
    v_add_u32 v6, {L_XS}, v6
    s_waitcnt vmcnt(0)
    v_and_b32 v9, 0xffff0000, v7
    v_rcp_f32 v9, v9
    v_lshlrev_b32 v7, 16, v7
    v_lshlrev_b32 v28, 16, v8
    v_and_b32 v29, 0xffff0000, v8
    v_sub_f32 v28, v28, v7
    v_sub_f32 v29, v29, v7
    v_cvt_pk_bf16_f32 v28, 0, v28
    v_cvt_pk_bf16_f32 v29, 0, v29
    v_mul_f32 v28, v28, v9
    v_mul_f32 v29, v29, v9
    v_cvt_pk_bf16_f32 v28, v28, v29
    ds_write_b32 v2, v28
    s_waitcnt lgkmcnt(0)""")
    stamp(7)
    XSF, AC0, AC1 = 120, 104, 24
    for s in range(4):
        a(f"ds_read_b128 v[{XSF+4*s}:{XSF+4*s+3}], v6 offset:{32*s}")
    a("s_waitcnt lgkmcnt(0)")
    for mtx in range(2):
        for s in range(4):
            mfma32(AC0, XSF + 4 * s, WFR + 4 * ((2 * mtx) * 4 + s), None if s == 0 else AC0)
            mfma32(AC1, XSF + 4 * s, WFR + 4 * ((2 * mtx + 1) * 4 + s), None if s == 0 else AC1)
        a(f"""v_cndmask_b32 v{8+2*mtx}, v{AC1}, v{AC0}, vcc
              v_cndmask_b32 v{9+2*mtx}, v{AC1+1}, v{AC0+1}, vcc""")
    a(f"""s_lshl_b32 s50, s2, 10
    s_add_u32 s50, s50, {WS_P1}
    v_lshlrev_b32 v1, 4, v0
    buffer_store_dwordx4 v[8:11], v1, {SWS}, s50 offen sc1
    s_lshl_b32 s65, s61, 7
    s_add_u32 s65, s65, {WS_FLAG + F3*128}
    s_waitcnt vmcnt(0)""")
    signal("s65", hZ, hONE)
    stamp(8)
    a("s_branch L_h_tail")

    a(f"""L_h2:
    s_cmpk_lt_u32 s2, 0xe0
    s_cbranch_scc0 L_h_tail""")
    mailbox("h2")
    a(f"""v_lshl_add_u32 v34, v31, 10, v32
    s_lshl_b32 s50, s61, 16
    s_lshl_b32 s51, s62, 7
    s_add_u32 s50, s50, s51""")
    srd(44, 22, 1835008)
    for s in range(4):
        for ct in range(2):
            a(f"""s_mov_b32 m0, {L_DN + (ct*4 + s)*1024}
                  s_add_u32 s51, s50, {s*16384 + ct*64}
                  {'s_nop 0' if cfg.nocold & 1 else f'buffer_load_dwordx4 v34, {SAUX}, s51 offen {cfg.ntw} lds'}""")
    a(f"""v_add_u32 v35, {L_DN}, v30
    s_waitcnt vmcnt(0)""")
    for b in range(8):
        read_w(WFR + 4 * b, 35, b * 1024)
        if b == 6:
            a("s_waitcnt lgkmcnt(0)")
    a(f"""s_waitcnt lgkmcnt(0)
    s_lshl_b32 s65, s61, 7
    s_add_u32 s65, s65, {WS_FLAG + F3*128}""")
    poll("s65", 8, "f3", hZ, hT, sleep=16)
    stamp(6)
    a(f"""s_lshl_b32 s50, s61, 13
    s_add_u32 s50, s50, {WS_P1}
    s_add_u32 s51, s50, 4096
    v_lshlrev_b32 v1, 4, v0""")
    for k in range(8):
        a(f"buffer_load_dwordx4 v[{72+4*k}:{75+4*k}], v1, {SWS}, {'s50' if k < 4 else 's51'} offen offset:{1024*(k & 3)} sc1")
    a(f"""v_lshlrev_b32 v2, 1, v0
    v_add_u32 v2, {L_XS + 256}, v2
    v_and_b32 v1, 1, v0
    v_lshrrev_b32 v6, 5, v0
    v_lshlrev_b32 v6, 4, v6
    v_lshl_add_u32 v6, v1, 7, v6
    v_add_u32 v6, {L_XS + 256}, v6
    v_cmp_gt_u32 vcc, 32, v0
    s_waitcnt vmcnt(0)""")
    for k in range(1, 8):
        a(f"""v_pk_add_f32 v[72:73], v[72:73], v[{72+4*k}:{73+4*k}]
              v_pk_add_f32 v[74:75], v[74:75], v[{74+4*k}:{75+4*k}]""")
    for i in range(4):
        rnd(72 + i, f"v{72+i}")
    a(f"""v_mul_f32 v76, {f32(-LOG2E)}, v72
    v_mul_f32 v77, {f32(-LOG2E)}, v73
    v_exp_f32 v76, v76
    v_exp_f32 v77, v77
    v_add_f32 v76, 1.0, v76
    v_add_f32 v77, 1.0, v77
    v_rcp_f32 v76, v76
    v_rcp_f32 v77, v77
    v_mul_f32 v76, v76, v72
    v_mul_f32 v77, v77, v73
    v_cvt_pk_bf16_f32 v76, 0, v76
    v_cvt_pk_bf16_f32 v77, 0, v77
    v_mul_f32 v76, v76, v74
    v_mul_f32 v77, v77, v75
    v_cvt_pk_bf16_f32 v76, v76, v77
    ds_write_b16 v2, v76
    ds_write_b16_d16_hi v2, v76 offset:128
    s_waitcnt lgkmcnt(0)""")
    for s in range(4):
        a(f"ds_read_b128 v[{XSF+4*s}:{XSF+4*s+3}], v6 offset:{32*s}")
    a("s_waitcnt lgkmcnt(0)")
    for s in range(4):
        mfma32(AC0, XSF + 4 * s, WFR + 4 * s, None if s == 0 else AC0)
        mfma32(AC1, XSF + 4 * s, WFR + 4 * (4 + s), None if s == 0 else AC1)
    a(f"""s_lshl_b32 s50, s61, 11
    s_lshl_b32 s51, s62, 8
    s_add_u32 s50, s50, s51
    s_add_u32 s50, s50, {WS_P2}
    s_add_u32 s51, s50, {28*2048}
    s_lshl_b32 s65, s62, 7
    s_add_u32 s65, s65, {WS_FLAG + F4*128}
    v_lshlrev_b32 v1, 2, v0
    v_cndmask_b32 v8, v{AC1}, v{AC0}, vcc
    v_cndmask_b32 v9, v{AC1+1}, v{AC0+1}, vcc
    buffer_store_dword v8, v1, {SWS}, s50 offen sc1
    buffer_store_dword v9, v1, {SWS}, s51 offen sc1
    s_waitcnt vmcnt(0)""")
    signal("s65", hZ, hONE)
    stamp(8)
    a("s_branch L_h_tail")

    def key_tok(dst, key):
        a(f"s_and_b32 {dst}, {key}, 0x7ff\ns_sub_u32 {dst}, 0x7ff, {dst}")

    a("L_h3:")
    mailbox("h3")
    a(f"""s_lshl_b32 s65, s59, 7
    s_add_u32 s65, s65, {WS_FLAG + F4*128}
    s_mov_b32 s68, 0
    v_lshlrev_b32 v3, 2, v0
L_h3_sel:""")
    key_tok("s50", "s66")
    a(f"""s_lshr_b32 s50, s50, 6
    s_cmp_lg_u32 s50, s60
    s_cbranch_scc1 L_h3_next""")
    poll("s65", 28, "f4", hZ, hT, sleep=16)
    stamp(6)
    a(f"""s_mul_i32 s50, s68, {28*2048}
    s_lshl_b32 s51, s59, 8
    s_add_u32 s50, s50, s51
    s_add_u32 s50, s50, {WS_P2}""")
    for k in range(28):
        a(f"buffer_load_dword v{40+k}, v3, {SWS}, s50 offen offset:{2048*(k & 1)} sc1")
        if k & 1:
            a("s_add_u32 s50, s50, 4096")
    a(f"""s_and_b32 s51, s66, 0xffff0000
    s_xor_b32 s52, s51, 0x80000000
    s_xor_b32 s53, s51, 0xffff0000
    s_bitcmp1_b32 s51, 31
    s_cselect_b32 s51, s52, s53
    v_mov_b32 v4, {f32(-LOG2E)}
    v_mul_f32 v4, s51, v4
    v_exp_f32 v4, v4
    s_lshl_b32 s51, s68, 8
    s_add_u32 s51, s51, {L_Y}
    v_add_u32 v7, s51, v3
    v_add_f32 v4, 1.0, v4
    v_rcp_f32 v4, v4
    s_waitcnt vmcnt(0)
    v_cvt_pk_bf16_f32 v4, 0, v4""")
    for k in range(1, 14):
        a(f"v_pk_add_f32 v[40:41], v[40:41], v[{40+2*k}:{41+2*k}]")
    a(f"""v_add_f32 v40, v40, v41
    v_cvt_pk_bf16_f32 v40, 0, v40
    v_mul_f32 v40, v40, v4
    v_cvt_pk_bf16_f32 v40, 0, v40
    ds_write_b32 v7, v40
L_h3_next:
    s_mov_b32 s66, s67
    s_add_u32 s68, s68, 1
    s_cmp_lt_u32 s68, 2
    s_cbranch_scc1 L_h3_sel""")
    stamp(8)

    a(f"""L_h_tail:
    s_waitcnt vmcnt(0) lgkmcnt(0)
    s_barrier                             ; T1""")
    stamp(9)
    a(f"""v_mov_b32 v6, {L_CTR}
    ds_read_b64 v[4:5], v6 offset:8
    v_and_b32 v1, 7, v0
    v_lshlrev_b32 v7, 5, v1
    v_add_u32 v7, {L_Y}, v7
    s_mov_b32 s68, 0
    s_mov_b32 s69, 0
    s_waitcnt lgkmcnt(0)
    v_readfirstlane_b32 s66, v4
    v_readfirstlane_b32 s67, v5
L_ht_sel:""")
    key_tok("s50", "s66")
    a(f"""s_lshr_b32 s51, s50, 6
    s_cmp_lg_u32 s51, s60
    s_cbranch_scc1 L_ht_next
    s_mov_b32 s69, 1
    s_and_b32 s50, s50, 63
    ds_read_b128 v[8:11], v7
    ds_read_b128 v[12:15], v7 offset:16
    s_sub_u32 s51, s50, 8
    v_cmp_eq_u32 s[52:53], s50, v22
    v_cmp_eq_u32 s[54:55], s51, v22
    s_waitcnt lgkmcnt(0)""")
    for q in range(2):
        for i in range(4):
            r = hXN + 4 * q + i
            a(f"""v_lshlrev_b32 v28, 16, v{r}
                  v_and_b32 v29, 0xffff0000, v{r}
                  v_add_f32 v28, v28, v{8+2*i}
                  v_add_f32 v29, v29, v{9+2*i}
                  v_cvt_pk_bf16_f32 v28, v28, v29
                  v_cndmask_b32 v{r}, v{r}, v28, s[{52+2*q}:{53+2*q}]""")
    a(f"""L_ht_next:
    v_add_u32 v7, 256, v7
    s_mov_b32 s66, s67
    s_add_u32 s68, s68, 1
    s_cmp_lt_u32 s68, 2
    s_cbranch_scc1 L_ht_sel
    s_cmp_eq_u32 s69, 0
    s_cbranch_scc1 L_ht_nopatch""")
    gate()
    a("L_ht_nopatch:")
    XU = 40
    for i in range(8):
        a(f"v_lshlrev_b32 v{XU+2*i}, 16, v{hXP+i}\nv_and_b32 v{XU+2*i+1}, 0xffff0000, v{hXP+i}")
    srd(44, 24, 2097152)
    def stage_setup(sw_sgpr):
        a(f"""s_lshr_b32 s30, {sP}, 3
              s_lshl_b32 s31, {sJ}, 1
              s_add_u32 s30, s30, s31
              s_lshl_b32 s30, s30, 16
              s_lshl_b32 s31, {sw_sgpr}, 10
              s_add_u32 s68, s30, s31
              s_add_u32 s68, s68, {WS_OF}
              s_add_u32 s69, s31, {L_OST}""")

    def stage_o(addr):
        def grp(g):
            for tt in range(2):
                off = g * 8192 + tt * 32768
                a(f"""s_add_u32 m0, s69, {off}
                      s_add_u32 s30, s68, {off}
                      buffer_load_dwordx4 v{addr}, {SWS}, s30 offen sc1 lds""")
        grp(0)
        grp(1)
        for g in range(4):
            a(f"""s_waitcnt vmcnt({2 if g < 3 else 0})
            s_barrier                             ; T4{'abcd'[g]}""")
            if g < 2:
                grp(g + 2)

    stage_setup(sT)
    a(f"""v_and_b32 v2, 7, v22
    v_xor_b32 v2, v1, v2
    v_lshlrev_b32 v3, 7, v22
    v_lshl_add_u32 v4, v2, 4, v3
    v_lshlrev_b32 v5, 4, v0
    s_barrier                             ; T2
    s_barrier                             ; T3""")
    stage_o(5)
    a(f"""s_barrier                             ; T5
    ds_read_b128 v[8:11], v4 offset:{L_SST}
    ds_read_b128 v[12:15], v4 offset:{L_SST + 1024}""")
    for q in range(2):
        a(f"s_waitcnt lgkmcnt({1-q})")
        for i in range(4):
            e = 8 * q + 2 * i
            a(f"""v_lshlrev_b32 v28, 16, v{8+4*q+i}
                  v_and_b32 v29, 0xffff0000, v{8+4*q+i}
                  v_fma_f32 v28, v28, v{hG+e}, v{XU+e}
                  v_fma_f32 v29, v29, v{hG+e+1}, v{XU+e+1}
                  v_cvt_pk_bf16_f32 v{8+4*q+i}, v28, v29""")
        a(f"buffer_store_dwordx4 v[{8+4*q}:{11+4*q}], v{hOA+q}, {SAUX}, 0 offen")
    stamp(14)
    if cfg.stamps:
        a("s_waitcnt vmcnt(0)")
    stamp(15)
    if cfg.probe:
        a(f"""s_sub_u32 s98, s98, s96
        s_mul_i32 s98, s98, {cfg.probe[2]}
        s_add_u32 s98, s98, {cfg.probe[1]}
        s_min_u32 s98, s98, 100000
    L_probe:
        s_sleep 4
        s_memrealtime s[100:101]
        s_waitcnt lgkmcnt(0)
        s_sub_u32 s100, s100, s96
        s_cmp_lt_u32 s100, s98
        s_cbranch_scc1 L_probe""")
    dump_stamps()
    a("s_endpgm")

    vXA, vWA = 144, 148
    vM, vRS, vDEN = 149, 150, 151
    CS = 152
    MF = 156
    t = 160
    vLANE, vL16 = 166, 167

    class Lg:
        def __init__(self):
            self.q = []

        def rd(self, tag, text):
            for ln in text.strip().split("\n"):
                if len(self.q) >= 15:
                    a("s_waitcnt lgkmcnt(9)")
                    self.q = self.q[-9:]
                a(ln)
                self.q.append(tag)

        def wait(self, *tags):
            last = max((i for i, x in enumerate(self.q) if x in tags), default=-1)
            if last < 0:
                return
            n = len(self.q) - 1 - last
            a(f"s_waitcnt lgkmcnt({min(n, 15)})")
            self.q = self.q[last + 1:]

    def trs(dst, addr, off, second=256):
        return (f"ds_read_b64_tr_b16 v[{dst}:{dst+1}], v{addr} offset:{off}\n"
                f"ds_read_b64_tr_b16 v[{dst+2}:{dst+3}], v{addr} offset:{off + second}")

    a(f"""L_compute:
    v_mov_b32 v{vLANE}, v0
    v_lshlrev_b32 v{vL16}, 4, v0
    v_and_b32 v1, 31, v0
    v_lshrrev_b32 v2, 5, v0              ; half
    v_bfe_u32 v3, v0, 1, 3
    v_xor_b32 v3, v3, v2
    s_lshl_b32 s30, {sT}, 12
    s_add_u32 s30, s30, {L_RING}
    v_lshl_add_u32 v4, v1, 7, s30""")
    for s in range(4):
        a(f"v_xor_b32 v5, {2*s}, v3\nv_lshl_add_u32 v{vXA+s}, v5, 4, v4")
    tr_addr(vWA, 0, 3, 4)
    a(f"""v_lshrrev_b32 v3, 2, v0
    v_xor_b32 v3, v3, v0
    v_and_b32 v3, 4, v3
    v_cmp_eq_u32 vcc, 0, v3
    v_mov_b32 v4, {sONE}""")
    for i in range(4):
        a(f"v_cndmask_b32 v{CS+i}, 0, v4, vcc")
    a("s_waitcnt lgkmcnt(0)")
    if cfg.stamps:
        a("s_mov_b32 s80, s78")
    srd(40, 28, WS_SIZE)
    a(f"""s_cmp_ge_u32 {sWV}, 8
    s_cbranch_scc1 L_bwave""")

    XB, WK, WV, AK, AV, RB, ASX, SQ = (0, 16), 32, 48, 64, 80, 96, 112, 116
    SFK, SFV, RF, OF_ = 128, 132, 136, 140
    vKG, vVG = 164, 165
    a(f"""
    v_cmp_gt_u32 vcc, 32, v{vLANE}
    v_and_b32 v{t}, 0x33, v{vLANE}
    v_bfe_u32 v{t+1}, v{vLANE}, 2, 1
    v_lshl_add_u32 v{t}, v{t+1}, 3, v{t}
    v_bfe_u32 v{t+1}, v{vLANE}, 3, 1
    v_lshl_add_u32 v{t}, v{t+1}, 2, v{t}
    v_lshlrev_b32 v{vKG}, 4, v{t}
    v_and_b32 v{t}, 0x2f, v{vLANE}
    v_lshlrev_b32 v{t}, 4, v{t}
    v_bfe_u32 v{t+1}, v{vLANE}, 4, 1
    v_lshl_add_u32 v{vVG}, v{t+1}, 17, v{t}
    v_cndmask_b32 v{OF_}, 0, v4, vcc
    v_cndmask_b32 v{OF_+1}, 0, v4, vcc
    v_mov_b32 v{OF_+2}, 0
    v_mov_b32 v{OF_+3}, 0
    v_mov_b32 v{RF+2}, 0
    v_mov_b32 v{RF+3}, 0
    v_add_u32 v{t+3}, {L_SFR}, v{vL16}
    s_lshl_b32 s50, {sP}, 18
    s_lshl_b32 s30, {sJ}, 13
    s_add_u32 s50, s50, s30
    s_lshl_b32 s49, {sT}, 11
    s_add_u32 s50, s50, s49
    s_add_u32 s51, s50, 0x20000
    s_mov_b32 s52, 0xaaaaaaaa
    s_mov_b32 s53, 0xaaaaaaaa
    s_mov_b32 s54, 0xcccccccc
    s_mov_b32 s55, 0xcccccccc
    s_barrier                             ; Ba""")
    lg = Lg()

    def rdw(n, s, which):
        if cfg.x1 & 4 and n > 0:
            return
        if which == 0:
            lg.rd(("k", n, s), trs(WK + 4 * s, vWA, L_WK + n * 4096 + s * 1024))
        else:
            lg.rd(("v", n, s), trs(WV + 4 * s, vWA, L_WV + n * 4096 + s * 1024))

    def rdx(n, s):
        r = XB[n & 1] + 4 * s
        off = (n % 5) * 16384 - (16 if n == 4 else 0)
        lg.rd(("x", n, s), f"ds_read_b128 v[{r}:{r+3}], v{vXA+s} offset:{off}")

    def bigk(n, s):
        lg.wait(("k", n, s), ("x", n, s))
        if cfg.x1 & 8 and 0 < n < 7:
            return
        mfma32(AK, WK + 4 * s, XB[n & 1] + 4 * s, None if (n, s) == (0, 0) else AK)

    def bigv(n, s):
        lg.wait(("v", n, s), ("x", n, s))
        if cfg.x1 & 8 and 0 < n < 7:
            return
        mfma32(AV, XB[n & 1] + 4 * s, WV + 4 * s, None if (n, s) == (0, 0) else AV)

    def smalls(n, fill=()):
        fill = list(fill)
        lg.wait(*[("x", n, s) for s in range(4)])
        if cfg.x1 & 2 and n not in (0, 7):
            for f_ in fill: a(f_)
            return
        for s in range(4):
            mfma16(ASX, CS, XB[n & 1] + 4 * s, None if (n, s) == (0, 0) else ASX)
            if fill:
                a(fill.pop(0))
        for i in range(8):
            d = SQ + 4 * (i % 3)
            r = XB[n & 1] + 2 * i
            c = "0" if (n == 0 and i < 3) else f"v[{d}:{d+3}]"
            a(f"v_mfma_f32_4x4x4_16b_bf16 v[{d}:{d+3}], v[{r}:{r+1}], v[{r}:{r+1}], {c}")
        assert not fill

    def head(n):
        rdx(n, 0); rdx(n, 1)
        if n:
            bigk(n - 1, 2)
        rdx(n, 2); rdx(n, 3)
        if n:
            bigv(n - 1, 2)
        rdw(n, 2, 0); rdw(n, 2, 1)
        if n:
            bigk(n - 1, 3)
        rdw(n, 3, 0)
        if n:
            bigv(n - 1, 3)
        rdw(n, 3, 1)

    for s in range(2):
        rdw(0, s, 0); rdw(0, s, 1)
    for n in range(7):
        a(f"s_barrier                             ; B{n}")
        head(n)
        for s in range(2):
            bigk(n, s)
            rdw(n + 1, s, 0)
            bigv(n, s)
            rdw(n + 1, s, 1)
        fill = []
        if n == 3:
            fill = [f"v_add_u32 v{vXA+s}, 16, v{vXA+s}" for s in range(4)]
        if n == 4:
            fill = [f"v_add_u32 v{vXA+s}, -16, v{vXA+s}" for s in range(4)]
        smalls(n, fill)
    a("s_barrier                             ; B7")
    stamp(3)
    head(7)
    lg.rd("sf", f"ds_read_b128 v[{SFK}:{SFK+3}], v{t+3}\nds_read_b128 v[{SFV}:{SFV+3}], v{t+3} offset:1024")
    smalls(7)
    PK = XB[0]
    groups = [
        [],
        [f"v_mul_f32 v{t}, {f32(1/512)}, v{ASX}            ; mean"] +
        [f"v_pk_add_f32 v[{SQ+i}:{SQ+i+1}], v[{SQ+i}:{SQ+i+1}], v[{SQ+4+i}:{SQ+5+i}]" for i in (0, 2)] +
        [f"v_pk_add_f32 v[{SQ+i}:{SQ+i+1}], v[{SQ+i}:{SQ+i+1}], v[{SQ+8+i}:{SQ+9+i}]" for i in (0, 2)],
        [f"v_cvt_pk_bf16_f32 v{MF}, -v{t}, -v{t}",
         f"v_cndmask_b32 v{SQ}, v{SQ}, v{SQ+1}, s[52:53]",
         f"v_cndmask_b32 v{SQ+2}, v{SQ+2}, v{SQ+3}, s[52:53]",
         f"v_mov_b32 v{MF+1}, v{MF}",
         f"v_cndmask_b32 v{SQ}, v{SQ}, v{SQ+2}, s[54:55]",
         f"v_mov_b32 v{t+1}, v{SQ}"],
        [f"v_mov_b32 v{MF+2}, v{MF}",
         f"v_mov_b32 v{MF+3}, v{MF}",
         f"v_permlane32_swap_b32 v{t+1}, v{SQ}",
         f"v_add_f32 v{t+1}, v{t+1}, v{SQ}",
         f"v_mul_f32 v{t+1}, {f32(1/512)}, v{t+1}"],
        [f"v_fma_f32 v{t+1}, -v{t}, v{t}, v{t+1}         ; variance",
         f"v_max_f32 v{t+1}, 0, v{t+1}",
         f"v_cvt_pk_bf16_f32 v{t+1}, 0, v{t+1}",
         f"v_add_f32 v{t+1}, {f32(1e-5)}, v{t+1}",
         f"v_cvt_pk_bf16_f32 v{t+1}, 0, v{t+1}",
         f"v_sqrt_f32 v{t+1}, v{t+1}"],
        [f"v_cvt_pk_bf16_f32 v{vDEN}, 0, v{t+1}",
         f"v_rcp_f32 v{vRS}, v{vDEN}",
         f"v_cvt_pk_bf16_f32 v{vM}, 0, v{t}",
         f"v_and_b32 v{t}, 0xffff0000, v{vRS}",
         f"v_sub_f32 v{t+1}, v{vRS}, v{t}"],
        [f"v_and_b32 v{t+2}, 0xffff0000, v{t+1}",
         f"v_sub_f32 v{t+1}, v{t+1}, v{t+2}",
         f"v_lshrrev_b32 v{t}, 16, v{t}",
         f"v_or_b32 v{RF}, v{t}, v{t+2}",
         f"v_lshrrev_b32 v{RF+1}, 16, v{t+1}",
         f"v_mul_f32 v{AK}, v{vRS}, v{AK}"],
        [f"v_mul_f32 v{AK+i}, v{vRS}, v{AK+i}" for i in range(1, 7)],
        [f"v_mul_f32 v{AK+7}, v{vRS}, v{AK+7}"] +
        [f"v_cvt_pk_bf16_f32 v{PK+i}, v{AK+2*i}, v{AK+2*i+1}" for i in range(4)] +
        [f"buffer_store_dwordx4 v[{PK}:{PK+3}], v{vKG}, {SWS}, s50 offen sc1"],
        [f"v_mul_f32 v{AK+i}, v{vRS}, v{AK+i}" for i in range(8, 14)],
        [f"v_mul_f32 v{AK+i}, v{vRS}, v{AK+i}" for i in range(14, 16)] +
        [f"v_cvt_pk_bf16_f32 v{PK+i}, v{AK+2*i}, v{AK+2*i+1}" for i in range(4, 8)] +
        [f"buffer_store_dwordx4 v[{PK+4}:{PK+7}], v{vKG}, {SWS}, s51 offen sc1"],
    ]

    def augk():
        lg.wait("sf")
        mfma32(AK, SFK, MF, AK)
    seq = [lambda s=s: bigk(7, s) for s in range(4)] + [augk] + [lambda s=s: bigv(7, s) for s in range(3)]
    seq += [lambda: mfma32(RB, RF, OF_), lambda: bigv(7, 3), lambda: mfma32(AV, MF, SFV, AV)]
    assert len(seq) == len(groups)
    for m, g in zip(seq, groups):
        m()
        for ins in g:
            a(ins)
    a(f"""v_add_u32 v{t}, s49, v{vKG}
    ds_write_b128 v{t}, v[{PK}:{PK+3}] offset:{L_OWNKV}
    ds_write_b128 v{t}, v[{PK+4}:{PK+7}] offset:{L_OWNKV + 8192}""")
    for hf in range(2):
        for i in range(4 * hf, 4 * hf + 4):
            a(f"v_pk_mul_f32 v[{AV+2*i}:{AV+2*i+1}], v[{RB+2*i}:{RB+2*i+1}], v[{AV+2*i}:{AV+2*i+1}]")
        for i in range(4 * hf, 4 * hf + 4):
            a(f"v_cvt_pk_bf16_f32 v{PK+8+i}, v{AV+2*i}, v{AV+2*i+1}")
        a(f"buffer_store_dwordx4 v[{PK+8+4*hf}:{PK+11+4*hf}], v{vVG}, {SWS}, s50 offen offset:{1024 + 256*hf} sc1")
    stamp(2)
    a(f"""v_and_b32 v{t}, 0x3ff, v{vVG}
    v_lshrrev_b32 v{t+1}, 4, v{vVG}
    v_and_b32 v{t+1}, 0x2000, v{t+1}
    v_add3_u32 v{t}, v{t}, v{t+1}, s49
    ds_write_b128 v{t}, v[{PK+8}:{PK+11}] offset:{L_OWNKV + 1024}
    ds_write_b128 v{t}, v[{PK+12}:{PK+15}] offset:{L_OWNKV + 1280}
    v_and_b32 v{t+4}, 31, v{vLANE}
    s_lshl_b32 s30, {sT}, 5
    v_add_lshl_u32 v{t+4}, v{t+4}, s30, 3
    v_add_u32 v{t+4}, {L_STAT}, v{t+4}
    v_mov_b32 v{t+2}, v{vM}
    v_mov_b32 v{t+3}, v{vDEN}
    ds_write_b64 v{t+4}, v[{t+2}:{t+3}]
    s_waitcnt lgkmcnt(0)
    s_barrier                             ; B8a""")
    stamp(4)

    SA, SB, OO, QQ, RING = 0, 16, 32, 96, 112
    vIDX = 160
    sHH, sKQ = "s58", "s60"
    sVM = "s[62:63]"

    def slot(s):
        b = RING + 12 * s
        return dict(K=b, V=[b + 4, b + 8])

    def attn_init():
        attn_init_a()
        attn_init_b()

    def attn_init_a():
        a(f"""s_sub_u32 s30, {sWV}, 4
        s_lshr_b32 {sHH}, s30, 2
        s_and_b32 {sKQ}, s30, 3
        s_mov_b32 s62, 0xffff
        s_mov_b32 s63, 0xffff
        s_lshl_b32 s64, {sP}, 1
        s_add_u32 s64, s64, {sHH}
        s_lshl_b32 s64, s64, 17
        s_lshl_b32 s61, {sJ}, 13
        s_lshl_b32 s31, {sKQ}, 11
        s_add_u32 s61, s61, s31
        s_add_u32 s61, s61, 8192
        s_and_b32 s61, s61, 0x1ffff
        v_and_b32 v0, 27, v{vLANE}
        v_cmp_eq_u32 vcc, 16, v0
        v_mov_b32 v1, {sONE}
        v_mov_b32 v2, 0
        v_mov_b32 v3, 0
        v_cndmask_b32 v0, 0, v1, vcc
        v_cndmask_b32 v1, 0, v1, vcc""")

    def attn_init_b():
        for s in range(4):
            for i in range(0, 8, 2):
                r = slot(s)["V"][0] + i
                a(f"v_mov_b64 v[{r}:{r+1}], v[0:1]")
        for r in list(range(SB + 8, SB + 16, 2)) + list(range(OO, OO + 64, 2)):
            a(f"v_mov_b64 v[{r}:{r+1}], v[2:3]")

    a(f"""s_setprio 3
    v_mov_b32 v{t+1}, 0
    v_mov_b32 v{t+2}, {L_CTR}
    v_mov_b32 v{t+4}, 1
    s_lshl_b32 s57, {sP}, 7
    s_add_u32 s57, s57, {WS_FLAG + F1*128}
    s_waitcnt vmcnt(0)
    s_mov_b64 exec, 1
    ds_add_rtn_u32 v{t+3}, v{t+2}, v{t+4}
    s_mov_b64 exec, -1
    s_waitcnt lgkmcnt(0)
    v_readfirstlane_b32 s59, v{t+3}
    s_cmp_lg_u32 s59, 3
    s_cbranch_scc1 L_a_nosig""")
    stamp(1)
    signal("s57", t + 1, t + 4)
    a("L_a_nosig:\ns_setprio 0\ns_barrier                             ; B8b")
    attn_init()
    a("""s_setprio 3
    s_cmp_lg_u32 s59, 3
    s_cbranch_scc1 L_attn_pre""")
    poll("s57", 16, "f1", t + 1, t + 3, sleep=1)
    stamp(8)
    a("s_branch L_attn_pre")

    XF, WF, EF, ACC, ASK, ASV, AR = 0, 80, 96, 112, 128, 132, 136
    a(f"""L_bwave:
    s_cmp_lg_u32 {sT}, 0
    s_cbranch_scc1 L_b_noinit""")
    srd(44, 16, 1024)
    a(f"""v_lshrrev_b32 v1, 3, v0
    v_add_u32 v1, {sC0}, v1
    v_and_b32 v1, 7, v1
    v_lshlrev_b32 v1, 7, v1
    v_and_b32 v3, 7, v0
    v_lshl_add_u32 v1, v3, 4, v1
    s_mov_b32 m0, {L_WR}
    v_mov_b32 v4, 0
    buffer_load_dwordx4 v1, {SAUX}, 0 offen lds
    v_mov_b32 v5, 0
    v_mov_b32 v6, 0
    v_mov_b32 v7, 0
    v_add_u32 v1, {L_ZERO}, v{vL16}
    ds_write_b128 v1, v[4:7]
    ds_write_b128 v1, v[4:7] offset:256
    s_waitcnt lgkmcnt(0)
L_b_noinit:""")
    srd(44, 26, 256)
    a(f"""s_lshl_b32 s52, s2, 2
    s_add_u32 s52, s52, {sT}
    s_cmp_lg_u32 s52, 1
    s_cbranch_scc1 L_b_noclear
    v_lshlrev_b32 v1, 7, v{vLANE}
    s_mov_b32 s30, {WS_FLAG}
    s_mov_b32 s31, {WS_FLAG + 64*128}
    v_mov_b32 v8, 0
    v_mov_b32 v9, 0
    v_mov_b32 v10, 0
    v_mov_b32 v11, 0
    buffer_store_dword v8, v1, {SWS}, s30 offen sc1
    buffer_store_dwordx4 v[8:11], v1, {SWS}, s31 offen sc1
    buffer_store_dwordx4 v[8:11], v1, {SWS}, s31 offen offset:16 sc1
    buffer_store_dwordx4 v[8:11], v1, {SWS}, s31 offen offset:32 sc1
    buffer_store_dwordx4 v[8:11], v1, {SWS}, s31 offen offset:48 sc1
L_b_noclear:""")
    a(f"""s_lshl_b32 s30, {sT}, 10
    v_add_u32 v{t}, s30, v{vWA}
    v_lshrrev_b32 v1, 5, v0
    v_lshlrev_b32 v1, 4, v1
    v_add_u32 v2, {L_WR}, v1
    v_add_u32 v1, {L_ZERO}, v1
    v_cndmask_b32 v{t+1}, v1, v2, vcc
    v_cmp_gt_u32 vcc, 32, v{vLANE}
    v_and_b32 v{EF}, 31, v{vLANE}
    v_lshrrev_b32 v{EF+1}, 5, v{vLANE}
    v_lshlrev_b32 v{EF+1}, 10, v{EF+1}
    v_lshl_add_u32 v{EF}, v{EF}, 4, v{EF+1}
    s_lshr_b32 s30, {sT}, 1
    s_lshl_b32 s30, s30, 9
    s_and_b32 s31, {sT}, 1
    s_lshl_b32 s31, s31, 3
    s_add_u32 s30, s30, s31
    s_add_u32 s30, s30, {L_SFR}
    v_add_u32 v{EF}, s30, v{EF}
    s_barrier                             ; Ba""")

    def ssum(n):
        read_w(WF, t, L_WK + n * 4096)
        read_w(WF + 4, t, L_WV + n * 4096)

    def ssum2(n):
        mfma16(ASK, CS, WF, None if n == 0 else ASK)
        mfma16(ASV, CS, WF + 4, None if n == 0 else ASV)

    ssum(0)
    a("s_waitcnt lgkmcnt(0)")
    ssum2(0)
    for n in range(7):
        a(f"s_barrier                             ; B{n}")
        ssum(n + 1)
        if n < 5 and not cfg.x1 & 1:
            for s in range(4):
                r = XF + 16 * n + 4 * s
                if n < 4:
                    a(f"ds_read_b128 v[{r}:{r+3}], v{vXA+s} offset:{n*16384}")
                else:
                    a(f"v_add_u32 v{t+2}, 65536, v{vXA+s}\nds_read_b128 v[{r}:{r+3}], v{t+2}")
        if n == 0:
            a(f"""s_waitcnt vmcnt(0)
            s_cmp_lg_u32 s52, 1
            s_cbranch_scc1 L_b_nosig
            v_mov_b32 v{t+2}, 0
            v_mov_b32 v{t+3}, 1
            s_mov_b64 exec, 1
            buffer_store_dword v{t+3}, v{t+2}, {SAUX}, 0 offen sc1
            s_mov_b64 exec, -1
        L_b_nosig:""")
        if n == 5:
            a(f"""s_cmp_lg_u32 {sT}, 0
            s_cbranch_scc1 L_b_noclr
            v_mov_b32 v{t+2}, 0
            s_mov_b64 exec, 1
            buffer_load_dword v{t+5}, v{t+2}, {SAUX}, 0 offen sc1
            s_mov_b64 exec, -1
        L_b_noclr:""")
        if n == 6:
            a("s_setprio 2")
        a("s_waitcnt lgkmcnt(0)")
        ssum2(n + 1)
    a(f"v_cndmask_b32 v{EF+1}, v{ASV}, v{ASK}, vcc")
    split3(EF + 2, EF + 1, t + 2)
    a(f"""ds_write_b64 v{EF}, v[{EF+2}:{EF+3}]
    s_setprio 0
    s_waitcnt lgkmcnt(0)
    s_barrier                             ; B7
    s_cmp_lg_u32 {sT}, 0
    s_cbranch_scc1 L_b_clrd
    s_waitcnt vmcnt(0)
    v_readfirstlane_b32 s30, v{t+5}
    v_mov_b32 v{t+2}, 0
    s_cmp_lg_u32 s30, 0
    s_cbranch_scc1 L_b_clrd""")
    poll("0", 1, "clr", t + 2, t + 5, sleep=1, srd_=SAUX)
    a(f"""L_b_clrd:
    v_add_u32 v{vWA}, {L_WQ}, v{vWA}
    v_and_b32 v{t+4}, 31, v{vLANE}
    s_lshl_b32 s30, {sT}, 5
    v_add_u32 v{t}, s30, v{t+4}
    v_lshlrev_b32 v{t+4}, 3, v{t}
    v_add_u32 v{t+4}, {L_STAT}, v{t+4}
    v_add_u32 v{t+2}, {L_WR}, v{vL16}
    v_mov_b32 v{MF}, {sONE}
    v_mov_b32 v{MF+1}, {sONE}
    v_mov_b32 v{MF+2}, {sONE}
    v_mov_b32 v{MF+3}, {sONE}
    s_barrier                             ; B8a""")
    stamp(4)
    lg = Lg()
    XT = ACC

    def rreads(k):
        lg.rd(("r", k), f"ds_read_b128 v[{WF+4*(k%8)}:{WF+4*(k%8)+3}], v{t+1} offset:{k*32}")

    def rxreads(k):
        if 20 <= k < 32:
            lg.rd(("r", k), f"ds_read_b128 v[{XT+4*(k%4)}:{XT+4*(k%4)+3}], v{vXA + (k & 3)} offset:{((k >> 2) - 5)*16384}")
    lg.rd("wr", f"ds_read_b128 v[140:143], v{t+2}\nds_read_b64 v[{t+2}:{t+3}], v{t+4}")
    order = []
    for i in range(12):
        order += [20 + i] + ([i, 12 + i] if i < 8 else [i])
    assert sorted(order) == list(range(32))
    pos = {k: i for i, k in enumerate(order)}
    emit_r = lambda i: lg.rd(("r", order[i]), f"ds_read_b128 v[{WF+4*(i%8)}:{WF+4*(i%8)+3}], v{t+1} offset:{order[i]*32}")
    for k in range(20, 23):
        rxreads(k)
    for i in range(7):
        emit_r(i)
    lg.wait("wr")
    mfma16(ASV, MF, 140)
    a(f"""v_mov_b32 v{vM}, v{t+2}
    v_rcp_f32 v{vRS}, v{t+3}""")
    for i, k in enumerate(order):
        lg.wait(("r", k))
        mfma16(AR, WF + 4 * (i % 8), XF + 4 * k if k < 20 else XT + 4 * (k % 4), AR if i else None)
        if k >= 20:
            rxreads(k + 3)
        if i + 7 < 32:
            emit_r(i + 7)
        if 4 <= i < 8:
            a(f"v_add_f32_dpp v{ASV}, v{ASV}, v{ASV} row_ror:{8 >> (i - 4)} row_mask:0xf bank_mask:0xf")
    a(f"""v_cvt_pk_bf16_f32 v{MF}, -v{vM}, -v{vM}
    v_mov_b32 v142, 0
    v_mov_b32 v143, 0
    v_cndmask_b32 v{MF}, 0, v{MF}, vcc
    v_mul_f32 v{vDEN}, {f32(CQ)}, v{vRS}
    v_mov_b32 v{MF+1}, v{MF}
    s_lshl_b32 s30, {sJ}, 7
    s_sub_u32 s31, 0x7ff, s30
    s_lshl_b32 s30, {sT}, 10
    v_add_u32 v{t+5}, s30, v{vL16}
    s_setprio 2
    s_barrier                             ; B8b""")
    stamp(8)

    def qreads(k):
        lg.rd(("q", k), trs(WF + 4 * (k % 8), vWA, k * 1024))
    for k in range(5):
        qreads(k)
    side = [f"v_fma_f32 v{AR}, -v{vM}, v{ASV}, v{AR}", f"v_mul_f32 v{AR}, v{vRS}, v{AR}",
            f"v_cvt_pk_bf16_f32 v{AR}, 0, v{AR}",
            f"v_ashrrev_i32 v{AR+1}, 31, v{AR}", f"v_or_b32 v{AR+1}, 0x80000000, v{AR+1}", f"v_xor_b32 v{AR}, v{AR}, v{AR+1}",
            f"v_and_b32 v{AR}, 0xffff0000, v{AR}\nv_sub_u32 v{AR+1}, s31, v{t}", f"v_or_b32 v{AR}, v{AR}, v{AR+1}"]
    dpp = lambda d, s_, r: f"v_max_u32_dpp v{d}, v{s_}, v{s_} row_ror:{r} row_mask:0xf bank_mask:0xf"
    for sd in ("s50", "s51"):
        side += [dpp(AR + 1, AR, 8), dpp(AR + 1, AR + 1, 4), dpp(AR + 1, AR + 1, 2), dpp(AR + 1, AR + 1, 1),
                 f"v_readlane_b32 {sd}, v{AR+1}, 0\nv_readlane_b32 s30, v{AR+1}, 16", f"s_max_u32 {sd}, {sd}, s30"]
        if sd == "s50":
            side += [f"v_cmp_eq_u32 vcc, s50, v{AR}", f"v_cndmask_b32 v{AR}, v{AR}, v142, vcc"]
    side += [f"s_lshl_b32 s30, {sT}, 3\ns_add_u32 s30, s30, {L_KEY}",
             f"v_mov_b32 v{AR}, s50\nv_mov_b32 v{AR+1}, s51\nv_mov_b32 v{AR+2}, s30"]
    for k in range(32):
        n, s = k >> 2, k & 3
        x = XF + 16 * (n if n < 5 else n - 5) + 4 * s
        lg.wait(("q", k), ("x", k))
        mfma32(ACC, WF + 4 * (k % 8), x, ACC if k else None)
        if k + 5 < 32:
            qreads(k + 5)
        if 8 <= k < 20:
            r = XF + 4 * (k - 8)
            lg.rd(("x", k + 12), f"ds_read_b128 v[{r}:{r+3}], v{vXA + s} offset:{(n - 2)*16384}")
        if side:
            a(side.pop(0))
        mfma16(ASK, CS, WF + 4 * (k % 8), ASK if k else None)
    assert not side
    a(f"ds_write_b64 v{AR+2}, v[{AR}:{AR+1}]")
    split3(140, ASK, t + 2)
    mfma32(ACC, 140, MF, ACC)
    attn_init_a()
    for i in range(16):
        a(f"v_mul_f32 v{ACC+i}, v{vDEN}, v{ACC+i}")
    for i in range(8):
        a(f"v_cvt_pk_bf16_f32 v{4+i}, v{ACC+2*i}, v{ACC+2*i+1}")
    a(f"""ds_write_b128 v{t+5}, v[4:7] offset:{L_Q}
    ds_write_b128 v{t+5}, v[8:11] offset:{L_Q + 4096}""")
    stamp(1)
    attn_init_b()

    def exp(r):
        a(f"v_exp_f32 v{r}, v{r}")

    def smf(o, v, p):
        a(f"v_smfmac_f32_32x32x32_bf16 v[{o}:{o+15}], v[{v}:{v+3}], v[{p}:{p+7}], v{vIDX}")

    def step(i, S, prev, nxt, h1=None, h2=None, h3=None):
        cur, oth = (SA, SB) if i % 2 == 0 else (SB, SA)
        exp(cur); exp(cur + 1)
        smf(OO + 16 * ((i - 1) & 3), (S if i else prev)["V"][1], oth + 8)
        if h1:
            h1()
        for e in range(2, 5):
            exp(cur + e)
        if i < 3:
            mfma32(oth, S["K"], QQ + 4 * (i + 1))
        elif nxt is not None:
            mfma32(oth, nxt["K"], QQ)
        for e in range(5, 10):
            exp(cur + e)
        smf(OO + 16 * i, S["V"][0], cur)
        if h2:
            h2()
        for e in range(10, 16):
            exp(cur + e)
            if e == 12 and h3:
                h3()

    def gl_addr():
        a("""s_add_u32 s61, s61, 8192
             s_and_b32 s61, s61, 0x1ffff""")

    def gl_k(s):
        S = slot(s)
        a(f"""s_add_u32 s65, s61, s64
              buffer_load_dwordx4 v[{S['K']}:{S['K']+3}], v{vL16}, {SWS}, s65 offen sc1""")

    def gl_v(s):
        S = slot(s)
        a(f"s_mov_b64 exec, {sVM}")
        for i in range(2):
            r = S["V"][i]
            a(f"buffer_load_dwordx4 v[{r}:{r+3}], v{vL16}, {SWS}, s65 offen offset:{1024 + 256*i} sc1")
        a("s_mov_b64 exec, -1")

    def unit(s, load=True, wait=6, last=False, hooks={}):
        S, prev, nxt = slot(s), slot((s + 3) % 4), slot((s + 1) % 4)
        H = lambda k: hooks.get(k)
        ld = (s + 3) % 4
        step(0, S, prev, nxt, h1=(lambda: gl_k(ld)) if load else H("01"), h2=(lambda: gl_v(ld)) if load else H("02"), h3=H("03"))
        step(1, S, prev, nxt, h1=gl_addr if load else H("11"), h2=H("12"), h3=H("13"))
        step(2, S, prev, nxt, h1=H("21"), h2=H("22"), h3=H("23"))
        step(3, S, prev, None if last else nxt, h1=(lambda: a(f"s_waitcnt vmcnt({wait})")) if not last else H("31"), h2=H("32"), h3=H("33"))

    a(f"""L_attn_pre:
    s_lshl_b32 s30, {sHH}, 13
    s_lshl_b32 s31, {sKQ}, 11
    s_add_u32 s30, s30, s31
    v_add_u32 v{t+1}, s30, v{vL16}
    v_mov_b32 v{vIDX}, 0xdddddddd
    s_lshl_b32 s31, {sHH}, 12""")
    for i in range(4):
        a(f"""s_add_u32 s30, {sKQ}, {1 + i}
              s_and_b32 s30, s30, 3
              s_lshl_b32 s30, s30, 10
              s_add_u32 s30, s30, s31
              v_add_u32 v{t+2+i}, s30, v{vL16}""")
    a(f"""s_setprio {3 if cfg.prio else 0}
    s_waitcnt lgkmcnt(0)
    s_barrier                             ; B10""")
    stamp(5)
    S0 = slot(0)
    gl_k(1)
    a(f"""ds_read_b128 v[{QQ}:{QQ+3}], v{t+2} offset:{L_Q}
    ds_read_b128 v[{S0['K']}:{S0['K']+3}], v{t+1} offset:{L_OWNKV}""")
    for i in range(1, 4):
        a(f"ds_read_b128 v[{QQ+4*i}:{QQ+4*i+3}], v{t+2+i} offset:{L_Q}")
    a(f"s_mov_b64 exec, {sVM}")
    for i in range(2):
        r = S0["V"][i]
        a(f"ds_read_b128 v[{r}:{r+3}], v{t+1} offset:{L_OWNKV + 1024 + 256*i}")
    gl_v(1)
    gl_addr()
    a("s_waitcnt lgkmcnt(5)")
    mfma32(SA, S0["K"], QQ)
    gl_k(2)
    gl_v(2)
    gl_addr()
    a(f"s_mov_b32 s66, {cfg.iters}\ns_waitcnt lgkmcnt(0)\ns_barrier                             ; B11\ns_nop 0")
    a(".p2align 3\nL_attn:")
    for s in range(4):
        unit(s, hooks={"32": lambda: a("s_sub_u32 s66, s66, 1\ns_cmp_lg_u32 s66, 0")} if s == 3 else {})
    a("s_cbranch_scc1 L_attn")
    stamp(6)
    if cfg.prio:
        a("s_setprio 2")

    def mbaddr():
        a(f"s_mul_i32 s52, {sHH}, {4*3*2304}")
        for i in range(3):
            a(f"""s_add_u32 s30, {sKQ}, {1 + i}
                  s_and_b32 s30, s30, 3
                  s_mul_i32 s30, s30, {3*2304}
                  s_add_u32 s{53+i}, s30, s52""")
        a(f"""s_mul_i32 s30, {sKQ}, {3*2304}
              s_add_u32 s52, s52, s30""")

    def send(i):
        o = OO + 16 * i
        a(f"""v_add_u32 v{t+1}, s{53+i}, v{vL16}
              v_lshl_add_u32 v{t+2}, v{vLANE}, 2, s{53+i}
              ds_write_b128 v{t+1}, v[{o}:{o+3}] offset:{L_CMB + i*2304}
              ds_write_b128 v{t+1}, v[{o+4}:{o+7}] offset:{L_CMB + i*2304 + 1024}
              ds_write_b32 v{t+2}, v{o+8} offset:{L_CMB + i*2304 + 2048}""")
    def touch():
        a(f"""s_lshl_b32 s30, {sJ}, 2
              s_add_u32 s30, s30, {sKQ}
              s_lshl_b32 s30, s30, 15
              s_lshr_b32 s31, s64, 7               ; head * 1024
              s_add_u32 s30, s30, s31
              s_add_u32 s67, s30, {WS_OF}
              s_lshl_b32 s57, {sJ}, 7
              s_add_u32 s59, s57, {WS_FLAG + FL*128}
              s_mov_b32 s50, 0x01010101
              s_mov_b32 s51, 0x01010101
              s_mov_b64 exec, s[50:51]
              buffer_load_dword v{t+4}, v{vL16}, {SWS}, s67 offen sc1
              s_mov_b64 exec, 1
              buffer_load_dword v{t+5}, v{vL16}, {SWS}, s59 offen sc1
              s_mov_b64 exec, -1""")
    unit(0, load=True, wait=8, hooks={"21": touch})
    unit(1, load=False, wait=5, hooks={"11": mbaddr})
    unit(2, load=False, wait=2)
    if cfg.prio:
        a("s_setprio 1")
    unit(3, load=False, last=True, hooks={"21": lambda: send(0), "31": lambda: (send(1), a("s_setprio 0")), "33": lambda: send(2)})
    O3 = OO + 48
    a(f"""v_add_u32 v{t+1}, s52, v{vL16}
    v_lshl_add_u32 v{t+2}, v{vLANE}, 2, s52""")
    smf(O3, slot(3)["V"][1], SB + 8)
    stamp(7)
    a(f"""v_mov_b32 v{t+3}, {L_CTR}
    s_waitcnt lgkmcnt(0)
    s_barrier                             ; T1""")
    stamp(9)
    a(f"ds_read_b32 v27, v{t+3} offset:16")
    for i in range(3):
        a(f"ds_read_b32 v{24+i}, v{t+2} offset:{L_CMB + i*2304 + 2048}")
    for i in range(3):
        a(f"""ds_read_b128 v[{8*i}:{8*i+3}], v{t+1} offset:{L_CMB + i*2304}
              ds_read_b128 v[{8*i+4}:{8*i+7}], v{t+1} offset:{L_CMB + i*2304 + 1024}""")
    a(f"""s_waitcnt lgkmcnt(6)
    v_readfirstlane_b32 s70, v27
    v_add_f32 v24, v24, v25
    v_add_f32 v26, v26, v{O3+8}
    v_add_f32 v{O3+8}, v24, v26
    v_cmp_nle_f32 vcc, {f32(2.0**-40)}, v{O3+8}
    v_rcp_f32 v28, v{O3+8}
    s_mov_b64 s[50:51], vcc
    v_cmp_nge_f32 vcc, {f32(2.0**40)}, v{O3+8}""")
    for i in range(3):
        a(f"s_waitcnt lgkmcnt({4 - 2*i})")
        for e in range(0, 8, 2):
            a(f"v_pk_add_f32 v[{O3+e}:{O3+e+1}], v[{O3+e}:{O3+e+1}], v[{8*i+e}:{8*i+e+1}]")
    a(f"""s_or_b64 s[50:51], s[50:51], vcc
    v_maximum3_f32 v0, |v{O3}|, |v{O3+1}|, |v{O3+2}|
    v_maximum3_f32 v1, |v{O3+3}|, |v{O3+4}|, |v{O3+5}|
    v_maximum3_f32 v0, |v{O3+6}|, |v{O3+7}|, v0
    v_maximum3_f32 v0, v0, v1, v1
    v_cmp_nge_f32 vcc, {f32(2.0**120)}, v0
    s_nop 0
    s_or_b64 s[50:51], s[50:51], vcc""")
    a("s_branch L_slow" if cfg.force_slow else "s_cbranch_scc1 L_slow")
    a("L_norm:")
    for e in range(0, 8, 2):
        a(f"v_pk_mul_f32 v[{O3+e}:{O3+e+1}], v[{O3+e}:{O3+e+1}], v[28:29] op_sel_hi:[1,0]")
    for i in range(4):
        a(f"v_cvt_pk_bf16_f32 v{156+i}, v{O3+2*i}, v{O3+2*i+1}")
    a(f"""s_cmp_eq_u32 s70, 0
    s_cbranch_scc1 L_ost_far
    buffer_store_dwordx4 v[156:159], v{vL16}, {SWS}, s67 offen
    s_branch L_ost_done
L_ost_far:
    buffer_store_dwordx4 v[156:159], v{vL16}, {SWS}, s67 offen sc1
L_ost_done:""")
    stamp(10)
    WOF, PACC, OFR = 0, 128, 144
    u = 144
    a(f"""s_cmp_ge_u32 {sWV}, 8
    s_cbranch_scc1 L_tail_b
    v_lshrrev_b32 v{u}, 5, v{vLANE}
    v_bfe_u32 v{u+1}, v{vLANE}, 2, 2
    v_lshl_add_u32 v{u}, v{u}, 2, v{u+1}
    v_lshlrev_b32 v{u}, 6, v{u}           ; (4*half + r) * 64
    v_and_b32 v{u+1}, 1, v{vLANE}
    v_lshl_add_u32 v{u}, v{u+1}, 5, v{u}
    v_bfe_u32 v{u+1}, v{vLANE}, 4, 1
    v_lshl_add_u32 v{u}, v{u+1}, 4, v{u}
    v_bfe_u32 v{u+1}, v{vLANE}, 1, 1
    v_lshl_add_u32 v{u}, v{u+1}, 3, v{u}
    s_and_b32 s50, {sT}, 1
    s_lshr_b32 s51, {sT}, 1
    s_lshl_b32 s30, s50, 15
    s_add_u32 s30, s30, {L_WO}
    v_add_u32 v{u}, s30, v{u}""")
    for hd in range(32):
        read_w(WOF + 4 * hd, u, hd * 1024, second=512)
        if hd % 6 == 5:
            a("s_waitcnt lgkmcnt(2)")
    a(f"""v_and_b32 v{u+1}, 31, v{vLANE}
    v_lshrrev_b32 v{u+2}, 5, v{vLANE}
    s_lshl_b32 s30, s50, 2
    v_lshl_add_u32 v{u+2}, v{u+2}, 1, s30
    v_and_b32 v{u+3}, 7, v{u+1}
    v_xor_b32 v{u+2}, v{u+2}, v{u+3}
    s_lshl_b32 s30, s51, 12
    v_lshl_add_u32 v{u+1}, v{u+1}, 7, s30
    v_lshl_add_u32 v162, v{u+2}, 4, v{u+1}
    v_xor_b32 v163, 16, v162
    s_lshl_b32 s30, s51, 15
    s_add_u32 s30, s30, {L_OST}
    v_add_u32 v166, s30, v{vL16}
    s_waitcnt vmcnt(0)
    s_barrier                             ; T2
    s_waitcnt lgkmcnt(0)
    s_barrier                             ; T3""")
    stamp(11)
    a("s_barrier                             ; T4a")
    stamp(12)
    for hd in range(3):
        a(f"ds_read_b128 v[{OFR+4*hd}:{OFR+4*hd+3}], v166 offset:{hd*1024}")
    for hd in range(32):
        a(f"s_waitcnt lgkmcnt({min(2, 31 - hd)})")
        mfma32(PACC, WOF + 4 * hd, OFR + 4 * (hd % 4), None if hd == 0 else PACC)
        if hd + 3 < 32:
            if (hd + 3) % 8 == 0:
                a("s_barrier                             ; T4b..d")
            r = OFR + 4 * ((hd + 3) % 4)
            a(f"ds_read_b128 v[{r}:{r+3}], v166 offset:{(hd+3)*1024}")
    for i in range(8):
        a(f"v_cvt_pk_bf16_f32 v{i}, v{PACC+2*i}, v{PACC+2*i+1}")
    a(f"""ds_write_b128 v162, v[0:3] offset:{L_SST}
    ds_write_b128 v163, v[4:7] offset:{L_SST}
    s_waitcnt lgkmcnt(0)
    s_barrier                             ; T5""")
    stamp(13)
    dump_stamps()
    a("s_endpgm")

    a(f"""L_tail_b:
    v_mov_b32 v0, 0
    v_mov_b32 v1, 1
    v_lshlrev_b32 v3, 2, v{vLANE}
    s_add_u32 s57, s57, {WS_FLAG + F5*128}
    s_lshl_b32 s51, {sP}, 2
    s_add_u32 s71, s51, s59
    s_add_u32 s50, {sT}, 4""")
    stage_setup("s50")
    a(f"""s_waitcnt vmcnt(0)
    s_barrier                             ; T2
    s_cmp_lg_u32 {sT}, 0
    s_cbranch_scc1 L_tail_b3
    s_cmp_eq_u32 s70, 0
    s_cbranch_scc1 L_tail_far
    s_mov_b64 exec, 1
    buffer_store_dword v1, v0, {SWS}, s71 offen
    s_mov_b64 exec, 0xffff
    s_mov_b32 s56, 0
L_tail_near:
    buffer_load_dword v2, v3, {SWS}, s59 offen sc1
    s_add_u32 s56, s56, 1
    s_waitcnt vmcnt(0)
    v_cmp_eq_u32 vcc, 0, v2
    s_cmp_ge_u32 s56, {cfg.spin_max}
    s_cbranch_scc1 L_tail_neard
    s_cbranch_vccnz L_tail_near
L_tail_neard:
    s_mov_b64 exec, -1
    s_branch L_tail_b3
L_tail_far:""")
    signal("s57", 0, 1)
    poll("s57", 16, "f5", 0, 2, sleep=1)
    a("""L_tail_b3:
    s_barrier                             ; T3""")
    stamp(11)
    stage_o(vL16)
    stamp(12)
    dump_stamps()
    a("s_endpgm")

    K_, V_, Q3 = slot(0)["K"], slot(0)["V"], QQ + 12
    a(f"""L_slow:
    v_mov_b32 v{t+1}, 0xff800000
    s_mov_b32 s61, 0
L_slow1:
    s_add_u32 s65, s61, s64
    buffer_load_dwordx4 v[{K_}:{K_+3}], v{vL16}, {SWS}, s65 offen sc1
    s_add_u32 s61, s61, 2048
    s_waitcnt vmcnt(0)""")
    mfma32(SA, K_, Q3)
    for i in range(8):
        a(f"v_max3_f32 v{t+1}, v{SA+2*i}, v{SA+2*i+1}, v{t+1}")
    a(f"""s_cmp_lt_u32 s61, 0x20000
    s_cbranch_scc1 L_slow1
    v_mov_b32 v{t+2}, v{t+1}
    v_permlane32_swap_b32 v{t+1}, v{t+2}
    v_max_f32 v{t+1}, v{t+1}, v{t+2}""")
    for i in range(16):
        a(f"v_sub_f32 v{SB+i}, 0, v{t+1}\nv_mov_b32 v{O3+i}, 0")
    a(f"""s_mov_b32 s61, 0
L_slow2:
    s_add_u32 s65, s61, s64
    buffer_load_dwordx4 v[{K_}:{K_+3}], v{vL16}, {SWS}, s65 offen sc1
    s_mov_b64 exec, {sVM}
    buffer_load_dwordx4 v[{V_[0]}:{V_[0]+3}], v{vL16}, {SWS}, s65 offen offset:1024 sc1
    buffer_load_dwordx4 v[{V_[1]}:{V_[1]+3}], v{vL16}, {SWS}, s65 offen offset:1280 sc1
    s_mov_b64 exec, -1
    s_add_u32 s61, s61, 2048
    s_waitcnt vmcnt(0)""")
    mfma32(SA, K_, Q3, SB)
    for i in range(16):
        exp(SA + i)
    smf(O3, V_[0], SA)
    smf(O3, V_[1], SA + 8)
    a(f"""s_cmp_lt_u32 s61, 0x20000
    s_cbranch_scc1 L_slow2
    s_nop 11
    v_rcp_f32 v28, v{O3+8}
    s_branch L_norm""")
    return finish(a, cfg)


def finish(a, cfg):
    a("L_exit:\ns_endpgm")
    body, log = fix_hazards(a.text(), fix=True, verbose=cfg.verbose)
    head = open("cdna_kernels/" + NAME + ".s.ref").read().split("; Override launch")[0]
    head += f"; @launch grid=(256,1,1) block=(768,1,1) lds={LDS_BYTES}\n"
    tail = f""".section .rodata,"a"
.p2align 6
.amdhsa_kernel {NAME}_kernel
  .amdhsa_next_free_vgpr 168
  .amdhsa_next_free_sgpr 102
  .amdhsa_accum_offset 168
  .amdhsa_group_segment_fixed_size 0
  .amdhsa_kernarg_size 88
  .amdhsa_user_sgpr_count 2
  .amdhsa_user_sgpr_kernarg_segment_ptr 1
  .amdhsa_system_sgpr_workgroup_id_x 1
  .amdhsa_float_denorm_mode_32 3
.end_amdhsa_kernel
"""
    return head + body + tail


if __name__ == "__main__":
    cfg = Cfg()
    out = sys.argv[1]
    for kv in sys.argv[2:]:
        k, v = kv.split("=")
        setattr(cfg, k, eval(v))
    open(out, "w").write(gen(cfg))
```

```python
import sys
import struct
from asmlib import Asm, fix_hazards

NAME = "recurrent_scan__softmax_full_mha__moe_arch_mod__prompt"

WS_KV = 0
WS_OF = 4 << 20
WS_FLAG = 6 << 20
WS_CAND = (6 << 20) + 0x10000
WS_STAT = (6 << 20) + 0x20000
WS_P1 = (6 << 20) + 0x80000
WS_P2 = (6 << 20) + 0xC0000
WS_DBG = 8 << 20
WS_SIZE = 268435456
F1, F2, F3, F4, F5, FX, FL = 0, 16, 32, 64, 72, 88, 104

L_WK, L_WV, L_RING = 0, 32768, 65536
L_WQ = L_RING + 3 * 16384
L_OWNKV = 0
L_Q = 32768
L_WO = 65536
L_GU = 128 * 1024
L_DN = 144 * 1024
L_CMB = 0
L_OST = L_WO
L_SST = 56 * 1024
L_MISC = 152 * 1024
L_WR = L_MISC
L_ZERO = L_MISC + 1088
L_ONES = L_MISC + 6784
L_CTR = L_MISC + 2112
L_STAT = L_MISC + 2304
L_SFR = L_MISC + 3328
L_KEY = L_MISC + 5376
L_XS = L_MISC + 5440
L_Y = L_MISC + 6144
LDS_BYTES = 163840

CQ = 0.25 * 1.4426950408889634
LOG2E = 1.4426950408889634


def f32(x):
    return "0x%08x" % struct.unpack("<I", struct.pack("<f", x))[0]


class Cfg:
    stamps = False
    L = 2
    rot = 7
    rotp = 1
    rotx = 1
    wq1 = 3
    cpf = 1
    qpf = 1
    b11 = '21'
    gatepos = 3
    wqwin = 3
    sigfirst = 0
    ntx = ''
    spin_max = 200000
    verbose = False
    force_slow = False
    prio = 1
    x1 = 0
    pxor = 0
    local = 1
    wo_win = 6
    gu_win = 4
    nocold = 0
    ntw = ''
    probe = None
    clk = 's_memtime'
    iters = 3


def gen(cfg):
    a = Asm()
    L = cfg.L
    sP, sJ, sWV, sT, sC0 = "s3", "s4", "s5", "s6", "s7"
    SX, SW, SWS, SAUX = "s[32:35]", "s[36:39]", "s[40:43]", "s[44:47]"
    sONE = "s48"

    def srd(base, ptr, size):
        a(f"""s_mov_b32 s{base}, s{ptr}
              s_mov_b32 s{base+1}, s{ptr+1}
              s_mov_b32 s{base+2}, {size}
              s_mov_b32 s{base+3}, 0x20000""")

    def stamp(i):
        if cfg.probe and cfg.probe[0] == i:
            a("s_memrealtime s[98:99]\ns_waitcnt lgkmcnt(0)")
        if cfg.stamps:
            a(f"{cfg.clk} s[78:79]\ns_waitcnt lgkmcnt(0)\ns_mov_b32 s{80+i}, s78")

    def dump_stamps():
        if cfg.stamps:
            a(f"""s_mul_i32 s78, s2, 12
                  s_add_u32 s78, s78, {sWV}
                  s_lshl_b32 s78, s78, 6
                  s_add_u32 s78, s78, {WS_DBG}
                  v_mov_b32 v0, 0""")
            for g in range(4):
                for i in range(4):
                    a(f"v_mov_b32 v{4+i}, s{80+4*g+i}")
                a(f"buffer_store_dwordx4 v[4:7], v0, {SWS}, s78 offen offset:{16*g}")
                a("s_nop 1")
            a("s_waitcnt vmcnt(0)")

    def signal(line_sgpr, vz, vone):
        a(f"""s_mov_b64 exec, 1
              buffer_atomic_add v{vone}, v{vz}, {SWS}, {line_sgpr} offen sc1
              s_mov_b64 exec, -1""")

    def poll(line_sgpr, target, tag, vz, vt, sleep=2, srd_=None):
        a(f"""s_mov_b32 s56, 0
              s_mov_b64 exec, 1
        L_poll_{tag}:
              buffer_load_dword v{vt}, v{vz}, {srd_ or SWS}, {line_sgpr} offen sc1
              s_waitcnt vmcnt(0)
              v_readfirstlane_b32 s30, v{vt}
              s_add_u32 s56, s56, 1
              s_cmp_ge_u32 s30, {target}
              s_cbranch_scc1 L_polld_{tag}
              s_sleep {sleep}
              s_cmp_lt_u32 s56, {cfg.spin_max}
              s_cbranch_scc1 L_poll_{tag}
        L_polld_{tag}:
              s_mov_b64 exec, -1""")

    def rowmax_u32(dst, src):
        a(f"v_max_u32_dpp v{dst}, v{src}, v{src} row_ror:8 row_mask:0xf bank_mask:0xf")
        for r in (4, 2, 1):
            a(f"v_max_u32_dpp v{dst}, v{dst}, v{dst} row_ror:{r} row_mask:0xf bank_mask:0xf")

    def wavemax_u32(sdst, src, tmp, rows):
        rowmax_u32(tmp, src)
        a(f"v_readlane_b32 {sdst}, v{tmp}, 0")
        for r in range(1, rows):
            a(f"v_readlane_b32 s30, v{tmp}, {16*r}\ns_max_u32 {sdst}, {sdst}, s30")

    def tr_addr(dst, lane, t1, t2, rowshift=3):
        a(f"""v_lshrrev_b32 v{t1}, 5, v{lane}
              v_bfe_u32 v{t2}, v{lane}, 2, 2
              v_lshl_add_u32 v{t1}, v{t1}, {rowshift}, v{t2}
              v_lshlrev_b32 v{t1}, 6, v{t1}
              v_bfe_u32 v{t2}, v{lane}, 4, 1
              v_lshl_add_u32 v{t1}, v{t2}, 5, v{t1}
              v_and_b32 v{t2}, 3, v{lane}
              v_lshl_add_u32 v{dst}, v{t2}, 3, v{t1}""")

    def read_w(dst, addr, off, second=256):
        a(f"""ds_read_b64_tr_b16 v[{dst}:{dst+1}], v{addr} offset:{off}
              ds_read_b64_tr_b16 v[{dst+2}:{dst+3}], v{addr} offset:{off + second}""")

    def mfma32(d, A, B, c=None):
        cs = "0" if c is None else f"v[{c}:{c+15}]"
        a(f"v_mfma_f32_32x32x16_bf16 v[{d}:{d+15}], v[{A}:{A+3}], v[{B}:{B+3}], {cs}")

    def mfma16(d, A, B, c=None):
        cs = "0" if c is None else f"v[{c}:{c+3}]"
        a(f"v_mfma_f32_16x16x32_bf16 v[{d}:{d+3}], v[{A}:{A+3}], v[{B}:{B+3}], {cs}")

    def rnd(dst, src):
        a(f"v_cvt_pk_bf16_f32 v{dst}, 0, {src}")

    def split3(dst, src, t):
        a(f"""v_and_b32 v{t}, 0xffff0000, v{src}
              v_sub_f32 v{t+1}, v{src}, v{t}
              v_and_b32 v{t+2}, 0xffff0000, v{t+1}
              v_sub_f32 v{t+1}, v{t+1}, v{t+2}
              v_lshrrev_b32 v{t}, 16, v{t}
              v_or_b32 v{dst}, v{t}, v{t+2}
              v_lshrrev_b32 v{dst+1}, 16, v{t+1}""")

    a(f""".amdgcn_target "amdgcn-amd-amdhsa--gfx950"
.text
.globl {NAME}_kernel
.p2align 8
.type {NAME}_kernel,@function
{NAME}_kernel:
    s_cmp_ge_u32 s2, 256
    s_cbranch_scc1 L_exit
    s_load_dwordx16 s[8:23], s[0:1], 0
    s_load_dwordx4 s[24:27], s[0:1], 64
    s_load_dwordx2 s[28:29], s[0:1], 80""")
    if cfg.probe:
        a("s_memrealtime s[96:97]\ns_memrealtime s[98:99]")
    if cfg.stamps:
        for i in range(16):
            a(f"s_mov_b32 s{80+i}, 0")
        a(f"{cfg.clk} s[78:79]")
    a(f"""v_lshrrev_b32 v1, 6, v0
    v_and_b32 v0, 63, v0                 ; lane
    s_lshr_b32 {sP}, s2, 4
    s_xor_b32 {sP}, {sP}, {cfg.pxor}
    v_readfirstlane_b32 {sWV}, v1
    s_and_b32 {sJ}, s2, 7
    s_lshl_b32 {sJ}, {sJ}, 1
    s_bfe_u32 s30, s2, 0x10003
    s_or_b32 {sJ}, {sJ}, s30
    s_lshl_b32 {sC0}, {sP}, 1
    s_add_u32 {sC0}, {sC0}, s30
    s_lshl_b32 {sC0}, {sC0}, 1
    s_lshr_b32 s30, {sP}, {cfg.rotp}
    s_add_u32 {sC0}, {sC0}, s30
    s_and_b32 s30, s2, {cfg.rotx}
    s_add_u32 {sC0}, {sC0}, s30
    s_and_b32 {sC0}, {sC0}, {cfg.rot}
    s_and_b32 {sT}, {sWV}, 3
    s_mov_b32 {sONE}, 0x3f803f80
    s_cmp_ge_u32 {sWV}, 4
    s_cbranch_scc1 L_compute""")

    hZ, hONE, hT = 17, 18, 19
    a(f"""v_lshrrev_b32 v1, 2, v0
    s_lshl_b32 s30, {sT}, 4
    v_add_u32 v1, s30, v1
    v_mul_u32_u24 v1, 3072, v1
    v_and_b32 v2, 3, v0
    v_lshl_add_u32 v1, v2, 4, v1
    s_lshl_b32 s30, {sP}, 6
    v_add_u32 v14, s30, v1
    v_lshrrev_b32 v1, 3, v0
    v_lshrrev_b32 v2, 4, v0
    v_and_b32 v3, 7, v0
    v_xor_b32 v4, v3, v2
    v_xor_b32 v5, 4, v4
    s_lshl_b32 s30, {sJ}, 17
    s_lshl_b32 s31, {sT}, 15
    s_add_u32 s30, s30, s31
    v_lshl_add_u32 v6, v1, 10, s30
    v_lshl_add_u32 v10, v4, 4, v6
    v_lshl_add_u32 v11, v5, 4, v6
    v_add_u32 v12, {2*7168}, v10
    v_add_u32 v13, {3*7168}, v11
    v_add_u32 v11, 7168, v11
    s_lshl_b32 s57, {sT}, 12
    s_lshl_b32 s49, {sT}, 10
    s_waitcnt lgkmcnt(0)""")
    if cfg.stamps:
        a("s_mov_b32 s80, s78")
    srd(36, 10, 1572864)
    srd(32, 8, 2097152)

    def kc(n, dst):
        a(f"s_add_u32 {dst}, {sC0}, {n}\ns_and_b32 {dst}, {dst}, 7")

    def issue_w(n):
        kc(n, "s50")
        a(f"""s_mul_i32 s51, s50, {64*3072}
              s_add_u32 m0, s49, {L_WK + n*4096}
              s_add_u32 s52, s51, 1024
              buffer_load_dwordx4 v14, {SW}, s52 offen lds
              s_add_u32 m0, s49, {L_WV + n*4096}
              s_add_u32 s53, s51, 2048
              buffer_load_dwordx4 v14, {SW}, s53 offen lds""")

    def issue(item):
        if item < 8:
            n = item
            kc(n, "s50")
            a(f"""s_add_u32 m0, s57, {L_RING + (n % 5)*16384}
                  s_lshl_b32 s50, s50, 7""")
            for q in range(4):
                a(f"buffer_load_dwordx4 v{10+q}, {SX}, s50 offen offset:{1024*q} {cfg.ntx} lds")
            if n < 7:
                issue_w(n + 1)
        else:
            for n in (range(cfg.wq1) if item == 8 else range(cfg.wq1, 8)):
                kc(n, "s50")
                if item == 9:
                    a(f"s_waitcnt vmcnt({cfg.wqwin - 1})")
                a(f"""s_add_u32 m0, s49, {L_WQ + n*4096}
                      s_mul_i32 s51, s50, {64*3072}
                      buffer_load_dwordx4 v14, {SW}, s51 offen lds""")

    cnt = lambda item: 6 if item < 7 else (4 if item == 7 else cfg.wq1)
    a(f"""s_cmp_lg_u32 {sT}, 0
    s_cbranch_scc1 L_h_nowr""")
    srd(44, 16, 1024)
    a(f"""v_add_u32 v1, {sC0}, v1
    v_and_b32 v1, 7, v1
    v_lshlrev_b32 v1, 7, v1
    s_mov_b32 m0, {L_WR}
    v_lshl_add_u32 v1, v3, 4, v1
    buffer_load_dwordx4 v1, {SAUX}, 0 offen lds
L_h_nowr:""")
    issue_w(0)
    for it in range(L):
        issue(it)
    srd(40, 28, WS_SIZE)
    a(f"""v_mov_b32 v{hZ}, 0
    v_mov_b32 v{hONE}, 1
    s_waitcnt vmcnt({sum(cnt(i) for i in range(L))})
    s_barrier""")
    issued = L
    for n in range(8):
        pend = sum(cnt(i) for i in range(n + 1, issued))
        a(f"s_waitcnt vmcnt({pend})")
        a(f"s_barrier                             ; B{n}")
        if n in (0, 1, 7):
            stamp({0: 1, 1: 10, 3: 2, 7: 3}[n])
        if n == 1 and cfg.qpf:
            a(f"""s_lshl_b32 s30, s2, 1
            s_lshr_b32 s31, {sT}, 1
            s_add_u32 s30, s30, s31
            s_mul_i32 s30, s30, 3072
            s_and_b32 s31, {sT}, 1
            s_lshl_b32 s31, s31, 9
            s_add_u32 s30, s30, s31
            s_add_u32 s54, s10, s30
            s_addc_u32 s55, s11, 0""")
            for i in range(8):
                a(f"s_load_dword s{70+i}, s[54:55], {64*i}")
        if issued < 8:
            issue(issued)
            issued += 1
            if issued == 8:
                issue(8)
                issued += 1
    hXP, hXN, hG = 136, 144, 152
    hOA = 20
    a(f"""s_lshr_b32 s58, {sP}, 3
    s_and_b32 s59, {sP}, 7
    s_lshl_b32 s60, {sJ}, 1
    s_add_u32 s60, s60, s58
    v_lshrrev_b32 v1, 3, v0
    s_lshl_b32 s30, {sT}, 4
    v_add_u32 v22, s30, v1
    s_lshl_b32 s30, s60, 16
    s_lshl_b32 s31, s59, 7
    s_add_u32 s30, s30, s31
    v_lshl_add_u32 v1, v22, 10, s30
    v_and_b32 v2, 7, v0
    v_lshl_add_u32 v{hOA}, v2, 4, v1
    v_add_u32 v{hOA+1}, 8192, v{hOA}
    s_lshl_b32 s30, s58, 6
    v_add_lshl_u32 v1, v22, s30, 3
    v_add_u32 v23, {L_STAT}, v1
    """)
    issue(9)
    a(f"""buffer_load_dwordx4 v[{hXP}:{hXP+3}], v{hOA}, {SX}, 0 offen
    buffer_load_dwordx4 v[{hXP+4}:{hXP+7}], v{hOA+1}, {SX}, 0 offen
    s_waitcnt vmcnt(2)""")
    stamp(11)
    a("s_barrier")
    stamp(4)
    def normrows():
        a(f"""v_mov_b32 v6, {L_CTR}
    s_mov_b32 s56, 0
L_h_st:
    s_sleep 2
    ds_read_b32 v7, v6 offset:4
    ds_read_b64 v[24:25], v23
    ds_read_b64 v[26:27], v23 offset:64
    s_add_u32 s56, s56, 1
    s_waitcnt lgkmcnt(0)
    v_readfirstlane_b32 s30, v7
    s_cmp_ge_u32 s56, {cfg.spin_max}
    s_cbranch_scc1 L_h_std
    s_cmp_lt_u32 s30, 4
    s_cbranch_scc1 L_h_st
L_h_std:
    v_rcp_f32 v25, v25
    v_rcp_f32 v27, v27
    s_waitcnt vmcnt(0)""")
        for i in range(8):
            m, rs = (24, 25) if i < 4 else (26, 27)
            a(f"""v_lshlrev_b32 v28, 16, v{hXP+i}
                  v_and_b32 v29, 0xffff0000, v{hXP+i}
                  v_sub_f32 v28, v28, v{m}
                  v_sub_f32 v29, v29, v{m}
                  v_cvt_pk_bf16_f32 v28, 0, v28
                  v_cvt_pk_bf16_f32 v29, 0, v29
                  v_mul_f32 v28, v28, v{rs}
                  v_mul_f32 v29, v29, v{rs}
                  v_cvt_pk_bf16_f32 v{hXN+i}, v28, v29""")

    def gate(lo, hi):
        for i in range(lo, hi):
            g0, g1 = hG + 2 * i, hG + 2 * i + 1
            a(f"""v_lshlrev_b32 v28, 16, v{hXN+i}
                  v_and_b32 v29, 0xffff0000, v{hXN+i}
                  v_mul_f32 v{g0}, {f32(-LOG2E)}, v28
                  v_mul_f32 v{g1}, {f32(-LOG2E)}, v29
                  v_exp_f32 v{g0}, v{g0}
                  v_exp_f32 v{g1}, v{g1}
                  v_add_f32 v{g0}, 1.0, v{g0}
                  v_add_f32 v{g1}, 1.0, v{g1}
                  v_rcp_f32 v{g0}, v{g0}
                  v_rcp_f32 v{g1}, v{g1}
                  v_mul_f32 v{g0}, v{g0}, v28
                  v_mul_f32 v{g1}, v{g1}, v29
                  v_cvt_pk_bf16_f32 v{g0}, 0, v{g0}
                  v_cvt_pk_bf16_f32 v{g1}, 0, v{g1}""")
    tr_addr(30, 0, 1, 2)
    a(f"""v_lshrrev_b32 v31, 2, v0
    v_and_b32 v1, 3, v0
    v_lshlrev_b32 v32, 4, v1             ; piece
    v_lshl_add_u32 v33, v31, 10, v32
    s_lshl_b32 s30, s59, 7
    v_add_u32 v33, s30, v33
    s_lshr_b32 s61, s2, 3
    s_and_b32 s62, s2, 7""")
    srd(36, 12, 0 if cfg.nocold & 2 else 524288)
    normrows()
    stamp(12)
    a(f"""s_setprio 3
    s_barrier""")
    stamp(5)
    a(f"""s_cmp_lg_u32 {sT}, 0
    s_cbranch_scc1 L_h_b11
    s_lshl_b32 s57, {sP}, 7
    s_add_u32 s57, s57, {WS_FLAG + F1*128}""")
    poll("s57", 16, "f1", hZ, hT, sleep=1)
    stamp(13)
    a(f"""L_h_b11:
    s_barrier
    s_cmp_eq_u32 {sT}, 1
    s_cbranch_scc1 L_h1
    s_cmp_eq_u32 {sT}, 2
    s_cbranch_scc1 L_h2
    s_cmp_eq_u32 {sT}, 3
    s_cbranch_scc1 L_h3""")

    def mailbox(tag):
        a(f"""v_mov_b32 v6, {L_CTR}
              s_mov_b32 s56, 0
        L_mb_{tag}:
              s_sleep 8
              ds_read_b64 v[4:5], v6 offset:8
              s_add_u32 s56, s56, 1
              s_waitcnt lgkmcnt(0)
              v_readfirstlane_b32 s66, v4
              v_readfirstlane_b32 s67, v5
              s_cmp_ge_u32 s56, {cfg.spin_max}
              s_cbranch_scc1 L_mbd_{tag}
              s_cmp_eq_u32 s66, 0
              s_cbranch_scc1 L_mb_{tag}
        L_mbd_{tag}:""")

    a(f"""s_getreg_b32 s50, hwreg(HW_REG_XCC_ID, 0, 4)
    s_or_b32 s50, s50, 0x100
    v_mov_b32 v8, s50
    s_lshl_b32 s63, {sJ}, 7
    s_add_u32 s63, s63, {WS_FLAG + FX*128}
    s_lshl_b32 s51, {sP}, 2
    s_add_u32 s51, s51, s63
    s_mov_b64 exec, 1
    buffer_store_dword v8, v{hZ}, {SWS}, s51 offen sc1
    s_mov_b64 exec, -1""")
    mailbox("h0")
    a(f"""s_mov_b32 s54, 0
L_wo:
    s_add_u32 s50, s54, s60
    s_and_b32 s50, s50, 31
    s_lshl_b32 s51, s50, 10
    s_lshl_b32 s50, s50, 14
    s_add_u32 m0, s51, {L_WO}
    s_add_u32 s52, s50, 64
    buffer_load_dwordx4 v33, {SW}, s50 offen lds
    s_add_u32 m0, s51, {L_WO + 32768}
    s_add_u32 s54, s54, 1
    buffer_load_dwordx4 v33, {SW}, s52 offen lds
    s_waitcnt vmcnt({cfg.wo_win})
    s_cmp_lt_u32 s54, 32
    s_cbranch_scc1 L_wo
    v_lshlrev_b32 v9, 2, v0
    s_mov_b32 s56, 0
    s_mov_b64 exec, 0xffff
L_xid:
    buffer_load_dword v10, v9, {SWS}, s63 offen sc1
    s_add_u32 s56, s56, 1
    s_waitcnt vmcnt(0)
    v_cmp_eq_u32 vcc, 0, v10
    s_cmp_ge_u32 s56, {cfg.spin_max}
    s_cbranch_scc1 L_xidd
    s_cbranch_vccnz L_xid
L_xidd:
    v_cmp_ne_u32 vcc, v8, v10
    s_mov_b64 exec, -1
    s_cmp_eq_u64 vcc, 0
    s_cselect_b32 s50, {cfg.local}, 0
    v_mov_b32 v10, s50
    ds_write_b32 v6, v10 offset:16""")
    stamp(6)
    a("s_branch L_h_tail")

    a(f"""L_h1:
    v_lshlrev_b32 v1, 4, v0
    v_add_u32 v2, {L_STAT}, v1
    ds_read_b128 v[4:7], v2
    v_lshlrev_b32 v2, 2, v0
    v_add_u32 v3, {L_KEY}, v2
    ds_read_b32 v8, v3
    s_lshl_b32 s50, {sP}, 13
    s_add_u32 s63, s50, {WS_STAT}
    s_lshl_b32 s50, {sJ}, 9
    s_add_u32 s50, s50, s63
    s_lshl_b32 s51, {sP}, 9
    s_add_u32 s64, s51, {WS_CAND}
    s_lshl_b32 s51, {sJ}, 5
    s_add_u32 s51, s51, s64
    v_lshlrev_b32 v3, 3, v0
    s_waitcnt lgkmcnt(0)
    v_lshrrev_b32 v4, 16, v4
    v_lshrrev_b32 v6, 16, v6
    v_or_b32 v4, v4, v5
    v_or_b32 v5, v6, v7
    buffer_store_dwordx2 v[4:5], v3, {SWS}, s50 offen sc1
    s_mov_b64 exec, 0xff
    buffer_store_dword v8, v2, {SWS}, s51 offen sc1
    s_mov_b64 exec, -1
    s_lshl_b32 s65, {sP}, 7
    s_add_u32 s65, s65, {WS_FLAG + F2*128}
    s_waitcnt vmcnt(0)""")
    signal("s65", hZ, hONE)
    WFR = 40
    a(f"""s_cmpk_lt_u32 s2, 0xe0
    s_cbranch_scc0 L_h1_nogu
    v_mul_u32_u24 v1, 3584, v31
    v_add_u32 v34, v1, v32
    s_mul_i32 s50, s62, {64*3584}
    s_lshl_b32 s51, s61, 7
    s_add_u32 s50, s50, s51""")
    for mtx in range(2):
        srd(44, 18 + 2 * mtx, 1835008)
        for s in range(4):
            for ct in range(2):
                a(f"""s_mov_b32 m0, {L_GU + ((2*mtx + ct)*4 + s)*1024}
                      s_add_u32 s51, s50, {s*16*3584 + ct*64}
                      {'s_nop 0' if cfg.nocold & 1 else f'buffer_load_dwordx4 v34, {SAUX}, s51 offen {cfg.ntw} lds'}""")
            a(f"s_waitcnt vmcnt({cfg.gu_win})")
    a(f"""v_add_u32 v35, {L_GU}, v30
    s_waitcnt vmcnt(0)""")
    for b in range(16):
        read_w(WFR + 4 * b, 35, b * 1024)
        if b in (6, 13):
            a("s_waitcnt lgkmcnt(0)")
    a("""s_waitcnt lgkmcnt(0)
L_h1_nogu:""")
    poll("s65", 16, "f2", hZ, hT, sleep=8)
    stamp(6)
    a(f"""buffer_load_dwordx2 v[4:5], v3, {SWS}, s64 offen sc1
    s_waitcnt vmcnt(0)""")
    wavemax_u32("s66", 4, 6, 4)
    a(f"""v_cmp_eq_u32 vcc, s66, v4
    v_cndmask_b32 v4, v4, v5, vcc""")
    wavemax_u32("s67", 4, 6, 4)
    a(f"""v_mov_b32 v4, s66
    v_mov_b32 v5, s67
    v_mov_b32 v6, {L_CTR}
    ds_write_b64 v6, v[4:5] offset:8      ; mailbox
    s_cmpk_lt_u32 s2, 0xe0
    s_cbranch_scc0 L_h_tail
    v_cmp_gt_u32 vcc, 32, v0
    v_cndmask_b32 v4, v5, v4, vcc
    v_and_b32 v4, 0x7ff, v4
    v_sub_u32 v4, 0x7ff, v4
    v_lshlrev_b32 v5, 2, v4
    v_and_b32 v6, 31, v0
    v_lshlrev_b32 v6, 2, v6
    v_lshl_add_u32 v6, v4, 10, v6
    s_lshl_b32 s50, s62, 7
    buffer_load_dword v7, v5, {SWS}, s63 offen sc1
    buffer_load_dword v8, v6, {SX}, s50 offen
    v_add_u32 v2, {L_XS}, v2
    v_and_b32 v1, 1, v0
    v_lshrrev_b32 v6, 5, v0
    v_lshlrev_b32 v6, 4, v6
    v_lshl_add_u32 v6, v1, 7, v6
    v_add_u32 v6, {L_XS}, v6
    s_waitcnt vmcnt(0)
    v_and_b32 v9, 0xffff0000, v7
    v_rcp_f32 v9, v9
    v_lshlrev_b32 v7, 16, v7
    v_lshlrev_b32 v28, 16, v8
    v_and_b32 v29, 0xffff0000, v8
    v_sub_f32 v28, v28, v7
    v_sub_f32 v29, v29, v7
    v_cvt_pk_bf16_f32 v28, 0, v28
    v_cvt_pk_bf16_f32 v29, 0, v29
    v_mul_f32 v28, v28, v9
    v_mul_f32 v29, v29, v9
    v_cvt_pk_bf16_f32 v28, v28, v29
    ds_write_b32 v2, v28
    s_waitcnt lgkmcnt(0)""")
    stamp(7)
    XSF, AC0, AC1 = 120, 104, 24
    for s in range(4):
        a(f"ds_read_b128 v[{XSF+4*s}:{XSF+4*s+3}], v6 offset:{32*s}")
    a("s_waitcnt lgkmcnt(0)")
    for mtx in range(2):
        for s in range(4):
            mfma32(AC0, XSF + 4 * s, WFR + 4 * ((2 * mtx) * 4 + s), None if s == 0 else AC0)
            mfma32(AC1, XSF + 4 * s, WFR + 4 * ((2 * mtx + 1) * 4 + s), None if s == 0 else AC1)
        a(f"""v_cndmask_b32 v{8+2*mtx}, v{AC1}, v{AC0}, vcc
              v_cndmask_b32 v{9+2*mtx}, v{AC1+1}, v{AC0+1}, vcc""")
    a(f"""s_lshl_b32 s50, s2, 10
    s_add_u32 s50, s50, {WS_P1}
    v_lshlrev_b32 v1, 4, v0
    buffer_store_dwordx4 v[8:11], v1, {SWS}, s50 offen sc1
    s_lshl_b32 s65, s61, 7
    s_add_u32 s65, s65, {WS_FLAG + F3*128}
    s_waitcnt vmcnt(0)""")
    signal("s65", hZ, hONE)
    stamp(8)
    a("s_branch L_h_tail")

    a(f"""L_h2:
    s_cmpk_lt_u32 s2, 0xe0
    s_cbranch_scc0 L_h_tail""")
    mailbox("h2")
    a(f"""v_lshl_add_u32 v34, v31, 10, v32
    s_lshl_b32 s50, s61, 16
    s_lshl_b32 s51, s62, 7
    s_add_u32 s50, s50, s51""")
    srd(44, 22, 1835008)
    for s in range(4):
        for ct in range(2):
            a(f"""s_mov_b32 m0, {L_DN + (ct*4 + s)*1024}
                  s_add_u32 s51, s50, {s*16384 + ct*64}
                  {'s_nop 0' if cfg.nocold & 1 else f'buffer_load_dwordx4 v34, {SAUX}, s51 offen {cfg.ntw} lds'}""")
    a(f"""v_add_u32 v35, {L_DN}, v30
    s_waitcnt vmcnt(0)""")
    for b in range(8):
        read_w(WFR + 4 * b, 35, b * 1024)
        if b == 6:
            a("s_waitcnt lgkmcnt(0)")
    a(f"""s_waitcnt lgkmcnt(0)
    s_lshl_b32 s65, s61, 7
    s_add_u32 s65, s65, {WS_FLAG + F3*128}""")
    poll("s65", 8, "f3", hZ, hT, sleep=16)
    stamp(6)
    a(f"""s_lshl_b32 s50, s61, 13
    s_add_u32 s50, s50, {WS_P1}
    s_add_u32 s51, s50, 4096
    v_lshlrev_b32 v1, 4, v0""")
    for k in range(8):
        a(f"buffer_load_dwordx4 v[{72+4*k}:{75+4*k}], v1, {SWS}, {'s50' if k < 4 else 's51'} offen offset:{1024*(k & 3)} sc1")
    a(f"""v_lshlrev_b32 v2, 1, v0
    v_add_u32 v2, {L_XS + 256}, v2
    v_and_b32 v1, 1, v0
    v_lshrrev_b32 v6, 5, v0
    v_lshlrev_b32 v6, 4, v6
    v_lshl_add_u32 v6, v1, 7, v6
    v_add_u32 v6, {L_XS + 256}, v6
    v_cmp_gt_u32 vcc, 32, v0
    s_waitcnt vmcnt(0)""")
    for k in range(1, 8):
        a(f"""v_pk_add_f32 v[72:73], v[72:73], v[{72+4*k}:{73+4*k}]
              v_pk_add_f32 v[74:75], v[74:75], v[{74+4*k}:{75+4*k}]""")
    for i in range(4):
        rnd(72 + i, f"v{72+i}")
    a(f"""v_mul_f32 v76, {f32(-LOG2E)}, v72
    v_mul_f32 v77, {f32(-LOG2E)}, v73
    v_exp_f32 v76, v76
    v_exp_f32 v77, v77
    v_add_f32 v76, 1.0, v76
    v_add_f32 v77, 1.0, v77
    v_rcp_f32 v76, v76
    v_rcp_f32 v77, v77
    v_mul_f32 v76, v76, v72
    v_mul_f32 v77, v77, v73
    v_cvt_pk_bf16_f32 v76, 0, v76
    v_cvt_pk_bf16_f32 v77, 0, v77
    v_mul_f32 v76, v76, v74
    v_mul_f32 v77, v77, v75
    v_cvt_pk_bf16_f32 v76, v76, v77
    ds_write_b16 v2, v76
    ds_write_b16_d16_hi v2, v76 offset:128
    s_waitcnt lgkmcnt(0)""")
    for s in range(4):
        a(f"ds_read_b128 v[{XSF+4*s}:{XSF+4*s+3}], v6 offset:{32*s}")
    a("s_waitcnt lgkmcnt(0)")
    for s in range(4):
        mfma32(AC0, XSF + 4 * s, WFR + 4 * s, None if s == 0 else AC0)
        mfma32(AC1, XSF + 4 * s, WFR + 4 * (4 + s), None if s == 0 else AC1)
    a(f"""s_lshl_b32 s50, s61, 11
    s_lshl_b32 s51, s62, 8
    s_add_u32 s50, s50, s51
    s_add_u32 s50, s50, {WS_P2}
    s_add_u32 s51, s50, {28*2048}
    s_lshl_b32 s65, s62, 7
    s_add_u32 s65, s65, {WS_FLAG + F4*128}
    v_lshlrev_b32 v1, 2, v0
    v_cndmask_b32 v8, v{AC1}, v{AC0}, vcc
    v_cndmask_b32 v9, v{AC1+1}, v{AC0+1}, vcc
    buffer_store_dword v8, v1, {SWS}, s50 offen sc1
    buffer_store_dword v9, v1, {SWS}, s51 offen sc1
    s_waitcnt vmcnt(0)""")
    signal("s65", hZ, hONE)
    stamp(8)
    a("s_branch L_h_tail")

    def key_tok(dst, key):
        a(f"s_and_b32 {dst}, {key}, 0x7ff\ns_sub_u32 {dst}, 0x7ff, {dst}")

    a("L_h3:")
    mailbox("h3")
    a(f"""s_lshl_b32 s65, s59, 7
    s_add_u32 s65, s65, {WS_FLAG + F4*128}
    s_mov_b32 s68, 0
    v_lshlrev_b32 v3, 2, v0
L_h3_sel:""")
    key_tok("s50", "s66")
    a(f"""s_lshr_b32 s50, s50, 6
    s_cmp_lg_u32 s50, s60
    s_cbranch_scc1 L_h3_next""")
    poll("s65", 28, "f4", hZ, hT, sleep=16)
    stamp(6)
    a(f"""s_mul_i32 s50, s68, {28*2048}
    s_lshl_b32 s51, s59, 8
    s_add_u32 s50, s50, s51
    s_add_u32 s50, s50, {WS_P2}""")
    for k in range(28):
        a(f"buffer_load_dword v{40+k}, v3, {SWS}, s50 offen offset:{2048*(k & 1)} sc1")
        if k & 1:
            a("s_add_u32 s50, s50, 4096")
    a(f"""s_and_b32 s51, s66, 0xffff0000
    s_xor_b32 s52, s51, 0x80000000
    s_xor_b32 s53, s51, 0xffff0000
    s_bitcmp1_b32 s51, 31
    s_cselect_b32 s51, s52, s53
    v_mov_b32 v4, {f32(-LOG2E)}
    v_mul_f32 v4, s51, v4
    v_exp_f32 v4, v4
    s_lshl_b32 s51, s68, 8
    s_add_u32 s51, s51, {L_Y}
    v_add_u32 v7, s51, v3
    v_add_f32 v4, 1.0, v4
    v_rcp_f32 v4, v4
    s_waitcnt vmcnt(0)
    v_cvt_pk_bf16_f32 v4, 0, v4""")
    for k in range(1, 14):
        a(f"v_pk_add_f32 v[40:41], v[40:41], v[{40+2*k}:{41+2*k}]")
    a(f"""v_add_f32 v40, v40, v41
    v_cvt_pk_bf16_f32 v40, 0, v40
    v_mul_f32 v40, v40, v4
    v_cvt_pk_bf16_f32 v40, 0, v40
    ds_write_b32 v7, v40
L_h3_next:
    s_mov_b32 s66, s67
    s_add_u32 s68, s68, 1
    s_cmp_lt_u32 s68, 2
    s_cbranch_scc1 L_h3_sel""")
    stamp(8)

    a(f"""L_h_tail:
    s_setprio 0
    s_waitcnt vmcnt(0) lgkmcnt(0)
    s_barrier                             ; T1""")
    stamp(9)
    a(f"""v_mov_b32 v6, {L_CTR}
    ds_read_b64 v[4:5], v6 offset:8
    v_and_b32 v1, 7, v0
    v_lshlrev_b32 v7, 5, v1
    v_add_u32 v7, {L_Y}, v7
    s_mov_b32 s68, 0
    s_waitcnt lgkmcnt(0)
    v_readfirstlane_b32 s66, v4
    v_readfirstlane_b32 s67, v5
L_ht_sel:""")
    key_tok("s50", "s66")
    a(f"""s_lshr_b32 s51, s50, 6
    s_cmp_lg_u32 s51, s60
    s_cbranch_scc1 L_ht_next
    s_and_b32 s50, s50, 63
    ds_read_b128 v[8:11], v7
    ds_read_b128 v[12:15], v7 offset:16
    s_sub_u32 s51, s50, 8
    v_cmp_eq_u32 s[52:53], s50, v22
    v_cmp_eq_u32 s[54:55], s51, v22
    s_waitcnt lgkmcnt(0)""")
    for q in range(2):
        for i in range(4):
            r = hXN + 4 * q + i
            a(f"""v_lshlrev_b32 v28, 16, v{r}
                  v_and_b32 v29, 0xffff0000, v{r}
                  v_add_f32 v28, v28, v{8+2*i}
                  v_add_f32 v29, v29, v{9+2*i}
                  v_cvt_pk_bf16_f32 v28, v28, v29
                  v_cndmask_b32 v{r}, v{r}, v28, s[{52+2*q}:{53+2*q}]""")
    a(f"""L_ht_next:
    v_add_u32 v7, 256, v7
    s_mov_b32 s66, s67
    s_add_u32 s68, s68, 1
    s_cmp_lt_u32 s68, 2
    s_cbranch_scc1 L_ht_sel""")
    gate(0, cfg.gatepos)
    XU = 40
    srd(44, 24, 2097152)
    def stage_setup(sw_sgpr):
        a(f"""s_lshr_b32 s30, {sP}, 3
              s_lshl_b32 s31, {sJ}, 1
              s_add_u32 s30, s30, s31
              s_lshl_b32 s30, s30, 16
              s_lshl_b32 s31, {sw_sgpr}, 10
              s_add_u32 s68, s30, s31
              s_add_u32 s68, s68, {WS_OF}
              s_add_u32 s69, s31, {L_OST}""")

    def stage_o(addr):
        def grp(g):
            for tt in range(2):
                off = g * 8192 + tt * 32768
                a(f"""s_add_u32 m0, s69, {off}
                      s_add_u32 s30, s68, {off}
                      buffer_load_dwordx4 v{addr}, {SWS}, s30 offen sc1 lds""")
        grp(0)
        grp(1)
        for g in range(4):
            a(f"""s_waitcnt vmcnt({2 if g < 3 else 0})
            s_barrier                             ; T4{'abcd'[g]}""")
            if g < 2:
                grp(g + 2)

    stage_setup(sT)
    a(f"""v_and_b32 v2, 7, v22
    v_xor_b32 v2, v1, v2
    v_lshlrev_b32 v3, 7, v22
    v_lshl_add_u32 v4, v2, 4, v3
    v_lshlrev_b32 v5, 4, v0
    s_barrier                             ; T2""")
    gate(cfg.gatepos, 8)
    a("s_barrier                             ; T3")
    stage_o(5)
    for i in range(8):
        a(f"v_lshlrev_b32 v{XU+2*i}, 16, v{hXP+i}\nv_and_b32 v{XU+2*i+1}, 0xffff0000, v{hXP+i}")
    a(f"""s_barrier                             ; T5
    ds_read_b128 v[8:11], v4 offset:{L_SST}
    ds_read_b128 v[12:15], v4 offset:{L_SST + 1024}""")
    for q in range(2):
        a(f"s_waitcnt lgkmcnt({1-q})")
        for i in range(4):
            e = 8 * q + 2 * i
            a(f"""v_lshlrev_b32 v28, 16, v{8+4*q+i}
                  v_and_b32 v29, 0xffff0000, v{8+4*q+i}
                  v_fma_f32 v28, v28, v{hG+e}, v{XU+e}
                  v_fma_f32 v29, v29, v{hG+e+1}, v{XU+e+1}
                  v_cvt_pk_bf16_f32 v{8+4*q+i}, v28, v29""")
        a(f"buffer_store_dwordx4 v[{8+4*q}:{11+4*q}], v{hOA+q}, {SAUX}, 0 offen")
    stamp(14)
    if cfg.stamps:
        a("s_waitcnt vmcnt(0)")
    stamp(15)
    if cfg.probe:
        a(f"""s_sub_u32 s98, s98, s96
        s_mul_i32 s98, s98, {cfg.probe[2]}
        s_add_u32 s98, s98, {cfg.probe[1]}
        s_min_u32 s98, s98, 100000
    L_probe:
        s_sleep 4
        s_memrealtime s[100:101]
        s_waitcnt lgkmcnt(0)
        s_sub_u32 s100, s100, s96
        s_cmp_lt_u32 s100, s98
        s_cbranch_scc1 L_probe""")
    dump_stamps()
    a("s_endpgm")

    vXA, vWA = 144, 148
    vM, vRS, vDEN = 149, 150, 151
    CS = 152
    MF = 156
    t = 160
    vLANE, vL16 = 166, 167

    class Lg:
        def __init__(self):
            self.q = []

        def rd(self, tag, text):
            for ln in text.strip().split("\n"):
                if len(self.q) >= 15:
                    a("s_waitcnt lgkmcnt(9)")
                    self.q = self.q[-9:]
                a(ln)
                self.q.append(tag)

        def wait(self, *tags):
            last = max((i for i, x in enumerate(self.q) if x in tags), default=-1)
            if last < 0:
                return
            n = len(self.q) - 1 - last
            a(f"s_waitcnt lgkmcnt({min(n, 15)})")
            self.q = self.q[last + 1:]

    def trs(dst, addr, off, second=256):
        return (f"ds_read_b64_tr_b16 v[{dst}:{dst+1}], v{addr} offset:{off}\n"
                f"ds_read_b64_tr_b16 v[{dst+2}:{dst+3}], v{addr} offset:{off + second}")

    a(f"""L_compute:
    v_mov_b32 v{vLANE}, v0
    v_lshlrev_b32 v{vL16}, 4, v0
    v_and_b32 v1, 31, v0
    v_lshrrev_b32 v2, 5, v0              ; half
    v_bfe_u32 v3, v0, 1, 3
    v_xor_b32 v3, v3, v2
    s_lshl_b32 s30, {sT}, 12
    s_add_u32 s30, s30, {L_RING}
    v_lshl_add_u32 v4, v1, 7, s30""")
    for s in range(4):
        a(f"v_xor_b32 v5, {2*s}, v3\nv_lshl_add_u32 v{vXA+s}, v5, 4, v4")
    tr_addr(vWA, 0, 3, 4)
    a(f"""v_lshrrev_b32 v3, 2, v0
    v_xor_b32 v3, v3, v0
    v_and_b32 v3, 4, v3
    v_cmp_eq_u32 vcc, 0, v3
    v_mov_b32 v4, {sONE}""")
    for i in range(4):
        a(f"v_cndmask_b32 v{CS+i}, 0, v4, vcc")
    a("s_waitcnt lgkmcnt(0)")
    if cfg.stamps:
        a("s_mov_b32 s80, s78")
    srd(40, 28, WS_SIZE)
    a(f"""s_cmp_ge_u32 {sWV}, 8
    s_cbranch_scc1 L_bwave""")

    XB, WK, WV, AK, AV, RB, ASX, SQ = (0, 16), 32, 48, 64, 80, 96, 112, 116
    SFK, SFV, RF, OF_ = 128, 132, 136, 140
    vKG, vVG = 164, 165
    EFA, vEA = RB, vM
    a(f"""v_and_b32 v1, 3, v0
    v_mov_b32 v5, {L_ZERO}
    v_mov_b32 v6, {L_ONES}
    v_mov_b32 v7, {L_WR}
    v_cmp_eq_u32 s[52:53], 0, v1
    v_cmp_eq_u32 s[54:55], 1, v1
    v_cndmask_b32 v6, v5, v6, s[52:53]
    v_cndmask_b32 v6, v6, v7, s[54:55]
    v_cndmask_b32 v6, v5, v6, vcc
    v_lshl_add_u32 v{vEA}, v2, 4, v6
    v_cmp_gt_u32 vcc, 32, v{vLANE}
    v_and_b32 v{t}, 0x33, v{vLANE}
    v_bfe_u32 v{t+1}, v{vLANE}, 2, 1
    v_lshl_add_u32 v{t}, v{t+1}, 3, v{t}
    v_bfe_u32 v{t+1}, v{vLANE}, 3, 1
    v_lshl_add_u32 v{t}, v{t+1}, 2, v{t}
    v_lshlrev_b32 v{vKG}, 4, v{t}
    v_and_b32 v{t}, 0x2f, v{vLANE}
    v_lshlrev_b32 v{t}, 4, v{t}
    v_bfe_u32 v{t+1}, v{vLANE}, 4, 1
    v_lshl_add_u32 v{vVG}, v{t+1}, 17, v{t}
    v_cndmask_b32 v{OF_}, 0, v4, vcc
    v_cndmask_b32 v{OF_+1}, 0, v4, vcc
    v_mov_b32 v{OF_+2}, 0
    v_mov_b32 v{OF_+3}, 0
    v_mov_b32 v{RF+2}, 0
    v_mov_b32 v{RF+3}, 0
    v_add_u32 v{t+3}, {L_SFR}, v{vL16}
    s_lshl_b32 s50, {sP}, 18
    s_lshl_b32 s30, {sJ}, 13
    s_add_u32 s50, s50, s30
    s_lshl_b32 s49, {sT}, 11
    s_add_u32 s50, s50, s49
    s_add_u32 s51, s50, 0x20000
    s_mov_b32 s52, 0xaaaaaaaa
    s_mov_b32 s53, 0xaaaaaaaa
    s_mov_b32 s54, 0xcccccccc
    s_mov_b32 s55, 0xcccccccc
    s_barrier                             ; Ba""")
    lg = Lg()

    def rdw(n, s, which):
        if cfg.x1 & 4 and n > 0:
            return
        if which == 0:
            lg.rd(("k", n, s), trs(WK + 4 * s, vWA, L_WK + n * 4096 + s * 1024))
        else:
            lg.rd(("v", n, s), trs(WV + 4 * s, vWA, L_WV + n * 4096 + s * 1024))

    def rdx(n, s):
        r = XB[n & 1] + 4 * s
        off = (n % 5) * 16384 - (16 if n == 4 else 0)
        lg.rd(("x", n, s), f"ds_read_b128 v[{r}:{r+3}], v{vXA+s} offset:{off}")

    def rde(n, s):
        lg.rd(("e", n, s), f"ds_read_b128 v[{EFA+4*s}:{EFA+4*s+3}], v{vEA} offset:{(4*n + s)*32}")

    def bigk(n, s):
        lg.wait(("k", n, s), ("x", n, s))
        if cfg.x1 & 8 and 0 < n < 7:
            return
        mfma32(AK, WK + 4 * s, XB[n & 1] + 4 * s, None if (n, s) == (0, 0) else AK)

    def bigv(n, s):
        lg.wait(("v", n, s), ("x", n, s))
        if cfg.x1 & 8 and 0 < n < 7:
            return
        mfma32(AV, XB[n & 1] + 4 * s, WV + 4 * s, None if (n, s) == (0, 0) else AV)

    def smalls(n, fill=()):
        fill = list(fill)
        lg.wait(*[(k_, n, s) for s in range(4) for k_ in "xe"])
        if cfg.x1 & 2 and n not in (0, 7):
            for f_ in fill: a(f_)
            return
        for s in range(4):
            mfma16(ASX, EFA + 4 * s, XB[n & 1] + 4 * s, None if (n, s) == (0, 0) else ASX)
            if fill:
                a(fill.pop(0))
        for i in range(8):
            d = SQ + 4 * (i % 3)
            r = XB[n & 1] + 2 * i
            c = "0" if (n == 0 and i < 3) else f"v[{d}:{d+3}]"
            a(f"v_mfma_f32_4x4x4_16b_bf16 v[{d}:{d+3}], v[{r}:{r+1}], v[{r}:{r+1}], {c}")
        assert not fill

    def head(n):
        rdx(n, 0); rdx(n, 1)
        if n:
            bigk(n - 1, 2)
        rdx(n, 2); rdx(n, 3); rde(n, 0); rde(n, 1)
        if n:
            bigv(n - 1, 2)
        rdw(n, 2, 0); rdw(n, 2, 1)
        if n:
            bigk(n - 1, 3)
        rdw(n, 3, 0); rde(n, 2); rde(n, 3)
        if n:
            bigv(n - 1, 3)
        rdw(n, 3, 1)

    for s in range(2):
        rdw(0, s, 0); rdw(0, s, 1)
    for n in range(7):
        a(f"s_barrier                             ; B{n}")
        head(n)
        for s in range(2):
            bigk(n, s)
            rdw(n + 1, s, 0)
            bigv(n, s)
            rdw(n + 1, s, 1)
        fill = []
        if n == 3:
            fill = [f"v_add_u32 v{vXA+s}, 16, v{vXA+s}" for s in range(4)]
        if n == 4:
            fill = [f"v_add_u32 v{vXA+s}, -16, v{vXA+s}" for s in range(4)]
        smalls(n, fill)
    a("s_barrier                             ; B7")
    stamp(3)
    head(7)
    lg.rd("sf", f"ds_read_b128 v[{SFK}:{SFK+3}], v{t+3}\nds_read_b128 v[{SFV}:{SFV+3}], v{t+3} offset:1024")
    smalls(7)
    PK = XB[0]
    groups = [
        [],
        [f"v_mul_f32 v{t}, {f32(1/512)}, v{ASX}            ; mean"] +
        [f"v_pk_add_f32 v[{SQ+i}:{SQ+i+1}], v[{SQ+i}:{SQ+i+1}], v[{SQ+4+i}:{SQ+5+i}]" for i in (0, 2)] +
        [f"v_pk_add_f32 v[{SQ+i}:{SQ+i+1}], v[{SQ+i}:{SQ+i+1}], v[{SQ+8+i}:{SQ+9+i}]" for i in (0, 2)],
        [f"v_cvt_pk_bf16_f32 v{MF}, -v{t}, -v{t}",
         f"v_cndmask_b32 v{SQ}, v{SQ}, v{SQ+1}, s[52:53]",
         f"v_cndmask_b32 v{SQ+2}, v{SQ+2}, v{SQ+3}, s[52:53]",
         f"v_mov_b32 v{MF+1}, v{MF}",
         f"v_cndmask_b32 v{SQ}, v{SQ}, v{SQ+2}, s[54:55]",
         f"v_mov_b32 v{t+1}, v{SQ}"],
        [f"v_mov_b32 v{MF+2}, v{MF}",
         f"v_mov_b32 v{MF+3}, v{MF}",
         f"v_permlane32_swap_b32 v{t+1}, v{SQ}",
         f"v_add_f32 v{t+1}, v{t+1}, v{SQ}",
         f"v_mul_f32 v{t+1}, {f32(1/512)}, v{t+1}"],
        [f"v_fma_f32 v{t+1}, -v{t}, v{t}, v{t+1}         ; variance",
         f"v_max_f32 v{t+1}, 0, v{t+1}",
         f"v_cvt_pk_bf16_f32 v{t+1}, 0, v{t+1}",
         f"v_add_f32 v{t+1}, {f32(1e-5)}, v{t+1}",
         f"v_cvt_pk_bf16_f32 v{t+1}, 0, v{t+1}",
         f"v_sqrt_f32 v{t+1}, v{t+1}"],
        [f"v_cvt_pk_bf16_f32 v{vDEN}, 0, v{t+1}",
         f"v_rcp_f32 v{vRS}, v{vDEN}",
         f"v_cvt_pk_bf16_f32 v{vM}, 0, v{t}",
         f"v_and_b32 v{t}, 0xffff0000, v{vRS}",
         f"v_sub_f32 v{t+1}, v{vRS}, v{t}"],
        [f"v_and_b32 v{t+2}, 0xffff0000, v{t+1}",
         f"v_sub_f32 v{t+1}, v{t+1}, v{t+2}",
         f"v_lshrrev_b32 v{t}, 16, v{t}",
         f"v_or_b32 v{RF}, v{t}, v{t+2}",
         f"v_lshrrev_b32 v{RF+1}, 16, v{t+1}",
         f"v_mul_f32 v{AK}, v{vRS}, v{AK}"],
        [f"v_mul_f32 v{AK+i}, v{vRS}, v{AK+i}" for i in range(1, 7)],
        [f"v_mul_f32 v{AK+7}, v{vRS}, v{AK+7}"] +
        [f"v_cvt_pk_bf16_f32 v{PK+i}, v{AK+2*i}, v{AK+2*i+1}" for i in range(4)] +
        [f"buffer_store_dwordx4 v[{PK}:{PK+3}], v{vKG}, {SWS}, s50 offen sc1"],
        [f"v_mul_f32 v{AK+i}, v{vRS}, v{AK+i}" for i in range(8, 14)],
        [f"v_mul_f32 v{AK+i}, v{vRS}, v{AK+i}" for i in range(14, 16)] +
        [f"v_cvt_pk_bf16_f32 v{PK+i}, v{AK+2*i}, v{AK+2*i+1}" for i in range(4, 8)] +
        [f"buffer_store_dwordx4 v[{PK+4}:{PK+7}], v{vKG}, {SWS}, s51 offen sc1"],
    ]

    def augk():
        lg.wait("sf")
        mfma32(AK, SFK, MF, AK)
    seq = [lambda s=s: bigk(7, s) for s in range(4)] + [augk] + [lambda s=s: bigv(7, s) for s in range(3)]
    seq += [lambda: mfma32(RB, RF, OF_), lambda: bigv(7, 3), lambda: mfma32(AV, MF, SFV, AV)]
    assert len(seq) == len(groups)
    for m, g in zip(seq, groups):
        m()
        for ins in g:
            a(ins)
    a(f"""s_lshl_b32 s30, {sT}, 10
    s_add_u32 s30, s30, {L_WQ}
    v_add_u32 v{vWA}, s30, v{vWA}
    v_add_u32 v16, {L_WR}, v{vL16}""")
    for hf in range(2):
        for i in range(4 * hf, 4 * hf + 4):
            a(f"v_pk_mul_f32 v[{AV+2*i}:{AV+2*i+1}], v[{RB+2*i}:{RB+2*i+1}], v[{AV+2*i}:{AV+2*i+1}]")
        for i in range(4 * hf, 4 * hf + 4):
            a(f"v_cvt_pk_bf16_f32 v{PK+8+i}, v{AV+2*i}, v{AV+2*i+1}")
        a(f"buffer_store_dwordx4 v[{PK+8+4*hf}:{PK+11+4*hf}], v{vVG}, {SWS}, s50 offen offset:{1024 + 256*hf} sc1")
    stamp(2)

    SA, SB, OO, QQ, RING = 0, 16, 32, 96, 112
    vIDX = 160
    vC = 136
    sHH, sKQ = "s58", "s60"
    sVM = "s[62:63]"

    def slot(s):
        b = RING + 12 * s
        return dict(K=b, V=[b + 4, b + 8])

    def attn_init_a():
        a(f"""s_sub_u32 s30, {sWV}, 4
        s_lshr_b32 {sHH}, s30, 2
        s_and_b32 {sKQ}, s30, 3
        s_mov_b32 s62, 0xffff
        s_mov_b32 s63, 0xffff
        s_lshl_b32 s64, {sP}, 1
        s_add_u32 s64, s64, {sHH}
        s_lshl_b32 s64, s64, 17
        s_lshl_b32 s61, {sJ}, 13
        s_lshl_b32 s31, {sKQ}, 11
        s_add_u32 s61, s61, s31
        s_add_u32 s61, s61, 8192
        s_and_b32 s61, s61, 0x1ffff
        v_and_b32 v0, 27, v{vLANE}
        v_cmp_eq_u32 vcc, 16, v0
        v_mov_b32 v1, {sONE}
        v_mov_b32 v2, 0
        v_mov_b32 v3, 0
        v_cndmask_b32 v{vC}, 0, v1, vcc
        v_cndmask_b32 v{vC+1}, 0, v1, vcc""")

    def attn_init_b(slots):
        for s in slots:
            for i in range(0, 8, 2):
                r = slot(s)["V"][0] + i
                a(f"v_mov_b64 v[{r}:{r+1}], v[{vC}:{vC+1}]")

    def drain_signal():
        a(f"""s_waitcnt vmcnt(0)
        s_mov_b64 exec, 1
        ds_add_rtn_u32 v{t+3}, v{t+2}, v{t+4}
        s_mov_b64 exec, -1
        s_waitcnt lgkmcnt(0)
        v_readfirstlane_b32 s59, v{t+3}
        s_cmp_lg_u32 s59, 3
        s_cbranch_scc1 L_a_nosig""")
        signal("s57", t + 1, t + 4)
        stamp(1)
        a("L_a_nosig:")

    a("""s_setprio 3
    s_barrier                             ; B8""")
    stamp(4)
    lg = Lg()
    lg.rd("wr", "ds_read_b128 v[20:23], v16")
    for n in range(7):
        lg.rd(n, trs(32 + 4 * n, vWA, n * 4096))
    a(f"""v_and_b32 v{t}, 31, v{vLANE}
    s_lshl_b32 s30, {sT}, 5
    v_add_lshl_u32 v24, v{t}, s30, 3
    v_add_u32 v24, {L_STAT}, v24
    v_mov_b32 v26, v{vM}
    v_mov_b32 v27, v{vDEN}
    v_add_u32 v28, s49, v{vKG}
    v_and_b32 v29, 0x3ff, v{vVG}
    v_lshrrev_b32 v30, 4, v{vVG}
    v_and_b32 v30, 0x2000, v30
    v_add3_u32 v29, v29, v30, s49
    v_mov_b32 v{t+1}, 0
    v_mov_b32 v{t+2}, {L_CTR}
    v_mov_b32 v{t+4}, 1
    s_lshl_b32 s57, {sP}, 7
    s_add_u32 s57, s57, {WS_FLAG + F1*128}
    s_lshr_b32 s52, {sT}, 1
    s_lshl_b32 s52, s52, 9
    s_and_b32 s31, {sT}, 1
    s_lshl_b32 s31, s31, 3
    s_add_u32 s52, s52, s31
    s_add_u32 s52, s52, {L_SFR}
    v_lshl_add_u32 v{t+5}, v{t}, 4, s52""")
    lg.rd(7, trs(32 + 4 * 7, vWA, 7 * 4096))
    for i in range(4):
        a(f"v_mov_b32 v{16+i}, {sONE}")
    for n in range(8):
        lg.wait(n)
        mfma16(104, CS, 32 + 4 * n, 104 if n else None)
    mfma16(100, 16, 20)
    a(f"""s_lshl_b32 s30, {sJ}, 7
    s_lshl_b32 s31, {sT}, 5
    s_add_u32 s30, s30, s31
    s_sub_u32 s53, 0x7ff, s30""")
    a("ds_write_b64 v24, v[26:27]")
    split3(108, 104, 64)
    a(f"""ds_write_b64 v{t+5}, v[108:109]
    s_mov_b64 exec, 1
    ds_add_u32 v{t+2}, v{t+4} offset:4
    s_mov_b64 exec, -1
    ds_write_b128 v28, v[{PK}:{PK+3}] offset:{L_OWNKV}
    ds_write_b128 v28, v[{PK+4}:{PK+7}] offset:{L_OWNKV + 8192}
    ds_write_b128 v29, v[{PK+8}:{PK+11}] offset:{L_OWNKV + 1024}
    ds_write_b128 v29, v[{PK+12}:{PK+15}] offset:{L_OWNKV + 1280}""")
    stamp(14)
    drain_signal()
    a("s_setprio 1")
    AR = ASX + 1
    attn_init_a()
    for r in (8, 4, 2, 1):
        a(f"v_add_f32_dpp v100, v100, v100 row_ror:{r} row_mask:0xf bank_mask:0xf")
    a(f"""v_fma_f32 v{AR}, -v{vM}, v100, v{AR}
    v_mul_f32 v{AR}, v{vRS}, v{AR}
    v_cvt_pk_bf16_f32 v{AR}, 0, v{AR}
    v_ashrrev_i32 v{AR+1}, 31, v{AR}
    v_or_b32 v{AR+1}, 0x80000000, v{AR+1}
    v_xor_b32 v{AR}, v{AR}, v{AR+1}
    v_and_b32 v{AR}, 0xffff0000, v{AR}
    v_sub_u32 v{AR+1}, s53, v{t}
    v_or_b32 v{AR}, v{AR}, v{AR+1}""")
    wavemax_u32("s50", AR, AR + 1, 2)
    a(f"""v_cmp_eq_u32 vcc, s50, v{AR}
    v_cndmask_b32 v{AR}, v{AR}, v2, vcc""")
    wavemax_u32("s51", AR, AR + 1, 2)
    a(f"""s_lshl_b32 s30, {sT}, 3
    s_add_u32 s30, s30, {L_KEY}
    v_mov_b32 v4, s50
    v_mov_b32 v5, s51
    v_mov_b32 v6, s30
    ds_write_b64 v6, v[4:5]""")
    for r in range(OO, OO + 64, 2):
        a(f"v_mov_b64 v[{r}:{r+1}], v[2:3]")
    attn_init_b((0,))
    stamp(8)
    a("s_branch L_attn_pre")

    XF, WF, EF, ACC, ASK, ASV, AR = 0, 80, 96, 112, 128, 132, 136
    a(f"""L_bwave:
    s_cmp_lg_u32 {sT}, 0
    s_cbranch_scc1 L_b_noinit""")
    a(f"""v_mov_b32 v5, v4
    v_mov_b32 v6, v4
    v_mov_b32 v7, v4
    v_add_u32 v1, {L_ZERO}, v{vL16}
    v_mov_b32 v8, 0
    v_mov_b32 v9, 0
    v_mov_b32 v10, 0
    v_mov_b32 v11, 0
    ds_write_b128 v1, v[4:7] offset:{L_ONES - L_ZERO}
    ds_write_b128 v1, v[8:11]
    ds_write_b128 v1, v[8:11] offset:192
    s_waitcnt lgkmcnt(0)
L_b_noinit:""")
    if cfg.cpf:
        a(f"""s_cmp_lg_u32 {sT}, 2
        s_cbranch_scc1 L_b_nocpf
        s_getpc_b64 s[50:51]
    L_pc:
        s_lshr_b32 s30, s2, 3
        s_lshl_b32 s30, s30, 10
        v_lshl_add_u32 v1, v{vLANE}, 7, s30
        s_sub_u32 s50, s50, L_pc-{NAME}_kernel
        s_subb_u32 s51, s51, 0
        v_cmp_gt_u32 s[54:55], 8, v{vLANE}
        v_cmp_gt_u32 vcc, L_exit-{NAME}_kernel, v1
        v_mov_b32 v7, s51
        s_and_b64 s[54:55], s[54:55], vcc
        v_add_co_u32 v6, vcc, s50, v1
        v_addc_co_u32 v7, vcc, 0, v7, vcc
        s_and_saveexec_b64 s[30:31], s[54:55]
        s_cbranch_execz L_b_cpf0
        global_load_dword v{AR}, v[6:7], off
    L_b_cpf0:
        s_mov_b64 exec, -1
    L_b_nocpf:""")
    srd(44, 26, 256)
    a(f"""s_lshl_b32 s52, s2, 2
    s_add_u32 s52, s52, {sT}
    s_cmp_lg_u32 s52, 1
    s_cbranch_scc1 L_b_noclear
    v_lshlrev_b32 v1, 7, v{vLANE}
    s_mov_b32 s30, {WS_FLAG}
    s_mov_b32 s31, {WS_FLAG + 64*128}
    v_mov_b32 v8, 0
    v_mov_b32 v9, 0
    v_mov_b32 v10, 0
    v_mov_b32 v11, 0
    buffer_store_dword v8, v1, {SWS}, s30 offen sc1
    buffer_store_dwordx4 v[8:11], v1, {SWS}, s31 offen sc1
    buffer_store_dwordx4 v[8:11], v1, {SWS}, s31 offen offset:16 sc1
    buffer_store_dwordx4 v[8:11], v1, {SWS}, s31 offen offset:32 sc1
    buffer_store_dwordx4 v[8:11], v1, {SWS}, s31 offen offset:48 sc1
L_b_noclear:""")
    a(f"""s_lshl_b32 s30, {sT}, 10
    v_add_u32 v{t}, s30, v{vWA}
    v_cmp_gt_u32 vcc, 32, v{vLANE}
    v_and_b32 v{EF}, 31, v{vLANE}
    v_lshrrev_b32 v{EF+1}, 5, v{vLANE}
    v_lshlrev_b32 v{EF+1}, 10, v{EF+1}
    v_lshl_add_u32 v{EF}, v{EF}, 4, v{EF+1}
    s_lshr_b32 s30, {sT}, 1
    s_lshl_b32 s30, s30, 9
    s_and_b32 s31, {sT}, 1
    s_lshl_b32 s31, s31, 3
    s_add_u32 s30, s30, s31
    s_add_u32 s30, s30, {L_SFR}
    v_add_u32 v{EF}, s30, v{EF}
    s_barrier                             ; Ba""")

    def ssum(n):
        read_w(WF, t, L_WK + n * 4096)
        read_w(WF + 4, t, L_WV + n * 4096)

    def ssum2(n):
        mfma16(ASK, CS, WF, None if n == 0 else ASK)
        mfma16(ASV, CS, WF + 4, None if n == 0 else ASV)

    ssum(0)
    a("s_waitcnt lgkmcnt(0)")
    ssum2(0)
    for n in range(7):
        a(f"s_barrier                             ; B{n}")
        ssum(n + 1)
        if n < 5 and not cfg.x1 & 1:
            for s in range(4):
                r = XF + 16 * n + 4 * s
                if n < 4:
                    a(f"ds_read_b128 v[{r}:{r+3}], v{vXA+s} offset:{n*16384}")
                else:
                    a(f"v_add_u32 v{t+2}, 65536, v{vXA+s}\nds_read_b128 v[{r}:{r+3}], v{t+2}")
        if n == 0:
            a(f"""s_cmp_lg_u32 s52, 1
            s_cbranch_scc1 L_b_nosig
            s_waitcnt vmcnt(0)
            v_mov_b32 v{t+2}, 0
            v_mov_b32 v{t+3}, 1
            s_mov_b64 exec, 1
            buffer_store_dword v{t+3}, v{t+2}, {SAUX}, 0 offen sc1
            s_mov_b64 exec, -1
        L_b_nosig:""")
        if n == 4:
            a(f"""s_cmp_lg_u32 {sT}, 0
            s_cbranch_scc1 L_b_noclr
            v_mov_b32 v{t+2}, 0
            s_mov_b64 exec, 1
            buffer_load_dword v{t+5}, v{t+2}, {SAUX}, 0 offen sc1
            s_mov_b64 exec, -1
        L_b_noclr:""")
        if n == 6:
            a("s_setprio 2")
        a("s_waitcnt lgkmcnt(0)")
        ssum2(n + 1)
    a(f"v_cndmask_b32 v{EF+1}, v{ASV}, v{ASK}, vcc")
    split3(EF + 2, EF + 1, t + 2)
    a(f"""ds_write_b64 v{EF}, v[{EF+2}:{EF+3}]
    s_cmp_lg_u32 {sT}, 0
    s_cbranch_scc1 L_b_clrd
    s_waitcnt vmcnt(0)
    v_readfirstlane_b32 s30, v{t+5}
    v_mov_b32 v{t+2}, 0
    s_cmp_lg_u32 s30, 0
    s_cbranch_scc1 L_b_clrd""")
    poll("0", 1, "clr", t + 2, t + 5, sleep=1, srd_=SAUX)
    a(f"""L_b_clrd:
    s_setprio 0
    s_waitcnt vmcnt(0) lgkmcnt(0)
    s_barrier                             ; B7
    v_add_u32 v{vWA}, {L_WQ}, v{vWA}
    v_and_b32 v{t+4}, 31, v{vLANE}
    s_lshl_b32 s30, {sT}, 5
    v_add_lshl_u32 v{t+4}, v{t+4}, s30, 3
    v_add_u32 v{t+4}, {L_STAT}, v{t+4}
    s_lshl_b32 s30, {sT}, 10
    v_add_u32 v{t+5}, s30, v{vL16}
    v_add_u32 v{t+1}, {L_SFR}, v{vL16}
    v_mov_b32 v{t}, {L_CTR}
    v_mov_b32 v{ASK}, 0
    v_mov_b32 v{ASK+1}, 0
    s_setprio 2
    s_barrier                             ; B8""")
    stamp(4)
    lg = Lg()

    def qreads(k):
        lg.rd(("q", k), trs(WF + 4 * (k % 8), vWA, k * 1024))
    for k in range(5):
        qreads(k)
    side = {}
    for k in range(20, 28):
        side[k] = "\n".join(f"v_mov_b64 v[{r}:{r+1}], v[{ASK}:{ASK+1}]" for r in range(48 + 4 * (k - 20), 52 + 4 * (k - 20), 2))
    for k in range(28, 32):
        side[k] = "\n".join(f"v_mov_b64 v[{r}:{r+1}], v[{ASK}:{ASK+1}]" for r in range(80 + 4 * (k - 28), 84 + 4 * (k - 28), 2))
    for k in range(32):
        n, s = k >> 2, k & 3
        x = XF + 16 * (n if n < 5 else n - 5) + 4 * s
        lg.wait(("q", k), ("x", k))
        mfma32(ACC, WF + 4 * (k % 8), x, ACC if k else None)
        if k + 5 < 32:
            qreads(k + 5)
        if 6 <= k < 18:
            k2 = k - 6
            lg.rd(("x", k2 + 20), f"ds_read_b128 v[{XF+4*k2}:{XF+4*k2+3}], v{vXA + (k2 & 3)} offset:{(k2 >> 2)*16384}")
        if k in side:
            a(side[k])
        if k == 27:
            lg.rd("sf", f"ds_read_b32 v{ASV}, v{t} offset:4\nds_read_b128 v[140:143], v{t+1}\nds_read_b64 v[{t+2}:{t+3}], v{t+4}")
    a(f"""s_mov_b32 s56, 0
L_b_sq:
    s_waitcnt lgkmcnt(0)
    v_readfirstlane_b32 s30, v{ASV}
    v_cvt_pk_bf16_f32 v{MF}, -v{t+2}, -v{t+2}
    v_rcp_f32 v{vRS}, v{t+3}
    v_mov_b32 v{MF+1}, v{MF}
    v_mov_b32 v{MF+2}, v{MF}
    v_mov_b32 v{MF+3}, v{MF}
    s_add_u32 s56, s56, 1
    s_cmp_ge_u32 s30, 4
    s_cbranch_scc1 L_b_sqd
    ds_read_b32 v{ASV}, v{t} offset:4
    ds_read_b128 v[140:143], v{t+1}
    ds_read_b64 v[{t+2}:{t+3}], v{t+4}
    s_cmp_lt_u32 s56, {cfg.spin_max}
    s_cbranch_scc1 L_b_sq
L_b_sqd:""")
    stamp(8)
    mfma32(ACC, 140, MF, ACC)
    a(f"v_mul_f32 v{vRS}, {f32(CQ)}, v{vRS}")
    attn_init_a()
    for i in range(0, 16, 2):
        a(f"v_pk_mul_f32 v[{ACC+i}:{ACC+i+1}], v[{ACC+i}:{ACC+i+1}], v[{vRS}:{vRS+1}] op_sel_hi:[1,0]")
    for i in range(8):
        a(f"v_cvt_pk_bf16_f32 v{4+i}, v{ACC+2*i}, v{ACC+2*i+1}")
    a(f"""ds_write_b128 v{t+5}, v[4:7] offset:{L_Q}
    ds_write_b128 v{t+5}, v[8:11] offset:{L_Q + 4096}""")
    stamp(1)
    for r in range(32, 48, 2):
        a(f"v_mov_b64 v[{r}:{r+1}], v[2:3]")
    attn_init_b((0,))

    def exp(r):
        a(f"v_exp_f32 v{r}, v{r}")

    def smf(o, v, p):
        a(f"v_smfmac_f32_32x32x32_bf16 v[{o}:{o+15}], v[{v}:{v+3}], v[{p}:{p+7}], v{vIDX}")

    def step(i, S, prev, nxt, h1=None, h2=None, h3=None):
        cur, oth = (SA, SB) if i % 2 == 0 else (SB, SA)
        exp(cur); exp(cur + 1)
        if i or prev is not None:
            smf(OO + 16 * ((i - 1) & 3), (S if i else prev)["V"][1], oth + 8)
        if h1:
            h1()
        for e in range(2, 5):
            exp(cur + e)
        if i < 3:
            mfma32(oth, S["K"], QQ + 4 * (i + 1))
        elif nxt is not None:
            mfma32(oth, nxt["K"], QQ)
        for e in range(5, 10):
            exp(cur + e)
        smf(OO + 16 * i, S["V"][0], cur)
        if h2:
            h2()
        for e in range(10, 16):
            exp(cur + e)
            if e == 12 and h3:
                h3()

    def gl_addr():
        a("""s_add_u32 s61, s61, 8192
             s_and_b32 s61, s61, 0x1ffff""")

    def gl_k(s):
        S = slot(s)
        a(f"""s_add_u32 s65, s61, s64
              buffer_load_dwordx4 v[{S['K']}:{S['K']+3}], v{vL16}, {SWS}, s65 offen sc1""")

    def gl_v(s):
        S = slot(s)
        a(f"s_mov_b64 exec, {sVM}")
        for i in range(2):
            r = S["V"][i]
            a(f"buffer_load_dwordx4 v[{r}:{r+3}], v{vL16}, {SWS}, s65 offen offset:{1024 + 256*i} sc1")
        a("s_mov_b64 exec, -1")

    def unit(s, load=True, wait=6, last=False, hooks={}, first=False):
        S, prev, nxt = slot(s), None if first else slot((s + 3) % 4), slot((s + 1) % 4)
        H = lambda k: hooks.get(k)
        ld = (s + 3) % 4
        step(0, S, prev, nxt, h1=(lambda: gl_k(ld)) if load else H("01"), h2=(lambda: gl_v(ld)) if load else H("02"), h3=H("03"))
        step(1, S, prev, nxt, h1=gl_addr if load else H("11"), h2=H("12"), h3=H("13"))
        step(2, S, prev, nxt, h1=H("21"), h2=H("22"), h3=H("23"))
        step(3, S, prev, None if last else nxt, h1=(lambda: a(f"s_waitcnt vmcnt({wait})")) if not last else H("31"), h2=H("32"), h3=H("33"))

    a(f"""L_attn_pre:
    s_lshl_b32 s30, {sHH}, 13
    s_lshl_b32 s31, {sKQ}, 11
    s_add_u32 s30, s30, s31
    v_add_u32 v{t+1}, s30, v{vL16}
    v_mov_b32 v{vIDX}, 0xdddddddd
    s_lshl_b32 s31, {sHH}, 12""")
    for i in range(4):
        a(f"""s_add_u32 s30, {sKQ}, {1 + i}
              s_and_b32 s30, s30, 3
              s_lshl_b32 s30, s30, 10
              s_add_u32 s30, s30, s31
              v_add_u32 v{t+2+i}, s30, v{vL16}""")
    a(f"""s_setprio {3 if cfg.prio else 0}
    s_waitcnt lgkmcnt(0)
    s_barrier                             ; B10""")
    stamp(5)
    S0 = slot(0)
    a(f"""ds_read_b128 v[{QQ}:{QQ+3}], v{t+2} offset:{L_Q}
    ds_read_b128 v[{S0['K']}:{S0['K']+3}], v{t+1} offset:{L_OWNKV}""")
    for i in range(1, 4):
        a(f"ds_read_b128 v[{QQ+4*i}:{QQ+4*i+3}], v{t+2+i} offset:{L_Q}")
    a(f"s_mov_b64 exec, {sVM}")
    for i in range(2):
        r = S0["V"][i]
        a(f"ds_read_b128 v[{r}:{r+3}], v{t+1} offset:{L_OWNKV + 1024 + 256*i}")
    a("s_mov_b64 exec, -1\ns_waitcnt lgkmcnt(5)")
    mfma32(SA, S0["K"], QQ)
    attn_init_b((1, 2, 3))
    a("s_waitcnt lgkmcnt(0)")
    def release():
        stamp(15)
        a("s_barrier                             ; B11")
        for s in (1, 2, 3):
            gl_k(s)
            gl_v(s)
            gl_addr()
    unit(0, load=False, first=True, hooks={cfg.b11: release})
    a(f"s_mov_b32 s66, {cfg.iters}")
    a(".p2align 3\nL_attn:")
    for s in (1, 2, 3, 0):
        unit(s, hooks={"32": lambda: a("s_sub_u32 s66, s66, 1\ns_cmp_lg_u32 s66, 0")} if s == 0 else {})
    a("s_cbranch_scc1 L_attn")
    stamp(6)
    if cfg.prio:
        a("s_setprio 2")

    def mbaddr():
        a(f"s_mul_i32 s52, {sHH}, {4*3*2304}")
        for i in range(3):
            a(f"""s_add_u32 s30, {sKQ}, {1 + i}
                  s_and_b32 s30, s30, 3
                  s_mul_i32 s30, s30, {3*2304}
                  s_add_u32 s{53+i}, s30, s52""")
        a(f"""s_mul_i32 s30, {sKQ}, {3*2304}
              s_add_u32 s52, s52, s30""")

    def send(i):
        o = OO + 16 * i
        a(f"""v_add_u32 v{t+1}, s{53+i}, v{vL16}
              v_lshl_add_u32 v{t+2}, v{vLANE}, 2, s{53+i}
              ds_write_b128 v{t+1}, v[{o}:{o+3}] offset:{L_CMB + i*2304}
              ds_write_b128 v{t+1}, v[{o+4}:{o+7}] offset:{L_CMB + i*2304 + 1024}
              ds_write_b32 v{t+2}, v{o+8} offset:{L_CMB + i*2304 + 2048}""")
    def touch():
        a(f"""s_lshl_b32 s30, {sJ}, 2
              s_add_u32 s30, s30, {sKQ}
              s_lshl_b32 s30, s30, 15
              s_lshr_b32 s31, s64, 7               ; head * 1024
              s_add_u32 s30, s30, s31
              s_add_u32 s67, s30, {WS_OF}
              s_lshl_b32 s57, {sJ}, 7
              s_add_u32 s59, s57, {WS_FLAG + FL*128}
              s_mov_b32 s50, 0x01010101
              s_mov_b32 s51, 0x01010101
              s_mov_b64 exec, s[50:51]
              buffer_load_dword v{t+4}, v{vL16}, {SWS}, s67 offen sc1
              s_mov_b64 exec, 1
              buffer_load_dword v{t+5}, v{vL16}, {SWS}, s59 offen sc1
              s_mov_b64 exec, -1""")
    unit(1, load=False, wait=5, hooks={"01": touch, "11": mbaddr})
    unit(2, load=False, wait=2)
    if cfg.prio:
        a("s_setprio 1")
    unit(3, load=False, last=True, hooks={"21": lambda: send(0), "31": lambda: (send(1), a("s_setprio 0")), "33": lambda: send(2)})
    O3 = OO + 48
    a(f"""v_add_u32 v{t+1}, s52, v{vL16}
    v_lshl_add_u32 v{t+2}, v{vLANE}, 2, s52""")
    smf(O3, slot(3)["V"][1], SB + 8)
    stamp(7)
    a(f"""v_mov_b32 v{t+3}, {L_CTR}
    s_setprio 2
    s_waitcnt lgkmcnt(0)
    s_barrier                             ; T1""")
    stamp(9)
    a(f"ds_read_b32 v27, v{t+3} offset:16")
    for i in range(3):
        a(f"ds_read_b32 v{24+i}, v{t+2} offset:{L_CMB + i*2304 + 2048}")
    for i in range(3):
        a(f"""ds_read_b128 v[{8*i}:{8*i+3}], v{t+1} offset:{L_CMB + i*2304}
              ds_read_b128 v[{8*i+4}:{8*i+7}], v{t+1} offset:{L_CMB + i*2304 + 1024}""")
    a(f"""s_waitcnt lgkmcnt(6)
    v_readfirstlane_b32 s70, v27
    v_add_f32 v24, v24, v25
    v_add_f32 v26, v26, v{O3+8}
    v_add_f32 v{O3+8}, v24, v26
    v_cmp_nle_f32 vcc, {f32(2.0**-40)}, v{O3+8}
    v_rcp_f32 v28, v{O3+8}
    s_mov_b64 s[50:51], vcc
    v_cmp_nge_f32 vcc, {f32(2.0**40)}, v{O3+8}""")
    for i in range(3):
        a(f"s_waitcnt lgkmcnt({4 - 2*i})")
        for e in range(0, 8, 2):
            a(f"v_pk_add_f32 v[{O3+e}:{O3+e+1}], v[{O3+e}:{O3+e+1}], v[{8*i+e}:{8*i+e+1}]")
    a(f"""s_or_b64 s[50:51], s[50:51], vcc
    v_maximum3_f32 v0, |v{O3}|, |v{O3+1}|, |v{O3+2}|
    v_maximum3_f32 v1, |v{O3+3}|, |v{O3+4}|, |v{O3+5}|
    v_maximum3_f32 v0, |v{O3+6}|, |v{O3+7}|, v0
    v_maximum3_f32 v0, v0, v1, v1
    v_cmp_nge_f32 vcc, {f32(2.0**120)}, v0
    s_nop 0
    s_or_b64 s[50:51], s[50:51], vcc""")
    a("s_branch L_slow" if cfg.force_slow else "s_cbranch_scc1 L_slow")
    a("L_norm:")
    for e in range(0, 8, 2):
        a(f"v_pk_mul_f32 v[{O3+e}:{O3+e+1}], v[{O3+e}:{O3+e+1}], v[28:29] op_sel_hi:[1,0]")
    for i in range(4):
        a(f"v_cvt_pk_bf16_f32 v{156+i}, v{O3+2*i}, v{O3+2*i+1}")
    a(f"""s_cmp_eq_u32 s70, 0
    s_cbranch_scc1 L_ost_far
    buffer_store_dwordx4 v[156:159], v{vL16}, {SWS}, s67 offen
    s_branch L_ost_done
L_ost_far:
    buffer_store_dwordx4 v[156:159], v{vL16}, {SWS}, s67 offen sc1
L_ost_done:""")
    stamp(10)
    WOF, PACC, OFR = 0, 128, 144
    u = 144
    a(f"""s_cmp_ge_u32 {sWV}, 8
    s_cbranch_scc1 L_tail_b
    v_lshrrev_b32 v{u}, 5, v{vLANE}
    v_bfe_u32 v{u+1}, v{vLANE}, 2, 2
    v_lshl_add_u32 v{u}, v{u}, 2, v{u+1}
    v_lshlrev_b32 v{u}, 6, v{u}           ; (4*half + r) * 64
    v_and_b32 v{u+1}, 1, v{vLANE}
    v_lshl_add_u32 v{u}, v{u+1}, 5, v{u}
    v_bfe_u32 v{u+1}, v{vLANE}, 4, 1
    v_lshl_add_u32 v{u}, v{u+1}, 4, v{u}
    v_bfe_u32 v{u+1}, v{vLANE}, 1, 1
    v_lshl_add_u32 v{u}, v{u+1}, 3, v{u}
    s_and_b32 s50, {sT}, 1
    s_lshr_b32 s51, {sT}, 1
    s_lshl_b32 s30, s50, 15
    s_add_u32 s30, s30, {L_WO}
    v_add_u32 v{u}, s30, v{u}""")
    for hd in range(32):
        read_w(WOF + 4 * hd, u, hd * 1024, second=512)
        if hd % 6 == 5:
            a("s_waitcnt lgkmcnt(2)")
    a(f"""v_and_b32 v{u+1}, 31, v{vLANE}
    v_lshrrev_b32 v{u+2}, 5, v{vLANE}
    s_lshl_b32 s30, s50, 2
    v_lshl_add_u32 v{u+2}, v{u+2}, 1, s30
    v_and_b32 v{u+3}, 7, v{u+1}
    v_xor_b32 v{u+2}, v{u+2}, v{u+3}
    s_lshl_b32 s30, s51, 12
    v_lshl_add_u32 v{u+1}, v{u+1}, 7, s30
    v_lshl_add_u32 v162, v{u+2}, 4, v{u+1}
    v_xor_b32 v163, 16, v162
    s_lshl_b32 s30, s51, 15
    s_add_u32 s30, s30, {L_OST}
    v_add_u32 v166, s30, v{vL16}
    s_waitcnt vmcnt(0)
    s_barrier                             ; T2
    s_waitcnt lgkmcnt(0)
    s_barrier                             ; T3""")
    stamp(11)
    a("s_barrier                             ; T4a")
    stamp(12)
    for hd in range(3):
        a(f"ds_read_b128 v[{OFR+4*hd}:{OFR+4*hd+3}], v166 offset:{hd*1024}")
    for hd in range(32):
        a(f"s_waitcnt lgkmcnt({min(2, 31 - hd)})")
        mfma32(PACC, WOF + 4 * hd, OFR + 4 * (hd % 4), None if hd == 0 else PACC)
        if hd + 3 < 32:
            if (hd + 3) % 8 == 0:
                a("s_barrier                             ; T4b..d")
            r = OFR + 4 * ((hd + 3) % 4)
            a(f"ds_read_b128 v[{r}:{r+3}], v166 offset:{(hd+3)*1024}")
    for i in range(8):
        a(f"v_cvt_pk_bf16_f32 v{i}, v{PACC+2*i}, v{PACC+2*i+1}")
    a(f"""ds_write_b128 v162, v[0:3] offset:{L_SST}
    ds_write_b128 v163, v[4:7] offset:{L_SST}
    s_waitcnt lgkmcnt(0)
    s_barrier                             ; T5""")
    stamp(13)
    dump_stamps()
    a("s_endpgm")

    a(f"""L_tail_b:
    v_mov_b32 v0, 0
    v_mov_b32 v1, 1
    v_lshlrev_b32 v3, 2, v{vLANE}
    s_add_u32 s57, s57, {WS_FLAG + F5*128}
    s_lshl_b32 s51, {sP}, 2
    s_add_u32 s71, s51, s59
    s_add_u32 s50, {sT}, 4""")
    stage_setup("s50")
    a(f"""s_waitcnt vmcnt(0)
    s_barrier                             ; T2
    s_cmp_lg_u32 {sT}, 0
    s_cbranch_scc1 L_tail_b3
    s_cmp_eq_u32 s70, 0
    s_cbranch_scc1 L_tail_far
    s_mov_b64 exec, 1
    buffer_store_dword v1, v0, {SWS}, s71 offen
    s_mov_b64 exec, 0xffff
    s_mov_b32 s56, 0
L_tail_near:
    buffer_load_dword v2, v3, {SWS}, s59 offen sc1
    s_add_u32 s56, s56, 1
    s_waitcnt vmcnt(0)
    v_cmp_eq_u32 vcc, 0, v2
    s_cmp_ge_u32 s56, {cfg.spin_max}
    s_cbranch_scc1 L_tail_neard
    s_cbranch_vccnz L_tail_near
L_tail_neard:
    s_mov_b64 exec, -1
    s_branch L_tail_b3
L_tail_far:""")
    signal("s57", 0, 1)
    poll("s57", 16, "f5", 0, 2, sleep=1)
    a("""L_tail_b3:
    s_barrier                             ; T3""")
    stamp(11)
    stage_o(vL16)
    stamp(12)
    dump_stamps()
    a("s_endpgm")

    K_, V_, Q3 = slot(0)["K"], slot(0)["V"], QQ + 12
    a(f"""L_slow:
    v_mov_b32 v{t+1}, 0xff800000
    s_mov_b32 s61, 0
L_slow1:
    s_add_u32 s65, s61, s64
    buffer_load_dwordx4 v[{K_}:{K_+3}], v{vL16}, {SWS}, s65 offen sc1
    s_add_u32 s61, s61, 2048
    s_waitcnt vmcnt(0)""")
    mfma32(SA, K_, Q3)
    for i in range(8):
        a(f"v_max3_f32 v{t+1}, v{SA+2*i}, v{SA+2*i+1}, v{t+1}")
    a(f"""s_cmp_lt_u32 s61, 0x20000
    s_cbranch_scc1 L_slow1
    v_mov_b32 v{t+2}, v{t+1}
    v_permlane32_swap_b32 v{t+1}, v{t+2}
    v_max_f32 v{t+1}, v{t+1}, v{t+2}""")
    for i in range(16):
        a(f"v_sub_f32 v{SB+i}, 0, v{t+1}\nv_mov_b32 v{O3+i}, 0")
    a(f"""s_mov_b32 s61, 0
L_slow2:
    s_add_u32 s65, s61, s64
    buffer_load_dwordx4 v[{K_}:{K_+3}], v{vL16}, {SWS}, s65 offen sc1
    s_mov_b64 exec, {sVM}
    buffer_load_dwordx4 v[{V_[0]}:{V_[0]+3}], v{vL16}, {SWS}, s65 offen offset:1024 sc1
    buffer_load_dwordx4 v[{V_[1]}:{V_[1]+3}], v{vL16}, {SWS}, s65 offen offset:1280 sc1
    s_mov_b64 exec, -1
    s_add_u32 s61, s61, 2048
    s_waitcnt vmcnt(0)""")
    mfma32(SA, K_, Q3, SB)
    for i in range(16):
        exp(SA + i)
    smf(O3, V_[0], SA)
    smf(O3, V_[1], SA + 8)
    a(f"""s_cmp_lt_u32 s61, 0x20000
    s_cbranch_scc1 L_slow2
    s_nop 11
    v_rcp_f32 v28, v{O3+8}
    s_branch L_norm""")
    return finish(a, cfg)


def finish(a, cfg):
    a("L_exit:\ns_endpgm")
    body, log = fix_hazards(a.text(), fix=True, verbose=cfg.verbose)
    head = open("cdna_kernels/" + NAME + ".s.ref").read().split("; Override launch")[0]
    head += f"; @launch grid=(256,1,1) block=(768,1,1) lds={LDS_BYTES}\n"
    tail = f""".section .rodata,"a"
.p2align 6
.amdhsa_kernel {NAME}_kernel
  .amdhsa_next_free_vgpr 168
  .amdhsa_next_free_sgpr 102
  .amdhsa_accum_offset 168
  .amdhsa_group_segment_fixed_size 0
  .amdhsa_kernarg_size 88
  .amdhsa_user_sgpr_count 2
  .amdhsa_user_sgpr_kernarg_segment_ptr 1
  .amdhsa_system_sgpr_workgroup_id_x 1
  .amdhsa_float_denorm_mode_32 3
.end_amdhsa_kernel
"""
    return head + body + tail


if __name__ == "__main__":
    cfg = Cfg()
    out = sys.argv[1]
    for kv in sys.argv[2:]:
        k, v = kv.split("=")
        setattr(cfg, k, eval(v))
    open(out, "w").write(gen(cfg))
```

```python
import sys
import struct
from asmlib import Asm, fix_hazards

NAME = "recurrent_scan__softmax_full_mha__moe_arch_mod__prompt"

WS_KV = 0
WS_OF = 4 << 20
WS_FLAG = 6 << 20
WS_CAND = (6 << 20) + 0x10000
WS_STAT = (6 << 20) + 0x20000
WS_P1 = (6 << 20) + 0x80000
WS_P2 = (6 << 20) + 0xC0000
WS_DBG = 8 << 20
WS_SIZE = 268435456
F1, F2, F3, F4, F5, FX, FL = 0, 16, 32, 64, 72, 88, 104

L_WK, L_WV, L_RING = 0, 32768, 65536
L_WQ = L_RING + 3 * 16384
L_OWNKV = 0
L_Q = 32768
L_WO = 65536
L_GU = 128 * 1024
L_DN = 144 * 1024
L_CMB = 0
L_OST = L_WO
L_SST = 56 * 1024
L_MISC = 152 * 1024
L_WR = L_MISC
L_ZERO = L_MISC + 1088
L_ONES = L_MISC + 6784
L_CTR = L_MISC + 2112
L_STAT = L_MISC + 2304
L_SFR = L_MISC + 3328
L_KEY = L_MISC + 5376
L_XS = L_MISC + 5440
L_Y = L_MISC + 6144
LDS_BYTES = 163840

CQ = 0.25 * 1.4426950408889634
LOG2E = 1.4426950408889634


def f32(x):
    return "0x%08x" % struct.unpack("<I", struct.pack("<f", x))[0]


class Cfg:
    stamps = False
    L = 2
    rot = 7
    rotj = 1
    rotp = 1
    rotx = 1
    wq1 = 4
    wq2 = 4
    x2 = 0
    kvpf = 0
    cpf = 1
    qpf = 3
    qpfn = 3
    b11 = '11'
    gatepos = 3
    wqwin = 4
    sigfirst = 0
    ntx = ''
    spin_max = 200000
    verbose = False
    force_slow = False
    prio = 1
    x1 = 0
    pxor = 0
    local = 1
    wo_win = 6
    gu_win = 4
    nocold = 0
    ntw = ''
    probe = None
    clk = 's_memtime'
    iters = 3


def gen(cfg):
    a = Asm()
    L = cfg.L
    sP, sJ, sWV, sT, sC0 = "s3", "s4", "s5", "s6", "s7"
    SX, SW, SWS, SAUX = "s[32:35]", "s[36:39]", "s[40:43]", "s[44:47]"
    sONE = "s48"

    def srd(base, ptr, size):
        a(f"""s_mov_b32 s{base}, s{ptr}
              s_mov_b32 s{base+1}, s{ptr+1}
              s_mov_b32 s{base+2}, {size}
              s_mov_b32 s{base+3}, 0x20000""")

    def stamp(i):
        if cfg.probe and cfg.probe[0] == i:
            a("s_memrealtime s[98:99]\ns_waitcnt lgkmcnt(0)")
        if cfg.stamps:
            a(f"{cfg.clk} s[78:79]\ns_waitcnt lgkmcnt(0)\ns_mov_b32 s{80+i}, s78")

    def dump_stamps():
        if cfg.stamps:
            a(f"""s_mul_i32 s78, s2, 12
                  s_add_u32 s78, s78, {sWV}
                  s_lshl_b32 s78, s78, 6
                  s_add_u32 s78, s78, {WS_DBG}
                  v_mov_b32 v0, 0""")
            for g in range(4):
                for i in range(4):
                    a(f"v_mov_b32 v{4+i}, s{80+4*g+i}")
                a(f"buffer_store_dwordx4 v[4:7], v0, {SWS}, s78 offen offset:{16*g}")
                a("s_nop 1")
            a("s_waitcnt vmcnt(0)")

    def signal(line_sgpr, vz, vone):
        a(f"""s_mov_b64 exec, 1
              buffer_atomic_add v{vone}, v{vz}, {SWS}, {line_sgpr} offen sc1
              s_mov_b64 exec, -1""")

    def poll(line_sgpr, target, tag, vz, vt, sleep=2, srd_=None):
        a(f"""s_mov_b32 s56, 0
              s_mov_b64 exec, 1
        L_poll_{tag}:
              buffer_load_dword v{vt}, v{vz}, {srd_ or SWS}, {line_sgpr} offen sc1
              s_waitcnt vmcnt(0)
              v_readfirstlane_b32 s30, v{vt}
              s_add_u32 s56, s56, 1
              s_cmp_ge_u32 s30, {target}
              s_cbranch_scc1 L_polld_{tag}
              s_sleep {sleep}
              s_cmp_lt_u32 s56, {cfg.spin_max}
              s_cbranch_scc1 L_poll_{tag}
        L_polld_{tag}:
              s_mov_b64 exec, -1""")

    def rowmax_u32(dst, src):
        a(f"v_max_u32_dpp v{dst}, v{src}, v{src} row_ror:8 row_mask:0xf bank_mask:0xf")
        for r in (4, 2, 1):
            a(f"v_max_u32_dpp v{dst}, v{dst}, v{dst} row_ror:{r} row_mask:0xf bank_mask:0xf")

    def wavemax_u32(sdst, src, tmp, rows):
        rowmax_u32(tmp, src)
        a(f"v_readlane_b32 {sdst}, v{tmp}, 0")
        for r in range(1, rows):
            a(f"v_readlane_b32 s30, v{tmp}, {16*r}\ns_max_u32 {sdst}, {sdst}, s30")

    def tr_addr(dst, lane, t1, t2, rowshift=3):
        a(f"""v_lshrrev_b32 v{t1}, 5, v{lane}
              v_bfe_u32 v{t2}, v{lane}, 2, 2
              v_lshl_add_u32 v{t1}, v{t1}, {rowshift}, v{t2}
              v_lshlrev_b32 v{t1}, 6, v{t1}
              v_bfe_u32 v{t2}, v{lane}, 4, 1
              v_lshl_add_u32 v{t1}, v{t2}, 5, v{t1}
              v_and_b32 v{t2}, 3, v{lane}
              v_lshl_add_u32 v{dst}, v{t2}, 3, v{t1}""")

    def read_w(dst, addr, off, second=256):
        a(f"""ds_read_b64_tr_b16 v[{dst}:{dst+1}], v{addr} offset:{off}
              ds_read_b64_tr_b16 v[{dst+2}:{dst+3}], v{addr} offset:{off + second}""")

    def mfma32(d, A, B, c=None):
        cs = "0" if c is None else f"v[{c}:{c+15}]"
        a(f"v_mfma_f32_32x32x16_bf16 v[{d}:{d+15}], v[{A}:{A+3}], v[{B}:{B+3}], {cs}")

    def mfma16(d, A, B, c=None):
        cs = "0" if c is None else f"v[{c}:{c+3}]"
        a(f"v_mfma_f32_16x16x32_bf16 v[{d}:{d+3}], v[{A}:{A+3}], v[{B}:{B+3}], {cs}")

    def rnd(dst, src):
        a(f"v_cvt_pk_bf16_f32 v{dst}, 0, {src}")

    def split3(dst, src, t):
        a(f"""v_and_b32 v{t}, 0xffff0000, v{src}
              v_sub_f32 v{t+1}, v{src}, v{t}
              v_and_b32 v{t+2}, 0xffff0000, v{t+1}
              v_sub_f32 v{t+1}, v{t+1}, v{t+2}
              v_lshrrev_b32 v{t}, 16, v{t}
              v_or_b32 v{dst}, v{t}, v{t+2}
              v_lshrrev_b32 v{dst+1}, 16, v{t+1}""")

    a(f""".amdgcn_target "amdgcn-amd-amdhsa--gfx950"
.text
.globl {NAME}_kernel
.p2align 8
.type {NAME}_kernel,@function
{NAME}_kernel:
    s_cmp_ge_u32 s2, 256
    s_cbranch_scc1 L_exit
    s_load_dwordx16 s[8:23], s[0:1], 0
    s_load_dwordx4 s[24:27], s[0:1], 64
    s_load_dwordx2 s[28:29], s[0:1], 80""")
    if cfg.probe:
        a("s_memrealtime s[96:97]\ns_memrealtime s[98:99]")
    if cfg.stamps:
        for i in range(16):
            a(f"s_mov_b32 s{80+i}, 0")
        a(f"{cfg.clk} s[78:79]")
    a(f"""v_lshrrev_b32 v1, 6, v0
    v_and_b32 v0, 63, v0                 ; lane
    s_lshr_b32 {sP}, s2, 4
    s_xor_b32 {sP}, {sP}, {cfg.pxor}
    v_readfirstlane_b32 {sWV}, v1
    s_and_b32 {sJ}, s2, 7
    s_lshl_b32 {sJ}, {sJ}, 1
    s_bfe_u32 s30, s2, 0x10003
    s_or_b32 {sJ}, {sJ}, s30
    s_lshl_b32 s30, s30, {1 if cfg.rotj else 0}
    s_and_b32 {sC0}, {sP}, 1
    s_lshl_b32 {sC0}, {sC0}, {0 if cfg.rotj else 1}
    s_add_u32 {sC0}, {sC0}, s30
    s_lshl_b32 {sC0}, {sC0}, 1
    s_lshr_b32 s30, {sP}, {cfg.rotp}
    s_add_u32 {sC0}, {sC0}, s30
    s_and_b32 s30, s2, {cfg.rotx}
    s_add_u32 {sC0}, {sC0}, s30
    s_and_b32 {sC0}, {sC0}, {cfg.rot}
    s_and_b32 {sT}, {sWV}, 3
    s_mov_b32 {sONE}, 0x3f803f80
    s_cmp_ge_u32 {sWV}, 4
    s_cbranch_scc1 L_compute""")

    hZ, hONE, hT = 17, 18, 19
    a(f"""v_lshrrev_b32 v1, 2, v0
    s_lshl_b32 s30, {sT}, 4
    v_add_u32 v1, s30, v1
    v_mul_u32_u24 v1, 3072, v1
    v_and_b32 v2, 3, v0
    v_lshl_add_u32 v1, v2, 4, v1
    s_lshl_b32 s30, {sP}, 6
    v_add_u32 v14, s30, v1
    v_lshrrev_b32 v1, 3, v0
    v_lshrrev_b32 v2, 4, v0
    v_and_b32 v3, 7, v0
    v_xor_b32 v4, v3, v2
    v_xor_b32 v5, 4, v4
    s_lshl_b32 s30, {sJ}, 17
    s_lshl_b32 s31, {sT}, 15
    s_add_u32 s30, s30, s31
    v_lshl_add_u32 v6, v1, 10, s30
    v_lshl_add_u32 v10, v4, 4, v6
    v_lshl_add_u32 v11, v5, 4, v6
    v_add_u32 v12, {2*7168}, v10
    v_add_u32 v13, {3*7168}, v11
    v_add_u32 v11, 7168, v11
    s_lshl_b32 s57, {sT}, 12
    s_lshl_b32 s49, {sT}, 10
    s_waitcnt lgkmcnt(0)""")
    if cfg.stamps:
        a("s_mov_b32 s80, s78")
    srd(36, 10, 1572864)
    srd(32, 8, 2097152)

    def kc(n, dst):
        a(f"s_add_u32 {dst}, {sC0}, {n}\ns_and_b32 {dst}, {dst}, 7")

    def issue_w(n):
        kc(n, "s50")
        a(f"""s_mul_i32 s51, s50, {64*3072}
              s_add_u32 m0, s49, {L_WK + n*4096}
              s_add_u32 s52, s51, 1024
              buffer_load_dwordx4 v14, {SW}, s52 offen lds
              s_add_u32 m0, s49, {L_WV + n*4096}
              s_add_u32 s53, s51, 2048
              buffer_load_dwordx4 v14, {SW}, s53 offen lds""")

    def issue(item):
        if item < 8:
            n = item
            kc(n, "s50")
            a(f"""s_add_u32 m0, s57, {L_RING + (n % 5)*16384}
                  s_lshl_b32 s50, s50, 7""")
            for q in range(4):
                a(f"buffer_load_dwordx4 v{10+q}, {SX}, s50 offen offset:{1024*q} {cfg.ntx} lds")
            if n < 7:
                issue_w(n + 1)
        else:
            for n in {8: range(cfg.wq1), 9: range(cfg.wq1, cfg.wq1 + cfg.wq2), 10: range(cfg.wq1 + cfg.wq2, 8)}[item]:
                kc(n, "s50")
                if item == 10:
                    a(f"s_waitcnt vmcnt({cfg.wqwin - 1})")
                a(f"""s_add_u32 m0, s49, {L_WQ + n*4096}
                      s_mul_i32 s51, s50, {64*3072}
                      buffer_load_dwordx4 v14, {SW}, s51 offen lds""")

    cnt = lambda item: 6 if item < 7 else {7: 4, 8: cfg.wq1, 9: cfg.wq2}[item]
    a(f"""s_cmp_lg_u32 {sT}, 0
    s_cbranch_scc1 L_h_nowr""")
    srd(44, 16, 1024)
    a(f"""v_add_u32 v1, {sC0}, v1
    v_and_b32 v1, 7, v1
    v_lshlrev_b32 v1, 7, v1
    s_mov_b32 m0, {L_WR}
    v_lshl_add_u32 v1, v3, 4, v1
    buffer_load_dwordx4 v1, {SAUX}, 0 offen lds
L_h_nowr:""")
    issue_w(0)
    for it in range(L):
        issue(it)
    if cfg.kvpf:
        a(f"""s_lshr_b32 s30, s2, 3
        s_lshl_b32 s30, s30, 2
        s_add_u32 s30, s30, {sT}
        s_mul_i32 s30, s30, {4*3072}
        s_sub_u32 s31, 384, s10
        s_and_b32 s31, s31, 0x380
        s_add_u32 s30, s30, s31
        s_add_u32 s54, s10, s30
        s_addc_u32 s55, s11, 0""")
        for i in range(16):
            a(f"s_load_dword s{70+(i & 7)}, s[54:55], {1024 + 1024*(i >> 3) + 3072*((i & 7) >> 1) + 64*(i & 1)}")
    srd(40, 28, WS_SIZE)
    a(f"""v_mov_b32 v{hZ}, 0
    v_mov_b32 v{hONE}, 1
    s_waitcnt vmcnt({sum(cnt(i) for i in range(L))})
    s_barrier""")
    issued = L
    for n in range(8):
        pend = sum(cnt(i) for i in range(n + 1, issued))
        a(f"s_waitcnt vmcnt({pend})")
        a(f"s_barrier                             ; B{n}")
        if n in (0, 1, 7):
            stamp({0: 1, 1: 10, 3: 2, 7: 3}[n])
        if n == cfg.qpfn and cfg.qpf & 2:
            a(f"""s_lshr_b32 s30, s2, 3
            s_lshl_b32 s30, s30, 2
            s_add_u32 s30, s30, {sT}
            s_mul_i32 s30, s30, {4*3072}
            s_sub_u32 s31, 384, s10
            s_and_b32 s31, s31, 0x380
            s_add_u32 s30, s30, s31
            s_add_u32 s54, s10, s30
            s_addc_u32 s55, s11, 0""")
            for i in range(8):
                a(f"s_load_dword s{70+i}, s[54:55], {3072*(i >> 1) + 64*(i & 1)}")
        if n == 1 and cfg.qpf & 1:
            a(f"""s_lshl_b32 s30, s2, 1
            s_lshr_b32 s31, {sT}, 1
            s_add_u32 s30, s30, s31
            s_mul_i32 s30, s30, 3072
            s_and_b32 s31, {sT}, 1
            s_lshl_b32 s31, s31, 9
            s_add_u32 s30, s30, s31
            s_add_u32 s54, s10, s30
            s_addc_u32 s55, s11, 0""")
            for i in range(8):
                a(f"s_load_dword s{70+i}, s[54:55], {64*i}")
        if issued < 8:
            issue(issued)
            issued += 1
            if issued == 8:
                issue(8)
                issued += 1
        elif issued == 9 and n == 6:
            issue(9)
            issued += 1
    hXP, hXN, hG = 136, 144, 152
    hOA = 20
    a(f"""s_lshr_b32 s58, {sP}, 3
    s_and_b32 s59, {sP}, 7
    s_lshl_b32 s60, {sJ}, 1
    s_add_u32 s60, s60, s58
    v_lshrrev_b32 v1, 3, v0
    s_lshl_b32 s30, {sT}, 4
    v_add_u32 v22, s30, v1
    s_lshl_b32 s30, s60, 16
    s_lshl_b32 s31, s59, 7
    s_add_u32 s30, s30, s31
    v_lshl_add_u32 v1, v22, 10, s30
    v_and_b32 v2, 7, v0
    v_lshl_add_u32 v{hOA}, v2, 4, v1
    v_add_u32 v{hOA+1}, 8192, v{hOA}
    s_lshl_b32 s30, s58, 6
    v_add_lshl_u32 v1, v22, s30, 3
    v_add_u32 v23, {L_STAT}, v1
    """)
    issue(10)
    a(f"""buffer_load_dwordx4 v[{hXP}:{hXP+3}], v{hOA}, {SX}, 0 offen
    buffer_load_dwordx4 v[{hXP+4}:{hXP+7}], v{hOA+1}, {SX}, 0 offen
    s_waitcnt vmcnt(2)""")
    stamp(11)
    a("s_barrier")
    stamp(4)
    def normrows():
        a(f"""ds_read_b64 v[24:25], v23
    ds_read_b64 v[26:27], v23 offset:64
    s_waitcnt lgkmcnt(0)
    v_rcp_f32 v25, v25
    v_rcp_f32 v27, v27
    s_waitcnt vmcnt(0)""")
        for i in range(8):
            m, rs = (24, 25) if i < 4 else (26, 27)
            a(f"""v_lshlrev_b32 v28, 16, v{hXP+i}
                  v_and_b32 v29, 0xffff0000, v{hXP+i}
                  v_sub_f32 v28, v28, v{m}
                  v_sub_f32 v29, v29, v{m}
                  v_cvt_pk_bf16_f32 v28, 0, v28
                  v_cvt_pk_bf16_f32 v29, 0, v29
                  v_mul_f32 v28, v28, v{rs}
                  v_mul_f32 v29, v29, v{rs}
                  v_cvt_pk_bf16_f32 v{hXN+i}, v28, v29""")

    def gate(lo, hi):
        for i in range(lo, hi):
            g0, g1 = hG + 2 * i, hG + 2 * i + 1
            a(f"""v_lshlrev_b32 v28, 16, v{hXN+i}
                  v_and_b32 v29, 0xffff0000, v{hXN+i}
                  v_mul_f32 v{g0}, {f32(-LOG2E)}, v28
                  v_mul_f32 v{g1}, {f32(-LOG2E)}, v29
                  v_exp_f32 v{g0}, v{g0}
                  v_exp_f32 v{g1}, v{g1}
                  v_add_f32 v{g0}, 1.0, v{g0}
                  v_add_f32 v{g1}, 1.0, v{g1}
                  v_rcp_f32 v{g0}, v{g0}
                  v_rcp_f32 v{g1}, v{g1}
                  v_mul_f32 v{g0}, v{g0}, v28
                  v_mul_f32 v{g1}, v{g1}, v29
                  v_cvt_pk_bf16_f32 v{g0}, 0, v{g0}
                  v_cvt_pk_bf16_f32 v{g1}, 0, v{g1}""")
    tr_addr(30, 0, 1, 2)
    a(f"""v_lshrrev_b32 v31, 2, v0
    v_and_b32 v1, 3, v0
    v_lshlrev_b32 v32, 4, v1             ; piece
    v_lshl_add_u32 v33, v31, 10, v32
    s_lshl_b32 s30, s59, 7
    v_add_u32 v33, s30, v33
    s_lshr_b32 s61, s2, 3
    s_and_b32 s62, s2, 7""")
    srd(36, 12, 0 if cfg.nocold & 2 else 524288)
    normrows()
    stamp(12)
    a(f"""s_setprio 3
    s_barrier""")
    stamp(5)
    a(f"""s_cmp_lg_u32 {sT}, 0
    s_cbranch_scc1 L_h_b11
    s_lshl_b32 s57, {sP}, 7
    s_add_u32 s57, s57, {WS_FLAG + F1*128}""")
    poll("s57", 16, "f1", hZ, hT, sleep=1)
    stamp(13)
    a(f"""L_h_b11:
    s_barrier
    s_cmp_eq_u32 {sT}, 1
    s_cbranch_scc1 L_h1
    s_cmp_eq_u32 {sT}, 2
    s_cbranch_scc1 L_h2
    s_cmp_eq_u32 {sT}, 3
    s_cbranch_scc1 L_h3""")

    def mailbox(tag):
        a(f"""v_mov_b32 v6, {L_CTR}
              s_mov_b32 s56, 0
        L_mb_{tag}:
              s_sleep 8
              ds_read_b64 v[4:5], v6 offset:8
              s_add_u32 s56, s56, 1
              s_waitcnt lgkmcnt(0)
              v_readfirstlane_b32 s66, v4
              v_readfirstlane_b32 s67, v5
              s_cmp_ge_u32 s56, {cfg.spin_max}
              s_cbranch_scc1 L_mbd_{tag}
              s_cmp_eq_u32 s66, 0
              s_cbranch_scc1 L_mb_{tag}
        L_mbd_{tag}:""")

    a(f"""s_getreg_b32 s50, hwreg(HW_REG_XCC_ID, 0, 4)
    s_or_b32 s50, s50, 0x100
    v_mov_b32 v8, s50
    s_lshl_b32 s63, {sJ}, 7
    s_add_u32 s63, s63, {WS_FLAG + FX*128}
    s_lshl_b32 s51, {sP}, 2
    s_add_u32 s51, s51, s63
    s_mov_b64 exec, 1
    buffer_store_dword v8, v{hZ}, {SWS}, s51 offen sc1
    s_mov_b64 exec, -1""")
    mailbox("h0")
    a(f"""s_mov_b32 s54, 0
L_wo:
    s_add_u32 s50, s54, s60
    s_and_b32 s50, s50, 31
    s_lshl_b32 s51, s50, 10
    s_lshl_b32 s50, s50, 14
    s_add_u32 m0, s51, {L_WO}
    s_add_u32 s52, s50, 64
    buffer_load_dwordx4 v33, {SW}, s50 offen lds
    s_add_u32 m0, s51, {L_WO + 32768}
    s_add_u32 s54, s54, 1
    buffer_load_dwordx4 v33, {SW}, s52 offen lds
    s_waitcnt vmcnt({cfg.wo_win})
    s_cmp_lt_u32 s54, 32
    s_cbranch_scc1 L_wo
    v_lshlrev_b32 v9, 2, v0
    s_mov_b32 s56, 0
    s_mov_b64 exec, 0xffff
L_xid:
    buffer_load_dword v10, v9, {SWS}, s63 offen sc1
    s_add_u32 s56, s56, 1
    s_waitcnt vmcnt(0)
    v_cmp_eq_u32 vcc, 0, v10
    s_cmp_ge_u32 s56, {cfg.spin_max}
    s_cbranch_scc1 L_xidd
    s_cbranch_vccnz L_xid
L_xidd:
    v_cmp_ne_u32 vcc, v8, v10
    s_mov_b64 exec, -1
    s_cmp_eq_u64 vcc, 0
    s_cselect_b32 s50, {cfg.local}, 0
    v_mov_b32 v10, s50
    ds_write_b32 v6, v10 offset:16""")
    stamp(6)
    a("s_branch L_h_tail")

    a(f"""L_h1:
    v_lshlrev_b32 v1, 4, v0
    v_add_u32 v2, {L_STAT}, v1
    ds_read_b128 v[4:7], v2
    v_lshlrev_b32 v2, 2, v0
    v_add_u32 v3, {L_KEY}, v2
    ds_read_b32 v8, v3
    s_lshl_b32 s50, {sP}, 13
    s_add_u32 s63, s50, {WS_STAT}
    s_lshl_b32 s50, {sJ}, 9
    s_add_u32 s50, s50, s63
    s_lshl_b32 s51, {sP}, 9
    s_add_u32 s64, s51, {WS_CAND}
    s_lshl_b32 s51, {sJ}, 5
    s_add_u32 s51, s51, s64
    v_lshlrev_b32 v3, 3, v0
    s_waitcnt lgkmcnt(0)
    v_lshrrev_b32 v4, 16, v4
    v_lshrrev_b32 v6, 16, v6
    v_or_b32 v4, v4, v5
    v_or_b32 v5, v6, v7
    buffer_store_dwordx2 v[4:5], v3, {SWS}, s50 offen sc1
    s_mov_b64 exec, 0xff
    buffer_store_dword v8, v2, {SWS}, s51 offen sc1
    s_mov_b64 exec, -1
    s_lshl_b32 s65, {sP}, 7
    s_add_u32 s65, s65, {WS_FLAG + F2*128}
    s_waitcnt vmcnt(0)""")
    signal("s65", hZ, hONE)
    WFR = 40
    a(f"""s_cmpk_lt_u32 s2, 0xe0
    s_cbranch_scc0 L_h1_nogu
    v_mul_u32_u24 v1, 3584, v31
    v_add_u32 v34, v1, v32
    s_mul_i32 s50, s62, {64*3584}
    s_lshl_b32 s51, s61, 7
    s_add_u32 s50, s50, s51""")
    for mtx in range(2):
        srd(44, 18 + 2 * mtx, 1835008)
        for s in range(4):
            for ct in range(2):
                a(f"""s_mov_b32 m0, {L_GU + ((2*mtx + ct)*4 + s)*1024}
                      s_add_u32 s51, s50, {s*16*3584 + ct*64}
                      {'s_nop 0' if cfg.nocold & 1 else f'buffer_load_dwordx4 v34, {SAUX}, s51 offen {cfg.ntw} lds'}""")
            a(f"s_waitcnt vmcnt({cfg.gu_win})")
    a(f"""v_add_u32 v35, {L_GU}, v30
    s_waitcnt vmcnt(0)""")
    for b in range(16):
        read_w(WFR + 4 * b, 35, b * 1024)
        if b in (6, 13):
            a("s_waitcnt lgkmcnt(0)")
    a("""s_waitcnt lgkmcnt(0)
L_h1_nogu:""")
    poll("s65", 16, "f2", hZ, hT, sleep=8)
    stamp(6)
    a(f"""buffer_load_dwordx2 v[4:5], v3, {SWS}, s64 offen sc1
    s_waitcnt vmcnt(0)""")
    wavemax_u32("s66", 4, 6, 4)
    a(f"""v_cmp_eq_u32 vcc, s66, v4
    v_cndmask_b32 v4, v4, v5, vcc""")
    wavemax_u32("s67", 4, 6, 4)
    a(f"""v_mov_b32 v4, s66
    v_mov_b32 v5, s67
    v_mov_b32 v6, {L_CTR}
    ds_write_b64 v6, v[4:5] offset:8      ; mailbox
    s_cmpk_lt_u32 s2, 0xe0
    s_cbranch_scc0 L_h_tail
    v_cmp_gt_u32 vcc, 32, v0
    v_cndmask_b32 v4, v5, v4, vcc
    v_and_b32 v4, 0x7ff, v4
    v_sub_u32 v4, 0x7ff, v4
    v_lshlrev_b32 v5, 2, v4
    v_and_b32 v6, 31, v0
    v_lshlrev_b32 v6, 2, v6
    v_lshl_add_u32 v6, v4, 10, v6
    s_lshl_b32 s50, s62, 7
    buffer_load_dword v7, v5, {SWS}, s63 offen sc1
    buffer_load_dword v8, v6, {SX}, s50 offen
    v_add_u32 v2, {L_XS}, v2
    v_and_b32 v1, 1, v0
    v_lshrrev_b32 v6, 5, v0
    v_lshlrev_b32 v6, 4, v6
    v_lshl_add_u32 v6, v1, 7, v6
    v_add_u32 v6, {L_XS}, v6
    s_waitcnt vmcnt(0)
    v_and_b32 v9, 0xffff0000, v7
    v_rcp_f32 v9, v9
    v_lshlrev_b32 v7, 16, v7
    v_lshlrev_b32 v28, 16, v8
    v_and_b32 v29, 0xffff0000, v8
    v_sub_f32 v28, v28, v7
    v_sub_f32 v29, v29, v7
    v_cvt_pk_bf16_f32 v28, 0, v28
    v_cvt_pk_bf16_f32 v29, 0, v29
    v_mul_f32 v28, v28, v9
    v_mul_f32 v29, v29, v9
    v_cvt_pk_bf16_f32 v28, v28, v29
    ds_write_b32 v2, v28
    s_waitcnt lgkmcnt(0)""")
    stamp(7)
    XSF, AC0, AC1 = 120, 104, 24
    for s in range(4):
        a(f"ds_read_b128 v[{XSF+4*s}:{XSF+4*s+3}], v6 offset:{32*s}")
    a("s_waitcnt lgkmcnt(0)")
    for mtx in range(2):
        for s in range(4):
            mfma32(AC0, XSF + 4 * s, WFR + 4 * ((2 * mtx) * 4 + s), None if s == 0 else AC0)
            mfma32(AC1, XSF + 4 * s, WFR + 4 * ((2 * mtx + 1) * 4 + s), None if s == 0 else AC1)
        a(f"""v_cndmask_b32 v{8+2*mtx}, v{AC1}, v{AC0}, vcc
              v_cndmask_b32 v{9+2*mtx}, v{AC1+1}, v{AC0+1}, vcc""")
    a(f"""s_lshl_b32 s50, s2, 10
    s_add_u32 s50, s50, {WS_P1}
    v_lshlrev_b32 v1, 4, v0
    buffer_store_dwordx4 v[8:11], v1, {SWS}, s50 offen sc1
    s_lshl_b32 s65, s61, 7
    s_add_u32 s65, s65, {WS_FLAG + F3*128}
    s_waitcnt vmcnt(0)""")
    signal("s65", hZ, hONE)
    stamp(8)
    a("s_branch L_h_tail")

    a(f"""L_h2:
    s_cmpk_lt_u32 s2, 0xe0
    s_cbranch_scc0 L_h_tail""")
    mailbox("h2")
    a(f"""v_lshl_add_u32 v34, v31, 10, v32
    s_lshl_b32 s50, s61, 16
    s_lshl_b32 s51, s62, 7
    s_add_u32 s50, s50, s51""")
    srd(44, 22, 1835008)
    for s in range(4):
        for ct in range(2):
            a(f"""s_mov_b32 m0, {L_DN + (ct*4 + s)*1024}
                  s_add_u32 s51, s50, {s*16384 + ct*64}
                  {'s_nop 0' if cfg.nocold & 1 else f'buffer_load_dwordx4 v34, {SAUX}, s51 offen {cfg.ntw} lds'}""")
    a(f"""v_add_u32 v35, {L_DN}, v30
    s_waitcnt vmcnt(0)""")
    for b in range(8):
        read_w(WFR + 4 * b, 35, b * 1024)
        if b == 6:
            a("s_waitcnt lgkmcnt(0)")
    a(f"""s_waitcnt lgkmcnt(0)
    s_lshl_b32 s65, s61, 7
    s_add_u32 s65, s65, {WS_FLAG + F3*128}""")
    poll("s65", 8, "f3", hZ, hT, sleep=16)
    stamp(6)
    a(f"""s_lshl_b32 s50, s61, 13
    s_add_u32 s50, s50, {WS_P1}
    s_add_u32 s51, s50, 4096
    v_lshlrev_b32 v1, 4, v0""")
    for k in range(8):
        a(f"buffer_load_dwordx4 v[{72+4*k}:{75+4*k}], v1, {SWS}, {'s50' if k < 4 else 's51'} offen offset:{1024*(k & 3)} sc1")
    a(f"""v_lshlrev_b32 v2, 1, v0
    v_add_u32 v2, {L_XS + 256}, v2
    v_and_b32 v1, 1, v0
    v_lshrrev_b32 v6, 5, v0
    v_lshlrev_b32 v6, 4, v6
    v_lshl_add_u32 v6, v1, 7, v6
    v_add_u32 v6, {L_XS + 256}, v6
    v_cmp_gt_u32 vcc, 32, v0
    s_waitcnt vmcnt(0)""")
    for k in range(1, 8):
        a(f"""v_pk_add_f32 v[72:73], v[72:73], v[{72+4*k}:{73+4*k}]
              v_pk_add_f32 v[74:75], v[74:75], v[{74+4*k}:{75+4*k}]""")
    for i in range(4):
        rnd(72 + i, f"v{72+i}")
    a(f"""v_mul_f32 v76, {f32(-LOG2E)}, v72
    v_mul_f32 v77, {f32(-LOG2E)}, v73
    v_exp_f32 v76, v76
    v_exp_f32 v77, v77
    v_add_f32 v76, 1.0, v76
    v_add_f32 v77, 1.0, v77
    v_rcp_f32 v76, v76
    v_rcp_f32 v77, v77
    v_mul_f32 v76, v76, v72
    v_mul_f32 v77, v77, v73
    v_cvt_pk_bf16_f32 v76, 0, v76
    v_cvt_pk_bf16_f32 v77, 0, v77
    v_mul_f32 v76, v76, v74
    v_mul_f32 v77, v77, v75
    v_cvt_pk_bf16_f32 v76, v76, v77
    ds_write_b16 v2, v76
    ds_write_b16_d16_hi v2, v76 offset:128
    s_waitcnt lgkmcnt(0)""")
    for s in range(4):
        a(f"ds_read_b128 v[{XSF+4*s}:{XSF+4*s+3}], v6 offset:{32*s}")
    a("s_waitcnt lgkmcnt(0)")
    for s in range(4):
        mfma32(AC0, XSF + 4 * s, WFR + 4 * s, None if s == 0 else AC0)
        mfma32(AC1, XSF + 4 * s, WFR + 4 * (4 + s), None if s == 0 else AC1)
    a(f"""s_lshl_b32 s50, s61, 11
    s_lshl_b32 s51, s62, 8
    s_add_u32 s50, s50, s51
    s_add_u32 s50, s50, {WS_P2}
    s_add_u32 s51, s50, {28*2048}
    s_lshl_b32 s65, s62, 7
    s_add_u32 s65, s65, {WS_FLAG + F4*128}
    v_lshlrev_b32 v1, 2, v0
    v_cndmask_b32 v8, v{AC1}, v{AC0}, vcc
    v_cndmask_b32 v9, v{AC1+1}, v{AC0+1}, vcc
    buffer_store_dword v8, v1, {SWS}, s50 offen sc1
    buffer_store_dword v9, v1, {SWS}, s51 offen sc1
    s_waitcnt vmcnt(0)""")
    signal("s65", hZ, hONE)
    stamp(8)
    a("s_branch L_h_tail")

    def key_tok(dst, key):
        a(f"s_and_b32 {dst}, {key}, 0x7ff\ns_sub_u32 {dst}, 0x7ff, {dst}")

    a("L_h3:")
    mailbox("h3")
    a(f"""s_lshl_b32 s65, s59, 7
    s_add_u32 s65, s65, {WS_FLAG + F4*128}
    s_mov_b32 s68, 0
    v_lshlrev_b32 v3, 2, v0
L_h3_sel:""")
    key_tok("s50", "s66")
    a(f"""s_lshr_b32 s50, s50, 6
    s_cmp_lg_u32 s50, s60
    s_cbranch_scc1 L_h3_next""")
    poll("s65", 28, "f4", hZ, hT, sleep=16)
    stamp(6)
    a(f"""s_mul_i32 s50, s68, {28*2048}
    s_lshl_b32 s51, s59, 8
    s_add_u32 s50, s50, s51
    s_add_u32 s50, s50, {WS_P2}""")
    for k in range(28):
        a(f"buffer_load_dword v{40+k}, v3, {SWS}, s50 offen offset:{2048*(k & 1)} sc1")
        if k & 1:
            a("s_add_u32 s50, s50, 4096")
    a(f"""s_and_b32 s51, s66, 0xffff0000
    s_xor_b32 s52, s51, 0x80000000
    s_xor_b32 s53, s51, 0xffff0000
    s_bitcmp1_b32 s51, 31
    s_cselect_b32 s51, s52, s53
    v_mov_b32 v4, {f32(-LOG2E)}
    v_mul_f32 v4, s51, v4
    v_exp_f32 v4, v4
    s_lshl_b32 s51, s68, 8
    s_add_u32 s51, s51, {L_Y}
    v_add_u32 v7, s51, v3
    v_add_f32 v4, 1.0, v4
    v_rcp_f32 v4, v4
    s_waitcnt vmcnt(0)
    v_cvt_pk_bf16_f32 v4, 0, v4""")
    for k in range(1, 14):
        a(f"v_pk_add_f32 v[40:41], v[40:41], v[{40+2*k}:{41+2*k}]")
    a(f"""v_add_f32 v40, v40, v41
    v_cvt_pk_bf16_f32 v40, 0, v40
    v_mul_f32 v40, v40, v4
    v_cvt_pk_bf16_f32 v40, 0, v40
    ds_write_b32 v7, v40
L_h3_next:
    s_mov_b32 s66, s67
    s_add_u32 s68, s68, 1
    s_cmp_lt_u32 s68, 2
    s_cbranch_scc1 L_h3_sel""")
    stamp(8)

    a(f"""L_h_tail:
    s_setprio 0
    s_waitcnt vmcnt(0) lgkmcnt(0)
    s_barrier                             ; T1""")
    stamp(9)
    a(f"""v_mov_b32 v6, {L_CTR}
    ds_read_b64 v[4:5], v6 offset:8
    v_and_b32 v1, 7, v0
    v_lshlrev_b32 v7, 5, v1
    v_add_u32 v7, {L_Y}, v7
    s_mov_b32 s68, 0
    s_waitcnt lgkmcnt(0)
    v_readfirstlane_b32 s66, v4
    v_readfirstlane_b32 s67, v5
L_ht_sel:""")
    key_tok("s50", "s66")
    a(f"""s_lshr_b32 s51, s50, 6
    s_cmp_lg_u32 s51, s60
    s_cbranch_scc1 L_ht_next
    s_and_b32 s50, s50, 63
    ds_read_b128 v[8:11], v7
    ds_read_b128 v[12:15], v7 offset:16
    s_sub_u32 s51, s50, 8
    v_cmp_eq_u32 s[52:53], s50, v22
    v_cmp_eq_u32 s[54:55], s51, v22
    s_waitcnt lgkmcnt(0)""")
    for q in range(2):
        for i in range(4):
            r = hXN + 4 * q + i
            a(f"""v_lshlrev_b32 v28, 16, v{r}
                  v_and_b32 v29, 0xffff0000, v{r}
                  v_add_f32 v28, v28, v{8+2*i}
                  v_add_f32 v29, v29, v{9+2*i}
                  v_cvt_pk_bf16_f32 v28, v28, v29
                  v_cndmask_b32 v{r}, v{r}, v28, s[{52+2*q}:{53+2*q}]""")
    a(f"""L_ht_next:
    v_add_u32 v7, 256, v7
    s_mov_b32 s66, s67
    s_add_u32 s68, s68, 1
    s_cmp_lt_u32 s68, 2
    s_cbranch_scc1 L_ht_sel""")
    gate(0, cfg.gatepos)
    XU = 40
    srd(44, 24, 2097152)
    def stage_setup(sw_sgpr):
        a(f"""s_lshr_b32 s30, {sP}, 3
              s_lshl_b32 s31, {sJ}, 1
              s_add_u32 s30, s30, s31
              s_lshl_b32 s30, s30, 16
              s_lshl_b32 s31, {sw_sgpr}, 10
              s_add_u32 s68, s30, s31
              s_add_u32 s68, s68, {WS_OF}
              s_add_u32 s69, s31, {L_OST}""")

    def stage_o(addr):
        def grp(g):
            for tt in range(2):
                off = g * 8192 + tt * 32768
                a(f"""s_add_u32 m0, s69, {off}
                      s_add_u32 s30, s68, {off}
                      buffer_load_dwordx4 v{addr}, {SWS}, s30 offen sc1 lds""")
        grp(0)
        grp(1)
        for g in range(4):
            a(f"""s_waitcnt vmcnt({2 if g < 3 else 0})
            s_barrier                             ; T4{'abcd'[g]}""")
            if g < 2:
                grp(g + 2)

    stage_setup(sT)
    a(f"""v_and_b32 v2, 7, v22
    v_xor_b32 v2, v1, v2
    v_lshlrev_b32 v3, 7, v22
    v_lshl_add_u32 v4, v2, 4, v3
    v_lshlrev_b32 v5, 4, v0
    s_barrier                             ; T2""")
    gate(cfg.gatepos, 8)
    a("s_barrier                             ; T3")
    stage_o(5)
    for i in range(8):
        a(f"v_lshlrev_b32 v{XU+2*i}, 16, v{hXP+i}\nv_and_b32 v{XU+2*i+1}, 0xffff0000, v{hXP+i}")
    a(f"""s_barrier                             ; T5
    ds_read_b128 v[8:11], v4 offset:{L_SST}
    ds_read_b128 v[12:15], v4 offset:{L_SST + 1024}""")
    for q in range(2):
        a(f"s_waitcnt lgkmcnt({1-q})")
        for i in range(4):
            e = 8 * q + 2 * i
            a(f"""v_lshlrev_b32 v28, 16, v{8+4*q+i}
                  v_and_b32 v29, 0xffff0000, v{8+4*q+i}
                  v_fma_f32 v28, v28, v{hG+e}, v{XU+e}
                  v_fma_f32 v29, v29, v{hG+e+1}, v{XU+e+1}
                  v_cvt_pk_bf16_f32 v{8+4*q+i}, v28, v29""")
        a(f"buffer_store_dwordx4 v[{8+4*q}:{11+4*q}], v{hOA+q}, {SAUX}, 0 offen")
    stamp(14)
    if cfg.stamps:
        a("s_waitcnt vmcnt(0)")
    stamp(15)
    if cfg.probe:
        a(f"""s_sub_u32 s98, s98, s96
        s_mul_i32 s98, s98, {cfg.probe[2]}
        s_add_u32 s98, s98, {cfg.probe[1]}
        s_min_u32 s98, s98, 100000
    L_probe:
        s_sleep 4
        s_memrealtime s[100:101]
        s_waitcnt lgkmcnt(0)
        s_sub_u32 s100, s100, s96
        s_cmp_lt_u32 s100, s98
        s_cbranch_scc1 L_probe""")
    dump_stamps()
    a("s_endpgm")

    vXA, vWA = 144, 148
    vM, vRS, vDEN = 149, 150, 151
    CS = 152
    MF = 156
    t = 160
    vLANE, vL16 = 166, 167

    class Lg:
        def __init__(self):
            self.q = []

        def rd(self, tag, text):
            for ln in text.strip().split("\n"):
                if len(self.q) >= 15:
                    a("s_waitcnt lgkmcnt(9)")
                    self.q = self.q[-9:]
                a(ln)
                self.q.append(tag)

        def wait(self, *tags):
            last = max((i for i, x in enumerate(self.q) if x in tags), default=-1)
            if last < 0:
                return
            n = len(self.q) - 1 - last
            a(f"s_waitcnt lgkmcnt({min(n, 15)})")
            self.q = self.q[last + 1:]

    def trs(dst, addr, off, second=256):
        return (f"ds_read_b64_tr_b16 v[{dst}:{dst+1}], v{addr} offset:{off}\n"
                f"ds_read_b64_tr_b16 v[{dst+2}:{dst+3}], v{addr} offset:{off + second}")

    a(f"""L_compute:
    v_mov_b32 v{vLANE}, v0
    v_lshlrev_b32 v{vL16}, 4, v0
    v_and_b32 v1, 31, v0
    v_lshrrev_b32 v2, 5, v0              ; half
    v_bfe_u32 v3, v0, 1, 3
    v_xor_b32 v3, v3, v2
    s_lshl_b32 s30, {sT}, 12
    s_add_u32 s30, s30, {L_RING}
    v_lshl_add_u32 v4, v1, 7, s30""")
    for s in range(4):
        a(f"v_xor_b32 v5, {2*s}, v3\nv_lshl_add_u32 v{vXA+s}, v5, 4, v4")
    tr_addr(vWA, 0, 3, 4)
    a(f"""v_lshrrev_b32 v3, 2, v0
    v_xor_b32 v3, v3, v0
    v_and_b32 v3, 4, v3
    v_cmp_eq_u32 vcc, 0, v3
    v_mov_b32 v4, {sONE}""")
    for i in range(4):
        a(f"v_cndmask_b32 v{CS+i}, 0, v4, vcc")
    a("s_waitcnt lgkmcnt(0)")
    if cfg.stamps:
        a("s_mov_b32 s80, s78")
    srd(40, 28, WS_SIZE)
    SA, SB, OO, QQ, RING = 0, 16, 32, 96, 112
    vIDX = 160
    vC = 154
    sHH, sKQ = "s58", sT
    sVM = "s[62:63]"

    def slot(s):
        b = RING + 12 * s
        return dict(K=b, V=[b + 4, b + 8])

    def const_rows(tmp):
        return [f"v_and_b32 v{tmp}, 27, v{vLANE}",
                f"v_cmp_eq_u32 vcc, 16, v{tmp}",
                f"v_mov_b32 v{tmp}, {sONE}",
                f"v_cndmask_b32 v{vC}, 0, v{tmp}, vcc\nv_cndmask_b32 v{vC+1}, 0, v{tmp}, vcc"]

    def attn_init_b(slots):
        for s in slots:
            for i in range(0, 8, 2):
                r = slot(s)["V"][0] + i
                if r != vC:
                    a(f"v_mov_b64 v[{r}:{r+1}], v[{vC}:{vC+1}]")

    a(f"""s_lshr_b32 {sHH}, {sWV}, 3
    s_mov_b32 s62, 0xffff
    s_mov_b32 s63, 0xffff
    s_lshl_b32 s64, {sP}, 1
    s_add_u32 s64, s64, {sHH}
    s_lshl_b32 s64, s64, 17
    s_lshl_b32 s61, {sJ}, 13
    s_lshl_b32 s31, {sKQ}, 11
    s_add_u32 s61, s61, s31
    s_add_u32 s61, s61, 8192
    s_and_b32 s61, s61, 0x1ffff
    s_lshl_b32 s30, {sHH}, 13
    s_add_u32 s71, s30, s31
    s_lshl_b32 s31, {sHH}, 12""")
    for i in range(4):
        a(f"""s_add_u32 s30, {sKQ}, {1 + i}
              s_and_b32 s30, s30, 3
              s_lshl_b32 s30, s30, 10
              s_add_u32 s{72+i}, s30, s31""")
    a(f"""s_cmp_ge_u32 {sWV}, 8
    s_cbranch_scc1 L_bwave""")

    XB, WK, WV, AK, AV, RB, ASX, SQ = (0, 16), 32, 48, 64, 80, 96, 112, 116
    SFK, SFV, RF, OF_ = 128, 132, 136, 140
    vKG, vVG = 164, 165
    EFA, vEA = RB, vM
    a(f"""v_and_b32 v1, 3, v0
    v_mov_b32 v5, {L_ZERO}
    v_mov_b32 v6, {L_ONES}
    v_mov_b32 v7, {L_WR}
    v_cmp_eq_u32 s[52:53], 0, v1
    v_cmp_eq_u32 s[54:55], 1, v1
    v_cndmask_b32 v6, v5, v6, s[52:53]
    v_cndmask_b32 v6, v6, v7, s[54:55]
    v_cndmask_b32 v6, v5, v6, vcc
    v_lshl_add_u32 v{vEA}, v2, 4, v6
    v_cmp_gt_u32 vcc, 32, v{vLANE}
    v_and_b32 v{t}, 0x33, v{vLANE}
    v_bfe_u32 v{t+1}, v{vLANE}, 2, 1
    v_lshl_add_u32 v{t}, v{t+1}, 3, v{t}
    v_bfe_u32 v{t+1}, v{vLANE}, 3, 1
    v_lshl_add_u32 v{t}, v{t+1}, 2, v{t}
    v_lshlrev_b32 v{vKG}, 4, v{t}
    v_and_b32 v{t}, 0x2f, v{vLANE}
    v_lshlrev_b32 v{t}, 4, v{t}
    v_bfe_u32 v{t+1}, v{vLANE}, 4, 1
    v_lshl_add_u32 v{vVG}, v{t+1}, 17, v{t}
    v_cndmask_b32 v{OF_}, 0, v4, vcc
    v_cndmask_b32 v{OF_+1}, 0, v4, vcc
    v_mov_b32 v{OF_+2}, 0
    v_mov_b32 v{OF_+3}, 0
    v_mov_b32 v{RF+2}, 0
    v_mov_b32 v{RF+3}, 0
    v_add_u32 v{t+3}, {L_SFR}, v{vL16}
    v_and_b32 v1, 31, v{vLANE}
    s_lshl_b32 s30, {sT}, 5
    v_add_lshl_u32 v{CS}, v1, s30, 3
    v_add_u32 v{CS}, {L_STAT}, v{CS}
    v_add_u32 v5, {L_WR}, v{vL16}
    v_mov_b32 v8, v4
    v_mov_b32 v9, v4
    v_mov_b32 v10, v4
    v_mov_b32 v11, v4
    s_lshl_b32 s50, {sP}, 18
    s_lshl_b32 s30, {sJ}, 13
    s_add_u32 s50, s50, s30
    s_lshl_b32 s49, {sT}, 11
    s_add_u32 s50, s50, s49
    s_add_u32 s51, s50, 0x20000
    s_mov_b32 s52, 0xaaaaaaaa
    s_mov_b32 s53, 0xaaaaaaaa
    s_mov_b32 s54, 0xcccccccc
    s_mov_b32 s55, 0xcccccccc
    """)
    for ins in const_rows(6):
        a(ins)
    a("""s_barrier                             ; Ba
    ds_read_b128 v[12:15], v5""")
    lg = Lg()

    def rdw(n, s, which):
        if cfg.x1 & 4 and n > 0:
            return
        if which == 0:
            lg.rd(("k", n, s), trs(WK + 4 * s, vWA, L_WK + n * 4096 + s * 1024))
        else:
            lg.rd(("v", n, s), trs(WV + 4 * s, vWA, L_WV + n * 4096 + s * 1024))

    def rdx(n, s):
        r = XB[n & 1] + 4 * s
        off = (n % 5) * 16384 - (16 if n == 4 else 0)
        lg.rd(("x", n, s), f"ds_read_b128 v[{r}:{r+3}], v{vXA+s} offset:{off}")

    def rde(n, s):
        lg.rd(("e", n, s), f"ds_read_b128 v[{EFA+4*s}:{EFA+4*s+3}], v{vEA} offset:{(4*n + s)*32}")

    def bigk(n, s):
        lg.wait(("k", n, s), ("x", n, s))
        if cfg.x1 & 8 and 0 < n < 7:
            return
        mfma32(AK, WK + 4 * s, XB[n & 1] + 4 * s, None if (n, s) == (0, 0) else AK)

    def bigv(n, s):
        lg.wait(("v", n, s), ("x", n, s))
        if cfg.x1 & 8 and 0 < n < 7:
            return
        mfma32(AV, XB[n & 1] + 4 * s, WV + 4 * s, None if (n, s) == (0, 0) else AV)

    def smalls(n, fill=()):
        fill = list(fill)
        lg.wait(*[(k_, n, s) for s in range(4) for k_ in "xe"])
        if cfg.x1 & 2 and n not in (0, 7):
            for f_ in fill: a(f_)
            return
        for s in range(4):
            mfma16(ASX, EFA + 4 * s, XB[n & 1] + 4 * s, None if (n, s) == (0, 0) else ASX)
            if fill:
                a(fill.pop(0))
        for i in range(8):
            d = SQ + 4 * (i % 3)
            r = XB[n & 1] + 2 * i
            c = "0" if (n == 0 and i < 3) else f"v[{d}:{d+3}]"
            a(f"v_mfma_f32_4x4x4_16b_bf16 v[{d}:{d+3}], v[{r}:{r+1}], v[{r}:{r+1}], {c}")
        assert not fill

    def head(n):
        rdx(n, 0); rdx(n, 1)
        if n:
            bigk(n - 1, 2)
        rdx(n, 2); rdx(n, 3); rde(n, 0); rde(n, 1)
        if n:
            bigv(n - 1, 2)
        rdw(n, 2, 0); rdw(n, 2, 1)
        if n:
            bigk(n - 1, 3)
        rdw(n, 3, 0); rde(n, 2); rde(n, 3)
        if n:
            bigv(n - 1, 3)
        rdw(n, 3, 1)

    for s in range(2):
        rdw(0, s, 0); rdw(0, s, 1)
    a("s_waitcnt lgkmcnt(8)")
    mfma16(16, 8, 12)
    for r in (8, 4, 2, 1):
        a(f"v_add_f32_dpp v16, v16, v16 row_ror:{r} row_mask:0xf bank_mask:0xf")
    a("v_readfirstlane_b32 s70, v16")
    for n in range(7):
        a(f"s_barrier                             ; B{n}")
        head(n)
        for s in range(2):
            bigk(n, s)
            rdw(n + 1, s, 0)
            bigv(n, s)
            rdw(n + 1, s, 1)
        fill = []
        if n == 3:
            fill = [f"v_add_u32 v{vXA+s}, 16, v{vXA+s}" for s in range(4)]
        if n == 4:
            fill = [f"v_add_u32 v{vXA+s}, -16, v{vXA+s}" for s in range(4)]
        smalls(n, fill)
    a("s_barrier                             ; B7")
    stamp(3)
    head(7)
    lg.rd("sf", f"ds_read_b128 v[{SFK}:{SFK+3}], v{t+3}\nds_read_b128 v[{SFV}:{SFV+3}], v{t+3} offset:1024")
    smalls(7)
    PK = XB[0]
    groups = [
        [],
        [f"v_mul_f32 v{t}, {f32(1/512)}, v{ASX}            ; mean"] +
        [f"v_pk_add_f32 v[{SQ+i}:{SQ+i+1}], v[{SQ+i}:{SQ+i+1}], v[{SQ+4+i}:{SQ+5+i}]" for i in (0, 2)] +
        [f"v_pk_add_f32 v[{SQ+i}:{SQ+i+1}], v[{SQ+i}:{SQ+i+1}], v[{SQ+8+i}:{SQ+9+i}]" for i in (0, 2)],
        [f"v_cvt_pk_bf16_f32 v{MF}, -v{t}, -v{t}",
         f"v_cndmask_b32 v{SQ}, v{SQ}, v{SQ+1}, s[52:53]",
         f"v_cndmask_b32 v{SQ+2}, v{SQ+2}, v{SQ+3}, s[52:53]",
         f"v_mov_b32 v{MF+1}, v{MF}",
         f"v_cndmask_b32 v{SQ}, v{SQ}, v{SQ+2}, s[54:55]",
         f"v_mov_b32 v{t+1}, v{SQ}"],
        [f"v_mov_b32 v{MF+2}, v{MF}",
         f"v_mov_b32 v{MF+3}, v{MF}",
         f"v_permlane32_swap_b32 v{t+1}, v{SQ}",
         f"v_add_f32 v{t+1}, v{t+1}, v{SQ}",
         f"v_mul_f32 v{t+1}, {f32(1/512)}, v{t+1}"],
        [f"v_fma_f32 v{t+1}, -v{t}, v{t}, v{t+1}         ; variance",
         f"v_max_f32 v{t+1}, 0, v{t+1}",
         f"v_cvt_pk_bf16_f32 v{t+1}, 0, v{t+1}",
         f"v_add_f32 v{t+1}, {f32(1e-5)}, v{t+1}",
         f"v_cvt_pk_bf16_f32 v{t+1}, 0, v{t+1}",
         f"v_sqrt_f32 v{t+1}, v{t+1}"],
        [f"v_cvt_pk_bf16_f32 v{vDEN}, 0, v{t+1}",
         f"v_rcp_f32 v{vRS}, v{vDEN}",
         f"v_cvt_pk_bf16_f32 v{vM}, 0, v{t}",
         f"v_and_b32 v{t}, 0xffff0000, v{vRS}",
         f"v_sub_f32 v{t+1}, v{vRS}, v{t}"],
        [f"v_and_b32 v{t+2}, 0xffff0000, v{t+1}",
         f"v_sub_f32 v{t+1}, v{t+1}, v{t+2}",
         f"v_lshrrev_b32 v{t}, 16, v{t}",
         f"v_or_b32 v{RF}, v{t}, v{t+2}",
         f"v_lshrrev_b32 v{RF+1}, 16, v{t+1}",
         f"v_mul_f32 v{AK}, v{vRS}, v{AK}"],
        [f"ds_write2_b32 v{CS}, v{vM}, v{vDEN} offset1:1"] + [f"v_mul_f32 v{AK+i}, v{vRS}, v{AK+i}" for i in range(1, 7)],
        [f"v_mul_f32 v{AK+7}, v{vRS}, v{AK+7}"] +
        [f"v_cvt_pk_bf16_f32 v{PK+i}, v{AK+2*i}, v{AK+2*i+1}" for i in range(4)] +
        [f"buffer_store_dwordx4 v[{PK}:{PK+3}], v{vKG}, {SWS}, s50 offen sc1"],
        [f"v_mul_f32 v{AK+i}, v{vRS}, v{AK+i}" for i in range(8, 14)],
        [f"v_mul_f32 v{AK+i}, v{vRS}, v{AK+i}" for i in range(14, 16)] +
        [f"v_cvt_pk_bf16_f32 v{PK+i}, v{AK+2*i}, v{AK+2*i+1}" for i in range(4, 8)] +
        [f"buffer_store_dwordx4 v[{PK+4}:{PK+7}], v{vKG}, {SWS}, s51 offen sc1"],
    ]

    def augk():
        lg.wait("sf")
        mfma32(AK, SFK, MF, AK)
    seq = [lambda s=s: bigk(7, s) for s in range(4)] + [augk] + [lambda s=s: bigv(7, s) for s in range(3)]
    seq += [lambda: mfma32(RB, RF, OF_), lambda: bigv(7, 3), lambda: mfma32(AV, MF, SFV, AV)]
    assert len(seq) == len(groups)
    for m, g in zip(seq, groups):
        m()
        for ins in g:
            a(ins)
    for hf in range(2):
        for i in range(4 * hf, 4 * hf + 4):
            a(f"v_pk_mul_f32 v[{AV+2*i}:{AV+2*i+1}], v[{RB+2*i}:{RB+2*i+1}], v[{AV+2*i}:{AV+2*i+1}]")
        for i in range(4 * hf, 4 * hf + 4):
            a(f"v_cvt_pk_bf16_f32 v{PK+8+i}, v{AV+2*i}, v{AV+2*i+1}")
        a(f"buffer_store_dwordx4 v[{PK+8+4*hf}:{PK+11+4*hf}], v{vVG}, {SWS}, s50 offen offset:{1024 + 256*hf} sc1")
    stamp(2)

    def drain_signal():
        a(f"""s_waitcnt vmcnt(0)
        s_mov_b64 exec, 1
        ds_add_rtn_u32 v{t+3}, v{t+2}, v{t+4}
        s_mov_b64 exec, -1
        s_waitcnt lgkmcnt(0)
        v_readfirstlane_b32 s59, v{t+3}
        s_cmp_lg_u32 s59, 3
        s_cbranch_scc1 L_a_nosig""")
        signal("s57", t + 1, t + 4)
        stamp(1)
        a("L_a_nosig:")

    a(f"""s_waitcnt lgkmcnt(0)
    s_setprio 1
    s_barrier                             ; B8""")
    stamp(4)
    a(f"""v_and_b32 v{t}, 31, v{vLANE}
    v_add_u32 v28, s49, v{vKG}
    v_and_b32 v29, 0x3ff, v{vVG}
    v_lshrrev_b32 v30, 4, v{vVG}
    v_and_b32 v30, 0x2000, v30
    v_add3_u32 v29, v29, v30, s49
    v_mov_b32 v{t+1}, 0
    v_mov_b32 v{t+2}, {L_CTR}
    v_mov_b32 v{t+4}, 1
    s_lshl_b32 s57, {sP}, 7
    s_add_u32 s57, s57, {WS_FLAG + F1*128}
    s_lshl_b32 s30, {sJ}, 7
    s_lshl_b32 s31, {sT}, 5
    s_add_u32 s30, s30, s31
    s_sub_u32 s53, 0x7ff, s30""")
    AR = ASX + 1
    a(f"""v_fma_f32 v{AR}, -v{vM}, s70, v{AR}
    v_mul_f32 v{AR}, v{vRS}, v{AR}
    v_cvt_pk_bf16_f32 v{AR}, 0, v{AR}
    v_ashrrev_i32 v{AR+1}, 31, v{AR}
    v_or_b32 v{AR+1}, 0x80000000, v{AR+1}
    v_xor_b32 v{AR}, v{AR}, v{AR+1}
    v_and_b32 v{AR}, 0xffff0000, v{AR}
    v_sub_u32 v{AR+1}, s53, v{t}
    v_or_b32 v{AR}, v{AR}, v{AR+1}""")
    wavemax_u32("s50", AR, AR + 1, 2)
    a(f"""v_cmp_eq_u32 vcc, s50, v{AR}
    v_cndmask_b32 v{AR}, v{AR}, v{t+1}, vcc""")
    wavemax_u32("s51", AR, AR + 1, 2)
    a(f"""s_lshl_b32 s30, {sT}, 3
    s_add_u32 s30, s30, {L_KEY}
    v_mov_b32 v16, s50
    v_mov_b32 v17, s51
    v_mov_b32 v18, s30
    ds_write_b64 v18, v[16:17]
    ds_write_b128 v28, v[{PK}:{PK+3}] offset:{L_OWNKV}
    ds_write_b128 v28, v[{PK+4}:{PK+7}] offset:{L_OWNKV + 8192}
    ds_write_b128 v29, v[{PK+8}:{PK+11}] offset:{L_OWNKV + 1024}
    ds_write_b128 v29, v[{PK+12}:{PK+15}] offset:{L_OWNKV + 1280}""")
    stamp(14)
    a("s_setprio 3")
    drain_signal()
    a("s_setprio 1")
    for r in range(OO, OO + 64, 2):
        a(f"v_mov_b64 v[{r}:{r+1}], 0")
    attn_init_b((0,))
    stamp(8)
    a("s_branch L_attn_pre")

    XF, WF, EF, ACC, ASK, ASV, AR = 0, 80, 96, 112, 128, 132, 136
    a(f"""L_bwave:
    s_cmp_lg_u32 {sT}, 0
    s_cbranch_scc1 L_b_noinit""")
    a(f"""v_mov_b32 v5, v4
    v_mov_b32 v6, v4
    v_mov_b32 v7, v4
    v_add_u32 v1, {L_ZERO}, v{vL16}
    v_mov_b32 v8, 0
    v_mov_b32 v9, 0
    v_mov_b32 v10, 0
    v_mov_b32 v11, 0
    ds_write_b128 v1, v[4:7] offset:{L_ONES - L_ZERO}
    ds_write_b128 v1, v[8:11]
    ds_write_b128 v1, v[8:11] offset:192
    s_waitcnt lgkmcnt(0)
L_b_noinit:""")
    if cfg.cpf:
        a(f"""s_cmp_lg_u32 {sT}, 2
        s_cbranch_scc1 L_b_nocpf
        s_getpc_b64 s[50:51]
    L_pc:
        s_lshr_b32 s30, s2, 3
        s_lshl_b32 s30, s30, 10
        v_lshl_add_u32 v1, v{vLANE}, 7, s30
        s_sub_u32 s50, s50, L_pc-{NAME}_kernel
        s_subb_u32 s51, s51, 0
        v_cmp_gt_u32 s[54:55], 8, v{vLANE}
        v_cmp_gt_u32 vcc, L_exit-{NAME}_kernel, v1
        v_mov_b32 v7, s51
        s_and_b64 s[54:55], s[54:55], vcc
        v_add_co_u32 v6, vcc, s50, v1
        v_addc_co_u32 v7, vcc, 0, v7, vcc
        s_and_saveexec_b64 s[30:31], s[54:55]
        s_cbranch_execz L_b_cpf0
        global_load_dword v{AR}, v[6:7], off
    L_b_cpf0:
        s_mov_b64 exec, -1
    L_b_nocpf:""")
    srd(44, 26, 256)
    a(f"""s_lshl_b32 s52, s2, 2
    s_add_u32 s52, s52, {sT}
    s_cmp_lg_u32 s52, 1
    s_cbranch_scc1 L_b_noclear
    v_lshlrev_b32 v1, 7, v{vLANE}
    s_mov_b32 s30, {WS_FLAG}
    s_mov_b32 s31, {WS_FLAG + 64*128}
    v_mov_b32 v8, 0
    v_mov_b32 v9, 0
    v_mov_b32 v10, 0
    v_mov_b32 v11, 0
    buffer_store_dword v8, v1, {SWS}, s30 offen sc1
    buffer_store_dwordx4 v[8:11], v1, {SWS}, s31 offen sc1
    buffer_store_dwordx4 v[8:11], v1, {SWS}, s31 offen offset:16 sc1
    buffer_store_dwordx4 v[8:11], v1, {SWS}, s31 offen offset:32 sc1
    buffer_store_dwordx4 v[8:11], v1, {SWS}, s31 offen offset:48 sc1
L_b_noclear:""")
    a(f"""s_lshl_b32 s30, {sT}, 10
    v_add_u32 v{t}, s30, v{vWA}
    v_cmp_gt_u32 vcc, 32, v{vLANE}
    v_and_b32 v{EF}, 31, v{vLANE}
    v_lshrrev_b32 v{EF+1}, 5, v{vLANE}
    v_lshlrev_b32 v{EF+1}, 10, v{EF+1}
    v_lshl_add_u32 v{EF}, v{EF}, 4, v{EF+1}
    s_lshr_b32 s30, {sT}, 1
    s_lshl_b32 s30, s30, 9
    s_and_b32 s31, {sT}, 1
    s_lshl_b32 s31, s31, 3
    s_add_u32 s30, s30, s31
    s_add_u32 s30, s30, {L_SFR}
    v_and_b32 v{vM}, 0x1ff, v{EF}
    v_add_u32 v{vM}, s30, v{vM}
    v_add_u32 v{EF}, s30, v{EF}
    s_lshl_b32 s30, {sT}, 5""")
    for s in range(4):
        a(f"v_xor_b32 v{vXA+s}, s30, v{vXA+s}")
    a("s_barrier                             ; Ba")

    def ssum(n):
        read_w(WF, t, L_WK + n * 4096)
        read_w(WF + 4, t, L_WV + n * 4096)

    def ssum2(n):
        mfma16(ASK, CS, WF, None if n == 0 else ASK)
        mfma16(ASV, CS, WF + 4, None if n == 0 else ASV)

    ssum(0)
    a("s_waitcnt lgkmcnt(0)")
    ssum2(0)
    for n in range(7):
        a(f"s_barrier                             ; B{n}")
        ssum(n + 1)
        if n < 5 and not cfg.x1 & 1:
            for s in range(4):
                r = XF + 20 * s + 4 * n
                if n < 4:
                    a(f"ds_read_b128 v[{r}:{r+3}], v{vXA+s} offset:{n*16384}")
                else:
                    a(f"v_add_u32 v{t+2}, 65536, v{vXA+s}\nds_read_b128 v[{r}:{r+3}], v{t+2}")
        if n == 0:
            a(f"""s_cmp_lg_u32 s52, 1
            s_cbranch_scc1 L_b_nosig
            s_waitcnt vmcnt(0)
            v_mov_b32 v{t+2}, 0
            v_mov_b32 v{t+3}, 1
            s_mov_b64 exec, 1
            buffer_store_dword v{t+3}, v{t+2}, {SAUX}, 0 offen sc1
            s_mov_b64 exec, -1
        L_b_nosig:""")
        if n == 4:
            a(f"""s_cmp_lg_u32 {sT}, 0
            s_cbranch_scc1 L_b_noclr
            v_mov_b32 v{t+2}, 0
            s_mov_b64 exec, 1
            buffer_load_dword v{t+5}, v{t+2}, {SAUX}, 0 offen sc1
            s_mov_b64 exec, -1
        L_b_noclr:""")
        if n == 6:
            a("s_setprio 2")
        a("s_waitcnt lgkmcnt(0)")
        ssum2(n + 1)
    a(f"v_cndmask_b32 v{EF+1}, v{ASV}, v{ASK}, vcc")
    split3(EF + 2, EF + 1, t + 2)
    a(f"""ds_write_b64 v{EF}, v[{EF+2}:{EF+3}]
    s_cmp_lg_u32 {sT}, 0
    s_cbranch_scc1 L_b_clrd
    s_waitcnt vmcnt(0)
    v_readfirstlane_b32 s30, v{t+5}
    v_mov_b32 v{t+2}, 0
    s_cmp_lg_u32 s30, 0
    s_cbranch_scc1 L_b_clrd""")
    poll("0", 1, "clr", t + 2, t + 5, sleep=1, srd_=SAUX)
    a(f"""L_b_clrd:
    s_setprio 0
    s_waitcnt vmcnt(0) lgkmcnt(0)
    s_barrier                             ; B7
    v_add_u32 v{vWA}, {L_WQ}, v{t}
    v_and_b32 v{t+4}, 31, v{vLANE}
    s_lshl_b32 s30, {sT}, 5
    v_add_lshl_u32 v{t+4}, v{t+4}, s30, 3
    v_add_u32 v{t+4}, {L_STAT}, v{t+4}
    s_lshl_b32 s30, {sT}, 10
    v_add_u32 v{t+5}, s30, v{vL16}
    v_add_u32 v{t+1}, {L_SFR}, v{vL16}
    v_mov_b32 v{t}, {L_CTR}
    v_mov_b32 v{vDEN}, 1""")
    xq = lambda n, s: XF + 20 * s + 4 * n if n < 5 else (128 if s % 2 == 0 else 0) + 4 * (n - 5)
    xrd = lambda n, s: f"ds_read_b128 v[{xq(n, s)}:{xq(n, s)+3}], v{vXA+s} offset:{(n - 5)*16384}"
    for n in range(5, 8):
        a(xrd(n, 0))
    a("""s_waitcnt lgkmcnt(0)
    s_setprio 2
    s_barrier                             ; B8""")
    stamp(4)
    lg = Lg()
    SQA = 140

    def qreads(k):
        s_, n = k >> 3, k & 7
        if n == 0 and s_:
            a(f"v_xor_b32 v{vWA}, {(s_ ^ (s_ - 1)) << 10}, v{vWA}")
        lg.rd(("q", k), trs(WF + 4 * (k % 8), vWA, n * 4096))
    for k in range(5):
        qreads(k)
    lg.rd("st", f"ds_read_b64 v[{t+2}:{t+3}], v{t+4}")
    z = lambda lo, hi: "\n".join(f"v_mov_b64 v[{r}:{r+1}], 0" for r in range(lo, hi, 2))
    cr = const_rows(t + 4)
    side = {8: f"v_rcp_f32 v{vRS}, v{t+3}\nv_cvt_pk_bf16_f32 v{MF}, -v{t+2}, -v{t+2}",
            9: f"v_mul_f32 v{vRS}, {f32(CQ)}, v{vRS}\nv_mov_b32 v{MF+1}, v{MF}",
            10: f"v_and_b32 v{t+2}, 0xffff0000, v{SQA}\nv_sub_f32 v{t+3}, v{SQA}, v{t+2}\nv_and_b32 v{t+4}, 0xffff0000, v{t+3}",
            11: f"v_sub_f32 v{t+3}, v{t+3}, v{t+4}\nv_lshrrev_b32 v{t+2}, 16, v{t+2}\nv_or_b32 v{t+2}, v{t+2}, v{t+4}",
            12: f"v_lshrrev_b32 v{t+3}, 16, v{t+3}",
            14: f"v_mov_b64 v[{MF+2}:{MF+3}], v[{MF}:{MF+1}]\n" + cr[0] + "\n" + cr[1],
            15: cr[2] + "\n" + z(32, 36), 16: cr[3], 19: z(36, 40),
            21: z(40, 46), 22: z(46, 52), 23: z(52, 56), 24: z(56, 60), 26: z(80, 84), 27: z(84, 88), 28: z(88, 96),
            29: z(60, 68), 30: z(68, 76), 31: z(76, 80)}
    for k in range(32):
        s, n = k >> 3, k & 7
        lg.wait(("q", k), ("x", k))
        mfma32(ACC, WF + 4 * (k % 8), xq(n, s), ACC if k else None)
        if k + 5 < 32:
            qreads(k + 5)
        if s < 3 and (3 <= n < 6 if s == 0 else n < 3):
            n2 = n + 2 if s == 0 else n + 5
            lg.rd(("x", 8 * (s + 1) + n2), xrd(n2, s + 1))
        if k in side:
            a(side[k])
        if k < 8:
            mfma16(SQA, CS, WF + 4 * k, SQA if k else None)
        if k == 13:
            lg.rd("w", f"ds_write_b64 v{vM}, v[{t+2}:{t+3}]")
            a("s_mov_b64 exec, 1")
            lg.rd("w", f"ds_add_u32 v{t}, v{vDEN} offset:4")
            a("s_mov_b64 exec, -1")
        if k == 25:
            lg.rd("sf", f"ds_read_b32 v{t+2}, v{t} offset:4\nds_read_b128 v[{SQA}:{SQA+3}], v{t+1}")
    a(f"""s_mov_b32 s56, 0
L_b_sq:
    s_waitcnt lgkmcnt(0)
    v_readfirstlane_b32 s30, v{t+2}
    s_add_u32 s56, s56, 1
    s_cmp_ge_u32 s30, 4
    s_cbranch_scc1 L_b_sqd
    ds_read_b32 v{t+2}, v{t} offset:4
    ds_read_b128 v[{SQA}:{SQA+3}], v{t+1}
    s_cmp_lt_u32 s56, {cfg.spin_max}
    s_cbranch_scc1 L_b_sq
L_b_sqd:""")
    stamp(8)
    mfma32(ACC, SQA, MF, ACC)
    for i in range(0, 16, 2):
        a(f"v_pk_mul_f32 v[{ACC+i}:{ACC+i+1}], v[{ACC+i}:{ACC+i+1}], v[{vRS}:{vRS+1}] op_sel_hi:[1,0]")
        a(f"v_cvt_pk_bf16_f32 v{4+i//2}, v{ACC+i}, v{ACC+i+1}")
        if i == 6:
            a(f"ds_write_b128 v{t+5}, v[4:7] offset:{L_Q}")
    a(f"ds_write_b128 v{t+5}, v[8:11] offset:{L_Q + 4096}")
    stamp(1)
    attn_init_b((0,))

    def exp(r):
        a(f"v_exp_f32 v{r}, v{r}")

    def smf(o, v, p):
        a(f"v_smfmac_f32_32x32x32_bf16 v[{o}:{o+15}], v[{v}:{v+3}], v[{p}:{p+7}], v{vIDX}")

    def step(i, S, prev, nxt, h1=None, h2=None, h3=None):
        cur, oth = (SA, SB) if i % 2 == 0 else (SB, SA)
        exp(cur); exp(cur + 1)
        if i or prev is not None:
            smf(OO + 16 * ((i - 1) & 3), (S if i else prev)["V"][1], oth + 8)
        if h1:
            h1()
        for e in range(2, 5):
            exp(cur + e)
        if i < 3:
            mfma32(oth, S["K"], QQ + 4 * (i + 1))
        elif nxt is not None:
            mfma32(oth, nxt["K"], QQ)
        for e in range(5, 10):
            exp(cur + e)
        smf(OO + 16 * i, S["V"][0], cur)
        if h2:
            h2()
        for e in range(10, 16):
            exp(cur + e)
            if e == 12 and h3:
                h3()

    def gl_addr():
        a("""s_add_u32 s61, s61, 8192
             s_and_b32 s61, s61, 0x1ffff""")

    def gl_k(s):
        S = slot(s)
        a(f"""s_add_u32 s65, s61, s64
              buffer_load_dwordx4 v[{S['K']}:{S['K']+3}], v{vL16}, {SWS}, s65 offen sc1""")

    def gl_v(s):
        S = slot(s)
        a(f"s_mov_b64 exec, {sVM}")
        for i in range(2):
            r = S["V"][i]
            a(f"buffer_load_dwordx4 v[{r}:{r+3}], v{vL16}, {SWS}, s65 offen offset:{1024 + 256*i} sc1")
        a("s_mov_b64 exec, -1")

    def unit(s, load=True, wait=6, last=False, hooks={}, first=False):
        S, prev, nxt = slot(s), None if first else slot((s + 3) % 4), slot((s + 1) % 4)
        H = lambda k: hooks.get(k)
        ld = (s + 3) % 4
        step(0, S, prev, nxt, h1=(lambda: gl_k(ld)) if load else H("01"), h2=(lambda: gl_v(ld)) if load else H("02"), h3=H("03"))
        step(1, S, prev, nxt, h1=gl_addr if load else H("11"), h2=H("12"), h3=H("13"))
        step(2, S, prev, nxt, h1=H("21"), h2=H("22"), h3=H("23"))
        step(3, S, prev, None if last else nxt, h1=(lambda: a(f"s_waitcnt vmcnt({wait})")) if not last else H("31"), h2=H("32"), h3=H("33"))

    a(f"""L_attn_pre:
    v_add_u32 v{t+1}, s71, v{vL16}
    v_mov_b32 v{vIDX}, 0xdddddddd""")
    for i in range(4):
        a(f"v_add_u32 v{t+2+i}, s{72+i}, v{vL16}")
    a(f"""s_setprio {3 if cfg.prio else 0}
    s_waitcnt lgkmcnt(0)
    s_barrier                             ; B10""")
    stamp(5)
    S0 = slot(0)
    a(f"""ds_read_b128 v[{QQ}:{QQ+3}], v{t+2} offset:{L_Q}
    ds_read_b128 v[{S0['K']}:{S0['K']+3}], v{t+1} offset:{L_OWNKV}""")
    for i in range(1, 4):
        a(f"ds_read_b128 v[{QQ+4*i}:{QQ+4*i+3}], v{t+2+i} offset:{L_Q}")
    a(f"s_mov_b64 exec, {sVM}")
    for i in range(2):
        r = S0["V"][i]
        a(f"ds_read_b128 v[{r}:{r+3}], v{t+1} offset:{L_OWNKV + 1024 + 256*i}")
    a("s_mov_b64 exec, -1\ns_waitcnt lgkmcnt(5)")
    mfma32(SA, S0["K"], QQ)
    attn_init_b((1, 2, 3))
    a("s_waitcnt lgkmcnt(0)")
    def release():
        stamp(15)
        a("s_barrier                             ; B11")
        for s in (1, 2, 3):
            gl_k(s)
            gl_v(s)
            gl_addr()
    unit(0, load=False, first=True, hooks={cfg.b11: release})
    a(f"s_mov_b32 s66, {cfg.iters}")
    a(".p2align 3\nL_attn:")
    for s in (1, 2, 3, 0):
        unit(s, hooks={"32": lambda: a("s_sub_u32 s66, s66, 1\ns_cmp_lg_u32 s66, 0")} if s == 0 else {})
    a("s_cbranch_scc1 L_attn")
    stamp(6)
    if cfg.prio:
        a("s_setprio 2")

    def mbaddr():
        a(f"s_mul_i32 s52, {sHH}, {4*3*2304}")
        for i in range(3):
            a(f"""s_add_u32 s30, {sKQ}, {1 + i}
                  s_and_b32 s30, s30, 3
                  s_mul_i32 s30, s30, {3*2304}
                  s_add_u32 s{53+i}, s30, s52""")
        a(f"""s_mul_i32 s30, {sKQ}, {3*2304}
              s_add_u32 s52, s52, s30""")

    def send(i):
        o = OO + 16 * i
        a(f"""v_add_u32 v{t+1}, s{53+i}, v{vL16}
              v_lshl_add_u32 v{t+2}, v{vLANE}, 2, s{53+i}
              ds_write_b128 v{t+1}, v[{o}:{o+3}] offset:{L_CMB + i*2304}
              ds_write_b128 v{t+1}, v[{o+4}:{o+7}] offset:{L_CMB + i*2304 + 1024}
              ds_write_b32 v{t+2}, v{o+8} offset:{L_CMB + i*2304 + 2048}""")
    def touch():
        a(f"""s_lshl_b32 s30, {sJ}, 2
              s_add_u32 s30, s30, {sKQ}
              s_lshl_b32 s30, s30, 15
              s_lshr_b32 s31, s64, 7               ; head * 1024
              s_add_u32 s30, s30, s31
              s_add_u32 s67, s30, {WS_OF}
              s_lshl_b32 s57, {sJ}, 7
              s_add_u32 s59, s57, {WS_FLAG + FL*128}
              s_mov_b32 s50, 0x01010101
              s_mov_b32 s51, 0x01010101
              s_mov_b64 exec, s[50:51]
              buffer_load_dword v{t+4}, v{vL16}, {SWS}, s67 offen sc1
              s_mov_b64 exec, 1
              buffer_load_dword v{t+5}, v{vL16}, {SWS}, s59 offen sc1
              s_mov_b64 exec, -1""")
    unit(1, load=False, wait=5, hooks={"01": touch, "11": mbaddr})
    unit(2, load=False, wait=2)
    if cfg.prio:
        a("s_setprio 1")
    unit(3, load=False, last=True, hooks={"21": lambda: send(0), "31": lambda: (send(1), a("s_setprio 0")), "33": lambda: send(2)})
    O3 = OO + 48
    a(f"""v_add_u32 v{t+1}, s52, v{vL16}
    v_lshl_add_u32 v{t+2}, v{vLANE}, 2, s52""")
    smf(O3, slot(3)["V"][1], SB + 8)
    stamp(7)
    a(f"""v_mov_b32 v{t+3}, {L_CTR}
    s_setprio 2
    s_waitcnt lgkmcnt(0)
    s_barrier                             ; T1""")
    stamp(9)
    a(f"ds_read_b32 v27, v{t+3} offset:16")
    for i in range(3):
        a(f"ds_read_b32 v{24+i}, v{t+2} offset:{L_CMB + i*2304 + 2048}")
    for i in range(3):
        a(f"""ds_read_b128 v[{8*i}:{8*i+3}], v{t+1} offset:{L_CMB + i*2304}
              ds_read_b128 v[{8*i+4}:{8*i+7}], v{t+1} offset:{L_CMB + i*2304 + 1024}""")
    a(f"""s_waitcnt lgkmcnt(6)
    v_readfirstlane_b32 s70, v27
    v_add_f32 v24, v24, v25
    v_add_f32 v26, v26, v{O3+8}
    v_add_f32 v{O3+8}, v24, v26
    v_cmp_nle_f32 vcc, {f32(2.0**-40)}, v{O3+8}
    v_rcp_f32 v28, v{O3+8}
    s_mov_b64 s[50:51], vcc
    v_cmp_nge_f32 vcc, {f32(2.0**40)}, v{O3+8}""")
    for i in range(3):
        a(f"s_waitcnt lgkmcnt({4 - 2*i})")
        for e in range(0, 8, 2):
            a(f"v_pk_add_f32 v[{O3+e}:{O3+e+1}], v[{O3+e}:{O3+e+1}], v[{8*i+e}:{8*i+e+1}]")
    a(f"""s_or_b64 s[50:51], s[50:51], vcc
    v_maximum3_f32 v0, |v{O3}|, |v{O3+1}|, |v{O3+2}|
    v_maximum3_f32 v1, |v{O3+3}|, |v{O3+4}|, |v{O3+5}|
    v_maximum3_f32 v0, |v{O3+6}|, |v{O3+7}|, v0
    v_maximum3_f32 v0, v0, v1, v1
    v_cmp_nge_f32 vcc, {f32(2.0**120)}, v0
    s_nop 0
    s_or_b64 s[50:51], s[50:51], vcc""")
    a("s_branch L_slow" if cfg.force_slow else "s_cbranch_scc1 L_slow")
    a("L_norm:")
    for e in range(0, 8, 2):
        a(f"v_pk_mul_f32 v[{O3+e}:{O3+e+1}], v[{O3+e}:{O3+e+1}], v[28:29] op_sel_hi:[1,0]")
    for i in range(4):
        a(f"v_cvt_pk_bf16_f32 v{156+i}, v{O3+2*i}, v{O3+2*i+1}")
    a(f"""s_cmp_eq_u32 s70, 0
    s_cbranch_scc1 L_ost_far
    buffer_store_dwordx4 v[156:159], v{vL16}, {SWS}, s67 offen
    s_branch L_ost_done
L_ost_far:
    buffer_store_dwordx4 v[156:159], v{vL16}, {SWS}, s67 offen sc1
L_ost_done:""")
    stamp(10)
    WOF, PACC, OFR = 0, 128, 144
    u = 144
    a(f"""s_cmp_ge_u32 {sWV}, 8
    s_cbranch_scc1 L_tail_b
    v_lshrrev_b32 v{u}, 5, v{vLANE}
    v_bfe_u32 v{u+1}, v{vLANE}, 2, 2
    v_lshl_add_u32 v{u}, v{u}, 2, v{u+1}
    v_lshlrev_b32 v{u}, 6, v{u}           ; (4*half + r) * 64
    v_and_b32 v{u+1}, 1, v{vLANE}
    v_lshl_add_u32 v{u}, v{u+1}, 5, v{u}
    v_bfe_u32 v{u+1}, v{vLANE}, 4, 1
    v_lshl_add_u32 v{u}, v{u+1}, 4, v{u}
    v_bfe_u32 v{u+1}, v{vLANE}, 1, 1
    v_lshl_add_u32 v{u}, v{u+1}, 3, v{u}
    s_and_b32 s50, {sT}, 1
    s_lshr_b32 s51, {sT}, 1
    s_lshl_b32 s30, s50, 15
    s_add_u32 s30, s30, {L_WO}
    v_add_u32 v{u}, s30, v{u}""")
    for hd in range(32):
        read_w(WOF + 4 * hd, u, hd * 1024, second=512)
        if hd % 6 == 5:
            a("s_waitcnt lgkmcnt(2)")
    a(f"""v_and_b32 v{u+1}, 31, v{vLANE}
    v_lshrrev_b32 v{u+2}, 5, v{vLANE}
    s_lshl_b32 s30, s50, 2
    v_lshl_add_u32 v{u+2}, v{u+2}, 1, s30
    v_and_b32 v{u+3}, 7, v{u+1}
    v_xor_b32 v{u+2}, v{u+2}, v{u+3}
    s_lshl_b32 s30, s51, 12
    v_lshl_add_u32 v{u+1}, v{u+1}, 7, s30
    v_lshl_add_u32 v162, v{u+2}, 4, v{u+1}
    v_xor_b32 v163, 16, v162
    s_lshl_b32 s30, s51, 15
    s_add_u32 s30, s30, {L_OST}
    v_add_u32 v166, s30, v{vL16}
    s_waitcnt vmcnt(0)
    s_barrier                             ; T2
    s_waitcnt lgkmcnt(0)
    s_barrier                             ; T3""")
    stamp(11)
    a("s_barrier                             ; T4a")
    stamp(12)
    for hd in range(3):
        a(f"ds_read_b128 v[{OFR+4*hd}:{OFR+4*hd+3}], v166 offset:{hd*1024}")
    for hd in range(32):
        a(f"s_waitcnt lgkmcnt({min(2, 31 - hd)})")
        mfma32(PACC, WOF + 4 * hd, OFR + 4 * (hd % 4), None if hd == 0 else PACC)
        if hd + 3 < 32:
            if (hd + 3) % 8 == 0:
                a("s_barrier                             ; T4b..d")
            r = OFR + 4 * ((hd + 3) % 4)
            a(f"ds_read_b128 v[{r}:{r+3}], v166 offset:{(hd+3)*1024}")
    for i in range(8):
        a(f"v_cvt_pk_bf16_f32 v{i}, v{PACC+2*i}, v{PACC+2*i+1}")
    a(f"""ds_write_b128 v162, v[0:3] offset:{L_SST}
    ds_write_b128 v163, v[4:7] offset:{L_SST}
    s_waitcnt lgkmcnt(0)
    s_barrier                             ; T5""")
    stamp(13)
    dump_stamps()
    a("s_endpgm")

    a(f"""L_tail_b:
    v_mov_b32 v0, 0
    v_mov_b32 v1, 1
    v_lshlrev_b32 v3, 2, v{vLANE}
    s_add_u32 s57, s57, {WS_FLAG + F5*128}
    s_lshl_b32 s51, {sP}, 2
    s_add_u32 s71, s51, s59
    s_add_u32 s50, {sT}, 4""")
    stage_setup("s50")
    a(f"""s_waitcnt vmcnt(0)
    s_barrier                             ; T2
    s_cmp_lg_u32 {sT}, 0
    s_cbranch_scc1 L_tail_b3
    s_cmp_eq_u32 s70, 0
    s_cbranch_scc1 L_tail_far
    s_mov_b64 exec, 1
    buffer_store_dword v1, v0, {SWS}, s71 offen
    s_mov_b64 exec, 0xffff
    s_mov_b32 s56, 0
L_tail_near:
    buffer_load_dword v2, v3, {SWS}, s59 offen sc1
    s_add_u32 s56, s56, 1
    s_waitcnt vmcnt(0)
    v_cmp_eq_u32 vcc, 0, v2
    s_cmp_ge_u32 s56, {cfg.spin_max}
    s_cbranch_scc1 L_tail_neard
    s_cbranch_vccnz L_tail_near
L_tail_neard:
    s_mov_b64 exec, -1
    s_branch L_tail_b3
L_tail_far:""")
    signal("s57", 0, 1)
    poll("s57", 16, "f5", 0, 2, sleep=1)
    a("""L_tail_b3:
    s_barrier                             ; T3""")
    stamp(11)
    stage_o(vL16)
    stamp(12)
    dump_stamps()
    a("s_endpgm")

    K_, V_, Q3 = slot(0)["K"], slot(0)["V"], QQ + 12
    a(f"""L_slow:
    v_mov_b32 v{t+1}, 0xff800000
    s_mov_b32 s61, 0
L_slow1:
    s_add_u32 s65, s61, s64
    buffer_load_dwordx4 v[{K_}:{K_+3}], v{vL16}, {SWS}, s65 offen sc1
    s_add_u32 s61, s61, 2048
    s_waitcnt vmcnt(0)""")
    mfma32(SA, K_, Q3)
    for i in range(8):
        a(f"v_max3_f32 v{t+1}, v{SA+2*i}, v{SA+2*i+1}, v{t+1}")
    a(f"""s_cmp_lt_u32 s61, 0x20000
    s_cbranch_scc1 L_slow1
    v_mov_b32 v{t+2}, v{t+1}
    v_permlane32_swap_b32 v{t+1}, v{t+2}
    v_max_f32 v{t+1}, v{t+1}, v{t+2}""")
    for i in range(16):
        a(f"v_sub_f32 v{SB+i}, 0, v{t+1}\nv_mov_b32 v{O3+i}, 0")
    a(f"""s_mov_b32 s61, 0
L_slow2:
    s_add_u32 s65, s61, s64
    buffer_load_dwordx4 v[{K_}:{K_+3}], v{vL16}, {SWS}, s65 offen sc1
    s_mov_b64 exec, {sVM}
    buffer_load_dwordx4 v[{V_[0]}:{V_[0]+3}], v{vL16}, {SWS}, s65 offen offset:1024 sc1
    buffer_load_dwordx4 v[{V_[1]}:{V_[1]+3}], v{vL16}, {SWS}, s65 offen offset:1280 sc1
    s_mov_b64 exec, -1
    s_add_u32 s61, s61, 2048
    s_waitcnt vmcnt(0)""")
    mfma32(SA, K_, Q3, SB)
    for i in range(16):
        exp(SA + i)
    smf(O3, V_[0], SA)
    smf(O3, V_[1], SA + 8)
    a(f"""s_cmp_lt_u32 s61, 0x20000
    s_cbranch_scc1 L_slow2
    s_nop 11
    v_rcp_f32 v28, v{O3+8}
    s_branch L_norm""")
    return finish(a, cfg)


def finish(a, cfg):
    a("L_exit:\ns_endpgm")
    body, log = fix_hazards(a.text(), fix=True, verbose=cfg.verbose)
    head = open("cdna_kernels/" + NAME + ".s.ref").read().split("; Override launch")[0]
    head += f"; @launch grid=(256,1,1) block=(768,1,1) lds={LDS_BYTES}\n"
    tail = f""".section .rodata,"a"
.p2align 6
.amdhsa_kernel {NAME}_kernel
  .amdhsa_next_free_vgpr 168
  .amdhsa_next_free_sgpr 102
  .amdhsa_accum_offset 168
  .amdhsa_group_segment_fixed_size 0
  .amdhsa_kernarg_size 88
  .amdhsa_user_sgpr_count 2
  .amdhsa_user_sgpr_kernarg_segment_ptr 1
  .amdhsa_system_sgpr_workgroup_id_x 1
  .amdhsa_float_denorm_mode_32 3
.end_amdhsa_kernel
"""
    return head + body + tail


if __name__ == "__main__":
    cfg = Cfg()
    out = sys.argv[1]
    for kv in sys.argv[2:]:
        k, v = kv.split("=")
        setattr(cfg, k, eval(v))
    open(out, "w").write(gen(cfg))
```

```python
import sys
import struct
from asmlib import Asm, fix_hazards

NAME = "recurrent_scan__softmax_full_mha__moe_arch_mod__prompt"

WS_KV = 0
WS_OF = 4 << 20
WS_FLAG = 6 << 20
WS_CAND = (6 << 20) + 0x10000
WS_STAT = (6 << 20) + 0x20000
WS_P1 = (6 << 20) + 0x80000
WS_P2 = (6 << 20) + 0xC0000
WS_DBG = 8 << 20
WS_SIZE = 268435456
F1, F2, F3, F4, F5, FX, FL = 0, 16, 32, 64, 72, 88, 104

L_WK, L_WV, L_RING = 0, 32768, 65536
L_WQ = L_RING + 3 * 16384
L_OWNKV = 0
L_Q = 32768
L_WO = 65536
L_GU = 128 * 1024
L_DN = 144 * 1024
L_CMB = 0
L_OST = L_WO
L_SST = 56 * 1024
L_MISC = 152 * 1024
L_WR = L_MISC
L_ZERO = L_MISC + 1088
L_ONES = L_MISC + 6784
L_CTR = L_MISC + 2112
L_STAT = L_MISC + 2304
L_SFR = L_MISC + 3328
L_KEY = L_MISC + 5376
L_XS = L_MISC + 5440
L_Y = L_MISC + 6144
LDS_BYTES = 163840

CQ = 0.25 * 1.4426950408889634
LOG2E = 1.4426950408889634


def f32(x):
    return "0x%08x" % struct.unpack("<I", struct.pack("<f", x))[0]


class Cfg:
    stamps = False
    L = 2
    rot = 7
    rotj = 1
    rotp = 1
    rotx = 1
    wq1 = 4
    wq2 = 4
    x2 = 0
    kvpf = 0
    cpf = 1
    qpf = 3
    qpfn = 3
    b11 = '11'
    gatepos = 3
    wqwin = 4
    sigfirst = 0
    ntx = ''
    spin_max = 200000
    verbose = False
    force_slow = False
    prio = 1
    x1 = 0
    pxor = 0
    local = 1
    wo_win = 6
    gu_win = 4
    nocold = 0
    ntw = ''
    probe = None
    clk = 's_memtime'
    iters = 3


def gen(cfg):
    a = Asm()
    L = cfg.L
    sP, sJ, sWV, sT, sC0 = "s3", "s4", "s5", "s6", "s7"
    SX, SW, SWS, SAUX = "s[32:35]", "s[36:39]", "s[40:43]", "s[44:47]"
    sONE = "s48"

    def srd(base, ptr, size):
        a(f"""s_mov_b32 s{base}, s{ptr}
              s_mov_b32 s{base+1}, s{ptr+1}
              s_mov_b32 s{base+2}, {size}
              s_mov_b32 s{base+3}, 0x20000""")

    def stamp(i):
        if cfg.probe and cfg.probe[0] == i:
            a("s_memrealtime s[98:99]\ns_waitcnt lgkmcnt(0)")
        if cfg.stamps:
            a(f"{cfg.clk} s[78:79]\ns_waitcnt lgkmcnt(0)\ns_mov_b32 s{80+i}, s78")

    def dump_stamps():
        if cfg.stamps:
            a(f"""s_mul_i32 s78, s2, 12
                  s_add_u32 s78, s78, {sWV}
                  s_lshl_b32 s78, s78, 6
                  s_add_u32 s78, s78, {WS_DBG}
                  v_mov_b32 v0, 0""")
            for g in range(4):
                for i in range(4):
                    a(f"v_mov_b32 v{4+i}, s{80+4*g+i}")
                a(f"buffer_store_dwordx4 v[4:7], v0, {SWS}, s78 offen offset:{16*g}")
                a("s_nop 1")
            a("s_waitcnt vmcnt(0)")

    def signal(line_sgpr, vz, vone):
        a(f"""s_mov_b64 exec, 1
              buffer_atomic_add v{vone}, v{vz}, {SWS}, {line_sgpr} offen sc1
              s_mov_b64 exec, -1""")

    def poll(line_sgpr, target, tag, vz, vt, sleep=2, srd_=None):
        a(f"""s_mov_b32 s56, 0
              s_mov_b64 exec, 1
        L_poll_{tag}:
              buffer_load_dword v{vt}, v{vz}, {srd_ or SWS}, {line_sgpr} offen sc1
              s_waitcnt vmcnt(0)
              v_readfirstlane_b32 s30, v{vt}
              s_add_u32 s56, s56, 1
              s_cmp_ge_u32 s30, {target}
              s_cbranch_scc1 L_polld_{tag}
              s_sleep {sleep}
              s_cmp_lt_u32 s56, {cfg.spin_max}
              s_cbranch_scc1 L_poll_{tag}
        L_polld_{tag}:
              s_mov_b64 exec, -1""")

    def rowmax_u32(dst, src):
        a(f"v_max_u32_dpp v{dst}, v{src}, v{src} row_ror:8 row_mask:0xf bank_mask:0xf")
        for r in (4, 2, 1):
            a(f"v_max_u32_dpp v{dst}, v{dst}, v{dst} row_ror:{r} row_mask:0xf bank_mask:0xf")

    def wavemax_u32(sdst, src, tmp, rows):
        rowmax_u32(tmp, src)
        a(f"v_readlane_b32 {sdst}, v{tmp}, 0")
        for r in range(1, rows):
            a(f"v_readlane_b32 s30, v{tmp}, {16*r}\ns_max_u32 {sdst}, {sdst}, s30")

    def tr_addr(dst, lane, t1, t2, rowshift=3):
        a(f"""v_lshrrev_b32 v{t1}, 5, v{lane}
              v_bfe_u32 v{t2}, v{lane}, 2, 2
              v_lshl_add_u32 v{t1}, v{t1}, {rowshift}, v{t2}
              v_lshlrev_b32 v{t1}, 6, v{t1}
              v_bfe_u32 v{t2}, v{lane}, 4, 1
              v_lshl_add_u32 v{t1}, v{t2}, 5, v{t1}
              v_and_b32 v{t2}, 3, v{lane}
              v_lshl_add_u32 v{dst}, v{t2}, 3, v{t1}""")

    def read_w(dst, addr, off, second=256):
        a(f"""ds_read_b64_tr_b16 v[{dst}:{dst+1}], v{addr} offset:{off}
              ds_read_b64_tr_b16 v[{dst+2}:{dst+3}], v{addr} offset:{off + second}""")

    def mfma32(d, A, B, c=None):
        cs = "0" if c is None else f"v[{c}:{c+15}]"
        a(f"v_mfma_f32_32x32x16_bf16 v[{d}:{d+15}], v[{A}:{A+3}], v[{B}:{B+3}], {cs}")

    def mfma16(d, A, B, c=None):
        cs = "0" if c is None else f"v[{c}:{c+3}]"
        a(f"v_mfma_f32_16x16x32_bf16 v[{d}:{d+3}], v[{A}:{A+3}], v[{B}:{B+3}], {cs}")

    def rnd(dst, src):
        a(f"v_cvt_pk_bf16_f32 v{dst}, 0, {src}")

    def split3(dst, src, t):
        a(f"""v_and_b32 v{t}, 0xffff0000, v{src}
              v_sub_f32 v{t+1}, v{src}, v{t}
              v_and_b32 v{t+2}, 0xffff0000, v{t+1}
              v_sub_f32 v{t+1}, v{t+1}, v{t+2}
              v_lshrrev_b32 v{t}, 16, v{t}
              v_or_b32 v{dst}, v{t}, v{t+2}
              v_lshrrev_b32 v{dst+1}, 16, v{t+1}""")

    a(f""".amdgcn_target "amdgcn-amd-amdhsa--gfx950"
.text
.globl {NAME}_kernel
.p2align 8
.type {NAME}_kernel,@function
{NAME}_kernel:
    s_cmp_ge_u32 s2, 256
    s_cbranch_scc1 L_exit
    s_load_dwordx16 s[8:23], s[0:1], 0
    s_load_dwordx4 s[24:27], s[0:1], 64
    s_load_dwordx2 s[28:29], s[0:1], 80""")
    if cfg.probe:
        a("s_memrealtime s[96:97]\ns_memrealtime s[98:99]")
    if cfg.stamps:
        for i in range(16):
            a(f"s_mov_b32 s{80+i}, 0")
        a(f"{cfg.clk} s[78:79]")
    a(f"""v_lshrrev_b32 v1, 6, v0
    v_and_b32 v0, 63, v0                 ; lane
    s_lshr_b32 {sP}, s2, 4
    s_xor_b32 {sP}, {sP}, {cfg.pxor}
    v_readfirstlane_b32 {sWV}, v1
    s_and_b32 {sJ}, s2, 7
    s_lshl_b32 {sJ}, {sJ}, 1
    s_bfe_u32 s30, s2, 0x10003
    s_or_b32 {sJ}, {sJ}, s30
    s_lshl_b32 s30, s30, {1 if cfg.rotj else 0}
    s_and_b32 {sC0}, {sP}, 1
    s_lshl_b32 {sC0}, {sC0}, {0 if cfg.rotj else 1}
    s_add_u32 {sC0}, {sC0}, s30
    s_lshl_b32 {sC0}, {sC0}, 1
    s_lshr_b32 s30, {sP}, {cfg.rotp}
    s_add_u32 {sC0}, {sC0}, s30
    s_and_b32 s30, s2, {cfg.rotx}
    s_add_u32 {sC0}, {sC0}, s30
    s_and_b32 {sC0}, {sC0}, {cfg.rot}
    s_and_b32 {sT}, {sWV}, 3
    s_mov_b32 {sONE}, 0x3f803f80
    s_cmp_ge_u32 {sWV}, 4
    s_cbranch_scc1 L_compute""")

    hZ, hONE, hT = 17, 18, 19
    a(f"""v_lshrrev_b32 v1, 2, v0
    s_lshl_b32 s30, {sT}, 4
    v_add_u32 v1, s30, v1
    v_mul_u32_u24 v1, 3072, v1
    v_and_b32 v2, 3, v0
    v_lshl_add_u32 v1, v2, 4, v1
    s_lshl_b32 s30, {sP}, 6
    v_add_u32 v14, s30, v1
    v_lshrrev_b32 v1, 3, v0
    v_lshrrev_b32 v2, 4, v0
    v_and_b32 v3, 7, v0
    v_xor_b32 v4, v3, v2
    v_xor_b32 v5, 4, v4
    s_lshl_b32 s30, {sJ}, 17
    s_lshl_b32 s31, {sT}, 15
    s_add_u32 s30, s30, s31
    v_lshl_add_u32 v6, v1, 10, s30
    v_lshl_add_u32 v10, v4, 4, v6
    v_lshl_add_u32 v11, v5, 4, v6
    v_add_u32 v12, {2*7168}, v10
    v_add_u32 v13, {3*7168}, v11
    v_add_u32 v11, 7168, v11
    s_lshl_b32 s57, {sT}, 12
    s_lshl_b32 s49, {sT}, 10
    s_waitcnt lgkmcnt(0)""")
    if cfg.stamps:
        a("s_mov_b32 s80, s78")
    srd(36, 10, 1572864)
    srd(32, 8, 2097152)

    def kc(n, dst):
        a(f"s_add_u32 {dst}, {sC0}, {n}\ns_and_b32 {dst}, {dst}, 7")

    def issue_w(n):
        kc(n, "s50")
        a(f"""s_mul_i32 s51, s50, {64*3072}
              s_add_u32 m0, s49, {L_WK + n*4096}
              s_add_u32 s52, s51, 1024
              buffer_load_dwordx4 v14, {SW}, s52 offen lds
              s_add_u32 m0, s49, {L_WV + n*4096}
              s_add_u32 s53, s51, 2048
              buffer_load_dwordx4 v14, {SW}, s53 offen lds""")

    def issue(item):
        if item < 8:
            n = item
            kc(n, "s50")
            a(f"""s_add_u32 m0, s57, {L_RING + (n % 5)*16384}
                  s_lshl_b32 s50, s50, 7""")
            for q in range(4):
                a(f"buffer_load_dwordx4 v{10+q}, {SX}, s50 offen offset:{1024*q} {cfg.ntx} lds")
            if n < 7:
                issue_w(n + 1)
        else:
            for n in {8: range(cfg.wq1), 9: range(cfg.wq1, cfg.wq1 + cfg.wq2), 10: range(cfg.wq1 + cfg.wq2, 8)}[item]:
                kc(n, "s50")
                if item == 10:
                    a(f"s_waitcnt vmcnt({cfg.wqwin - 1})")
                a(f"""s_add_u32 m0, s49, {L_WQ + n*4096}
                      s_mul_i32 s51, s50, {64*3072}
                      buffer_load_dwordx4 v14, {SW}, s51 offen lds""")

    cnt = lambda item: 6 if item < 7 else {7: 4, 8: cfg.wq1, 9: cfg.wq2}[item]
    a(f"""s_cmp_lg_u32 {sT}, 0
    s_cbranch_scc1 L_h_nowr""")
    srd(44, 16, 1024)
    a(f"""v_add_u32 v1, {sC0}, v1
    v_and_b32 v1, 7, v1
    v_lshlrev_b32 v1, 7, v1
    s_mov_b32 m0, {L_WR}
    v_lshl_add_u32 v1, v3, 4, v1
    buffer_load_dwordx4 v1, {SAUX}, 0 offen lds
L_h_nowr:""")
    issue_w(0)
    for it in range(L):
        issue(it)
    if cfg.kvpf:
        a(f"""s_lshr_b32 s30, s2, 3
        s_lshl_b32 s30, s30, 2
        s_add_u32 s30, s30, {sT}
        s_mul_i32 s30, s30, {4*3072}
        s_sub_u32 s31, 384, s10
        s_and_b32 s31, s31, 0x380
        s_add_u32 s30, s30, s31
        s_add_u32 s54, s10, s30
        s_addc_u32 s55, s11, 0""")
        for i in range(16):
            a(f"s_load_dword s{70+(i & 7)}, s[54:55], {1024 + 1024*(i >> 3) + 3072*((i & 7) >> 1) + 64*(i & 1)}")
    srd(40, 28, WS_SIZE)
    a(f"""v_mov_b32 v{hZ}, 0
    v_mov_b32 v{hONE}, 1
    s_waitcnt vmcnt({sum(cnt(i) for i in range(L))})
    s_barrier""")
    issued = L
    for n in range(8):
        pend = sum(cnt(i) for i in range(n + 1, issued))
        a(f"s_waitcnt vmcnt({pend})")
        a(f"s_barrier                             ; B{n}")
        if n in (0, 1, 7):
            stamp({0: 1, 1: 10, 3: 2, 7: 3}[n])
        if n == cfg.qpfn and cfg.qpf & 2:
            a(f"""s_lshr_b32 s30, s2, 3
            s_lshl_b32 s30, s30, 2
            s_add_u32 s30, s30, {sT}
            s_mul_i32 s30, s30, {4*3072}
            s_sub_u32 s31, 384, s10
            s_and_b32 s31, s31, 0x380
            s_add_u32 s30, s30, s31
            s_add_u32 s54, s10, s30
            s_addc_u32 s55, s11, 0""")
            for i in range(8):
                a(f"s_load_dword s{70+i}, s[54:55], {3072*(i >> 1) + 64*(i & 1)}")
        if n == 1 and cfg.qpf & 1:
            a(f"""s_lshl_b32 s30, s2, 1
            s_lshr_b32 s31, {sT}, 1
            s_add_u32 s30, s30, s31
            s_mul_i32 s30, s30, 3072
            s_and_b32 s31, {sT}, 1
            s_lshl_b32 s31, s31, 9
            s_add_u32 s30, s30, s31
            s_add_u32 s54, s10, s30
            s_addc_u32 s55, s11, 0""")
            for i in range(8):
                a(f"s_load_dword s{70+i}, s[54:55], {64*i}")
        if issued < 8:
            issue(issued)
            issued += 1
            if issued == 8:
                issue(8)
                issued += 1
        elif issued == 9 and n == 6:
            issue(9)
            issued += 1
    hXP, hXN, hG = 136, 144, 152
    hOA = 20
    a(f"""s_lshr_b32 s58, {sP}, 3
    s_and_b32 s59, {sP}, 7
    s_lshl_b32 s60, {sJ}, 1
    s_add_u32 s60, s60, s58
    v_lshrrev_b32 v1, 3, v0
    s_lshl_b32 s30, {sT}, 4
    v_add_u32 v22, s30, v1
    s_lshl_b32 s30, s60, 16
    s_lshl_b32 s31, s59, 7
    s_add_u32 s30, s30, s31
    v_lshl_add_u32 v1, v22, 10, s30
    v_and_b32 v2, 7, v0
    v_lshl_add_u32 v{hOA}, v2, 4, v1
    v_add_u32 v{hOA+1}, 8192, v{hOA}
    s_lshl_b32 s30, s58, 6
    v_add_lshl_u32 v1, v22, s30, 3
    v_add_u32 v23, {L_STAT}, v1
    """)
    issue(10)
    a(f"""buffer_load_dwordx4 v[{hXP}:{hXP+3}], v{hOA}, {SX}, 0 offen
    buffer_load_dwordx4 v[{hXP+4}:{hXP+7}], v{hOA+1}, {SX}, 0 offen
    s_waitcnt vmcnt(2)""")
    stamp(11)
    a("s_barrier")
    stamp(4)
    def normrows():
        a(f"""ds_read_b64 v[24:25], v23
    ds_read_b64 v[26:27], v23 offset:64
    s_waitcnt lgkmcnt(0)
    v_rcp_f32 v25, v25
    v_rcp_f32 v27, v27
    s_waitcnt vmcnt(0)""")
        for i in range(8):
            m, rs = (24, 25) if i < 4 else (26, 27)
            a(f"""v_lshlrev_b32 v28, 16, v{hXP+i}
                  v_and_b32 v29, 0xffff0000, v{hXP+i}
                  v_sub_f32 v28, v28, v{m}
                  v_sub_f32 v29, v29, v{m}
                  v_cvt_pk_bf16_f32 v28, 0, v28
                  v_cvt_pk_bf16_f32 v29, 0, v29
                  v_mul_f32 v28, v28, v{rs}
                  v_mul_f32 v29, v29, v{rs}
                  v_cvt_pk_bf16_f32 v{hXN+i}, v28, v29""")

    def gate(lo, hi):
        for i in range(lo, hi):
            g0, g1 = hG + 2 * i, hG + 2 * i + 1
            a(f"""v_lshlrev_b32 v28, 16, v{hXN+i}
                  v_and_b32 v29, 0xffff0000, v{hXN+i}
                  v_mul_f32 v{g0}, {f32(-LOG2E)}, v28
                  v_mul_f32 v{g1}, {f32(-LOG2E)}, v29
                  v_exp_f32 v{g0}, v{g0}
                  v_exp_f32 v{g1}, v{g1}
                  v_add_f32 v{g0}, 1.0, v{g0}
                  v_add_f32 v{g1}, 1.0, v{g1}
                  v_rcp_f32 v{g0}, v{g0}
                  v_rcp_f32 v{g1}, v{g1}
                  v_mul_f32 v{g0}, v{g0}, v28
                  v_mul_f32 v{g1}, v{g1}, v29
                  v_cvt_pk_bf16_f32 v{g0}, 0, v{g0}
                  v_cvt_pk_bf16_f32 v{g1}, 0, v{g1}""")
    tr_addr(30, 0, 1, 2)
    a(f"""v_lshrrev_b32 v31, 2, v0
    v_and_b32 v1, 3, v0
    v_lshlrev_b32 v32, 4, v1             ; piece
    v_lshl_add_u32 v33, v31, 10, v32
    s_lshl_b32 s30, s59, 7
    v_add_u32 v33, s30, v33
    s_lshr_b32 s61, s2, 3
    s_and_b32 s62, s2, 7""")
    srd(36, 12, 0 if cfg.nocold & 2 else 524288)
    normrows()
    stamp(12)
    a(f"""s_setprio 3
    s_barrier""")
    stamp(5)
    a(f"""s_cmp_lg_u32 {sT}, 0
    s_cbranch_scc1 L_h_b11
    s_lshl_b32 s57, {sP}, 7
    s_add_u32 s57, s57, {WS_FLAG + F1*128}""")
    poll("s57", 16, "f1", hZ, hT, sleep=1)
    stamp(13)
    a(f"""L_h_b11:
    s_barrier
    s_cmp_eq_u32 {sT}, 1
    s_cbranch_scc1 L_h1
    s_cmp_eq_u32 {sT}, 2
    s_cbranch_scc1 L_h2
    s_cmp_eq_u32 {sT}, 3
    s_cbranch_scc1 L_h3""")

    def mailbox(tag):
        a(f"""v_mov_b32 v6, {L_CTR}
              s_mov_b32 s56, 0
        L_mb_{tag}:
              s_sleep 8
              ds_read_b64 v[4:5], v6 offset:8
              s_add_u32 s56, s56, 1
              s_waitcnt lgkmcnt(0)
              v_readfirstlane_b32 s66, v4
              v_readfirstlane_b32 s67, v5
              s_cmp_ge_u32 s56, {cfg.spin_max}
              s_cbranch_scc1 L_mbd_{tag}
              s_cmp_eq_u32 s66, 0
              s_cbranch_scc1 L_mb_{tag}
        L_mbd_{tag}:""")

    a(f"""s_getreg_b32 s50, hwreg(HW_REG_XCC_ID, 0, 4)
    s_or_b32 s50, s50, 0x100
    v_mov_b32 v8, s50
    s_lshl_b32 s63, {sJ}, 7
    s_add_u32 s63, s63, {WS_FLAG + FX*128}
    s_lshl_b32 s51, {sP}, 2
    s_add_u32 s51, s51, s63
    s_mov_b64 exec, 1
    buffer_store_dword v8, v{hZ}, {SWS}, s51 offen sc1
    s_mov_b64 exec, -1""")
    mailbox("h0")
    a(f"""s_mov_b32 s54, 0
L_wo:
    s_add_u32 s50, s54, s60
    s_and_b32 s50, s50, 31
    s_lshl_b32 s51, s50, 10
    s_lshl_b32 s50, s50, 14
    s_add_u32 m0, s51, {L_WO}
    s_add_u32 s52, s50, 64
    buffer_load_dwordx4 v33, {SW}, s50 offen lds
    s_add_u32 m0, s51, {L_WO + 32768}
    s_add_u32 s54, s54, 1
    buffer_load_dwordx4 v33, {SW}, s52 offen lds
    s_waitcnt vmcnt({cfg.wo_win})
    s_cmp_lt_u32 s54, 32
    s_cbranch_scc1 L_wo
    v_lshlrev_b32 v9, 2, v0
    s_mov_b32 s56, 0
    s_mov_b64 exec, 0xffff
L_xid:
    buffer_load_dword v10, v9, {SWS}, s63 offen sc1
    s_add_u32 s56, s56, 1
    s_waitcnt vmcnt(0)
    v_cmp_eq_u32 vcc, 0, v10
    s_cmp_ge_u32 s56, {cfg.spin_max}
    s_cbranch_scc1 L_xidd
    s_cbranch_vccnz L_xid
L_xidd:
    v_cmp_ne_u32 vcc, v8, v10
    s_mov_b64 exec, -1
    s_cmp_eq_u64 vcc, 0
    s_cselect_b32 s50, {cfg.local}, 0
    v_mov_b32 v10, s50
    ds_write_b32 v6, v10 offset:16""")
    stamp(6)
    a("s_branch L_h_tail")

    a(f"""L_h1:
    v_lshlrev_b32 v1, 4, v0
    v_add_u32 v2, {L_STAT}, v1
    ds_read_b128 v[4:7], v2
    v_lshlrev_b32 v2, 2, v0
    v_add_u32 v3, {L_KEY}, v2
    ds_read_b32 v8, v3
    s_lshl_b32 s50, {sP}, 13
    s_add_u32 s63, s50, {WS_STAT}
    s_lshl_b32 s50, {sJ}, 9
    s_add_u32 s50, s50, s63
    s_lshl_b32 s51, {sP}, 9
    s_add_u32 s64, s51, {WS_CAND}
    s_lshl_b32 s51, {sJ}, 5
    s_add_u32 s51, s51, s64
    v_lshlrev_b32 v3, 3, v0
    s_waitcnt lgkmcnt(0)
    v_lshrrev_b32 v4, 16, v4
    v_lshrrev_b32 v6, 16, v6
    v_or_b32 v4, v4, v5
    v_or_b32 v5, v6, v7
    buffer_store_dwordx2 v[4:5], v3, {SWS}, s50 offen sc1
    s_mov_b64 exec, 0xff
    buffer_store_dword v8, v2, {SWS}, s51 offen sc1
    s_mov_b64 exec, -1
    s_lshl_b32 s65, {sP}, 7
    s_add_u32 s65, s65, {WS_FLAG + F2*128}
    s_waitcnt vmcnt(0)""")
    signal("s65", hZ, hONE)
    WFR = 40
    a(f"""s_cmpk_lt_u32 s2, 0xe0
    s_cbranch_scc0 L_h1_nogu
    v_mul_u32_u24 v1, 3584, v31
    v_add_u32 v34, v1, v32
    s_mul_i32 s50, s62, {64*3584}
    s_lshl_b32 s51, s61, 7
    s_add_u32 s50, s50, s51""")
    for mtx in range(2):
        srd(44, 18 + 2 * mtx, 1835008)
        for s in range(4):
            for ct in range(2):
                a(f"""s_mov_b32 m0, {L_GU + ((2*mtx + ct)*4 + s)*1024}
                      s_add_u32 s51, s50, {s*16*3584 + ct*64}
                      {'s_nop 0' if cfg.nocold & 1 else f'buffer_load_dwordx4 v34, {SAUX}, s51 offen {cfg.ntw} lds'}""")
            a(f"s_waitcnt vmcnt({cfg.gu_win})")
    a(f"""v_add_u32 v35, {L_GU}, v30
    s_waitcnt vmcnt(0)""")
    for b in range(16):
        read_w(WFR + 4 * b, 35, b * 1024)
        if b in (6, 13):
            a("s_waitcnt lgkmcnt(0)")
    a("""s_waitcnt lgkmcnt(0)
L_h1_nogu:""")
    poll("s65", 16, "f2", hZ, hT, sleep=8)
    stamp(6)
    a(f"""buffer_load_dwordx2 v[4:5], v3, {SWS}, s64 offen sc1
    s_waitcnt vmcnt(0)""")
    wavemax_u32("s66", 4, 6, 4)
    a(f"""v_cmp_eq_u32 vcc, s66, v4
    v_cndmask_b32 v4, v4, v5, vcc""")
    wavemax_u32("s67", 4, 6, 4)
    a(f"""v_mov_b32 v4, s66
    v_mov_b32 v5, s67
    v_mov_b32 v6, {L_CTR}
    ds_write_b64 v6, v[4:5] offset:8      ; mailbox
    s_cmpk_lt_u32 s2, 0xe0
    s_cbranch_scc0 L_h_tail
    v_cmp_gt_u32 vcc, 32, v0
    v_cndmask_b32 v4, v5, v4, vcc
    v_and_b32 v4, 0x7ff, v4
    v_sub_u32 v4, 0x7ff, v4
    v_lshlrev_b32 v5, 2, v4
    v_and_b32 v6, 31, v0
    v_lshlrev_b32 v6, 2, v6
    v_lshl_add_u32 v6, v4, 10, v6
    s_lshl_b32 s50, s62, 7
    buffer_load_dword v7, v5, {SWS}, s63 offen sc1
    buffer_load_dword v8, v6, {SX}, s50 offen
    v_add_u32 v2, {L_XS}, v2
    v_and_b32 v1, 1, v0
    v_lshrrev_b32 v6, 5, v0
    v_lshlrev_b32 v6, 4, v6
    v_lshl_add_u32 v6, v1, 7, v6
    v_add_u32 v6, {L_XS}, v6
    s_waitcnt vmcnt(0)
    v_and_b32 v9, 0xffff0000, v7
    v_rcp_f32 v9, v9
    v_lshlrev_b32 v7, 16, v7
    v_lshlrev_b32 v28, 16, v8
    v_and_b32 v29, 0xffff0000, v8
    v_sub_f32 v28, v28, v7
    v_sub_f32 v29, v29, v7
    v_cvt_pk_bf16_f32 v28, 0, v28
    v_cvt_pk_bf16_f32 v29, 0, v29
    v_mul_f32 v28, v28, v9
    v_mul_f32 v29, v29, v9
    v_cvt_pk_bf16_f32 v28, v28, v29
    ds_write_b32 v2, v28
    s_waitcnt lgkmcnt(0)""")
    stamp(7)
    XSF, AC0, AC1 = 120, 104, 24
    for s in range(4):
        a(f"ds_read_b128 v[{XSF+4*s}:{XSF+4*s+3}], v6 offset:{32*s}")
    a("s_waitcnt lgkmcnt(0)")
    for mtx in range(2):
        for s in range(4):
            mfma32(AC0, XSF + 4 * s, WFR + 4 * ((2 * mtx) * 4 + s), None if s == 0 else AC0)
            mfma32(AC1, XSF + 4 * s, WFR + 4 * ((2 * mtx + 1) * 4 + s), None if s == 0 else AC1)
        a(f"""v_cndmask_b32 v{8+2*mtx}, v{AC1}, v{AC0}, vcc
              v_cndmask_b32 v{9+2*mtx}, v{AC1+1}, v{AC0+1}, vcc""")
    a(f"""s_lshl_b32 s50, s2, 10
    s_add_u32 s50, s50, {WS_P1}
    v_lshlrev_b32 v1, 4, v0
    buffer_store_dwordx4 v[8:11], v1, {SWS}, s50 offen sc1
    s_lshl_b32 s65, s61, 7
    s_add_u32 s65, s65, {WS_FLAG + F3*128}
    s_waitcnt vmcnt(0)""")
    signal("s65", hZ, hONE)
    stamp(8)
    a("s_branch L_h_tail")

    a(f"""L_h2:
    s_cmpk_lt_u32 s2, 0xe0
    s_cbranch_scc0 L_h_tail""")
    mailbox("h2")
    a(f"""v_lshl_add_u32 v34, v31, 10, v32
    s_lshl_b32 s50, s61, 16
    s_lshl_b32 s51, s62, 7
    s_add_u32 s50, s50, s51""")
    srd(44, 22, 1835008)
    for s in range(4):
        for ct in range(2):
            a(f"""s_mov_b32 m0, {L_DN + (ct*4 + s)*1024}
                  s_add_u32 s51, s50, {s*16384 + ct*64}
                  {'s_nop 0' if cfg.nocold & 1 else f'buffer_load_dwordx4 v34, {SAUX}, s51 offen {cfg.ntw} lds'}""")
    a(f"""v_add_u32 v35, {L_DN}, v30
    s_waitcnt vmcnt(0)""")
    for b in range(8):
        read_w(WFR + 4 * b, 35, b * 1024)
        if b == 6:
            a("s_waitcnt lgkmcnt(0)")
    a(f"""s_waitcnt lgkmcnt(0)
    s_lshl_b32 s65, s61, 7
    s_add_u32 s65, s65, {WS_FLAG + F3*128}""")
    poll("s65", 8, "f3", hZ, hT, sleep=16)
    stamp(6)
    a(f"""s_lshl_b32 s50, s61, 13
    s_add_u32 s50, s50, {WS_P1}
    s_add_u32 s51, s50, 4096
    v_lshlrev_b32 v1, 4, v0""")
    for k in range(8):
        a(f"buffer_load_dwordx4 v[{72+4*k}:{75+4*k}], v1, {SWS}, {'s50' if k < 4 else 's51'} offen offset:{1024*(k & 3)} sc1")
    a(f"""v_lshlrev_b32 v2, 1, v0
    v_add_u32 v2, {L_XS + 256}, v2
    v_and_b32 v1, 1, v0
    v_lshrrev_b32 v6, 5, v0
    v_lshlrev_b32 v6, 4, v6
    v_lshl_add_u32 v6, v1, 7, v6
    v_add_u32 v6, {L_XS + 256}, v6
    v_cmp_gt_u32 vcc, 32, v0
    s_waitcnt vmcnt(0)""")
    for k in range(1, 8):
        a(f"""v_pk_add_f32 v[72:73], v[72:73], v[{72+4*k}:{73+4*k}]
              v_pk_add_f32 v[74:75], v[74:75], v[{74+4*k}:{75+4*k}]""")
    for i in range(4):
        rnd(72 + i, f"v{72+i}")
    a(f"""v_mul_f32 v76, {f32(-LOG2E)}, v72
    v_mul_f32 v77, {f32(-LOG2E)}, v73
    v_exp_f32 v76, v76
    v_exp_f32 v77, v77
    v_add_f32 v76, 1.0, v76
    v_add_f32 v77, 1.0, v77
    v_rcp_f32 v76, v76
    v_rcp_f32 v77, v77
    v_mul_f32 v76, v76, v72
    v_mul_f32 v77, v77, v73
    v_cvt_pk_bf16_f32 v76, 0, v76
    v_cvt_pk_bf16_f32 v77, 0, v77
    v_mul_f32 v76, v76, v74
    v_mul_f32 v77, v77, v75
    v_cvt_pk_bf16_f32 v76, v76, v77
    ds_write_b16 v2, v76
    ds_write_b16_d16_hi v2, v76 offset:128
    s_waitcnt lgkmcnt(0)""")
    for s in range(4):
        a(f"ds_read_b128 v[{XSF+4*s}:{XSF+4*s+3}], v6 offset:{32*s}")
    a("s_waitcnt lgkmcnt(0)")
    for s in range(4):
        mfma32(AC0, XSF + 4 * s, WFR + 4 * s, None if s == 0 else AC0)
        mfma32(AC1, XSF + 4 * s, WFR + 4 * (4 + s), None if s == 0 else AC1)
    a(f"""s_lshl_b32 s50, s61, 11
    s_lshl_b32 s51, s62, 8
    s_add_u32 s50, s50, s51
    s_add_u32 s50, s50, {WS_P2}
    s_add_u32 s51, s50, {28*2048}
    s_lshl_b32 s65, s62, 7
    s_add_u32 s65, s65, {WS_FLAG + F4*128}
    v_lshlrev_b32 v1, 2, v0
    v_cndmask_b32 v8, v{AC1}, v{AC0}, vcc
    v_cndmask_b32 v9, v{AC1+1}, v{AC0+1}, vcc
    buffer_store_dword v8, v1, {SWS}, s50 offen sc1
    buffer_store_dword v9, v1, {SWS}, s51 offen sc1
    s_waitcnt vmcnt(0)""")
    signal("s65", hZ, hONE)
    stamp(8)
    a("s_branch L_h_tail")

    def key_tok(dst, key):
        a(f"s_and_b32 {dst}, {key}, 0x7ff\ns_sub_u32 {dst}, 0x7ff, {dst}")

    a("L_h3:")
    mailbox("h3")
    a(f"""s_lshl_b32 s65, s59, 7
    s_add_u32 s65, s65, {WS_FLAG + F4*128}
    s_mov_b32 s68, 0
    v_lshlrev_b32 v3, 2, v0
L_h3_sel:""")
    key_tok("s50", "s66")
    a(f"""s_lshr_b32 s50, s50, 6
    s_cmp_lg_u32 s50, s60
    s_cbranch_scc1 L_h3_next""")
    poll("s65", 28, "f4", hZ, hT, sleep=16)
    stamp(6)
    a(f"""s_mul_i32 s50, s68, {28*2048}
    s_lshl_b32 s51, s59, 8
    s_add_u32 s50, s50, s51
    s_add_u32 s50, s50, {WS_P2}""")
    for k in range(28):
        a(f"buffer_load_dword v{40+k}, v3, {SWS}, s50 offen offset:{2048*(k & 1)} sc1")
        if k & 1:
            a("s_add_u32 s50, s50, 4096")
    a(f"""s_and_b32 s51, s66, 0xffff0000
    s_xor_b32 s52, s51, 0x80000000
    s_xor_b32 s53, s51, 0xffff0000
    s_bitcmp1_b32 s51, 31
    s_cselect_b32 s51, s52, s53
    v_mov_b32 v4, {f32(-LOG2E)}
    v_mul_f32 v4, s51, v4
    v_exp_f32 v4, v4
    s_lshl_b32 s51, s68, 8
    s_add_u32 s51, s51, {L_Y}
    v_add_u32 v7, s51, v3
    v_add_f32 v4, 1.0, v4
    v_rcp_f32 v4, v4
    s_waitcnt vmcnt(0)
    v_cvt_pk_bf16_f32 v4, 0, v4""")
    for k in range(1, 14):
        a(f"v_pk_add_f32 v[40:41], v[40:41], v[{40+2*k}:{41+2*k}]")
    a(f"""v_add_f32 v40, v40, v41
    v_cvt_pk_bf16_f32 v40, 0, v40
    v_mul_f32 v40, v40, v4
    v_cvt_pk_bf16_f32 v40, 0, v40
    ds_write_b32 v7, v40
L_h3_next:
    s_mov_b32 s66, s67
    s_add_u32 s68, s68, 1
    s_cmp_lt_u32 s68, 2
    s_cbranch_scc1 L_h3_sel""")
    stamp(8)

    a(f"""L_h_tail:
    s_setprio 0
    s_waitcnt vmcnt(0) lgkmcnt(0)
    s_barrier                             ; T1""")
    stamp(9)
    a(f"""v_mov_b32 v6, {L_CTR}
    ds_read_b64 v[4:5], v6 offset:8
    v_and_b32 v1, 7, v0
    v_lshlrev_b32 v7, 5, v1
    v_add_u32 v7, {L_Y}, v7
    s_mov_b32 s68, 0
    s_waitcnt lgkmcnt(0)
    v_readfirstlane_b32 s66, v4
    v_readfirstlane_b32 s67, v5
L_ht_sel:""")
    key_tok("s50", "s66")
    a(f"""s_lshr_b32 s51, s50, 6
    s_cmp_lg_u32 s51, s60
    s_cbranch_scc1 L_ht_next
    s_and_b32 s50, s50, 63
    ds_read_b128 v[8:11], v7
    ds_read_b128 v[12:15], v7 offset:16
    s_sub_u32 s51, s50, 8
    v_cmp_eq_u32 s[52:53], s50, v22
    v_cmp_eq_u32 s[54:55], s51, v22
    s_waitcnt lgkmcnt(0)""")
    for q in range(2):
        for i in range(4):
            r = hXN + 4 * q + i
            a(f"""v_lshlrev_b32 v28, 16, v{r}
                  v_and_b32 v29, 0xffff0000, v{r}
                  v_add_f32 v28, v28, v{8+2*i}
                  v_add_f32 v29, v29, v{9+2*i}
                  v_cvt_pk_bf16_f32 v28, v28, v29
                  v_cndmask_b32 v{r}, v{r}, v28, s[{52+2*q}:{53+2*q}]""")
    a(f"""L_ht_next:
    v_add_u32 v7, 256, v7
    s_mov_b32 s66, s67
    s_add_u32 s68, s68, 1
    s_cmp_lt_u32 s68, 2
    s_cbranch_scc1 L_ht_sel""")
    gate(0, cfg.gatepos)
    XU = 40
    srd(44, 24, 2097152)
    def stage_setup(sw_sgpr):
        a(f"""s_lshr_b32 s30, {sP}, 3
              s_lshl_b32 s31, {sJ}, 1
              s_add_u32 s30, s30, s31
              s_lshl_b32 s30, s30, 16
              s_lshl_b32 s31, {sw_sgpr}, 10
              s_add_u32 s68, s30, s31
              s_add_u32 s68, s68, {WS_OF}
              s_add_u32 s69, s31, {L_OST}""")

    def stage_o(addr):
        def grp(g):
            for tt in range(2):
                off = g * 8192 + tt * 32768
                a(f"""s_add_u32 m0, s69, {off}
                      s_add_u32 s30, s68, {off}
                      buffer_load_dwordx4 v{addr}, {SWS}, s30 offen sc1 lds""")
        grp(0)
        grp(1)
        for g in range(4):
            a(f"""s_waitcnt vmcnt({2 if g < 3 else 0})
            s_barrier                             ; T4{'abcd'[g]}""")
            if g < 2:
                grp(g + 2)

    stage_setup(sT)
    a(f"""v_and_b32 v2, 7, v22
    v_xor_b32 v2, v1, v2
    v_lshlrev_b32 v3, 7, v22
    v_lshl_add_u32 v4, v2, 4, v3
    v_lshlrev_b32 v5, 4, v0
    s_barrier                             ; T2""")
    gate(cfg.gatepos, 8)
    a("s_barrier                             ; T3")
    stage_o(5)
    for i in range(8):
        a(f"v_lshlrev_b32 v{XU+2*i}, 16, v{hXP+i}\nv_and_b32 v{XU+2*i+1}, 0xffff0000, v{hXP+i}")
    a(f"""s_barrier                             ; T5
    ds_read_b128 v[8:11], v4 offset:{L_SST}
    ds_read_b128 v[12:15], v4 offset:{L_SST + 1024}""")
    for q in range(2):
        a(f"s_waitcnt lgkmcnt({1-q})")
        for i in range(4):
            e = 8 * q + 2 * i
            a(f"""v_lshlrev_b32 v28, 16, v{8+4*q+i}
                  v_and_b32 v29, 0xffff0000, v{8+4*q+i}
                  v_fma_f32 v28, v28, v{hG+e}, v{XU+e}
                  v_fma_f32 v29, v29, v{hG+e+1}, v{XU+e+1}
                  v_cvt_pk_bf16_f32 v{8+4*q+i}, v28, v29""")
        a(f"buffer_store_dwordx4 v[{8+4*q}:{11+4*q}], v{hOA+q}, {SAUX}, 0 offen")
    stamp(14)
    if cfg.stamps:
        a("s_waitcnt vmcnt(0)")
    stamp(15)
    if cfg.probe and len(cfg.probe) > 3:
        srd(44, 26, 256)
        a(f"""v_mov_b32 v0, 0
        v_mov_b32 v1, s98
        s_not_b32 s99, s98
        v_mov_b32 v2, s99
        s_getreg_b32 s30, hwreg(HW_REG_XCC_ID, 0, 4)
        s_lshl_b32 s30, 1, s30
        s_and_b32 s30, s30, {cfg.probe[4] if len(cfg.probe) > 4 else 255}
        s_mov_b64 exec, 1
        s_cbranch_scc0 L_pr_nomax
        buffer_atomic_umax v1, v0, {SAUX}, 0 offen offset:32 sc1
    L_pr_nomax:
        buffer_atomic_umax v2, v0, {SAUX}, 0 offen offset:160 sc1
        s_waitcnt vmcnt(0)
    L_probe0:
        s_sleep 4
        s_memrealtime s[100:101]
        s_waitcnt lgkmcnt(0)
        s_sub_u32 s100, s100, s96
        s_cmp_lt_u32 s100, {cfg.probe[1] - 500}
        s_cbranch_scc1 L_probe0
        buffer_load_dword v1, v0, {SAUX}, 0 offen offset:32 sc1
        buffer_load_dword v2, v0, {SAUX}, 0 offen offset:160 sc1
        s_waitcnt vmcnt(0)
        v_readfirstlane_b32 s98, v1
        v_readfirstlane_b32 s99, v2
        s_nop 1
        s_not_b32 s99, s99
        s_sub_u32 s98, s98, s99
        s_add_u32 s98, s98, s96""")
    if cfg.probe:
        a(f"""s_sub_u32 s98, s98, s96
        s_mul_i32 s98, s98, {cfg.probe[2]}
        s_add_u32 s98, s98, {cfg.probe[1]}
        s_min_u32 s98, s98, 100000
    L_probe:
        s_sleep 4
        s_memrealtime s[100:101]
        s_waitcnt lgkmcnt(0)
        s_sub_u32 s100, s100, s96
        s_cmp_lt_u32 s100, s98
        s_cbranch_scc1 L_probe""")
    dump_stamps()
    a("s_endpgm")

    vXA, vWA = 144, 148
    vM, vRS, vDEN = 149, 150, 151
    CS = 152
    MF = 156
    t = 160
    vLANE, vL16 = 166, 167

    class Lg:
        def __init__(self):
            self.q = []

        def rd(self, tag, text):
            for ln in text.strip().split("\n"):
                if len(self.q) >= 15:
                    a("s_waitcnt lgkmcnt(9)")
                    self.q = self.q[-9:]
                a(ln)
                self.q.append(tag)

        def wait(self, *tags):
            last = max((i for i, x in enumerate(self.q) if x in tags), default=-1)
            if last < 0:
                return
            n = len(self.q) - 1 - last
            a(f"s_waitcnt lgkmcnt({min(n, 15)})")
            self.q = self.q[last + 1:]

    def trs(dst, addr, off, second=256):
        return (f"ds_read_b64_tr_b16 v[{dst}:{dst+1}], v{addr} offset:{off}\n"
                f"ds_read_b64_tr_b16 v[{dst+2}:{dst+3}], v{addr} offset:{off + second}")

    a(f"""L_compute:
    v_mov_b32 v{vLANE}, v0
    v_lshlrev_b32 v{vL16}, 4, v0
    v_and_b32 v1, 31, v0
    v_lshrrev_b32 v2, 5, v0              ; half
    v_bfe_u32 v3, v0, 1, 3
    v_xor_b32 v3, v3, v2
    s_lshl_b32 s30, {sT}, 12
    s_add_u32 s30, s30, {L_RING}
    v_lshl_add_u32 v4, v1, 7, s30""")
    for s in range(4):
        a(f"v_xor_b32 v5, {2*s}, v3\nv_lshl_add_u32 v{vXA+s}, v5, 4, v4")
    tr_addr(vWA, 0, 3, 4)
    a(f"""v_lshrrev_b32 v3, 2, v0
    v_xor_b32 v3, v3, v0
    v_and_b32 v3, 4, v3
    v_cmp_eq_u32 vcc, 0, v3
    v_mov_b32 v4, {sONE}""")
    for i in range(4):
        a(f"v_cndmask_b32 v{CS+i}, 0, v4, vcc")
    a("s_waitcnt lgkmcnt(0)")
    if cfg.stamps:
        a("s_mov_b32 s80, s78")
    srd(40, 28, WS_SIZE)
    SA, SB, OO, QQ, RING = 0, 16, 32, 96, 112
    vIDX = 160
    vC = 154
    sHH, sKQ = "s58", sT
    sVM = "s[62:63]"

    def slot(s):
        b = RING + 12 * s
        return dict(K=b, V=[b + 4, b + 8])

    def const_rows(tmp):
        return [f"v_and_b32 v{tmp}, 27, v{vLANE}",
                f"v_cmp_eq_u32 vcc, 16, v{tmp}",
                f"v_mov_b32 v{tmp}, {sONE}",
                f"v_cndmask_b32 v{vC}, 0, v{tmp}, vcc\nv_cndmask_b32 v{vC+1}, 0, v{tmp}, vcc"]

    def attn_init_b(slots):
        for s in slots:
            for i in range(0, 8, 2):
                r = slot(s)["V"][0] + i
                if r != vC:
                    a(f"v_mov_b64 v[{r}:{r+1}], v[{vC}:{vC+1}]")

    a(f"""s_lshr_b32 {sHH}, {sWV}, 3
    s_mov_b32 s62, 0xffff
    s_mov_b32 s63, 0xffff
    s_lshl_b32 s64, {sP}, 1
    s_add_u32 s64, s64, {sHH}
    s_lshl_b32 s64, s64, 17
    s_lshl_b32 s61, {sJ}, 13
    s_lshl_b32 s31, {sKQ}, 11
    s_add_u32 s61, s61, s31
    s_add_u32 s61, s61, 8192
    s_and_b32 s61, s61, 0x1ffff
    s_lshl_b32 s30, {sHH}, 13
    s_add_u32 s71, s30, s31
    s_lshl_b32 s31, {sHH}, 12""")
    for i in range(4):
        a(f"""s_add_u32 s30, {sKQ}, {1 + i}
              s_and_b32 s30, s30, 3
              s_lshl_b32 s30, s30, 10
              s_add_u32 s{72+i}, s30, s31""")
    a(f"""s_cmp_ge_u32 {sWV}, 8
    s_cbranch_scc1 L_bwave""")

    XB, WK, WV, AK, AV, RB, ASX, SQ = (0, 16), 32, 48, 64, 80, 96, 112, 116
    SFK, SFV, RF, OF_ = 128, 132, 136, 140
    vKG, vVG = 164, 165
    EFA, vEA = RB, vM
    a(f"""v_and_b32 v1, 3, v0
    v_mov_b32 v5, {L_ZERO}
    v_mov_b32 v6, {L_ONES}
    v_mov_b32 v7, {L_WR}
    v_cmp_eq_u32 s[52:53], 0, v1
    v_cmp_eq_u32 s[54:55], 1, v1
    v_cndmask_b32 v6, v5, v6, s[52:53]
    v_cndmask_b32 v6, v6, v7, s[54:55]
    v_cndmask_b32 v6, v5, v6, vcc
    v_lshl_add_u32 v{vEA}, v2, 4, v6
    v_cmp_gt_u32 vcc, 32, v{vLANE}
    v_and_b32 v{t}, 0x33, v{vLANE}
    v_bfe_u32 v{t+1}, v{vLANE}, 2, 1
    v_lshl_add_u32 v{t}, v{t+1}, 3, v{t}
    v_bfe_u32 v{t+1}, v{vLANE}, 3, 1
    v_lshl_add_u32 v{t}, v{t+1}, 2, v{t}
    v_lshlrev_b32 v{vKG}, 4, v{t}
    v_and_b32 v{t}, 0x2f, v{vLANE}
    v_lshlrev_b32 v{t}, 4, v{t}
    v_bfe_u32 v{t+1}, v{vLANE}, 4, 1
    v_lshl_add_u32 v{vVG}, v{t+1}, 17, v{t}
    v_cndmask_b32 v{OF_}, 0, v4, vcc
    v_cndmask_b32 v{OF_+1}, 0, v4, vcc
    v_mov_b32 v{OF_+2}, 0
    v_mov_b32 v{OF_+3}, 0
    v_mov_b32 v{RF+2}, 0
    v_mov_b32 v{RF+3}, 0
    v_add_u32 v{t+3}, {L_SFR}, v{vL16}
    v_and_b32 v1, 31, v{vLANE}
    s_lshl_b32 s30, {sT}, 5
    v_add_lshl_u32 v{CS}, v1, s30, 3
    v_add_u32 v{CS}, {L_STAT}, v{CS}
    v_add_u32 v5, {L_WR}, v{vL16}
    v_mov_b32 v8, v4
    v_mov_b32 v9, v4
    v_mov_b32 v10, v4
    v_mov_b32 v11, v4
    s_lshl_b32 s50, {sP}, 18
    s_lshl_b32 s30, {sJ}, 13
    s_add_u32 s50, s50, s30
    s_lshl_b32 s49, {sT}, 11
    s_add_u32 s50, s50, s49
    s_add_u32 s51, s50, 0x20000
    s_mov_b32 s52, 0xaaaaaaaa
    s_mov_b32 s53, 0xaaaaaaaa
    s_mov_b32 s54, 0xcccccccc
    s_mov_b32 s55, 0xcccccccc
    """)
    for ins in const_rows(6):
        a(ins)
    a("""s_barrier                             ; Ba
    ds_read_b128 v[12:15], v5""")
    lg = Lg()

    def rdw(n, s, which):
        if cfg.x1 & 4 and n > 0:
            return
        if which == 0:
            lg.rd(("k", n, s), trs(WK + 4 * s, vWA, L_WK + n * 4096 + s * 1024))
        else:
            lg.rd(("v", n, s), trs(WV + 4 * s, vWA, L_WV + n * 4096 + s * 1024))

    def rdx(n, s):
        r = XB[n & 1] + 4 * s
        off = (n % 5) * 16384 - (16 if n == 4 else 0)
        lg.rd(("x", n, s), f"ds_read_b128 v[{r}:{r+3}], v{vXA+s} offset:{off}")

    def rde(n, s):
        lg.rd(("e", n, s), f"ds_read_b128 v[{EFA+4*s}:{EFA+4*s+3}], v{vEA} offset:{(4*n + s)*32}")

    def bigk(n, s):
        lg.wait(("k", n, s), ("x", n, s))
        if cfg.x1 & 8 and 0 < n < 7:
            return
        mfma32(AK, WK + 4 * s, XB[n & 1] + 4 * s, None if (n, s) == (0, 0) else AK)

    def bigv(n, s):
        lg.wait(("v", n, s), ("x", n, s))
        if cfg.x1 & 8 and 0 < n < 7:
            return
        mfma32(AV, XB[n & 1] + 4 * s, WV + 4 * s, None if (n, s) == (0, 0) else AV)

    def smalls(n, fill=()):
        fill = list(fill)
        lg.wait(*[(k_, n, s) for s in range(4) for k_ in "xe"])
        if cfg.x1 & 2 and n not in (0, 7):
            for f_ in fill: a(f_)
            return
        for s in range(4):
            mfma16(ASX, EFA + 4 * s, XB[n & 1] + 4 * s, None if (n, s) == (0, 0) else ASX)
            if fill:
                a(fill.pop(0))
        for i in range(8):
            d = SQ + 4 * (i % 3)
            r = XB[n & 1] + 2 * i
            c = "0" if (n == 0 and i < 3) else f"v[{d}:{d+3}]"
            a(f"v_mfma_f32_4x4x4_16b_bf16 v[{d}:{d+3}], v[{r}:{r+1}], v[{r}:{r+1}], {c}")
        assert not fill

    def head(n):
        rdx(n, 0); rdx(n, 1)
        if n:
            bigk(n - 1, 2)
        rdx(n, 2); rdx(n, 3); rde(n, 0); rde(n, 1)
        if n:
            bigv(n - 1, 2)
        rdw(n, 2, 0); rdw(n, 2, 1)
        if n:
            bigk(n - 1, 3)
        rdw(n, 3, 0); rde(n, 2); rde(n, 3)
        if n:
            bigv(n - 1, 3)
        rdw(n, 3, 1)

    for s in range(2):
        rdw(0, s, 0); rdw(0, s, 1)
    a("s_waitcnt lgkmcnt(8)")
    mfma16(16, 8, 12)
    for r in (8, 4, 2, 1):
        a(f"v_add_f32_dpp v16, v16, v16 row_ror:{r} row_mask:0xf bank_mask:0xf")
    a("v_readfirstlane_b32 s70, v16")
    for n in range(7):
        a(f"s_barrier                             ; B{n}")
        head(n)
        for s in range(2):
            bigk(n, s)
            rdw(n + 1, s, 0)
            bigv(n, s)
            rdw(n + 1, s, 1)
        fill = []
        if n == 3:
            fill = [f"v_add_u32 v{vXA+s}, 16, v{vXA+s}" for s in range(4)]
        if n == 4:
            fill = [f"v_add_u32 v{vXA+s}, -16, v{vXA+s}" for s in range(4)]
        smalls(n, fill)
    a("s_barrier                             ; B7")
    stamp(3)
    head(7)
    lg.rd("sf", f"ds_read_b128 v[{SFK}:{SFK+3}], v{t+3}\nds_read_b128 v[{SFV}:{SFV+3}], v{t+3} offset:1024")
    smalls(7)
    PK = XB[0]
    groups = [
        [],
        [f"v_mul_f32 v{t}, {f32(1/512)}, v{ASX}            ; mean"] +
        [f"v_pk_add_f32 v[{SQ+i}:{SQ+i+1}], v[{SQ+i}:{SQ+i+1}], v[{SQ+4+i}:{SQ+5+i}]" for i in (0, 2)] +
        [f"v_pk_add_f32 v[{SQ+i}:{SQ+i+1}], v[{SQ+i}:{SQ+i+1}], v[{SQ+8+i}:{SQ+9+i}]" for i in (0, 2)],
        [f"v_cvt_pk_bf16_f32 v{MF}, -v{t}, -v{t}",
         f"v_cndmask_b32 v{SQ}, v{SQ}, v{SQ+1}, s[52:53]",
         f"v_cndmask_b32 v{SQ+2}, v{SQ+2}, v{SQ+3}, s[52:53]",
         f"v_mov_b32 v{MF+1}, v{MF}",
         f"v_cndmask_b32 v{SQ}, v{SQ}, v{SQ+2}, s[54:55]",
         f"v_mov_b32 v{t+1}, v{SQ}"],
        [f"v_mov_b32 v{MF+2}, v{MF}",
         f"v_mov_b32 v{MF+3}, v{MF}",
         f"v_permlane32_swap_b32 v{t+1}, v{SQ}",
         f"v_add_f32 v{t+1}, v{t+1}, v{SQ}",
         f"v_mul_f32 v{t+1}, {f32(1/512)}, v{t+1}"],
        [f"v_fma_f32 v{t+1}, -v{t}, v{t}, v{t+1}         ; variance",
         f"v_max_f32 v{t+1}, 0, v{t+1}",
         f"v_cvt_pk_bf16_f32 v{t+1}, 0, v{t+1}",
         f"v_add_f32 v{t+1}, {f32(1e-5)}, v{t+1}",
         f"v_cvt_pk_bf16_f32 v{t+1}, 0, v{t+1}",
         f"v_sqrt_f32 v{t+1}, v{t+1}"],
        [f"v_cvt_pk_bf16_f32 v{vDEN}, 0, v{t+1}",
         f"v_rcp_f32 v{vRS}, v{vDEN}",
         f"v_cvt_pk_bf16_f32 v{vM}, 0, v{t}",
         f"v_and_b32 v{t}, 0xffff0000, v{vRS}",
         f"v_sub_f32 v{t+1}, v{vRS}, v{t}"],
        [f"v_and_b32 v{t+2}, 0xffff0000, v{t+1}",
         f"v_sub_f32 v{t+1}, v{t+1}, v{t+2}",
         f"v_lshrrev_b32 v{t}, 16, v{t}",
         f"v_or_b32 v{RF}, v{t}, v{t+2}",
         f"v_lshrrev_b32 v{RF+1}, 16, v{t+1}",
         f"v_mul_f32 v{AK}, v{vRS}, v{AK}"],
        [f"ds_write2_b32 v{CS}, v{vM}, v{vDEN} offset1:1"] + [f"v_mul_f32 v{AK+i}, v{vRS}, v{AK+i}" for i in range(1, 7)],
        [f"v_mul_f32 v{AK+7}, v{vRS}, v{AK+7}"] +
        [f"v_cvt_pk_bf16_f32 v{PK+i}, v{AK+2*i}, v{AK+2*i+1}" for i in range(4)] +
        [f"buffer_store_dwordx4 v[{PK}:{PK+3}], v{vKG}, {SWS}, s50 offen sc1"],
        [f"v_mul_f32 v{AK+i}, v{vRS}, v{AK+i}" for i in range(8, 14)],
        [f"v_mul_f32 v{AK+i}, v{vRS}, v{AK+i}" for i in range(14, 16)] +
        [f"v_cvt_pk_bf16_f32 v{PK+i}, v{AK+2*i}, v{AK+2*i+1}" for i in range(4, 8)] +
        [f"buffer_store_dwordx4 v[{PK+4}:{PK+7}], v{vKG}, {SWS}, s51 offen sc1"],
    ]

    def augk():
        lg.wait("sf")
        mfma32(AK, SFK, MF, AK)
    seq = [lambda s=s: bigk(7, s) for s in range(4)] + [augk] + [lambda s=s: bigv(7, s) for s in range(3)]
    seq += [lambda: mfma32(RB, RF, OF_), lambda: bigv(7, 3), lambda: mfma32(AV, MF, SFV, AV)]
    assert len(seq) == len(groups)
    for m, g in zip(seq, groups):
        m()
        for ins in g:
            a(ins)
    for hf in range(2):
        for i in range(4 * hf, 4 * hf + 4):
            a(f"v_pk_mul_f32 v[{AV+2*i}:{AV+2*i+1}], v[{RB+2*i}:{RB+2*i+1}], v[{AV+2*i}:{AV+2*i+1}]")
        for i in range(4 * hf, 4 * hf + 4):
            a(f"v_cvt_pk_bf16_f32 v{PK+8+i}, v{AV+2*i}, v{AV+2*i+1}")
        a(f"buffer_store_dwordx4 v[{PK+8+4*hf}:{PK+11+4*hf}], v{vVG}, {SWS}, s50 offen offset:{1024 + 256*hf} sc1")
    stamp(2)

    def drain_signal():
        a(f"""s_waitcnt vmcnt(0)
        s_mov_b64 exec, 1
        ds_add_rtn_u32 v{t+3}, v{t+2}, v{t+4}
        s_mov_b64 exec, -1
        s_waitcnt lgkmcnt(0)
        v_readfirstlane_b32 s59, v{t+3}
        s_cmp_lg_u32 s59, 3
        s_cbranch_scc1 L_a_nosig""")
        signal("s57", t + 1, t + 4)
        stamp(1)
        a("L_a_nosig:")

    a(f"""s_waitcnt lgkmcnt(0)
    s_setprio 1
    s_barrier                             ; B8""")
    stamp(4)
    a(f"""v_and_b32 v{t}, 31, v{vLANE}
    v_add_u32 v28, s49, v{vKG}
    v_and_b32 v29, 0x3ff, v{vVG}
    v_lshrrev_b32 v30, 4, v{vVG}
    v_and_b32 v30, 0x2000, v30
    v_add3_u32 v29, v29, v30, s49
    v_mov_b32 v{t+1}, 0
    v_mov_b32 v{t+2}, {L_CTR}
    v_mov_b32 v{t+4}, 1
    s_lshl_b32 s57, {sP}, 7
    s_add_u32 s57, s57, {WS_FLAG + F1*128}
    s_lshl_b32 s30, {sJ}, 7
    s_lshl_b32 s31, {sT}, 5
    s_add_u32 s30, s30, s31
    s_sub_u32 s53, 0x7ff, s30""")
    AR = ASX + 1
    a(f"""v_fma_f32 v{AR}, -v{vM}, s70, v{AR}
    v_mul_f32 v{AR}, v{vRS}, v{AR}
    v_cvt_pk_bf16_f32 v{AR}, 0, v{AR}
    v_ashrrev_i32 v{AR+1}, 31, v{AR}
    v_or_b32 v{AR+1}, 0x80000000, v{AR+1}
    v_xor_b32 v{AR}, v{AR}, v{AR+1}
    v_and_b32 v{AR}, 0xffff0000, v{AR}
    v_sub_u32 v{AR+1}, s53, v{t}
    v_or_b32 v{AR}, v{AR}, v{AR+1}""")
    wavemax_u32("s50", AR, AR + 1, 2)
    a(f"""v_cmp_eq_u32 vcc, s50, v{AR}
    v_cndmask_b32 v{AR}, v{AR}, v{t+1}, vcc""")
    wavemax_u32("s51", AR, AR + 1, 2)
    a(f"""s_lshl_b32 s30, {sT}, 3
    s_add_u32 s30, s30, {L_KEY}
    v_mov_b32 v16, s50
    v_mov_b32 v17, s51
    v_mov_b32 v18, s30
    ds_write_b64 v18, v[16:17]
    ds_write_b128 v28, v[{PK}:{PK+3}] offset:{L_OWNKV}
    ds_write_b128 v28, v[{PK+4}:{PK+7}] offset:{L_OWNKV + 8192}
    ds_write_b128 v29, v[{PK+8}:{PK+11}] offset:{L_OWNKV + 1024}
    ds_write_b128 v29, v[{PK+12}:{PK+15}] offset:{L_OWNKV + 1280}""")
    stamp(14)
    a("s_setprio 3")
    drain_signal()
    a("s_setprio 1")
    for r in range(OO, OO + 64, 2):
        a(f"v_mov_b64 v[{r}:{r+1}], 0")
    attn_init_b((0,))
    stamp(8)
    a("s_branch L_attn_pre")

    XF, WF, EF, ACC, ASK, ASV, AR = 0, 80, 96, 112, 128, 132, 136
    a(f"""L_bwave:
    s_cmp_lg_u32 {sT}, 0
    s_cbranch_scc1 L_b_noinit""")
    a(f"""v_mov_b32 v5, v4
    v_mov_b32 v6, v4
    v_mov_b32 v7, v4
    v_add_u32 v1, {L_ZERO}, v{vL16}
    v_mov_b32 v8, 0
    v_mov_b32 v9, 0
    v_mov_b32 v10, 0
    v_mov_b32 v11, 0
    ds_write_b128 v1, v[4:7] offset:{L_ONES - L_ZERO}
    ds_write_b128 v1, v[8:11]
    ds_write_b128 v1, v[8:11] offset:192
    s_waitcnt lgkmcnt(0)
L_b_noinit:""")
    if cfg.cpf:
        a(f"""s_cmp_lg_u32 {sT}, 2
        s_cbranch_scc1 L_b_nocpf
        s_getpc_b64 s[50:51]
    L_pc:
        s_lshr_b32 s30, s2, 3
        s_lshl_b32 s30, s30, 10
        v_lshl_add_u32 v1, v{vLANE}, 7, s30
        s_sub_u32 s50, s50, L_pc-{NAME}_kernel
        s_subb_u32 s51, s51, 0
        v_cmp_gt_u32 s[54:55], 8, v{vLANE}
        v_cmp_gt_u32 vcc, L_exit-{NAME}_kernel, v1
        v_mov_b32 v7, s51
        s_and_b64 s[54:55], s[54:55], vcc
        v_add_co_u32 v6, vcc, s50, v1
        v_addc_co_u32 v7, vcc, 0, v7, vcc
        s_and_saveexec_b64 s[30:31], s[54:55]
        s_cbranch_execz L_b_cpf0
        global_load_dword v{AR}, v[6:7], off
    L_b_cpf0:
        s_mov_b64 exec, -1
    L_b_nocpf:""")
    srd(44, 26, 256)
    a(f"""s_lshl_b32 s52, s2, 2
    s_add_u32 s52, s52, {sT}
    s_cmp_lg_u32 s52, 1
    s_cbranch_scc1 L_b_noclear
    v_lshlrev_b32 v1, 7, v{vLANE}
    s_mov_b32 s30, {WS_FLAG}
    s_mov_b32 s31, {WS_FLAG + 64*128}
    v_mov_b32 v8, 0
    v_mov_b32 v9, 0
    v_mov_b32 v10, 0
    v_mov_b32 v11, 0
    buffer_store_dword v8, v1, {SWS}, s30 offen sc1
    buffer_store_dwordx4 v[8:11], v1, {SWS}, s31 offen sc1
    buffer_store_dwordx4 v[8:11], v1, {SWS}, s31 offen offset:16 sc1
    buffer_store_dwordx4 v[8:11], v1, {SWS}, s31 offen offset:32 sc1
    buffer_store_dwordx4 v[8:11], v1, {SWS}, s31 offen offset:48 sc1
L_b_noclear:""")
    a(f"""s_lshl_b32 s30, {sT}, 10
    v_add_u32 v{t}, s30, v{vWA}
    v_cmp_gt_u32 vcc, 32, v{vLANE}
    v_and_b32 v{EF}, 31, v{vLANE}
    v_lshrrev_b32 v{EF+1}, 5, v{vLANE}
    v_lshlrev_b32 v{EF+1}, 10, v{EF+1}
    v_lshl_add_u32 v{EF}, v{EF}, 4, v{EF+1}
    s_lshr_b32 s30, {sT}, 1
    s_lshl_b32 s30, s30, 9
    s_and_b32 s31, {sT}, 1
    s_lshl_b32 s31, s31, 3
    s_add_u32 s30, s30, s31
    s_add_u32 s30, s30, {L_SFR}
    v_and_b32 v{vM}, 0x1ff, v{EF}
    v_add_u32 v{vM}, s30, v{vM}
    v_add_u32 v{EF}, s30, v{EF}
    s_lshl_b32 s30, {sT}, 5""")
    for s in range(4):
        a(f"v_xor_b32 v{vXA+s}, s30, v{vXA+s}")
    a("s_barrier                             ; Ba")

    def ssum(n):
        read_w(WF, t, L_WK + n * 4096)
        read_w(WF + 4, t, L_WV + n * 4096)

    def ssum2(n):
        mfma16(ASK, CS, WF, None if n == 0 else ASK)
        mfma16(ASV, CS, WF + 4, None if n == 0 else ASV)

    ssum(0)
    a("s_waitcnt lgkmcnt(0)")
    ssum2(0)
    for n in range(7):
        a(f"s_barrier                             ; B{n}")
        ssum(n + 1)
        if n < 5 and not cfg.x1 & 1:
            for s in range(4):
                r = XF + 20 * s + 4 * n
                if n < 4:
                    a(f"ds_read_b128 v[{r}:{r+3}], v{vXA+s} offset:{n*16384}")
                else:
                    a(f"v_add_u32 v{t+2}, 65536, v{vXA+s}\nds_read_b128 v[{r}:{r+3}], v{t+2}")
        if n == 0:
            a(f"""s_cmp_lg_u32 s52, 1
            s_cbranch_scc1 L_b_nosig
            s_waitcnt vmcnt(0)
            v_mov_b32 v{t+2}, 0
            v_mov_b32 v{t+3}, 1
            s_mov_b64 exec, 1
            buffer_store_dword v{t+3}, v{t+2}, {SAUX}, 0 offen sc1
            s_mov_b64 exec, -1
        L_b_nosig:""")
        if n == 4:
            a(f"""s_cmp_lg_u32 {sT}, 0
            s_cbranch_scc1 L_b_noclr
            v_mov_b32 v{t+2}, 0
            s_mov_b64 exec, 1
            buffer_load_dword v{t+5}, v{t+2}, {SAUX}, 0 offen sc1
            s_mov_b64 exec, -1
        L_b_noclr:""")
        if n == 6:
            a("s_setprio 2")
        a("s_waitcnt lgkmcnt(0)")
        ssum2(n + 1)
    a(f"v_cndmask_b32 v{EF+1}, v{ASV}, v{ASK}, vcc")
    split3(EF + 2, EF + 1, t + 2)
    a(f"""ds_write_b64 v{EF}, v[{EF+2}:{EF+3}]
    s_cmp_lg_u32 {sT}, 0
    s_cbranch_scc1 L_b_clrd
    s_waitcnt vmcnt(0)
    v_readfirstlane_b32 s30, v{t+5}
    v_mov_b32 v{t+2}, 0
    s_cmp_lg_u32 s30, 0
    s_cbranch_scc1 L_b_clrd""")
    poll("0", 1, "clr", t + 2, t + 5, sleep=1, srd_=SAUX)
    a(f"""L_b_clrd:
    s_setprio 0
    s_waitcnt vmcnt(0) lgkmcnt(0)
    s_barrier                             ; B7
    v_add_u32 v{vWA}, {L_WQ}, v{t}
    v_and_b32 v{t+4}, 31, v{vLANE}
    s_lshl_b32 s30, {sT}, 5
    v_add_lshl_u32 v{t+4}, v{t+4}, s30, 3
    v_add_u32 v{t+4}, {L_STAT}, v{t+4}
    s_lshl_b32 s30, {sT}, 10
    v_add_u32 v{t+5}, s30, v{vL16}
    v_add_u32 v{t+1}, {L_SFR}, v{vL16}
    v_mov_b32 v{t}, {L_CTR}
    v_mov_b32 v{vDEN}, 1""")
    xq = lambda n, s: XF + 20 * s + 4 * n if n < 5 else (128 if s % 2 == 0 else 0) + 4 * (n - 5)
    xrd = lambda n, s: f"ds_read_b128 v[{xq(n, s)}:{xq(n, s)+3}], v{vXA+s} offset:{(n - 5)*16384}"
    for n in range(5, 8):
        a(xrd(n, 0))
    a("""s_waitcnt lgkmcnt(0)
    s_setprio 2
    s_barrier                             ; B8""")
    stamp(4)
    lg = Lg()
    SQA = 140

    def qreads(k):
        s_, n = k >> 3, k & 7
        if n == 0 and s_:
            a(f"v_xor_b32 v{vWA}, {(s_ ^ (s_ - 1)) << 10}, v{vWA}")
        lg.rd(("q", k), trs(WF + 4 * (k % 8), vWA, n * 4096))
    for k in range(5):
        qreads(k)
    lg.rd("st", f"ds_read_b64 v[{t+2}:{t+3}], v{t+4}")
    z = lambda lo, hi: "\n".join(f"v_mov_b64 v[{r}:{r+1}], 0" for r in range(lo, hi, 2))
    cr = const_rows(t + 4)
    side = {8: f"v_rcp_f32 v{vRS}, v{t+3}\nv_cvt_pk_bf16_f32 v{MF}, -v{t+2}, -v{t+2}",
            9: f"v_mul_f32 v{vRS}, {f32(CQ)}, v{vRS}\nv_mov_b32 v{MF+1}, v{MF}",
            10: f"v_and_b32 v{t+2}, 0xffff0000, v{SQA}\nv_sub_f32 v{t+3}, v{SQA}, v{t+2}\nv_and_b32 v{t+4}, 0xffff0000, v{t+3}",
            11: f"v_sub_f32 v{t+3}, v{t+3}, v{t+4}\nv_lshrrev_b32 v{t+2}, 16, v{t+2}\nv_or_b32 v{t+2}, v{t+2}, v{t+4}",
            12: f"v_lshrrev_b32 v{t+3}, 16, v{t+3}",
            14: f"v_mov_b64 v[{MF+2}:{MF+3}], v[{MF}:{MF+1}]\n" + cr[0] + "\n" + cr[1],
            15: cr[2] + "\n" + z(32, 36), 16: cr[3], 19: z(36, 40),
            21: z(40, 46), 22: z(46, 52), 23: z(52, 56), 24: z(56, 60), 26: z(80, 84), 27: z(84, 88), 28: z(88, 96),
            29: z(60, 68), 30: z(68, 76), 31: z(76, 80)}
    for k in range(32):
        s, n = k >> 3, k & 7
        lg.wait(("q", k), ("x", k))
        mfma32(ACC, WF + 4 * (k % 8), xq(n, s), ACC if k else None)
        if k + 5 < 32:
            qreads(k + 5)
        if s < 3 and (3 <= n < 6 if s == 0 else n < 3):
            n2 = n + 2 if s == 0 else n + 5
            lg.rd(("x", 8 * (s + 1) + n2), xrd(n2, s + 1))
        if k in side:
            a(side[k])
        if k < 8:
            mfma16(SQA, CS, WF + 4 * k, SQA if k else None)
        if k == 13:
            lg.rd("w", f"ds_write_b64 v{vM}, v[{t+2}:{t+3}]")
            a("s_mov_b64 exec, 1")
            lg.rd("w", f"ds_add_u32 v{t}, v{vDEN} offset:4")
            a("s_mov_b64 exec, -1")
        if k == 25:
            lg.rd("sf", f"ds_read_b32 v{t+2}, v{t} offset:4\nds_read_b128 v[{SQA}:{SQA+3}], v{t+1}")
    a(f"""s_mov_b32 s56, 0
L_b_sq:
    s_waitcnt lgkmcnt(0)
    v_readfirstlane_b32 s30, v{t+2}
    s_add_u32 s56, s56, 1
    s_cmp_ge_u32 s30, 4
    s_cbranch_scc1 L_b_sqd
    ds_read_b32 v{t+2}, v{t} offset:4
    ds_read_b128 v[{SQA}:{SQA+3}], v{t+1}
    s_cmp_lt_u32 s56, {cfg.spin_max}
    s_cbranch_scc1 L_b_sq
L_b_sqd:""")
    stamp(8)
    mfma32(ACC, SQA, MF, ACC)
    for i in range(0, 16, 2):
        a(f"v_pk_mul_f32 v[{ACC+i}:{ACC+i+1}], v[{ACC+i}:{ACC+i+1}], v[{vRS}:{vRS+1}] op_sel_hi:[1,0]")
        a(f"v_cvt_pk_bf16_f32 v{4+i//2}, v{ACC+i}, v{ACC+i+1}")
        if i == 6:
            a(f"ds_write_b128 v{t+5}, v[4:7] offset:{L_Q}")
    a(f"ds_write_b128 v{t+5}, v[8:11] offset:{L_Q + 4096}")
    stamp(1)
    attn_init_b((0,))

    def exp(r):
        a(f"v_exp_f32 v{r}, v{r}")

    def smf(o, v, p):
        a(f"v_smfmac_f32_32x32x32_bf16 v[{o}:{o+15}], v[{v}:{v+3}], v[{p}:{p+7}], v{vIDX}")

    def step(i, S, prev, nxt, h1=None, h2=None, h3=None):
        cur, oth = (SA, SB) if i % 2 == 0 else (SB, SA)
        exp(cur); exp(cur + 1)
        if i or prev is not None:
            smf(OO + 16 * ((i - 1) & 3), (S if i else prev)["V"][1], oth + 8)
        if h1:
            h1()
        for e in range(2, 5):
            exp(cur + e)
        if i < 3:
            mfma32(oth, S["K"], QQ + 4 * (i + 1))
        elif nxt is not None:
            mfma32(oth, nxt["K"], QQ)
        for e in range(5, 10):
            exp(cur + e)
        smf(OO + 16 * i, S["V"][0], cur)
        if h2:
            h2()
        for e in range(10, 16):
            exp(cur + e)
            if e == 12 and h3:
                h3()

    def gl_addr():
        a("""s_add_u32 s61, s61, 8192
             s_and_b32 s61, s61, 0x1ffff""")

    def gl_k(s):
        S = slot(s)
        a(f"""s_add_u32 s65, s61, s64
              buffer_load_dwordx4 v[{S['K']}:{S['K']+3}], v{vL16}, {SWS}, s65 offen sc1""")

    def gl_v(s):
        S = slot(s)
        a(f"s_mov_b64 exec, {sVM}")
        for i in range(2):
            r = S["V"][i]
            a(f"buffer_load_dwordx4 v[{r}:{r+3}], v{vL16}, {SWS}, s65 offen offset:{1024 + 256*i} sc1")
        a("s_mov_b64 exec, -1")

    def unit(s, load=True, wait=6, last=False, hooks={}, first=False):
        S, prev, nxt = slot(s), None if first else slot((s + 3) % 4), slot((s + 1) % 4)
        H = lambda k: hooks.get(k)
        ld = (s + 3) % 4
        step(0, S, prev, nxt, h1=(lambda: gl_k(ld)) if load else H("01"), h2=(lambda: gl_v(ld)) if load else H("02"), h3=H("03"))
        step(1, S, prev, nxt, h1=gl_addr if load else H("11"), h2=H("12"), h3=H("13"))
        step(2, S, prev, nxt, h1=H("21"), h2=H("22"), h3=H("23"))
        step(3, S, prev, None if last else nxt, h1=(lambda: a(f"s_waitcnt vmcnt({wait})")) if not last else H("31"), h2=H("32"), h3=H("33"))

    a(f"""L_attn_pre:
    v_add_u32 v{t+1}, s71, v{vL16}
    v_mov_b32 v{vIDX}, 0xdddddddd""")
    for i in range(4):
        a(f"v_add_u32 v{t+2+i}, s{72+i}, v{vL16}")
    a(f"""s_setprio {3 if cfg.prio else 0}
    s_waitcnt lgkmcnt(0)
    s_barrier                             ; B10""")
    stamp(5)
    S0 = slot(0)
    a(f"""ds_read_b128 v[{QQ}:{QQ+3}], v{t+2} offset:{L_Q}
    ds_read_b128 v[{S0['K']}:{S0['K']+3}], v{t+1} offset:{L_OWNKV}""")
    for i in range(1, 4):
        a(f"ds_read_b128 v[{QQ+4*i}:{QQ+4*i+3}], v{t+2+i} offset:{L_Q}")
    a(f"s_mov_b64 exec, {sVM}")
    for i in range(2):
        r = S0["V"][i]
        a(f"ds_read_b128 v[{r}:{r+3}], v{t+1} offset:{L_OWNKV + 1024 + 256*i}")
    a("s_mov_b64 exec, -1\ns_waitcnt lgkmcnt(5)")
    mfma32(SA, S0["K"], QQ)
    attn_init_b((1, 2, 3))
    a("s_waitcnt lgkmcnt(0)")
    def release():
        stamp(15)
        a("s_barrier                             ; B11")
        for s in (1, 2, 3):
            gl_k(s)
            gl_v(s)
            gl_addr()
    unit(0, load=False, first=True, hooks={cfg.b11: release})
    a(f"s_mov_b32 s66, {cfg.iters}")
    a(".p2align 3\nL_attn:")
    for s in (1, 2, 3, 0):
        unit(s, hooks={"32": lambda: a("s_sub_u32 s66, s66, 1\ns_cmp_lg_u32 s66, 0")} if s == 0 else {})
    a("s_cbranch_scc1 L_attn")
    stamp(6)
    if cfg.prio:
        a("s_setprio 2")

    def mbaddr():
        a(f"s_mul_i32 s52, {sHH}, {4*3*2304}")
        for i in range(3):
            a(f"""s_add_u32 s30, {sKQ}, {1 + i}
                  s_and_b32 s30, s30, 3
                  s_mul_i32 s30, s30, {3*2304}
                  s_add_u32 s{53+i}, s30, s52""")
        a(f"""s_mul_i32 s30, {sKQ}, {3*2304}
              s_add_u32 s52, s52, s30""")

    def send(i):
        o = OO + 16 * i
        a(f"""v_add_u32 v{t+1}, s{53+i}, v{vL16}
              v_lshl_add_u32 v{t+2}, v{vLANE}, 2, s{53+i}
              ds_write_b128 v{t+1}, v[{o}:{o+3}] offset:{L_CMB + i*2304}
              ds_write_b128 v{t+1}, v[{o+4}:{o+7}] offset:{L_CMB + i*2304 + 1024}
              ds_write_b32 v{t+2}, v{o+8} offset:{L_CMB + i*2304 + 2048}""")
    def touch():
        a(f"""s_lshl_b32 s30, {sJ}, 2
              s_add_u32 s30, s30, {sKQ}
              s_lshl_b32 s30, s30, 15
              s_lshr_b32 s31, s64, 7               ; head * 1024
              s_add_u32 s30, s30, s31
              s_add_u32 s67, s30, {WS_OF}
              s_lshl_b32 s57, {sJ}, 7
              s_add_u32 s59, s57, {WS_FLAG + FL*128}
              s_mov_b32 s50, 0x01010101
              s_mov_b32 s51, 0x01010101
              s_mov_b64 exec, s[50:51]
              buffer_load_dword v{t+4}, v{vL16}, {SWS}, s67 offen sc1
              s_mov_b64 exec, 1
              buffer_load_dword v{t+5}, v{vL16}, {SWS}, s59 offen sc1
              s_mov_b64 exec, -1""")
    unit(1, load=False, wait=5, hooks={"01": touch, "11": mbaddr})
    unit(2, load=False, wait=2)
    if cfg.prio:
        a("s_setprio 1")
    unit(3, load=False, last=True, hooks={"21": lambda: send(0), "31": lambda: (send(1), a("s_setprio 0")), "33": lambda: send(2)})
    O3 = OO + 48
    a(f"""v_add_u32 v{t+1}, s52, v{vL16}
    v_lshl_add_u32 v{t+2}, v{vLANE}, 2, s52""")
    smf(O3, slot(3)["V"][1], SB + 8)
    stamp(7)
    a(f"""v_mov_b32 v{t+3}, {L_CTR}
    s_setprio 2
    s_waitcnt lgkmcnt(0)
    s_barrier                             ; T1""")
    stamp(9)
    a(f"ds_read_b32 v27, v{t+3} offset:16")
    for i in range(3):
        a(f"ds_read_b32 v{24+i}, v{t+2} offset:{L_CMB + i*2304 + 2048}")
    for i in range(3):
        a(f"""ds_read_b128 v[{8*i}:{8*i+3}], v{t+1} offset:{L_CMB + i*2304}
              ds_read_b128 v[{8*i+4}:{8*i+7}], v{t+1} offset:{L_CMB + i*2304 + 1024}""")
    a(f"""s_waitcnt lgkmcnt(6)
    v_readfirstlane_b32 s70, v27
    v_add_f32 v24, v24, v25
    v_add_f32 v26, v26, v{O3+8}
    v_add_f32 v{O3+8}, v24, v26
    v_cmp_nle_f32 vcc, {f32(2.0**-40)}, v{O3+8}
    v_rcp_f32 v28, v{O3+8}
    s_mov_b64 s[50:51], vcc
    v_cmp_nge_f32 vcc, {f32(2.0**40)}, v{O3+8}""")
    for i in range(3):
        a(f"s_waitcnt lgkmcnt({4 - 2*i})")
        for e in range(0, 8, 2):
            a(f"v_pk_add_f32 v[{O3+e}:{O3+e+1}], v[{O3+e}:{O3+e+1}], v[{8*i+e}:{8*i+e+1}]")
    a(f"""s_or_b64 s[50:51], s[50:51], vcc
    v_maximum3_f32 v0, |v{O3}|, |v{O3+1}|, |v{O3+2}|
    v_maximum3_f32 v1, |v{O3+3}|, |v{O3+4}|, |v{O3+5}|
    v_maximum3_f32 v0, |v{O3+6}|, |v{O3+7}|, v0
    v_maximum3_f32 v0, v0, v1, v1
    v_cmp_nge_f32 vcc, {f32(2.0**120)}, v0
    s_nop 0
    s_or_b64 s[50:51], s[50:51], vcc""")
    a("s_branch L_slow" if cfg.force_slow else "s_cbranch_scc1 L_slow")
    a("L_norm:")
    for e in range(0, 8, 2):
        a(f"v_pk_mul_f32 v[{O3+e}:{O3+e+1}], v[{O3+e}:{O3+e+1}], v[28:29] op_sel_hi:[1,0]")
    for i in range(4):
        a(f"v_cvt_pk_bf16_f32 v{156+i}, v{O3+2*i}, v{O3+2*i+1}")
    a(f"""s_cmp_eq_u32 s70, 0
    s_cbranch_scc1 L_ost_far
    buffer_store_dwordx4 v[156:159], v{vL16}, {SWS}, s67 offen
    s_branch L_ost_done
L_ost_far:
    buffer_store_dwordx4 v[156:159], v{vL16}, {SWS}, s67 offen sc1
L_ost_done:""")
    stamp(10)
    WOF, PACC, OFR = 0, 128, 144
    u = 144
    a(f"""s_cmp_ge_u32 {sWV}, 8
    s_cbranch_scc1 L_tail_b
    v_lshrrev_b32 v{u}, 5, v{vLANE}
    v_bfe_u32 v{u+1}, v{vLANE}, 2, 2
    v_lshl_add_u32 v{u}, v{u}, 2, v{u+1}
    v_lshlrev_b32 v{u}, 6, v{u}           ; (4*half + r) * 64
    v_and_b32 v{u+1}, 1, v{vLANE}
    v_lshl_add_u32 v{u}, v{u+1}, 5, v{u}
    v_bfe_u32 v{u+1}, v{vLANE}, 4, 1
    v_lshl_add_u32 v{u}, v{u+1}, 4, v{u}
    v_bfe_u32 v{u+1}, v{vLANE}, 1, 1
    v_lshl_add_u32 v{u}, v{u+1}, 3, v{u}
    s_and_b32 s50, {sT}, 1
    s_lshr_b32 s51, {sT}, 1
    s_lshl_b32 s30, s50, 15
    s_add_u32 s30, s30, {L_WO}
    v_add_u32 v{u}, s30, v{u}""")
    for hd in range(32):
        read_w(WOF + 4 * hd, u, hd * 1024, second=512)
        if hd % 6 == 5:
            a("s_waitcnt lgkmcnt(2)")
    a(f"""v_and_b32 v{u+1}, 31, v{vLANE}
    v_lshrrev_b32 v{u+2}, 5, v{vLANE}
    s_lshl_b32 s30, s50, 2
    v_lshl_add_u32 v{u+2}, v{u+2}, 1, s30
    v_and_b32 v{u+3}, 7, v{u+1}
    v_xor_b32 v{u+2}, v{u+2}, v{u+3}
    s_lshl_b32 s30, s51, 12
    v_lshl_add_u32 v{u+1}, v{u+1}, 7, s30
    v_lshl_add_u32 v162, v{u+2}, 4, v{u+1}
    v_xor_b32 v163, 16, v162
    s_lshl_b32 s30, s51, 15
    s_add_u32 s30, s30, {L_OST}
    v_add_u32 v166, s30, v{vL16}
    s_waitcnt vmcnt(0)
    s_barrier                             ; T2
    s_waitcnt lgkmcnt(0)
    s_barrier                             ; T3""")
    stamp(11)
    a("s_barrier                             ; T4a")
    stamp(12)
    for hd in range(3):
        a(f"ds_read_b128 v[{OFR+4*hd}:{OFR+4*hd+3}], v166 offset:{hd*1024}")
    for hd in range(32):
        a(f"s_waitcnt lgkmcnt({min(2, 31 - hd)})")
        mfma32(PACC, WOF + 4 * hd, OFR + 4 * (hd % 4), None if hd == 0 else PACC)
        if hd + 3 < 32:
            if (hd + 3) % 8 == 0:
                a("s_barrier                             ; T4b..d")
            r = OFR + 4 * ((hd + 3) % 4)
            a(f"ds_read_b128 v[{r}:{r+3}], v166 offset:{(hd+3)*1024}")
    for i in range(8):
        a(f"v_cvt_pk_bf16_f32 v{i}, v{PACC+2*i}, v{PACC+2*i+1}")
    a(f"""ds_write_b128 v162, v[0:3] offset:{L_SST}
    ds_write_b128 v163, v[4:7] offset:{L_SST}
    s_waitcnt lgkmcnt(0)
    s_barrier                             ; T5""")
    stamp(13)
    dump_stamps()
    a("s_endpgm")

    a(f"""L_tail_b:
    v_mov_b32 v0, 0
    v_mov_b32 v1, 1
    v_lshlrev_b32 v3, 2, v{vLANE}
    s_add_u32 s57, s57, {WS_FLAG + F5*128}
    s_lshl_b32 s51, {sP}, 2
    s_add_u32 s71, s51, s59
    s_add_u32 s50, {sT}, 4""")
    stage_setup("s50")
    a(f"""s_waitcnt vmcnt(0)
    s_barrier                             ; T2
    s_cmp_lg_u32 {sT}, 0
    s_cbranch_scc1 L_tail_b3
    s_cmp_eq_u32 s70, 0
    s_cbranch_scc1 L_tail_far
    s_mov_b64 exec, 1
    buffer_store_dword v1, v0, {SWS}, s71 offen
    s_mov_b64 exec, 0xffff
    s_mov_b32 s56, 0
L_tail_near:
    buffer_load_dword v2, v3, {SWS}, s59 offen sc1
    s_add_u32 s56, s56, 1
    s_waitcnt vmcnt(0)
    v_cmp_eq_u32 vcc, 0, v2
    s_cmp_ge_u32 s56, {cfg.spin_max}
    s_cbranch_scc1 L_tail_neard
    s_cbranch_vccnz L_tail_near
L_tail_neard:
    s_mov_b64 exec, -1
    s_branch L_tail_b3
L_tail_far:""")
    signal("s57", 0, 1)
    poll("s57", 16, "f5", 0, 2, sleep=1)
    a("""L_tail_b3:
    s_barrier                             ; T3""")
    stamp(11)
    stage_o(vL16)
    stamp(12)
    dump_stamps()
    a("s_endpgm")

    K_, V_, Q3 = slot(0)["K"], slot(0)["V"], QQ + 12
    a(f"""L_slow:
    v_mov_b32 v{t+1}, 0xff800000
    s_mov_b32 s61, 0
L_slow1:
    s_add_u32 s65, s61, s64
    buffer_load_dwordx4 v[{K_}:{K_+3}], v{vL16}, {SWS}, s65 offen sc1
    s_add_u32 s61, s61, 2048
    s_waitcnt vmcnt(0)""")
    mfma32(SA, K_, Q3)
    for i in range(8):
        a(f"v_max3_f32 v{t+1}, v{SA+2*i}, v{SA+2*i+1}, v{t+1}")
    a(f"""s_cmp_lt_u32 s61, 0x20000
    s_cbranch_scc1 L_slow1
    v_mov_b32 v{t+2}, v{t+1}
    v_permlane32_swap_b32 v{t+1}, v{t+2}
    v_max_f32 v{t+1}, v{t+1}, v{t+2}""")
    for i in range(16):
        a(f"v_sub_f32 v{SB+i}, 0, v{t+1}\nv_mov_b32 v{O3+i}, 0")
    a(f"""s_mov_b32 s61, 0
L_slow2:
    s_add_u32 s65, s61, s64
    buffer_load_dwordx4 v[{K_}:{K_+3}], v{vL16}, {SWS}, s65 offen sc1
    s_mov_b64 exec, {sVM}
    buffer_load_dwordx4 v[{V_[0]}:{V_[0]+3}], v{vL16}, {SWS}, s65 offen offset:1024 sc1
    buffer_load_dwordx4 v[{V_[1]}:{V_[1]+3}], v{vL16}, {SWS}, s65 offen offset:1280 sc1
    s_mov_b64 exec, -1
    s_add_u32 s61, s61, 2048
    s_waitcnt vmcnt(0)""")
    mfma32(SA, K_, Q3, SB)
    for i in range(16):
        exp(SA + i)
    smf(O3, V_[0], SA)
    smf(O3, V_[1], SA + 8)
    a(f"""s_cmp_lt_u32 s61, 0x20000
    s_cbranch_scc1 L_slow2
    s_nop 11
    v_rcp_f32 v28, v{O3+8}
    s_branch L_norm""")
    return finish(a, cfg)


def finish(a, cfg):
    a("L_exit:\ns_endpgm")
    body, log = fix_hazards(a.text(), fix=True, verbose=cfg.verbose)
    head = open("cdna_kernels/" + NAME + ".s.ref").read().split("; Override launch")[0]
    head += f"; @launch grid=(256,1,1) block=(768,1,1) lds={LDS_BYTES}\n"
    tail = f""".section .rodata,"a"
.p2align 6
.amdhsa_kernel {NAME}_kernel
  .amdhsa_next_free_vgpr 168
  .amdhsa_next_free_sgpr 102
  .amdhsa_accum_offset 168
  .amdhsa_group_segment_fixed_size 0
  .amdhsa_kernarg_size 88
  .amdhsa_user_sgpr_count 2
  .amdhsa_user_sgpr_kernarg_segment_ptr 1
  .amdhsa_system_sgpr_workgroup_id_x 1
  .amdhsa_float_denorm_mode_32 3
.end_amdhsa_kernel
"""
    return head + body + tail


if __name__ == "__main__":
    cfg = Cfg()
    out = sys.argv[1]
    for kv in sys.argv[2:]:
        k, v = kv.split("=")
        setattr(cfg, k, eval(v))
    open(out, "w").write(gen(cfg))
```

```python
import sys
import struct
from asmlib import Asm, fix_hazards

NAME = "recurrent_scan__softmax_full_mha__moe_arch_mod__prompt"

WS_KV = 0
WS_OF = 4 << 20
WS_FLAG = 6 << 20
WS_CAND = (6 << 20) + 0x10000
WS_STAT = (6 << 20) + 0x20000
WS_P1 = (6 << 20) + 0x80000
WS_P2 = (6 << 20) + 0xC0000
WS_DBG = 8 << 20
WS_SIZE = 268435456
F1, F2, F3, F4, F5, FX, FL = 0, 16, 32, 64, 72, 88, 104

L_WK, L_WV, L_RING = 0, 32768, 65536
L_WQ = L_RING + 3 * 16384
L_OWNKV = 0
L_Q = 32768
L_WO = 65536
L_GU = 128 * 1024
L_DN = 144 * 1024
L_CMB = 0
L_OST = L_WO
L_SST = 56 * 1024
L_MISC = 152 * 1024
L_WR = L_MISC
L_ZERO = L_MISC + 1088
L_ONES = L_MISC + 6784
L_CTR = L_MISC + 2112
L_STAT = L_MISC + 2304
L_SFR = L_MISC + 3328
L_KEY = L_MISC + 5376
L_XS = L_MISC + 5440
L_Y = L_MISC + 6144
LDS_BYTES = 163840

CQ = 0.25 * 1.4426950408889634
LOG2E = 1.4426950408889634


def f32(x):
    return "0x%08x" % struct.unpack("<I", struct.pack("<f", x))[0]


class Cfg:
    stamps = False
    L = 2
    rot = (4, 2, 1, 1)
    rotj = 1
    rotp = 1
    rotx = 1
    wq1 = 4
    wq2 = 4
    x2 = 0
    bz = 1
    early = 0
    kvpf = 0
    cpf = 1
    qpf = 0
    qpfn = 3
    b11 = '11'
    gatepos = 3
    wqwin = 4
    sigfirst = 0
    ntx = ''
    spin_max = 200000
    verbose = False
    force_slow = False
    prio = 1
    x1 = 0
    pxor = 0
    local = 1
    wo_win = 6
    gu_win = 4
    nocold = 0
    ntw = ''
    probe = None
    clk = 's_memtime'
    iters = 3


def gen(cfg):
    a = Asm()
    L = cfg.L
    sP, sJ, sWV, sT, sC0 = "s3", "s4", "s5", "s6", "s7"
    SX, SW, SWS, SAUX = "s[32:35]", "s[36:39]", "s[40:43]", "s[44:47]"
    sONE = "s48"

    def srd(base, ptr, size):
        a(f"""s_mov_b32 s{base}, s{ptr}
              s_mov_b32 s{base+1}, s{ptr+1}
              s_mov_b32 s{base+2}, {size}
              s_mov_b32 s{base+3}, 0x20000""")

    early_done = []

    def stamp(i):
        if cfg.early and i in (2, 6, 7, 8, 9, 12, 13):
            if i in early_done or 13 in early_done:
                return
            early_done.append(i)
        if cfg.probe and cfg.probe[0] == i:
            a("s_memrealtime s[98:99]\ns_waitcnt lgkmcnt(0)")
        if cfg.stamps:
            a(f"{cfg.clk} s[78:79]\ns_waitcnt lgkmcnt(0)\ns_mov_b32 s{80+i}, s78")

    def dump_stamps():
        if cfg.stamps:
            a(f"""s_mul_i32 s78, s2, 12
                  s_add_u32 s78, s78, {sWV}
                  s_lshl_b32 s78, s78, 6
                  s_add_u32 s78, s78, {WS_DBG}
                  v_mov_b32 v0, 0""")
            for g in range(4):
                for i in range(4):
                    a(f"v_mov_b32 v{4+i}, s{80+4*g+i}")
                a(f"buffer_store_dwordx4 v[4:7], v0, {SWS}, s78 offen offset:{16*g}")
                a("s_nop 1")
            a("s_waitcnt vmcnt(0)")

    def signal(line_sgpr, vz, vone):
        a(f"""s_mov_b64 exec, 1
              buffer_atomic_add v{vone}, v{vz}, {SWS}, {line_sgpr} offen sc1
              s_mov_b64 exec, -1""")

    def poll(line_sgpr, target, tag, vz, vt, sleep=2, srd_=None):
        a(f"""s_mov_b32 s56, 0
              s_mov_b64 exec, 1
        L_poll_{tag}:
              buffer_load_dword v{vt}, v{vz}, {srd_ or SWS}, {line_sgpr} offen sc1
              s_waitcnt vmcnt(0)
              v_readfirstlane_b32 s30, v{vt}
              s_add_u32 s56, s56, 1
              s_cmp_ge_u32 s30, {target}
              s_cbranch_scc1 L_polld_{tag}
              s_sleep {sleep}
              s_cmp_lt_u32 s56, {cfg.spin_max}
              s_cbranch_scc1 L_poll_{tag}
        L_polld_{tag}:
              s_mov_b64 exec, -1""")

    def rowmax_u32(dst, src):
        a(f"v_max_u32_dpp v{dst}, v{src}, v{src} row_ror:8 row_mask:0xf bank_mask:0xf")
        for r in (4, 2, 1):
            a(f"v_max_u32_dpp v{dst}, v{dst}, v{dst} row_ror:{r} row_mask:0xf bank_mask:0xf")

    def wavemax_u32(sdst, src, tmp, rows):
        rowmax_u32(tmp, src)
        a(f"v_readlane_b32 {sdst}, v{tmp}, 0")
        for r in range(1, rows):
            a(f"v_readlane_b32 s30, v{tmp}, {16*r}\ns_max_u32 {sdst}, {sdst}, s30")

    def tr_addr(dst, lane, t1, t2, rowshift=3):
        a(f"""v_lshrrev_b32 v{t1}, 5, v{lane}
              v_bfe_u32 v{t2}, v{lane}, 2, 2
              v_lshl_add_u32 v{t1}, v{t1}, {rowshift}, v{t2}
              v_lshlrev_b32 v{t1}, 6, v{t1}
              v_bfe_u32 v{t2}, v{lane}, 4, 1
              v_lshl_add_u32 v{t1}, v{t2}, 5, v{t1}
              v_and_b32 v{t2}, 3, v{lane}
              v_lshl_add_u32 v{dst}, v{t2}, 3, v{t1}""")

    def read_w(dst, addr, off, second=256):
        a(f"""ds_read_b64_tr_b16 v[{dst}:{dst+1}], v{addr} offset:{off}
              ds_read_b64_tr_b16 v[{dst+2}:{dst+3}], v{addr} offset:{off + second}""")

    def mfma32(d, A, B, c=None):
        cs = "0" if c is None else f"v[{c}:{c+15}]"
        a(f"v_mfma_f32_32x32x16_bf16 v[{d}:{d+15}], v[{A}:{A+3}], v[{B}:{B+3}], {cs}")

    def mfma16(d, A, B, c=None):
        cs = "0" if c is None else f"v[{c}:{c+3}]"
        a(f"v_mfma_f32_16x16x32_bf16 v[{d}:{d+3}], v[{A}:{A+3}], v[{B}:{B+3}], {cs}")

    def rnd(dst, src):
        a(f"v_cvt_pk_bf16_f32 v{dst}, 0, {src}")

    def split3(dst, src, t):
        a(f"""v_and_b32 v{t}, 0xffff0000, v{src}
              v_sub_f32 v{t+1}, v{src}, v{t}
              v_and_b32 v{t+2}, 0xffff0000, v{t+1}
              v_sub_f32 v{t+1}, v{t+1}, v{t+2}
              v_lshrrev_b32 v{t}, 16, v{t}
              v_or_b32 v{dst}, v{t}, v{t+2}
              v_lshrrev_b32 v{dst+1}, 16, v{t+1}""")

    a(f""".amdgcn_target "amdgcn-amd-amdhsa--gfx950"
.text
.globl {NAME}_kernel
.p2align 12
.p2align 8
.type {NAME}_kernel,@function
{NAME}_kernel:
    s_cmp_ge_u32 s2, 256
    s_cbranch_scc1 L_exit
    s_load_dwordx16 s[8:23], s[0:1], 0
    s_load_dwordx4 s[24:27], s[0:1], 64
    s_load_dwordx2 s[28:29], s[0:1], 80""")
    if cfg.probe:
        a("s_memrealtime s[96:97]\ns_memrealtime s[98:99]")
    if cfg.stamps:
        for i in range(16):
            a(f"s_mov_b32 s{80+i}, 0")
        a(f"{cfg.clk} s[78:79]")
    a(f"""v_lshrrev_b32 v1, 6, v0
    v_and_b32 v0, 63, v0                 ; lane
    s_lshr_b32 {sP}, s2, 4
    s_xor_b32 {sP}, {sP}, {cfg.pxor}
    v_readfirstlane_b32 {sWV}, v1
    s_and_b32 {sJ}, s2, 7
    s_lshl_b32 {sJ}, {sJ}, 1
    s_bfe_u32 s30, s2, 0x10003
    s_or_b32 {sJ}, {sJ}, s30
    s_mul_i32 {sC0}, s30, {cfg.rot[0]}
    s_and_b32 s30, {sP}, 1
    s_mul_i32 s30, s30, {cfg.rot[1]}
    s_add_u32 {sC0}, {sC0}, s30
    s_lshr_b32 s30, {sP}, 1
    s_mul_i32 s30, s30, {cfg.rot[2]}
    s_add_u32 {sC0}, {sC0}, s30
    s_and_b32 s30, s2, {cfg.rot[3]}
    s_add_u32 {sC0}, {sC0}, s30
    s_and_b32 {sC0}, {sC0}, 7
    s_and_b32 {sT}, {sWV}, 3
    s_mov_b32 {sONE}, 0x3f803f80
    s_cmp_lt_u32 {sWV}, 4
    s_cbranch_scc1 L_helper""")
    if cfg.cpf:
        a(f"""s_cmp_lg_u32 {sWV}, 8
        s_cbranch_scc1 L_nocpf
        s_getpc_b64 s[50:51]
    L_pc:
        s_lshr_b32 s30, s2, 3
        s_lshl_b32 s30, s30, 10
        v_lshl_add_u32 v1, v0, 7, s30
        v_min_u32 v1, L_exit-L_pc, v1
        v_mov_b32 v7, s51
        v_add_co_u32 v6, vcc, s50, v1
        v_addc_co_u32 v7, vcc, 0, v7, vcc
        s_mov_b64 exec, 0xff
        global_load_dword v136, v[6:7], off
        s_mov_b64 exec, -1
    L_nocpf:""")
    a(f"""{'s_barrier                             ; Bz' if cfg.bz else ''}
    s_branch L_compute
L_helper:""")

    hZ, hONE, hT = 17, 18, 19
    a(f"""v_lshrrev_b32 v1, 2, v0
    s_lshl_b32 s30, {sT}, 4
    v_add_u32 v1, s30, v1
    v_mul_u32_u24 v1, 3072, v1
    v_and_b32 v2, 3, v0
    v_lshl_add_u32 v1, v2, 4, v1
    s_lshl_b32 s30, {sP}, 6
    v_add_u32 v14, s30, v1
    v_lshrrev_b32 v1, 3, v0
    v_lshrrev_b32 v2, 4, v0
    v_and_b32 v3, 7, v0
    v_xor_b32 v4, v3, v2
    v_xor_b32 v5, 4, v4
    s_lshl_b32 s30, {sJ}, 17
    s_lshl_b32 s31, {sT}, 15
    s_add_u32 s30, s30, s31
    v_lshl_add_u32 v6, v1, 10, s30
    v_lshl_add_u32 v10, v4, 4, v6
    v_lshl_add_u32 v11, v5, 4, v6
    v_add_u32 v12, {2*7168}, v10
    v_add_u32 v13, {3*7168}, v11
    v_add_u32 v11, 7168, v11
    s_lshl_b32 s57, {sT}, 12
    s_lshl_b32 s49, {sT}, 10
    s_waitcnt lgkmcnt(0)""")
    if cfg.stamps:
        a("s_mov_b32 s80, s78")
    if cfg.early:
        stamp(2)
    srd(36, 10, 1572864)
    srd(32, 8, 2097152)

    def kc(n, dst):
        a(f"s_add_u32 {dst}, {sC0}, {n}\ns_and_b32 {dst}, {dst}, 7")

    def issue_w(n):
        kc(n, "s50")
        a(f"""s_mul_i32 s51, s50, {64*3072}
              s_add_u32 m0, s49, {L_WK + n*4096}
              s_add_u32 s52, s51, 1024
              buffer_load_dwordx4 v14, {SW}, s52 offen lds
              s_add_u32 m0, s49, {L_WV + n*4096}
              s_add_u32 s53, s51, 2048
              buffer_load_dwordx4 v14, {SW}, s53 offen lds""")

    def issue(item):
        if item < 8:
            n = item
            kc(n, "s50")
            a(f"""s_add_u32 m0, s57, {L_RING + (n % 5)*16384}
                  s_lshl_b32 s50, s50, 7""")
            for q in range(4):
                a(f"buffer_load_dwordx4 v{10+q}, {SX}, s50 offen offset:{1024*q} {cfg.ntx} lds")
            if n < 7:
                issue_w(n + 1)
        else:
            for n in {8: range(cfg.wq1), 9: range(cfg.wq1, cfg.wq1 + cfg.wq2), 10: range(cfg.wq1 + cfg.wq2, 8)}[item]:
                kc(n, "s50")
                if item == 10:
                    a(f"s_waitcnt vmcnt({cfg.wqwin - 1})")
                a(f"""s_add_u32 m0, s49, {L_WQ + n*4096}
                      s_mul_i32 s51, s50, {64*3072}
                      buffer_load_dwordx4 v14, {SW}, s51 offen lds""")

    cnt = lambda item: 6 if item < 7 else {7: 4, 8: cfg.wq1, 9: cfg.wq2}[item]
    a(f"""s_cmp_lg_u32 {sT}, 0
    s_cbranch_scc1 L_h_nowr""")
    srd(44, 16, 1024)
    a(f"""v_add_u32 v1, {sC0}, v1
    v_and_b32 v1, 7, v1
    v_lshlrev_b32 v1, 7, v1
    s_mov_b32 m0, {L_WR}
    v_lshl_add_u32 v1, v3, 4, v1
    buffer_load_dwordx4 v1, {SAUX}, 0 offen lds
L_h_nowr:""")
    issue_w(0)
    if cfg.early:
        stamp(6)
        if cfg.early == 2:
            a("s_waitcnt vmcnt(0)")
            stamp(7)
    for it in range(L):
        issue(it)
        if it == 0 and cfg.bz:
            a("s_barrier                             ; Bz")
        if cfg.early and it == 0:
            stamp(8)
    if cfg.early:
        stamp(9)
    if cfg.kvpf:
        a(f"""s_lshr_b32 s30, s2, 3
        s_lshl_b32 s30, s30, 2
        s_add_u32 s30, s30, {sT}
        s_mul_i32 s30, s30, {4*3072}
        s_sub_u32 s31, 384, s10
        s_and_b32 s31, s31, 0x380
        s_add_u32 s30, s30, s31
        s_add_u32 s54, s10, s30
        s_addc_u32 s55, s11, 0""")
        for i in range(16):
            a(f"s_load_dword s{70+(i & 7)}, s[54:55], {1024 + 1024*(i >> 3) + 3072*((i & 7) >> 1) + 64*(i & 1)}")
    srd(40, 28, WS_SIZE)
    a(f"""v_mov_b32 v{hZ}, 0
    v_mov_b32 v{hONE}, 1
    s_waitcnt vmcnt({sum(cnt(i) for i in range(L))})
    """)
    if cfg.early:
        stamp(12)
    a("s_barrier")
    if cfg.early:
        stamp(13)
    issued = L
    for n in range(8):
        pend = sum(cnt(i) for i in range(n + 1, issued))
        a(f"s_waitcnt vmcnt({pend})")
        a(f"s_barrier                             ; B{n}")
        if n in (0, 1, 7):
            stamp({0: 1, 1: 10, 3: 2, 7: 3}[n])
        if n == cfg.qpfn and cfg.qpf & 2:
            a(f"""s_lshr_b32 s30, s2, 3
            s_lshl_b32 s30, s30, 2
            s_add_u32 s30, s30, {sT}
            s_mul_i32 s30, s30, {4*3072}
            s_sub_u32 s31, 384, s10
            s_and_b32 s31, s31, 0x380
            s_add_u32 s30, s30, s31
            s_add_u32 s54, s10, s30
            s_addc_u32 s55, s11, 0""")
            for i in range(8):
                a(f"s_load_dword s{70+i}, s[54:55], {3072*(i >> 1) + 64*(i & 1)}")
        if n == 1 and cfg.qpf & 1:
            a(f"""s_lshl_b32 s30, s2, 1
            s_lshr_b32 s31, {sT}, 1
            s_add_u32 s30, s30, s31
            s_mul_i32 s30, s30, 3072
            s_and_b32 s31, {sT}, 1
            s_lshl_b32 s31, s31, 9
            s_add_u32 s30, s30, s31
            s_add_u32 s54, s10, s30
            s_addc_u32 s55, s11, 0""")
            for i in range(8):
                a(f"s_load_dword s{70+i}, s[54:55], {64*i}")
        if issued < 8:
            issue(issued)
            issued += 1
            if issued == 8:
                issue(8)
                issued += 1
        elif issued == 9 and n == 6:
            issue(9)
            issued += 1
    hXP, hXN, hG = 136, 144, 152
    hOA = 20
    a(f"""s_lshr_b32 s58, {sP}, 3
    s_and_b32 s59, {sP}, 7
    s_lshl_b32 s60, {sJ}, 1
    s_add_u32 s60, s60, s58
    v_lshrrev_b32 v1, 3, v0
    s_lshl_b32 s30, {sT}, 4
    v_add_u32 v22, s30, v1
    s_lshl_b32 s30, s60, 16
    s_lshl_b32 s31, s59, 7
    s_add_u32 s30, s30, s31
    v_lshl_add_u32 v1, v22, 10, s30
    v_and_b32 v2, 7, v0
    v_lshl_add_u32 v{hOA}, v2, 4, v1
    v_add_u32 v{hOA+1}, 8192, v{hOA}
    s_lshl_b32 s30, s58, 6
    v_add_lshl_u32 v1, v22, s30, 3
    v_add_u32 v23, {L_STAT}, v1
    """)
    issue(10)
    a(f"""buffer_load_dwordx4 v[{hXP}:{hXP+3}], v{hOA}, {SX}, 0 offen
    buffer_load_dwordx4 v[{hXP+4}:{hXP+7}], v{hOA+1}, {SX}, 0 offen
    s_waitcnt vmcnt(2)""")
    stamp(11)
    a("s_barrier")
    stamp(4)
    def normrows():
        a(f"""ds_read_b64 v[24:25], v23
    ds_read_b64 v[26:27], v23 offset:64
    s_waitcnt lgkmcnt(0)
    v_rcp_f32 v25, v25
    v_rcp_f32 v27, v27
    s_waitcnt vmcnt(0)""")
        for i in range(8):
            m, rs = (24, 25) if i < 4 else (26, 27)
            a(f"""v_lshlrev_b32 v28, 16, v{hXP+i}
                  v_and_b32 v29, 0xffff0000, v{hXP+i}
                  v_sub_f32 v28, v28, v{m}
                  v_sub_f32 v29, v29, v{m}
                  v_cvt_pk_bf16_f32 v28, 0, v28
                  v_cvt_pk_bf16_f32 v29, 0, v29
                  v_mul_f32 v28, v28, v{rs}
                  v_mul_f32 v29, v29, v{rs}
                  v_cvt_pk_bf16_f32 v{hXN+i}, v28, v29""")

    def gate(lo, hi):
        for i in range(lo, hi):
            g0, g1 = hG + 2 * i, hG + 2 * i + 1
            a(f"""v_lshlrev_b32 v28, 16, v{hXN+i}
                  v_and_b32 v29, 0xffff0000, v{hXN+i}
                  v_mul_f32 v{g0}, {f32(-LOG2E)}, v28
                  v_mul_f32 v{g1}, {f32(-LOG2E)}, v29
                  v_exp_f32 v{g0}, v{g0}
                  v_exp_f32 v{g1}, v{g1}
                  v_add_f32 v{g0}, 1.0, v{g0}
                  v_add_f32 v{g1}, 1.0, v{g1}
                  v_rcp_f32 v{g0}, v{g0}
                  v_rcp_f32 v{g1}, v{g1}
                  v_mul_f32 v{g0}, v{g0}, v28
                  v_mul_f32 v{g1}, v{g1}, v29
                  v_cvt_pk_bf16_f32 v{g0}, 0, v{g0}
                  v_cvt_pk_bf16_f32 v{g1}, 0, v{g1}""")
    tr_addr(30, 0, 1, 2)
    a(f"""v_lshrrev_b32 v31, 2, v0
    v_and_b32 v1, 3, v0
    v_lshlrev_b32 v32, 4, v1             ; piece
    v_lshl_add_u32 v33, v31, 10, v32
    s_lshl_b32 s30, s59, 7
    v_add_u32 v33, s30, v33
    s_lshr_b32 s61, s2, 3
    s_and_b32 s62, s2, 7""")
    srd(36, 12, 0 if cfg.nocold & 2 else 524288)
    normrows()
    stamp(12)
    a(f"""s_setprio 3
    s_barrier""")
    stamp(5)
    a(f"""s_cmp_lg_u32 {sT}, 0
    s_cbranch_scc1 L_h_b11
    s_lshl_b32 s57, {sP}, 7
    s_add_u32 s57, s57, {WS_FLAG + F1*128}""")
    poll("s57", 16, "f1", hZ, hT, sleep=1)
    stamp(13)
    a(f"""L_h_b11:
    s_barrier
    s_cmp_eq_u32 {sT}, 1
    s_cbranch_scc1 L_h1
    s_cmp_eq_u32 {sT}, 2
    s_cbranch_scc1 L_h2
    s_cmp_eq_u32 {sT}, 3
    s_cbranch_scc1 L_h3""")

    def mailbox(tag):
        a(f"""v_mov_b32 v6, {L_CTR}
              s_mov_b32 s56, 0
        L_mb_{tag}:
              s_sleep 8
              ds_read_b64 v[4:5], v6 offset:8
              s_add_u32 s56, s56, 1
              s_waitcnt lgkmcnt(0)
              v_readfirstlane_b32 s66, v4
              v_readfirstlane_b32 s67, v5
              s_cmp_ge_u32 s56, {cfg.spin_max}
              s_cbranch_scc1 L_mbd_{tag}
              s_cmp_eq_u32 s66, 0
              s_cbranch_scc1 L_mb_{tag}
        L_mbd_{tag}:""")

    a(f"""s_getreg_b32 s50, hwreg(HW_REG_XCC_ID, 0, 4)
    s_or_b32 s50, s50, 0x100
    v_mov_b32 v8, s50
    s_lshl_b32 s63, {sJ}, 7
    s_add_u32 s63, s63, {WS_FLAG + FX*128}
    s_lshl_b32 s51, {sP}, 2
    s_add_u32 s51, s51, s63
    s_mov_b64 exec, 1
    buffer_store_dword v8, v{hZ}, {SWS}, s51 offen sc1
    s_mov_b64 exec, -1""")
    mailbox("h0")
    a(f"""s_mov_b32 s54, 0
L_wo:
    s_add_u32 s50, s54, s60
    s_and_b32 s50, s50, 31
    s_lshl_b32 s51, s50, 10
    s_lshl_b32 s50, s50, 14
    s_add_u32 m0, s51, {L_WO}
    s_add_u32 s52, s50, 64
    buffer_load_dwordx4 v33, {SW}, s50 offen lds
    s_add_u32 m0, s51, {L_WO + 32768}
    s_add_u32 s54, s54, 1
    buffer_load_dwordx4 v33, {SW}, s52 offen lds
    s_waitcnt vmcnt({cfg.wo_win})
    s_cmp_lt_u32 s54, 32
    s_cbranch_scc1 L_wo
    v_lshlrev_b32 v9, 2, v0
    s_mov_b32 s56, 0
    s_mov_b64 exec, 0xffff
L_xid:
    buffer_load_dword v10, v9, {SWS}, s63 offen sc1
    s_add_u32 s56, s56, 1
    s_waitcnt vmcnt(0)
    v_cmp_eq_u32 vcc, 0, v10
    s_cmp_ge_u32 s56, {cfg.spin_max}
    s_cbranch_scc1 L_xidd
    s_cbranch_vccnz L_xid
L_xidd:
    v_cmp_ne_u32 vcc, v8, v10
    s_mov_b64 exec, -1
    s_cmp_eq_u64 vcc, 0
    s_cselect_b32 s50, {cfg.local}, 0
    v_mov_b32 v10, s50
    ds_write_b32 v6, v10 offset:16""")
    stamp(6)
    a("s_branch L_h_tail")

    a(f"""L_h1:
    v_lshlrev_b32 v1, 4, v0
    v_add_u32 v2, {L_STAT}, v1
    ds_read_b128 v[4:7], v2
    v_lshlrev_b32 v2, 2, v0
    v_add_u32 v3, {L_KEY}, v2
    ds_read_b32 v8, v3
    s_lshl_b32 s50, {sP}, 13
    s_add_u32 s63, s50, {WS_STAT}
    s_lshl_b32 s50, {sJ}, 9
    s_add_u32 s50, s50, s63
    s_lshl_b32 s51, {sP}, 9
    s_add_u32 s64, s51, {WS_CAND}
    s_lshl_b32 s51, {sJ}, 5
    s_add_u32 s51, s51, s64
    v_lshlrev_b32 v3, 3, v0
    s_waitcnt lgkmcnt(0)
    v_lshrrev_b32 v4, 16, v4
    v_lshrrev_b32 v6, 16, v6
    v_or_b32 v4, v4, v5
    v_or_b32 v5, v6, v7
    buffer_store_dwordx2 v[4:5], v3, {SWS}, s50 offen sc1
    s_mov_b64 exec, 0xff
    buffer_store_dword v8, v2, {SWS}, s51 offen sc1
    s_mov_b64 exec, -1
    s_lshl_b32 s65, {sP}, 7
    s_add_u32 s65, s65, {WS_FLAG + F2*128}
    s_waitcnt vmcnt(0)""")
    signal("s65", hZ, hONE)
    WFR = 40
    a(f"""s_cmpk_lt_u32 s2, 0xe0
    s_cbranch_scc0 L_h1_nogu
    v_mul_u32_u24 v1, 3584, v31
    v_add_u32 v34, v1, v32
    s_mul_i32 s50, s62, {64*3584}
    s_lshl_b32 s51, s61, 7
    s_add_u32 s50, s50, s51""")
    for mtx in range(2):
        srd(44, 18 + 2 * mtx, 1835008)
        for s in range(4):
            for ct in range(2):
                a(f"""s_mov_b32 m0, {L_GU + ((2*mtx + ct)*4 + s)*1024}
                      s_add_u32 s51, s50, {s*16*3584 + ct*64}
                      {'s_nop 0' if cfg.nocold & 1 else f'buffer_load_dwordx4 v34, {SAUX}, s51 offen {cfg.ntw} lds'}""")
            a(f"s_waitcnt vmcnt({cfg.gu_win})")
    a(f"""v_add_u32 v35, {L_GU}, v30
    s_waitcnt vmcnt(0)""")
    for b in range(16):
        read_w(WFR + 4 * b, 35, b * 1024)
        if b in (6, 13):
            a("s_waitcnt lgkmcnt(0)")
    a("""s_waitcnt lgkmcnt(0)
L_h1_nogu:""")
    poll("s65", 16, "f2", hZ, hT, sleep=8)
    stamp(6)
    a(f"""buffer_load_dwordx2 v[4:5], v3, {SWS}, s64 offen sc1
    s_waitcnt vmcnt(0)""")
    wavemax_u32("s66", 4, 6, 4)
    a(f"""v_cmp_eq_u32 vcc, s66, v4
    v_cndmask_b32 v4, v4, v5, vcc""")
    wavemax_u32("s67", 4, 6, 4)
    a(f"""v_mov_b32 v4, s66
    v_mov_b32 v5, s67
    v_mov_b32 v6, {L_CTR}
    ds_write_b64 v6, v[4:5] offset:8      ; mailbox
    s_cmpk_lt_u32 s2, 0xe0
    s_cbranch_scc0 L_h_tail
    v_cmp_gt_u32 vcc, 32, v0
    v_cndmask_b32 v4, v5, v4, vcc
    v_and_b32 v4, 0x7ff, v4
    v_sub_u32 v4, 0x7ff, v4
    v_lshlrev_b32 v5, 2, v4
    v_and_b32 v6, 31, v0
    v_lshlrev_b32 v6, 2, v6
    v_lshl_add_u32 v6, v4, 10, v6
    s_lshl_b32 s50, s62, 7
    buffer_load_dword v7, v5, {SWS}, s63 offen sc1
    buffer_load_dword v8, v6, {SX}, s50 offen
    v_add_u32 v2, {L_XS}, v2
    v_and_b32 v1, 1, v0
    v_lshrrev_b32 v6, 5, v0
    v_lshlrev_b32 v6, 4, v6
    v_lshl_add_u32 v6, v1, 7, v6
    v_add_u32 v6, {L_XS}, v6
    s_waitcnt vmcnt(0)
    v_and_b32 v9, 0xffff0000, v7
    v_rcp_f32 v9, v9
    v_lshlrev_b32 v7, 16, v7
    v_lshlrev_b32 v28, 16, v8
    v_and_b32 v29, 0xffff0000, v8
    v_sub_f32 v28, v28, v7
    v_sub_f32 v29, v29, v7
    v_cvt_pk_bf16_f32 v28, 0, v28
    v_cvt_pk_bf16_f32 v29, 0, v29
    v_mul_f32 v28, v28, v9
    v_mul_f32 v29, v29, v9
    v_cvt_pk_bf16_f32 v28, v28, v29
    ds_write_b32 v2, v28
    s_waitcnt lgkmcnt(0)""")
    stamp(7)
    XSF, AC0, AC1 = 120, 104, 24
    for s in range(4):
        a(f"ds_read_b128 v[{XSF+4*s}:{XSF+4*s+3}], v6 offset:{32*s}")
    a("s_waitcnt lgkmcnt(0)")
    for mtx in range(2):
        for s in range(4):
            mfma32(AC0, XSF + 4 * s, WFR + 4 * ((2 * mtx) * 4 + s), None if s == 0 else AC0)
            mfma32(AC1, XSF + 4 * s, WFR + 4 * ((2 * mtx + 1) * 4 + s), None if s == 0 else AC1)
        a(f"""v_cndmask_b32 v{8+2*mtx}, v{AC1}, v{AC0}, vcc
              v_cndmask_b32 v{9+2*mtx}, v{AC1+1}, v{AC0+1}, vcc""")
    a(f"""s_lshl_b32 s50, s2, 10
    s_add_u32 s50, s50, {WS_P1}
    v_lshlrev_b32 v1, 4, v0
    buffer_store_dwordx4 v[8:11], v1, {SWS}, s50 offen sc1
    s_lshl_b32 s65, s61, 7
    s_add_u32 s65, s65, {WS_FLAG + F3*128}
    s_waitcnt vmcnt(0)""")
    signal("s65", hZ, hONE)
    stamp(8)
    a("s_branch L_h_tail")

    a(f"""L_h2:
    s_cmpk_lt_u32 s2, 0xe0
    s_cbranch_scc0 L_h_tail""")
    mailbox("h2")
    a(f"""v_lshl_add_u32 v34, v31, 10, v32
    s_lshl_b32 s50, s61, 16
    s_lshl_b32 s51, s62, 7
    s_add_u32 s50, s50, s51""")
    srd(44, 22, 1835008)
    for s in range(4):
        for ct in range(2):
            a(f"""s_mov_b32 m0, {L_DN + (ct*4 + s)*1024}
                  s_add_u32 s51, s50, {s*16384 + ct*64}
                  {'s_nop 0' if cfg.nocold & 1 else f'buffer_load_dwordx4 v34, {SAUX}, s51 offen {cfg.ntw} lds'}""")
    a(f"""v_add_u32 v35, {L_DN}, v30
    s_waitcnt vmcnt(0)""")
    for b in range(8):
        read_w(WFR + 4 * b, 35, b * 1024)
        if b == 6:
            a("s_waitcnt lgkmcnt(0)")
    a(f"""s_waitcnt lgkmcnt(0)
    s_lshl_b32 s65, s61, 7
    s_add_u32 s65, s65, {WS_FLAG + F3*128}""")
    poll("s65", 8, "f3", hZ, hT, sleep=16)
    stamp(6)
    a(f"""s_lshl_b32 s50, s61, 13
    s_add_u32 s50, s50, {WS_P1}
    s_add_u32 s51, s50, 4096
    v_lshlrev_b32 v1, 4, v0""")
    for k in range(8):
        a(f"buffer_load_dwordx4 v[{72+4*k}:{75+4*k}], v1, {SWS}, {'s50' if k < 4 else 's51'} offen offset:{1024*(k & 3)} sc1")
    a(f"""v_lshlrev_b32 v2, 1, v0
    v_add_u32 v2, {L_XS + 256}, v2
    v_and_b32 v1, 1, v0
    v_lshrrev_b32 v6, 5, v0
    v_lshlrev_b32 v6, 4, v6
    v_lshl_add_u32 v6, v1, 7, v6
    v_add_u32 v6, {L_XS + 256}, v6
    v_cmp_gt_u32 vcc, 32, v0
    s_waitcnt vmcnt(0)""")
    for k in range(1, 8):
        a(f"""v_pk_add_f32 v[72:73], v[72:73], v[{72+4*k}:{73+4*k}]
              v_pk_add_f32 v[74:75], v[74:75], v[{74+4*k}:{75+4*k}]""")
    for i in range(4):
        rnd(72 + i, f"v{72+i}")
    a(f"""v_mul_f32 v76, {f32(-LOG2E)}, v72
    v_mul_f32 v77, {f32(-LOG2E)}, v73
    v_exp_f32 v76, v76
    v_exp_f32 v77, v77
    v_add_f32 v76, 1.0, v76
    v_add_f32 v77, 1.0, v77
    v_rcp_f32 v76, v76
    v_rcp_f32 v77, v77
    v_mul_f32 v76, v76, v72
    v_mul_f32 v77, v77, v73
    v_cvt_pk_bf16_f32 v76, 0, v76
    v_cvt_pk_bf16_f32 v77, 0, v77
    v_mul_f32 v76, v76, v74
    v_mul_f32 v77, v77, v75
    v_cvt_pk_bf16_f32 v76, v76, v77
    ds_write_b16 v2, v76
    ds_write_b16_d16_hi v2, v76 offset:128
    s_waitcnt lgkmcnt(0)""")
    for s in range(4):
        a(f"ds_read_b128 v[{XSF+4*s}:{XSF+4*s+3}], v6 offset:{32*s}")
    a("s_waitcnt lgkmcnt(0)")
    for s in range(4):
        mfma32(AC0, XSF + 4 * s, WFR + 4 * s, None if s == 0 else AC0)
        mfma32(AC1, XSF + 4 * s, WFR + 4 * (4 + s), None if s == 0 else AC1)
    a(f"""s_lshl_b32 s50, s61, 11
    s_lshl_b32 s51, s62, 8
    s_add_u32 s50, s50, s51
    s_add_u32 s50, s50, {WS_P2}
    s_add_u32 s51, s50, {28*2048}
    s_lshl_b32 s65, s62, 7
    s_add_u32 s65, s65, {WS_FLAG + F4*128}
    v_lshlrev_b32 v1, 2, v0
    v_cndmask_b32 v8, v{AC1}, v{AC0}, vcc
    v_cndmask_b32 v9, v{AC1+1}, v{AC0+1}, vcc
    buffer_store_dword v8, v1, {SWS}, s50 offen sc1
    buffer_store_dword v9, v1, {SWS}, s51 offen sc1
    s_waitcnt vmcnt(0)""")
    signal("s65", hZ, hONE)
    stamp(8)
    a("s_branch L_h_tail")

    def key_tok(dst, key):
        a(f"s_and_b32 {dst}, {key}, 0x7ff\ns_sub_u32 {dst}, 0x7ff, {dst}")

    a("L_h3:")
    mailbox("h3")
    a(f"""s_lshl_b32 s65, s59, 7
    s_add_u32 s65, s65, {WS_FLAG + F4*128}
    s_mov_b32 s68, 0
    v_lshlrev_b32 v3, 2, v0
L_h3_sel:""")
    key_tok("s50", "s66")
    a(f"""s_lshr_b32 s50, s50, 6
    s_cmp_lg_u32 s50, s60
    s_cbranch_scc1 L_h3_next""")
    poll("s65", 28, "f4", hZ, hT, sleep=16)
    stamp(6)
    a(f"""s_mul_i32 s50, s68, {28*2048}
    s_lshl_b32 s51, s59, 8
    s_add_u32 s50, s50, s51
    s_add_u32 s50, s50, {WS_P2}""")
    for k in range(28):
        a(f"buffer_load_dword v{40+k}, v3, {SWS}, s50 offen offset:{2048*(k & 1)} sc1")
        if k & 1:
            a("s_add_u32 s50, s50, 4096")
    a(f"""s_and_b32 s51, s66, 0xffff0000
    s_xor_b32 s52, s51, 0x80000000
    s_xor_b32 s53, s51, 0xffff0000
    s_bitcmp1_b32 s51, 31
    s_cselect_b32 s51, s52, s53
    v_mov_b32 v4, {f32(-LOG2E)}
    v_mul_f32 v4, s51, v4
    v_exp_f32 v4, v4
    s_lshl_b32 s51, s68, 8
    s_add_u32 s51, s51, {L_Y}
    v_add_u32 v7, s51, v3
    v_add_f32 v4, 1.0, v4
    v_rcp_f32 v4, v4
    s_waitcnt vmcnt(0)
    v_cvt_pk_bf16_f32 v4, 0, v4""")
    for k in range(1, 14):
        a(f"v_pk_add_f32 v[40:41], v[40:41], v[{40+2*k}:{41+2*k}]")
    a(f"""v_add_f32 v40, v40, v41
    v_cvt_pk_bf16_f32 v40, 0, v40
    v_mul_f32 v40, v40, v4
    v_cvt_pk_bf16_f32 v40, 0, v40
    ds_write_b32 v7, v40
L_h3_next:
    s_mov_b32 s66, s67
    s_add_u32 s68, s68, 1
    s_cmp_lt_u32 s68, 2
    s_cbranch_scc1 L_h3_sel""")
    stamp(8)

    a(f"""L_h_tail:
    s_setprio 0
    s_waitcnt vmcnt(0) lgkmcnt(0)
    s_barrier                             ; T1""")
    stamp(9)
    a(f"""v_mov_b32 v6, {L_CTR}
    ds_read_b64 v[4:5], v6 offset:8
    v_and_b32 v1, 7, v0
    v_lshlrev_b32 v7, 5, v1
    v_add_u32 v7, {L_Y}, v7
    s_mov_b32 s68, 0
    s_waitcnt lgkmcnt(0)
    v_readfirstlane_b32 s66, v4
    v_readfirstlane_b32 s67, v5
L_ht_sel:""")
    key_tok("s50", "s66")
    a(f"""s_lshr_b32 s51, s50, 6
    s_cmp_lg_u32 s51, s60
    s_cbranch_scc1 L_ht_next
    s_and_b32 s50, s50, 63
    ds_read_b128 v[8:11], v7
    ds_read_b128 v[12:15], v7 offset:16
    s_sub_u32 s51, s50, 8
    v_cmp_eq_u32 s[52:53], s50, v22
    v_cmp_eq_u32 s[54:55], s51, v22
    s_waitcnt lgkmcnt(0)""")
    for q in range(2):
        for i in range(4):
            r = hXN + 4 * q + i
            a(f"""v_lshlrev_b32 v28, 16, v{r}
                  v_and_b32 v29, 0xffff0000, v{r}
                  v_add_f32 v28, v28, v{8+2*i}
                  v_add_f32 v29, v29, v{9+2*i}
                  v_cvt_pk_bf16_f32 v28, v28, v29
                  v_cndmask_b32 v{r}, v{r}, v28, s[{52+2*q}:{53+2*q}]""")
    a(f"""L_ht_next:
    v_add_u32 v7, 256, v7
    s_mov_b32 s66, s67
    s_add_u32 s68, s68, 1
    s_cmp_lt_u32 s68, 2
    s_cbranch_scc1 L_ht_sel""")
    gate(0, cfg.gatepos)
    XU = 40
    srd(44, 24, 2097152)
    def stage_setup(sw_sgpr):
        a(f"""s_lshr_b32 s30, {sP}, 3
              s_lshl_b32 s31, {sJ}, 1
              s_add_u32 s30, s30, s31
              s_lshl_b32 s30, s30, 16
              s_lshl_b32 s31, {sw_sgpr}, 10
              s_add_u32 s68, s30, s31
              s_add_u32 s68, s68, {WS_OF}
              s_add_u32 s69, s31, {L_OST}""")

    def stage_o(addr):
        def grp(g):
            for tt in range(2):
                off = g * 8192 + tt * 32768
                a(f"""s_add_u32 m0, s69, {off}
                      s_add_u32 s30, s68, {off}
                      buffer_load_dwordx4 v{addr}, {SWS}, s30 offen sc1 lds""")
        grp(0)
        grp(1)
        for g in range(4):
            a(f"""s_waitcnt vmcnt({2 if g < 3 else 0})
            s_barrier                             ; T4{'abcd'[g]}""")
            if g < 2:
                grp(g + 2)

    stage_setup(sT)
    a(f"""v_and_b32 v2, 7, v22
    v_xor_b32 v2, v1, v2
    v_lshlrev_b32 v3, 7, v22
    v_lshl_add_u32 v4, v2, 4, v3
    v_lshlrev_b32 v5, 4, v0
    s_barrier                             ; T2""")
    gate(cfg.gatepos, 8)
    a("s_barrier                             ; T3")
    stage_o(5)
    for i in range(8):
        a(f"v_lshlrev_b32 v{XU+2*i}, 16, v{hXP+i}\nv_and_b32 v{XU+2*i+1}, 0xffff0000, v{hXP+i}")
    a(f"""s_barrier                             ; T5
    ds_read_b128 v[8:11], v4 offset:{L_SST}
    ds_read_b128 v[12:15], v4 offset:{L_SST + 1024}""")
    for q in range(2):
        a(f"s_waitcnt lgkmcnt({1-q})")
        for i in range(4):
            e = 8 * q + 2 * i
            a(f"""v_lshlrev_b32 v28, 16, v{8+4*q+i}
                  v_and_b32 v29, 0xffff0000, v{8+4*q+i}
                  v_fma_f32 v28, v28, v{hG+e}, v{XU+e}
                  v_fma_f32 v29, v29, v{hG+e+1}, v{XU+e+1}
                  v_cvt_pk_bf16_f32 v{8+4*q+i}, v28, v29""")
        a(f"buffer_store_dwordx4 v[{8+4*q}:{11+4*q}], v{hOA+q}, {SAUX}, 0 offen")
    stamp(14)
    if cfg.stamps:
        a("s_waitcnt vmcnt(0)")
    stamp(15)
    if cfg.probe and len(cfg.probe) > 3:
        srd(44, 26, 256)
        a(f"""v_mov_b32 v0, 0
        v_mov_b32 v1, s98
        s_not_b32 s99, s98
        v_mov_b32 v2, s99
        s_getreg_b32 s30, hwreg(HW_REG_XCC_ID, 0, 4)
        s_lshl_b32 s30, 1, s30
        s_and_b32 s30, s30, {cfg.probe[4] if len(cfg.probe) > 4 else 255}
        s_mov_b64 exec, 1
        s_cbranch_scc0 L_pr_nomax
        buffer_atomic_umax v1, v0, {SAUX}, 0 offen offset:32 sc1
    L_pr_nomax:
        buffer_atomic_umax v2, v0, {SAUX}, 0 offen offset:160 sc1
        s_waitcnt vmcnt(0)
    L_probe0:
        s_sleep 4
        s_memrealtime s[100:101]
        s_waitcnt lgkmcnt(0)
        s_sub_u32 s100, s100, s96
        s_cmp_lt_u32 s100, {cfg.probe[1] - 500}
        s_cbranch_scc1 L_probe0
        buffer_load_dword v1, v0, {SAUX}, 0 offen offset:32 sc1
        buffer_load_dword v2, v0, {SAUX}, 0 offen offset:160 sc1
        s_waitcnt vmcnt(0)
        v_readfirstlane_b32 s98, v1
        v_readfirstlane_b32 s99, v2
        s_nop 1
        s_not_b32 s99, s99
        s_sub_u32 s98, s98, s99
        s_add_u32 s98, s98, s96""")
    if cfg.probe:
        a(f"""s_sub_u32 s98, s98, s96
        s_mul_i32 s98, s98, {cfg.probe[2]}
        s_add_u32 s98, s98, {cfg.probe[1]}
        s_min_u32 s98, s98, 100000
    L_probe:
        s_sleep 4
        s_memrealtime s[100:101]
        s_waitcnt lgkmcnt(0)
        s_sub_u32 s100, s100, s96
        s_cmp_lt_u32 s100, s98
        s_cbranch_scc1 L_probe""")
    dump_stamps()
    a("s_endpgm")

    vXA, vWA = 144, 148
    vM, vRS, vDEN = 149, 150, 151
    CS = 152
    MF = 156
    t = 160
    vLANE, vL16 = 166, 167

    class Lg:
        def __init__(self):
            self.q = []

        def rd(self, tag, text):
            for ln in text.strip().split("\n"):
                if len(self.q) >= 15:
                    a("s_waitcnt lgkmcnt(9)")
                    self.q = self.q[-9:]
                a(ln)
                self.q.append(tag)

        def wait(self, *tags):
            last = max((i for i, x in enumerate(self.q) if x in tags), default=-1)
            if last < 0:
                return
            n = len(self.q) - 1 - last
            a(f"s_waitcnt lgkmcnt({min(n, 15)})")
            self.q = self.q[last + 1:]

    def trs(dst, addr, off, second=256):
        return (f"ds_read_b64_tr_b16 v[{dst}:{dst+1}], v{addr} offset:{off}\n"
                f"ds_read_b64_tr_b16 v[{dst+2}:{dst+3}], v{addr} offset:{off + second}")

    a(f"""L_compute:
    v_mov_b32 v{vLANE}, v0
    v_lshlrev_b32 v{vL16}, 4, v0
    v_and_b32 v1, 31, v0
    v_lshrrev_b32 v2, 5, v0              ; half
    v_bfe_u32 v3, v0, 1, 3
    v_xor_b32 v3, v3, v2
    s_lshl_b32 s30, {sT}, 12
    s_add_u32 s30, s30, {L_RING}
    v_lshl_add_u32 v4, v1, 7, s30""")
    for s in range(4):
        a(f"v_xor_b32 v5, {2*s}, v3\nv_lshl_add_u32 v{vXA+s}, v5, 4, v4")
    tr_addr(vWA, 0, 3, 4)
    a(f"""v_lshrrev_b32 v3, 2, v0
    v_xor_b32 v3, v3, v0
    v_and_b32 v3, 4, v3
    v_cmp_eq_u32 vcc, 0, v3
    v_mov_b32 v4, {sONE}""")
    for i in range(4):
        a(f"v_cndmask_b32 v{CS+i}, 0, v4, vcc")
    a("s_waitcnt lgkmcnt(0)")
    if cfg.stamps:
        a("s_mov_b32 s80, s78")
    srd(40, 28, WS_SIZE)
    SA, SB, OO, QQ, RING = 0, 16, 32, 96, 112
    vIDX = 160
    vC = 154
    sHH, sKQ = "s58", sT
    sVM = "s[62:63]"

    def slot(s):
        b = RING + 12 * s
        return dict(K=b, V=[b + 4, b + 8])

    def const_rows(tmp):
        return [f"v_and_b32 v{tmp}, 27, v{vLANE}",
                f"v_cmp_eq_u32 vcc, 16, v{tmp}",
                f"v_mov_b32 v{tmp}, {sONE}",
                f"v_cndmask_b32 v{vC}, 0, v{tmp}, vcc\nv_cndmask_b32 v{vC+1}, 0, v{tmp}, vcc"]

    def attn_init_b(slots):
        for s in slots:
            for i in range(0, 8, 2):
                r = slot(s)["V"][0] + i
                if r != vC:
                    a(f"v_mov_b64 v[{r}:{r+1}], v[{vC}:{vC+1}]")

    a(f"""s_lshr_b32 {sHH}, {sWV}, 3
    s_mov_b32 s62, 0xffff
    s_mov_b32 s63, 0xffff
    s_lshl_b32 s64, {sP}, 1
    s_add_u32 s64, s64, {sHH}
    s_lshl_b32 s64, s64, 17
    s_lshl_b32 s61, {sJ}, 13
    s_lshl_b32 s31, {sKQ}, 11
    s_add_u32 s61, s61, s31
    s_add_u32 s61, s61, 8192
    s_and_b32 s61, s61, 0x1ffff
    s_lshl_b32 s30, {sHH}, 13
    s_add_u32 s71, s30, s31
    s_lshl_b32 s31, {sHH}, 12""")
    for i in range(4):
        a(f"""s_add_u32 s30, {sKQ}, {1 + i}
              s_and_b32 s30, s30, 3
              s_lshl_b32 s30, s30, 10
              s_add_u32 s{72+i}, s30, s31""")
    a(f"""s_cmp_ge_u32 {sWV}, 8
    s_cbranch_scc1 L_bwave""")

    XB, WK, WV, AK, AV, RB, ASX, SQ = (0, 16), 32, 48, 64, 80, 96, 112, 116
    SFK, SFV, RF, OF_ = 128, 132, 136, 140
    vKG, vVG = 164, 165
    EFA, vEA = RB, vM
    a(f"""v_and_b32 v1, 3, v0
    v_mov_b32 v5, {L_ZERO}
    v_mov_b32 v6, {L_ONES}
    v_mov_b32 v7, {L_WR}
    v_cmp_eq_u32 s[52:53], 0, v1
    v_cmp_eq_u32 s[54:55], 1, v1
    v_cndmask_b32 v6, v5, v6, s[52:53]
    v_cndmask_b32 v6, v6, v7, s[54:55]
    v_cndmask_b32 v6, v5, v6, vcc
    v_lshl_add_u32 v{vEA}, v2, 4, v6
    v_cmp_gt_u32 vcc, 32, v{vLANE}
    v_and_b32 v{t}, 0x33, v{vLANE}
    v_bfe_u32 v{t+1}, v{vLANE}, 2, 1
    v_lshl_add_u32 v{t}, v{t+1}, 3, v{t}
    v_bfe_u32 v{t+1}, v{vLANE}, 3, 1
    v_lshl_add_u32 v{t}, v{t+1}, 2, v{t}
    v_lshlrev_b32 v{vKG}, 4, v{t}
    v_and_b32 v{t}, 0x2f, v{vLANE}
    v_lshlrev_b32 v{t}, 4, v{t}
    v_bfe_u32 v{t+1}, v{vLANE}, 4, 1
    v_lshl_add_u32 v{vVG}, v{t+1}, 17, v{t}
    v_cndmask_b32 v{OF_}, 0, v4, vcc
    v_cndmask_b32 v{OF_+1}, 0, v4, vcc
    v_mov_b32 v{OF_+2}, 0
    v_mov_b32 v{OF_+3}, 0
    v_mov_b32 v{RF+2}, 0
    v_mov_b32 v{RF+3}, 0
    v_add_u32 v{t+3}, {L_SFR}, v{vL16}
    v_and_b32 v1, 31, v{vLANE}
    s_lshl_b32 s30, {sT}, 5
    v_add_lshl_u32 v{CS}, v1, s30, 3
    v_add_u32 v{CS}, {L_STAT}, v{CS}
    v_add_u32 v5, {L_WR}, v{vL16}
    v_mov_b32 v8, v4
    v_mov_b32 v9, v4
    v_mov_b32 v10, v4
    v_mov_b32 v11, v4
    s_lshl_b32 s50, {sP}, 18
    s_lshl_b32 s30, {sJ}, 13
    s_add_u32 s50, s50, s30
    s_lshl_b32 s49, {sT}, 11
    s_add_u32 s50, s50, s49
    s_add_u32 s51, s50, 0x20000
    s_mov_b32 s52, 0xaaaaaaaa
    s_mov_b32 s53, 0xaaaaaaaa
    s_mov_b32 s54, 0xcccccccc
    s_mov_b32 s55, 0xcccccccc
    """)
    for ins in const_rows(6):
        a(ins)
    a("""s_barrier                             ; Ba
    ds_read_b128 v[12:15], v5""")
    lg = Lg()

    def rdw(n, s, which):
        if cfg.x1 & 4 and n > 0:
            return
        if which == 0:
            lg.rd(("k", n, s), trs(WK + 4 * s, vWA, L_WK + n * 4096 + s * 1024))
        else:
            lg.rd(("v", n, s), trs(WV + 4 * s, vWA, L_WV + n * 4096 + s * 1024))

    def rdx(n, s):
        r = XB[n & 1] + 4 * s
        off = (n % 5) * 16384 - (16 if n == 4 else 0)
        lg.rd(("x", n, s), f"ds_read_b128 v[{r}:{r+3}], v{vXA+s} offset:{off}")

    def rde(n, s):
        lg.rd(("e", n, s), f"ds_read_b128 v[{EFA+4*s}:{EFA+4*s+3}], v{vEA} offset:{(4*n + s)*32}")

    def bigk(n, s):
        lg.wait(("k", n, s), ("x", n, s))
        if cfg.x1 & 8 and 0 < n < 7:
            return
        mfma32(AK, WK + 4 * s, XB[n & 1] + 4 * s, None if (n, s) == (0, 0) else AK)

    def bigv(n, s):
        lg.wait(("v", n, s), ("x", n, s))
        if cfg.x1 & 8 and 0 < n < 7:
            return
        mfma32(AV, XB[n & 1] + 4 * s, WV + 4 * s, None if (n, s) == (0, 0) else AV)

    def smalls(n, fill=()):
        fill = list(fill)
        lg.wait(*[(k_, n, s) for s in range(4) for k_ in "xe"])
        if cfg.x1 & 2 and n not in (0, 7):
            for f_ in fill: a(f_)
            return
        for s in range(4):
            mfma16(ASX, EFA + 4 * s, XB[n & 1] + 4 * s, None if (n, s) == (0, 0) else ASX)
            if fill:
                a(fill.pop(0))
        for i in range(8):
            d = SQ + 4 * (i % 3)
            r = XB[n & 1] + 2 * i
            c = "0" if (n == 0 and i < 3) else f"v[{d}:{d+3}]"
            a(f"v_mfma_f32_4x4x4_16b_bf16 v[{d}:{d+3}], v[{r}:{r+1}], v[{r}:{r+1}], {c}")
        assert not fill

    def head(n):
        rdx(n, 0); rdx(n, 1)
        if n:
            bigk(n - 1, 2)
        rdx(n, 2); rdx(n, 3); rde(n, 0); rde(n, 1)
        if n:
            bigv(n - 1, 2)
        rdw(n, 2, 0); rdw(n, 2, 1)
        if n:
            bigk(n - 1, 3)
        rdw(n, 3, 0); rde(n, 2); rde(n, 3)
        if n:
            bigv(n - 1, 3)
        rdw(n, 3, 1)

    for s in range(2):
        rdw(0, s, 0); rdw(0, s, 1)
    a("s_waitcnt lgkmcnt(8)")
    mfma16(16, 8, 12)
    for r in (8, 4, 2, 1):
        a(f"v_add_f32_dpp v16, v16, v16 row_ror:{r} row_mask:0xf bank_mask:0xf")
    a("v_readfirstlane_b32 s70, v16")
    for n in range(7):
        a(f"s_barrier                             ; B{n}")
        head(n)
        for s in range(2):
            bigk(n, s)
            rdw(n + 1, s, 0)
            bigv(n, s)
            rdw(n + 1, s, 1)
        fill = []
        if n == 3:
            fill = [f"v_add_u32 v{vXA+s}, 16, v{vXA+s}" for s in range(4)]
        if n == 4:
            fill = [f"v_add_u32 v{vXA+s}, -16, v{vXA+s}" for s in range(4)]
        smalls(n, fill)
    a("s_barrier                             ; B7")
    stamp(3)
    head(7)
    lg.rd("sf", f"ds_read_b128 v[{SFK}:{SFK+3}], v{t+3}\nds_read_b128 v[{SFV}:{SFV+3}], v{t+3} offset:1024")
    smalls(7)
    PK = XB[0]
    groups = [
        [],
        [f"v_mul_f32 v{t}, {f32(1/512)}, v{ASX}            ; mean"] +
        [f"v_pk_add_f32 v[{SQ+i}:{SQ+i+1}], v[{SQ+i}:{SQ+i+1}], v[{SQ+4+i}:{SQ+5+i}]" for i in (0, 2)] +
        [f"v_pk_add_f32 v[{SQ+i}:{SQ+i+1}], v[{SQ+i}:{SQ+i+1}], v[{SQ+8+i}:{SQ+9+i}]" for i in (0, 2)],
        [f"v_cvt_pk_bf16_f32 v{MF}, -v{t}, -v{t}",
         f"v_cndmask_b32 v{SQ}, v{SQ}, v{SQ+1}, s[52:53]",
         f"v_cndmask_b32 v{SQ+2}, v{SQ+2}, v{SQ+3}, s[52:53]",
         f"v_mov_b32 v{MF+1}, v{MF}",
         f"v_cndmask_b32 v{SQ}, v{SQ}, v{SQ+2}, s[54:55]",
         f"v_mov_b32 v{t+1}, v{SQ}"],
        [f"v_mov_b32 v{MF+2}, v{MF}",
         f"v_mov_b32 v{MF+3}, v{MF}",
         f"v_permlane32_swap_b32 v{t+1}, v{SQ}",
         f"v_add_f32 v{t+1}, v{t+1}, v{SQ}",
         f"v_mul_f32 v{t+1}, {f32(1/512)}, v{t+1}"],
        [f"v_fma_f32 v{t+1}, -v{t}, v{t}, v{t+1}         ; variance",
         f"v_max_f32 v{t+1}, 0, v{t+1}",
         f"v_cvt_pk_bf16_f32 v{t+1}, 0, v{t+1}",
         f"v_add_f32 v{t+1}, {f32(1e-5)}, v{t+1}",
         f"v_cvt_pk_bf16_f32 v{t+1}, 0, v{t+1}",
         f"v_sqrt_f32 v{t+1}, v{t+1}"],
        [f"v_cvt_pk_bf16_f32 v{vDEN}, 0, v{t+1}",
         f"v_rcp_f32 v{vRS}, v{vDEN}",
         f"v_cvt_pk_bf16_f32 v{vM}, 0, v{t}",
         f"v_and_b32 v{t}, 0xffff0000, v{vRS}",
         f"v_sub_f32 v{t+1}, v{vRS}, v{t}"],
        [f"v_and_b32 v{t+2}, 0xffff0000, v{t+1}",
         f"v_sub_f32 v{t+1}, v{t+1}, v{t+2}",
         f"v_lshrrev_b32 v{t}, 16, v{t}",
         f"v_or_b32 v{RF}, v{t}, v{t+2}",
         f"v_lshrrev_b32 v{RF+1}, 16, v{t+1}",
         f"v_mul_f32 v{AK}, v{vRS}, v{AK}"],
        [f"ds_write2_b32 v{CS}, v{vM}, v{vDEN} offset1:1"] + [f"v_mul_f32 v{AK+i}, v{vRS}, v{AK+i}" for i in range(1, 7)],
        [f"v_mul_f32 v{AK+7}, v{vRS}, v{AK+7}"] +
        [f"v_cvt_pk_bf16_f32 v{PK+i}, v{AK+2*i}, v{AK+2*i+1}" for i in range(4)] +
        [f"buffer_store_dwordx4 v[{PK}:{PK+3}], v{vKG}, {SWS}, s50 offen sc1"],
        [f"v_mul_f32 v{AK+i}, v{vRS}, v{AK+i}" for i in range(8, 14)],
        [f"v_mul_f32 v{AK+i}, v{vRS}, v{AK+i}" for i in range(14, 16)] +
        [f"v_cvt_pk_bf16_f32 v{PK+i}, v{AK+2*i}, v{AK+2*i+1}" for i in range(4, 8)] +
        [f"buffer_store_dwordx4 v[{PK+4}:{PK+7}], v{vKG}, {SWS}, s51 offen sc1"],
    ]

    def augk():
        lg.wait("sf")
        mfma32(AK, SFK, MF, AK)
    seq = [lambda s=s: bigk(7, s) for s in range(4)] + [augk] + [lambda s=s: bigv(7, s) for s in range(3)]
    seq += [lambda: mfma32(RB, RF, OF_), lambda: bigv(7, 3), lambda: mfma32(AV, MF, SFV, AV)]
    assert len(seq) == len(groups)
    for m, g in zip(seq, groups):
        m()
        for ins in g:
            a(ins)
    for hf in range(2):
        for i in range(4 * hf, 4 * hf + 4):
            a(f"v_pk_mul_f32 v[{AV+2*i}:{AV+2*i+1}], v[{RB+2*i}:{RB+2*i+1}], v[{AV+2*i}:{AV+2*i+1}]")
        for i in range(4 * hf, 4 * hf + 4):
            a(f"v_cvt_pk_bf16_f32 v{PK+8+i}, v{AV+2*i}, v{AV+2*i+1}")
        a(f"buffer_store_dwordx4 v[{PK+8+4*hf}:{PK+11+4*hf}], v{vVG}, {SWS}, s50 offen offset:{1024 + 256*hf} sc1")
    stamp(2)

    def drain_signal():
        a(f"""s_waitcnt vmcnt(0)
        s_mov_b64 exec, 1
        ds_add_rtn_u32 v{t+3}, v{t+2}, v{t+4}
        s_mov_b64 exec, -1
        s_waitcnt lgkmcnt(0)
        v_readfirstlane_b32 s59, v{t+3}
        s_cmp_lg_u32 s59, 3
        s_cbranch_scc1 L_a_nosig""")
        signal("s57", t + 1, t + 4)
        stamp(1)
        a("L_a_nosig:")

    a(f"""s_waitcnt lgkmcnt(0)
    s_setprio 1
    s_barrier                             ; B8""")
    stamp(4)
    a(f"""v_and_b32 v{t}, 31, v{vLANE}
    v_add_u32 v28, s49, v{vKG}
    v_and_b32 v29, 0x3ff, v{vVG}
    v_lshrrev_b32 v30, 4, v{vVG}
    v_and_b32 v30, 0x2000, v30
    v_add3_u32 v29, v29, v30, s49
    v_mov_b32 v{t+1}, 0
    v_mov_b32 v{t+2}, {L_CTR}
    v_mov_b32 v{t+4}, 1
    s_lshl_b32 s57, {sP}, 7
    s_add_u32 s57, s57, {WS_FLAG + F1*128}
    s_lshl_b32 s30, {sJ}, 7
    s_lshl_b32 s31, {sT}, 5
    s_add_u32 s30, s30, s31
    s_sub_u32 s53, 0x7ff, s30""")
    AR = ASX + 1
    a(f"""v_fma_f32 v{AR}, -v{vM}, s70, v{AR}
    v_mul_f32 v{AR}, v{vRS}, v{AR}
    v_cvt_pk_bf16_f32 v{AR}, 0, v{AR}
    v_ashrrev_i32 v{AR+1}, 31, v{AR}
    v_or_b32 v{AR+1}, 0x80000000, v{AR+1}
    v_xor_b32 v{AR}, v{AR}, v{AR+1}
    v_and_b32 v{AR}, 0xffff0000, v{AR}
    v_sub_u32 v{AR+1}, s53, v{t}
    v_or_b32 v{AR}, v{AR}, v{AR+1}""")
    wavemax_u32("s50", AR, AR + 1, 2)
    a(f"""v_cmp_eq_u32 vcc, s50, v{AR}
    v_cndmask_b32 v{AR}, v{AR}, v{t+1}, vcc""")
    wavemax_u32("s51", AR, AR + 1, 2)
    a(f"""s_lshl_b32 s30, {sT}, 3
    s_add_u32 s30, s30, {L_KEY}
    v_mov_b32 v16, s50
    v_mov_b32 v17, s51
    v_mov_b32 v18, s30
    ds_write_b64 v18, v[16:17]
    ds_write_b128 v28, v[{PK}:{PK+3}] offset:{L_OWNKV}
    ds_write_b128 v28, v[{PK+4}:{PK+7}] offset:{L_OWNKV + 8192}
    ds_write_b128 v29, v[{PK+8}:{PK+11}] offset:{L_OWNKV + 1024}
    ds_write_b128 v29, v[{PK+12}:{PK+15}] offset:{L_OWNKV + 1280}""")
    stamp(14)
    a("s_setprio 3")
    drain_signal()
    a("s_setprio 1")
    for r in range(OO, OO + 64, 2):
        a(f"v_mov_b64 v[{r}:{r+1}], 0")
    attn_init_b((0,))
    stamp(8)
    a("s_branch L_attn_pre")

    XF, WF, EF, ACC, ASK, ASV, AR = 0, 80, 96, 112, 128, 132, 136
    a(f"""L_bwave:
    s_cmp_lg_u32 {sT}, 0
    s_cbranch_scc1 L_b_noinit""")
    a(f"""v_mov_b32 v5, v4
    v_mov_b32 v6, v4
    v_mov_b32 v7, v4
    v_add_u32 v1, {L_ZERO}, v{vL16}
    v_mov_b32 v8, 0
    v_mov_b32 v9, 0
    v_mov_b32 v10, 0
    v_mov_b32 v11, 0
    ds_write_b128 v1, v[4:7] offset:{L_ONES - L_ZERO}
    ds_write_b128 v1, v[8:11]
    ds_write_b128 v1, v[8:11] offset:192
    s_waitcnt lgkmcnt(0)
L_b_noinit:""")
    srd(44, 26, 256)
    a(f"""s_lshl_b32 s52, s2, 2
    s_add_u32 s52, s52, {sT}
    s_cmp_lg_u32 s52, 1
    s_cbranch_scc1 L_b_noclear
    v_lshlrev_b32 v1, 7, v{vLANE}
    s_mov_b32 s30, {WS_FLAG}
    s_mov_b32 s31, {WS_FLAG + 64*128}
    v_mov_b32 v8, 0
    v_mov_b32 v9, 0
    v_mov_b32 v10, 0
    v_mov_b32 v11, 0
    buffer_store_dword v8, v1, {SWS}, s30 offen sc1
    buffer_store_dwordx4 v[8:11], v1, {SWS}, s31 offen sc1
    buffer_store_dwordx4 v[8:11], v1, {SWS}, s31 offen offset:16 sc1
    buffer_store_dwordx4 v[8:11], v1, {SWS}, s31 offen offset:32 sc1
    buffer_store_dwordx4 v[8:11], v1, {SWS}, s31 offen offset:48 sc1
L_b_noclear:""")
    a(f"""s_lshl_b32 s30, {sT}, 10
    v_add_u32 v{t}, s30, v{vWA}
    v_cmp_gt_u32 vcc, 32, v{vLANE}
    v_and_b32 v{EF}, 31, v{vLANE}
    v_lshrrev_b32 v{EF+1}, 5, v{vLANE}
    v_lshlrev_b32 v{EF+1}, 10, v{EF+1}
    v_lshl_add_u32 v{EF}, v{EF}, 4, v{EF+1}
    s_lshr_b32 s30, {sT}, 1
    s_lshl_b32 s30, s30, 9
    s_and_b32 s31, {sT}, 1
    s_lshl_b32 s31, s31, 3
    s_add_u32 s30, s30, s31
    s_add_u32 s30, s30, {L_SFR}
    v_and_b32 v{vM}, 0x1ff, v{EF}
    v_add_u32 v{vM}, s30, v{vM}
    v_add_u32 v{EF}, s30, v{EF}
    s_lshl_b32 s30, {sT}, 5""")
    for s in range(4):
        a(f"v_xor_b32 v{vXA+s}, s30, v{vXA+s}")
    a("s_barrier                             ; Ba")

    def ssum(n):
        read_w(WF, t, L_WK + n * 4096)
        read_w(WF + 4, t, L_WV + n * 4096)

    def ssum2(n):
        mfma16(ASK, CS, WF, None if n == 0 else ASK)
        mfma16(ASV, CS, WF + 4, None if n == 0 else ASV)

    ssum(0)
    a("s_waitcnt lgkmcnt(0)")
    ssum2(0)
    for n in range(7):
        a(f"s_barrier                             ; B{n}")
        ssum(n + 1)
        if n < 5 and not cfg.x1 & 1:
            for s in range(4):
                r = XF + 20 * s + 4 * n
                if n < 4:
                    a(f"ds_read_b128 v[{r}:{r+3}], v{vXA+s} offset:{n*16384}")
                else:
                    a(f"v_add_u32 v{t+2}, 65536, v{vXA+s}\nds_read_b128 v[{r}:{r+3}], v{t+2}")
        if n == 0:
            a(f"""s_cmp_lg_u32 s52, 1
            s_cbranch_scc1 L_b_nosig
            s_waitcnt vmcnt(0)
            v_mov_b32 v{t+2}, 0
            v_mov_b32 v{t+3}, 1
            s_mov_b64 exec, 1
            buffer_store_dword v{t+3}, v{t+2}, {SAUX}, 0 offen sc1
            s_mov_b64 exec, -1
        L_b_nosig:""")
        if n == 4:
            a(f"""s_cmp_lg_u32 {sT}, 0
            s_cbranch_scc1 L_b_noclr
            v_mov_b32 v{t+2}, 0
            s_mov_b64 exec, 1
            buffer_load_dword v{t+5}, v{t+2}, {SAUX}, 0 offen sc1
            s_mov_b64 exec, -1
        L_b_noclr:""")
        if n == 6:
            a("s_setprio 2")
        a("s_waitcnt lgkmcnt(0)")
        ssum2(n + 1)
    a(f"v_cndmask_b32 v{EF+1}, v{ASV}, v{ASK}, vcc")
    split3(EF + 2, EF + 1, t + 2)
    a(f"""ds_write_b64 v{EF}, v[{EF+2}:{EF+3}]
    s_cmp_lg_u32 {sT}, 0
    s_cbranch_scc1 L_b_clrd
    s_waitcnt vmcnt(0)
    v_readfirstlane_b32 s30, v{t+5}
    v_mov_b32 v{t+2}, 0
    s_cmp_lg_u32 s30, 0
    s_cbranch_scc1 L_b_clrd""")
    poll("0", 1, "clr", t + 2, t + 5, sleep=1, srd_=SAUX)
    a(f"""L_b_clrd:
    s_setprio 0
    s_waitcnt vmcnt(0) lgkmcnt(0)
    s_barrier                             ; B7
    v_add_u32 v{vWA}, {L_WQ}, v{t}
    v_and_b32 v{t+4}, 31, v{vLANE}
    s_lshl_b32 s30, {sT}, 5
    v_add_lshl_u32 v{t+4}, v{t+4}, s30, 3
    v_add_u32 v{t+4}, {L_STAT}, v{t+4}
    s_lshl_b32 s30, {sT}, 10
    v_add_u32 v{t+5}, s30, v{vL16}
    v_add_u32 v{t+1}, {L_SFR}, v{vL16}
    v_mov_b32 v{t}, {L_CTR}
    v_mov_b32 v{vDEN}, 1""")
    xq = lambda n, s: XF + 20 * s + 4 * n if n < 5 else (128 if s % 2 == 0 else 0) + 4 * (n - 5)
    xrd = lambda n, s: f"ds_read_b128 v[{xq(n, s)}:{xq(n, s)+3}], v{vXA+s} offset:{(n - 5)*16384}"
    for n in range(5, 8):
        a(xrd(n, 0))
    a("""s_waitcnt lgkmcnt(0)
    s_setprio 2
    s_barrier                             ; B8""")
    stamp(4)
    lg = Lg()
    SQA = 140

    def qreads(k):
        s_, n = k >> 3, k & 7
        if n == 0 and s_:
            a(f"v_xor_b32 v{vWA}, {(s_ ^ (s_ - 1)) << 10}, v{vWA}")
        lg.rd(("q", k), trs(WF + 4 * (k % 8), vWA, n * 4096))
    for k in range(5):
        qreads(k)
    lg.rd("st", f"ds_read_b64 v[{t+2}:{t+3}], v{t+4}")
    z = lambda lo, hi: "\n".join(f"v_mov_b64 v[{r}:{r+1}], 0" for r in range(lo, hi, 2))
    cr = const_rows(t + 4)
    side = {8: f"v_rcp_f32 v{vRS}, v{t+3}\nv_cvt_pk_bf16_f32 v{MF}, -v{t+2}, -v{t+2}",
            9: f"v_mul_f32 v{vRS}, {f32(CQ)}, v{vRS}\nv_mov_b32 v{MF+1}, v{MF}",
            10: f"v_and_b32 v{t+2}, 0xffff0000, v{SQA}\nv_sub_f32 v{t+3}, v{SQA}, v{t+2}\nv_and_b32 v{t+4}, 0xffff0000, v{t+3}",
            11: f"v_sub_f32 v{t+3}, v{t+3}, v{t+4}\nv_lshrrev_b32 v{t+2}, 16, v{t+2}\nv_or_b32 v{t+2}, v{t+2}, v{t+4}",
            12: f"v_lshrrev_b32 v{t+3}, 16, v{t+3}",
            14: f"v_mov_b64 v[{MF+2}:{MF+3}], v[{MF}:{MF+1}]\n" + cr[0] + "\n" + cr[1],
            15: cr[2] + "\n" + z(32, 36), 16: cr[3], 19: z(36, 40),
            21: z(40, 46), 22: z(46, 52), 23: z(52, 56), 24: z(56, 60), 26: z(80, 84), 27: z(84, 88), 28: z(88, 96),
            29: z(60, 68), 30: z(68, 76), 31: z(76, 80)}
    for k in range(32):
        s, n = k >> 3, k & 7
        lg.wait(("q", k), ("x", k))
        mfma32(ACC, WF + 4 * (k % 8), xq(n, s), ACC if k else None)
        if k + 5 < 32:
            qreads(k + 5)
        if s < 3 and (3 <= n < 6 if s == 0 else n < 3):
            n2 = n + 2 if s == 0 else n + 5
            lg.rd(("x", 8 * (s + 1) + n2), xrd(n2, s + 1))
        if k in side:
            a(side[k])
        if k < 8:
            mfma16(SQA, CS, WF + 4 * k, SQA if k else None)
        if k == 13:
            lg.rd("w", f"ds_write_b64 v{vM}, v[{t+2}:{t+3}]")
            a("s_mov_b64 exec, 1")
            lg.rd("w", f"ds_add_u32 v{t}, v{vDEN} offset:4")
            a("s_mov_b64 exec, -1")
        if k == 25:
            lg.rd("sf", f"ds_read_b32 v{t+2}, v{t} offset:4\nds_read_b128 v[{SQA}:{SQA+3}], v{t+1}")
    a(f"""s_mov_b32 s56, 0
L_b_sq:
    s_waitcnt lgkmcnt(0)
    v_readfirstlane_b32 s30, v{t+2}
    s_add_u32 s56, s56, 1
    s_cmp_ge_u32 s30, 4
    s_cbranch_scc1 L_b_sqd
    ds_read_b32 v{t+2}, v{t} offset:4
    ds_read_b128 v[{SQA}:{SQA+3}], v{t+1}
    s_cmp_lt_u32 s56, {cfg.spin_max}
    s_cbranch_scc1 L_b_sq
L_b_sqd:""")
    stamp(8)
    mfma32(ACC, SQA, MF, ACC)
    for i in range(0, 16, 2):
        a(f"v_pk_mul_f32 v[{ACC+i}:{ACC+i+1}], v[{ACC+i}:{ACC+i+1}], v[{vRS}:{vRS+1}] op_sel_hi:[1,0]")
        a(f"v_cvt_pk_bf16_f32 v{4+i//2}, v{ACC+i}, v{ACC+i+1}")
        if i == 6:
            a(f"ds_write_b128 v{t+5}, v[4:7] offset:{L_Q}")
    a(f"ds_write_b128 v{t+5}, v[8:11] offset:{L_Q + 4096}")
    stamp(1)
    attn_init_b((0,))

    def exp(r):
        a(f"v_exp_f32 v{r}, v{r}")

    def smf(o, v, p):
        a(f"v_smfmac_f32_32x32x32_bf16 v[{o}:{o+15}], v[{v}:{v+3}], v[{p}:{p+7}], v{vIDX}")

    def step(i, S, prev, nxt, h1=None, h2=None, h3=None):
        cur, oth = (SA, SB) if i % 2 == 0 else (SB, SA)
        exp(cur); exp(cur + 1)
        if i or prev is not None:
            smf(OO + 16 * ((i - 1) & 3), (S if i else prev)["V"][1], oth + 8)
        if h1:
            h1()
        for e in range(2, 5):
            exp(cur + e)
        if i < 3:
            mfma32(oth, S["K"], QQ + 4 * (i + 1))
        elif nxt is not None:
            mfma32(oth, nxt["K"], QQ)
        for e in range(5, 10):
            exp(cur + e)
        smf(OO + 16 * i, S["V"][0], cur)
        if h2:
            h2()
        for e in range(10, 16):
            exp(cur + e)
            if e == 12 and h3:
                h3()

    def gl_addr():
        a("""s_add_u32 s61, s61, 8192
             s_and_b32 s61, s61, 0x1ffff""")

    def gl_k(s):
        S = slot(s)
        a(f"""s_add_u32 s65, s61, s64
              buffer_load_dwordx4 v[{S['K']}:{S['K']+3}], v{vL16}, {SWS}, s65 offen sc1""")

    def gl_v(s):
        S = slot(s)
        a(f"s_mov_b64 exec, {sVM}")
        for i in range(2):
            r = S["V"][i]
            a(f"buffer_load_dwordx4 v[{r}:{r+3}], v{vL16}, {SWS}, s65 offen offset:{1024 + 256*i} sc1")
        a("s_mov_b64 exec, -1")

    def unit(s, load=True, wait=6, last=False, hooks={}, first=False):
        S, prev, nxt = slot(s), None if first else slot((s + 3) % 4), slot((s + 1) % 4)
        H = lambda k: hooks.get(k)
        ld = (s + 3) % 4
        step(0, S, prev, nxt, h1=(lambda: gl_k(ld)) if load else H("01"), h2=(lambda: gl_v(ld)) if load else H("02"), h3=H("03"))
        step(1, S, prev, nxt, h1=gl_addr if load else H("11"), h2=H("12"), h3=H("13"))
        step(2, S, prev, nxt, h1=H("21"), h2=H("22"), h3=H("23"))
        step(3, S, prev, None if last else nxt, h1=(lambda: a(f"s_waitcnt vmcnt({wait})")) if not last else H("31"), h2=H("32"), h3=H("33"))

    a(f"""L_attn_pre:
    v_add_u32 v{t+1}, s71, v{vL16}
    v_mov_b32 v{vIDX}, 0xdddddddd""")
    for i in range(4):
        a(f"v_add_u32 v{t+2+i}, s{72+i}, v{vL16}")
    a(f"""s_setprio {3 if cfg.prio else 0}
    s_waitcnt lgkmcnt(0)
    s_barrier                             ; B10""")
    stamp(5)
    S0 = slot(0)
    a(f"""ds_read_b128 v[{QQ}:{QQ+3}], v{t+2} offset:{L_Q}
    ds_read_b128 v[{S0['K']}:{S0['K']+3}], v{t+1} offset:{L_OWNKV}""")
    for i in range(1, 4):
        a(f"ds_read_b128 v[{QQ+4*i}:{QQ+4*i+3}], v{t+2+i} offset:{L_Q}")
    a(f"s_mov_b64 exec, {sVM}")
    for i in range(2):
        r = S0["V"][i]
        a(f"ds_read_b128 v[{r}:{r+3}], v{t+1} offset:{L_OWNKV + 1024 + 256*i}")
    a("s_mov_b64 exec, -1\ns_waitcnt lgkmcnt(5)")
    mfma32(SA, S0["K"], QQ)
    attn_init_b((1, 2, 3))
    a("s_waitcnt lgkmcnt(0)")
    def release():
        stamp(15)
        a("s_barrier                             ; B11")
        for s in (1, 2, 3):
            gl_k(s)
            gl_v(s)
            gl_addr()
    unit(0, load=False, first=True, hooks={cfg.b11: release})
    a(f"s_mov_b32 s66, {cfg.iters}")
    a(".p2align 3\nL_attn:")
    for s in (1, 2, 3, 0):
        unit(s, hooks={"32": lambda: a("s_sub_u32 s66, s66, 1\ns_cmp_lg_u32 s66, 0")} if s == 0 else {})
    a("s_cbranch_scc1 L_attn")
    stamp(6)
    if cfg.prio:
        a("s_setprio 2")

    def mbaddr():
        a(f"s_mul_i32 s52, {sHH}, {4*3*2304}")
        for i in range(3):
            a(f"""s_add_u32 s30, {sKQ}, {1 + i}
                  s_and_b32 s30, s30, 3
                  s_mul_i32 s30, s30, {3*2304}
                  s_add_u32 s{53+i}, s30, s52""")
        a(f"""s_mul_i32 s30, {sKQ}, {3*2304}
              s_add_u32 s52, s52, s30""")

    def send(i):
        o = OO + 16 * i
        a(f"""v_add_u32 v{t+1}, s{53+i}, v{vL16}
              v_lshl_add_u32 v{t+2}, v{vLANE}, 2, s{53+i}
              ds_write_b128 v{t+1}, v[{o}:{o+3}] offset:{L_CMB + i*2304}
              ds_write_b128 v{t+1}, v[{o+4}:{o+7}] offset:{L_CMB + i*2304 + 1024}
              ds_write_b32 v{t+2}, v{o+8} offset:{L_CMB + i*2304 + 2048}""")
    def touch():
        a(f"""s_lshl_b32 s30, {sJ}, 2
              s_add_u32 s30, s30, {sKQ}
              s_lshl_b32 s30, s30, 15
              s_lshr_b32 s31, s64, 7               ; head * 1024
              s_add_u32 s30, s30, s31
              s_add_u32 s67, s30, {WS_OF}
              s_lshl_b32 s57, {sJ}, 7
              s_add_u32 s59, s57, {WS_FLAG + FL*128}
              s_mov_b32 s50, 0x01010101
              s_mov_b32 s51, 0x01010101
              s_mov_b64 exec, s[50:51]
              buffer_load_dword v{t+4}, v{vL16}, {SWS}, s67 offen sc1
              s_mov_b64 exec, 1
              buffer_load_dword v{t+5}, v{vL16}, {SWS}, s59 offen sc1
              s_mov_b64 exec, -1""")
    unit(1, load=False, wait=5, hooks={"01": touch, "11": mbaddr})
    unit(2, load=False, wait=2)
    if cfg.prio:
        a("s_setprio 1")
    unit(3, load=False, last=True, hooks={"21": lambda: send(0), "31": lambda: (send(1), a("s_setprio 0")), "33": lambda: send(2)})
    O3 = OO + 48
    a(f"""v_add_u32 v{t+1}, s52, v{vL16}
    v_lshl_add_u32 v{t+2}, v{vLANE}, 2, s52""")
    smf(O3, slot(3)["V"][1], SB + 8)
    stamp(7)
    a(f"""v_mov_b32 v{t+3}, {L_CTR}
    s_setprio 2
    s_waitcnt lgkmcnt(0)
    s_barrier                             ; T1""")
    stamp(9)
    a(f"ds_read_b32 v27, v{t+3} offset:16")
    for i in range(3):
        a(f"ds_read_b32 v{24+i}, v{t+2} offset:{L_CMB + i*2304 + 2048}")
    for i in range(3):
        a(f"""ds_read_b128 v[{8*i}:{8*i+3}], v{t+1} offset:{L_CMB + i*2304}
              ds_read_b128 v[{8*i+4}:{8*i+7}], v{t+1} offset:{L_CMB + i*2304 + 1024}""")
    a(f"""s_waitcnt lgkmcnt(6)
    v_readfirstlane_b32 s70, v27
    v_add_f32 v24, v24, v25
    v_add_f32 v26, v26, v{O3+8}
    v_add_f32 v{O3+8}, v24, v26
    v_cmp_nle_f32 vcc, {f32(2.0**-40)}, v{O3+8}
    v_rcp_f32 v28, v{O3+8}
    s_mov_b64 s[50:51], vcc
    v_cmp_nge_f32 vcc, {f32(2.0**40)}, v{O3+8}""")
    for i in range(3):
        a(f"s_waitcnt lgkmcnt({4 - 2*i})")
        for e in range(0, 8, 2):
            a(f"v_pk_add_f32 v[{O3+e}:{O3+e+1}], v[{O3+e}:{O3+e+1}], v[{8*i+e}:{8*i+e+1}]")
    a(f"""s_or_b64 s[50:51], s[50:51], vcc
    v_maximum3_f32 v0, |v{O3}|, |v{O3+1}|, |v{O3+2}|
    v_maximum3_f32 v1, |v{O3+3}|, |v{O3+4}|, |v{O3+5}|
    v_maximum3_f32 v0, |v{O3+6}|, |v{O3+7}|, v0
    v_maximum3_f32 v0, v0, v1, v1
    v_cmp_nge_f32 vcc, {f32(2.0**120)}, v0
    s_nop 0
    s_or_b64 s[50:51], s[50:51], vcc""")
    a("s_branch L_slow" if cfg.force_slow else "s_cbranch_scc1 L_slow")
    a("L_norm:")
    for e in range(0, 8, 2):
        a(f"v_pk_mul_f32 v[{O3+e}:{O3+e+1}], v[{O3+e}:{O3+e+1}], v[28:29] op_sel_hi:[1,0]")
    for i in range(4):
        a(f"v_cvt_pk_bf16_f32 v{156+i}, v{O3+2*i}, v{O3+2*i+1}")
    a(f"""s_cmp_eq_u32 s70, 0
    s_cbranch_scc1 L_ost_far
    buffer_store_dwordx4 v[156:159], v{vL16}, {SWS}, s67 offen
    s_branch L_ost_done
L_ost_far:
    buffer_store_dwordx4 v[156:159], v{vL16}, {SWS}, s67 offen sc1
L_ost_done:""")
    stamp(10)
    WOF, PACC, OFR = 0, 128, 144
    u = 144
    a(f"""s_cmp_ge_u32 {sWV}, 8
    s_cbranch_scc1 L_tail_b
    v_lshrrev_b32 v{u}, 5, v{vLANE}
    v_bfe_u32 v{u+1}, v{vLANE}, 2, 2
    v_lshl_add_u32 v{u}, v{u}, 2, v{u+1}
    v_lshlrev_b32 v{u}, 6, v{u}           ; (4*half + r) * 64
    v_and_b32 v{u+1}, 1, v{vLANE}
    v_lshl_add_u32 v{u}, v{u+1}, 5, v{u}
    v_bfe_u32 v{u+1}, v{vLANE}, 4, 1
    v_lshl_add_u32 v{u}, v{u+1}, 4, v{u}
    v_bfe_u32 v{u+1}, v{vLANE}, 1, 1
    v_lshl_add_u32 v{u}, v{u+1}, 3, v{u}
    s_and_b32 s50, {sT}, 1
    s_lshr_b32 s51, {sT}, 1
    s_lshl_b32 s30, s50, 15
    s_add_u32 s30, s30, {L_WO}
    v_add_u32 v{u}, s30, v{u}""")
    for hd in range(32):
        read_w(WOF + 4 * hd, u, hd * 1024, second=512)
        if hd % 6 == 5:
            a("s_waitcnt lgkmcnt(2)")
    a(f"""v_and_b32 v{u+1}, 31, v{vLANE}
    v_lshrrev_b32 v{u+2}, 5, v{vLANE}
    s_lshl_b32 s30, s50, 2
    v_lshl_add_u32 v{u+2}, v{u+2}, 1, s30
    v_and_b32 v{u+3}, 7, v{u+1}
    v_xor_b32 v{u+2}, v{u+2}, v{u+3}
    s_lshl_b32 s30, s51, 12
    v_lshl_add_u32 v{u+1}, v{u+1}, 7, s30
    v_lshl_add_u32 v162, v{u+2}, 4, v{u+1}
    v_xor_b32 v163, 16, v162
    s_lshl_b32 s30, s51, 15
    s_add_u32 s30, s30, {L_OST}
    v_add_u32 v166, s30, v{vL16}
    s_waitcnt vmcnt(0)
    s_barrier                             ; T2
    s_waitcnt lgkmcnt(0)
    s_barrier                             ; T3""")
    stamp(11)
    a("s_barrier                             ; T4a")
    stamp(12)
    for hd in range(3):
        a(f"ds_read_b128 v[{OFR+4*hd}:{OFR+4*hd+3}], v166 offset:{hd*1024}")
    for hd in range(32):
        a(f"s_waitcnt lgkmcnt({min(2, 31 - hd)})")
        mfma32(PACC, WOF + 4 * hd, OFR + 4 * (hd % 4), None if hd == 0 else PACC)
        if hd + 3 < 32:
            if (hd + 3) % 8 == 0:
                a("s_barrier                             ; T4b..d")
            r = OFR + 4 * ((hd + 3) % 4)
            a(f"ds_read_b128 v[{r}:{r+3}], v166 offset:{(hd+3)*1024}")
    for i in range(8):
        a(f"v_cvt_pk_bf16_f32 v{i}, v{PACC+2*i}, v{PACC+2*i+1}")
    a(f"""ds_write_b128 v162, v[0:3] offset:{L_SST}
    ds_write_b128 v163, v[4:7] offset:{L_SST}
    s_waitcnt lgkmcnt(0)
    s_barrier                             ; T5""")
    stamp(13)
    dump_stamps()
    a("s_endpgm")

    a(f"""L_tail_b:
    v_mov_b32 v0, 0
    v_mov_b32 v1, 1
    v_lshlrev_b32 v3, 2, v{vLANE}
    s_add_u32 s57, s57, {WS_FLAG + F5*128}
    s_lshl_b32 s51, {sP}, 2
    s_add_u32 s71, s51, s59
    s_add_u32 s50, {sT}, 4""")
    stage_setup("s50")
    a(f"""s_waitcnt vmcnt(0)
    s_barrier                             ; T2
    s_cmp_lg_u32 {sT}, 0
    s_cbranch_scc1 L_tail_b3
    s_cmp_eq_u32 s70, 0
    s_cbranch_scc1 L_tail_far
    s_mov_b64 exec, 1
    buffer_store_dword v1, v0, {SWS}, s71 offen
    s_mov_b64 exec, 0xffff
    s_mov_b32 s56, 0
L_tail_near:
    buffer_load_dword v2, v3, {SWS}, s59 offen sc1
    s_add_u32 s56, s56, 1
    s_waitcnt vmcnt(0)
    v_cmp_eq_u32 vcc, 0, v2
    s_cmp_ge_u32 s56, {cfg.spin_max}
    s_cbranch_scc1 L_tail_neard
    s_cbranch_vccnz L_tail_near
L_tail_neard:
    s_mov_b64 exec, -1
    s_branch L_tail_b3
L_tail_far:""")
    signal("s57", 0, 1)
    poll("s57", 16, "f5", 0, 2, sleep=1)
    a("""L_tail_b3:
    s_barrier                             ; T3""")
    stamp(11)
    stage_o(vL16)
    stamp(12)
    dump_stamps()
    a("s_endpgm")

    K_, V_, Q3 = slot(0)["K"], slot(0)["V"], QQ + 12
    a(f"""L_slow:
    v_mov_b32 v{t+1}, 0xff800000
    s_mov_b32 s61, 0
L_slow1:
    s_add_u32 s65, s61, s64
    buffer_load_dwordx4 v[{K_}:{K_+3}], v{vL16}, {SWS}, s65 offen sc1
    s_add_u32 s61, s61, 2048
    s_waitcnt vmcnt(0)""")
    mfma32(SA, K_, Q3)
    for i in range(8):
        a(f"v_max3_f32 v{t+1}, v{SA+2*i}, v{SA+2*i+1}, v{t+1}")
    a(f"""s_cmp_lt_u32 s61, 0x20000
    s_cbranch_scc1 L_slow1
    v_mov_b32 v{t+2}, v{t+1}
    v_permlane32_swap_b32 v{t+1}, v{t+2}
    v_max_f32 v{t+1}, v{t+1}, v{t+2}""")
    for i in range(16):
        a(f"v_sub_f32 v{SB+i}, 0, v{t+1}\nv_mov_b32 v{O3+i}, 0")
    a(f"""s_mov_b32 s61, 0
L_slow2:
    s_add_u32 s65, s61, s64
    buffer_load_dwordx4 v[{K_}:{K_+3}], v{vL16}, {SWS}, s65 offen sc1
    s_mov_b64 exec, {sVM}
    buffer_load_dwordx4 v[{V_[0]}:{V_[0]+3}], v{vL16}, {SWS}, s65 offen offset:1024 sc1
    buffer_load_dwordx4 v[{V_[1]}:{V_[1]+3}], v{vL16}, {SWS}, s65 offen offset:1280 sc1
    s_mov_b64 exec, -1
    s_add_u32 s61, s61, 2048
    s_waitcnt vmcnt(0)""")
    mfma32(SA, K_, Q3, SB)
    for i in range(16):
        exp(SA + i)
    smf(O3, V_[0], SA)
    smf(O3, V_[1], SA + 8)
    a(f"""s_cmp_lt_u32 s61, 0x20000
    s_cbranch_scc1 L_slow2
    s_nop 11
    v_rcp_f32 v28, v{O3+8}
    s_branch L_norm""")
    return finish(a, cfg)


def finish(a, cfg):
    a("L_exit:\ns_endpgm")
    body, log = fix_hazards(a.text(), fix=True, verbose=cfg.verbose)
    head = open("cdna_kernels/" + NAME + ".s.ref").read().split("; Override launch")[0]
    head += f"; @launch grid=(256,1,1) block=(768,1,1) lds={LDS_BYTES}\n"
    tail = f""".section .rodata,"a"
.p2align 6
.amdhsa_kernel {NAME}_kernel
  .amdhsa_next_free_vgpr 168
  .amdhsa_next_free_sgpr 102
  .amdhsa_accum_offset 168
  .amdhsa_group_segment_fixed_size 0
  .amdhsa_kernarg_size 88
  .amdhsa_user_sgpr_count 2
  .amdhsa_user_sgpr_kernarg_segment_ptr 1
  .amdhsa_system_sgpr_workgroup_id_x 1
  .amdhsa_float_denorm_mode_32 3
.end_amdhsa_kernel
"""
    return head + body + tail


if __name__ == "__main__":
    cfg = Cfg()
    out = sys.argv[1]
    for kv in sys.argv[2:]:
        k, v = kv.split("=")
        setattr(cfg, k, eval(v))
    open(out, "w").write(gen(cfg))
```

```python
import sys
import struct
from asmlib import Asm, fix_hazards

NAME = "recurrent_scan__softmax_full_mha__moe_arch_mod__prompt"

WS_KV = 0
WS_OF = 4 << 20
WS_FLAG = 6 << 20
WS_CAND = (6 << 20) + 0x10000
WS_STAT = (6 << 20) + 0x20000
WS_P1 = (6 << 20) + 0x80000
WS_P2 = (6 << 20) + 0xC0000
WS_DBG = 8 << 20
WS_SIZE = 268435456
F1, F2, F3, F4, FX, FO = 0, 16, 32, 64, 72, 96

L_WK, L_WV, L_RING = 0, 32768, 65536
L_WQ = L_RING + 3 * 16384
L_OWNKV = 0
L_Q = 32768
L_WO = 65536
L_GU = 128 * 1024
L_DN = 144 * 1024
L_CMB = 0
L_OST = 0
L_SST = 128 * 1024
L_MISC = 152 * 1024
L_WR = L_MISC
L_ZERO = L_MISC + 1088
L_ONES = L_MISC + 6784
L_CTR = L_MISC + 2112
L_STAT = L_MISC + 2304
L_SFR = L_MISC + 3328
L_KEY = L_MISC + 5376
L_XS = L_MISC + 5440
L_Y = L_MISC + 6144
LDS_BYTES = 163840

CQ = 0.25 * 1.4426950408889634
LOG2E = 1.4426950408889634


def f32(x):
    return "0x%08x" % struct.unpack("<I", struct.pack("<f", x))[0]


class Cfg:
    stamps = False
    L = 2
    rot = (4, 2, 1, 1)
    rotj = 1
    rotp = 1
    rotx = 1
    wq1 = 4
    wq2 = 4
    x2 = 0
    light = 0
    bz = 0
    early = 0
    kvpf = 0
    cpf = 1
    qpf = 2
    qpfn = 3
    b11 = ('11', '21', '22')
    gatepos = 2
    gatepos2 = 8
    t2early = 1
    prepoll = 0
    apoll = 1
    early3 = 0
    psl = (8, 16, 16)
    spread = 1
    mpoll = 1
    sigret = 1
    nomoe = 0
    azero = 24
    exempt = 1
    both = 0
    mspace = ''
    h1go = 15
    midpoll = 1
    minrdy = 0
    spoll = 0
    sib = 1
    stubsleep = 1
    f1sleep = 8
    otouch = 1
    outpf = 0
    wqwin = 4
    sigfirst = 0
    ntx = ''
    spin_max = 200000
    verbose = False
    force_slow = False
    prio = 1
    x1 = 0
    pxor = 0
    local = 1
    wo_win = 6
    gu_win = 4
    nocold = 0
    ntw = ''
    probe = None
    clk = 's_memtime'
    iters = 3


def gen(cfg):
    a = Asm()
    L = cfg.L
    sP, sJ, sWV, sT, sC0 = "s3", "s4", "s5", "s6", "s7"
    SX, SW, SWS, SAUX = "s[32:35]", "s[36:39]", "s[40:43]", "s[44:47]"
    sONE = "s48"

    def srd(base, ptr, size):
        a(f"""s_mov_b32 s{base}, s{ptr}
              s_mov_b32 s{base+1}, s{ptr+1}
              s_mov_b32 s{base+2}, {size}
              s_mov_b32 s{base+3}, 0x20000""")

    early_done = []

    def stamp(i):
        if cfg.early and i in (2, 6, 7, 8, 9, 12, 13):
            if i in early_done or 13 in early_done:
                return
            early_done.append(i)
        if cfg.probe and cfg.probe[0] == i:
            a("s_memrealtime s[98:99]\ns_waitcnt lgkmcnt(0)")
        if cfg.stamps:
            a(f"{cfg.clk} s[78:79]\ns_waitcnt lgkmcnt(0)\ns_mov_b32 s{80+i}, s78")

    def dump_stamps():
        if cfg.stamps:
            a(f"""s_mul_i32 s78, s2, 12
                  s_add_u32 s78, s78, {sWV}
                  s_lshl_b32 s78, s78, 6
                  s_add_u32 s78, s78, {WS_DBG}
                  v_mov_b32 v0, 0""")
            for g in range(4):
                for i in range(4):
                    a(f"v_mov_b32 v{4+i}, s{80+4*g+i}")
                a(f"buffer_store_dwordx4 v[4:7], v0, {SWS}, s78 offen offset:{16*g}")
                a("s_nop 1")
            a("s_waitcnt vmcnt(0)")

    def signal(line_sgpr, vz, vone):
        a(f"""s_mov_b64 exec, 1
              buffer_atomic_add v{vone}, v{vz}, {SWS}, {line_sgpr} offen sc1
              s_mov_b64 exec, -1""")

    def poll(line_sgpr, target, tag, vz, vt, sleep=2, srd_=None):
        kind = 0 if srd_ else cfg.mpoll
        rd = (f"buffer_load_dword v{vt}, v{vz}, {srd_ or SWS}, {line_sgpr} offen sc1\ns_waitcnt vmcnt(0)\nv_readfirstlane_b32 s30, v{vt}",
              f"v_mov_b32 v{vt}, 0\nbuffer_atomic_add v{vt}, v{vz}, {SWS}, {line_sgpr} offen sc0 sc1\ns_waitcnt vmcnt(0)\nv_readfirstlane_b32 s30, v{vt}",
              f"s_load_dword s30, s[28:29], {line_sgpr} glc\ns_waitcnt vmcnt(0) lgkmcnt(0)")[kind]
        a(f"""s_mov_b32 s56, 0
              s_mov_b64 exec, 1
        L_poll_{tag}:
              {rd}
              s_add_u32 s56, s56, 1
              s_cmp_ge_u32 s30, {target}
              s_cbranch_scc1 L_polld_{tag}
              s_sleep {sleep}
              s_cmp_lt_u32 s56, {cfg.spin_max}
              s_cbranch_scc1 L_poll_{tag}
        L_polld_{tag}:
              s_mov_b64 exec, -1""")

    def rowmax_u32(dst, src):
        a(f"v_max_u32_dpp v{dst}, v{src}, v{src} row_ror:8 row_mask:0xf bank_mask:0xf")
        for r in (4, 2, 1):
            a(f"v_max_u32_dpp v{dst}, v{dst}, v{dst} row_ror:{r} row_mask:0xf bank_mask:0xf")

    def wavemax_u32(sdst, src, tmp, rows):
        rowmax_u32(tmp, src)
        a(f"v_readlane_b32 {sdst}, v{tmp}, 0")
        for r in range(1, rows):
            a(f"v_readlane_b32 s30, v{tmp}, {16*r}\ns_max_u32 {sdst}, {sdst}, s30")

    def tr_addr(dst, lane, t1, t2, rowshift=3):
        a(f"""v_lshrrev_b32 v{t1}, 5, v{lane}
              v_bfe_u32 v{t2}, v{lane}, 2, 2
              v_lshl_add_u32 v{t1}, v{t1}, {rowshift}, v{t2}
              v_lshlrev_b32 v{t1}, 6, v{t1}
              v_bfe_u32 v{t2}, v{lane}, 4, 1
              v_lshl_add_u32 v{t1}, v{t2}, 5, v{t1}
              v_and_b32 v{t2}, 3, v{lane}
              v_lshl_add_u32 v{dst}, v{t2}, 3, v{t1}""")

    def read_w(dst, addr, off, second=256):
        a(f"""ds_read_b64_tr_b16 v[{dst}:{dst+1}], v{addr} offset:{off}
              ds_read_b64_tr_b16 v[{dst+2}:{dst+3}], v{addr} offset:{off + second}""")

    def mfma32(d, A, B, c=None):
        cs = "0" if c is None else f"v[{c}:{c+15}]"
        a(f"v_mfma_f32_32x32x16_bf16 v[{d}:{d+15}], v[{A}:{A+3}], v[{B}:{B+3}], {cs}")

    def mfma16(d, A, B, c=None):
        cs = "0" if c is None else f"v[{c}:{c+3}]"
        a(f"v_mfma_f32_16x16x32_bf16 v[{d}:{d+3}], v[{A}:{A+3}], v[{B}:{B+3}], {cs}")

    def rnd(dst, src):
        a(f"v_cvt_pk_bf16_f32 v{dst}, 0, {src}")

    def split3(dst, src, t):
        a(f"""v_and_b32 v{t}, 0xffff0000, v{src}
              v_sub_f32 v{t+1}, v{src}, v{t}
              v_and_b32 v{t+2}, 0xffff0000, v{t+1}
              v_sub_f32 v{t+1}, v{t+1}, v{t+2}
              v_lshrrev_b32 v{t}, 16, v{t}
              v_or_b32 v{dst}, v{t}, v{t+2}
              v_lshrrev_b32 v{dst+1}, 16, v{t+1}""")

    a(f""".amdgcn_target "amdgcn-amd-amdhsa--gfx950"
.text
.globl {NAME}_kernel
.p2align 12
.p2align 8
.type {NAME}_kernel,@function
{NAME}_kernel:
    s_cmp_ge_u32 s2, 256
    s_cbranch_scc1 L_exit
    s_load_dwordx16 s[8:23], s[0:1], 0
    s_load_dwordx4 s[24:27], s[0:1], 64
    s_load_dwordx2 s[28:29], s[0:1], 80""")
    if cfg.probe:
        a("s_memrealtime s[96:97]\ns_memrealtime s[98:99]")
    if cfg.light:
        a("s_memrealtime s[96:97]")
    if cfg.stamps:
        for i in range(16):
            a(f"s_mov_b32 s{80+i}, 0")
        a(f"{cfg.clk} s[78:79]")
    a(f"""v_lshrrev_b32 v1, 6, v0
    v_and_b32 v0, 63, v0                 ; lane
    s_lshr_b32 {sP}, s2, 4
    s_xor_b32 {sP}, {sP}, {cfg.pxor}
    v_readfirstlane_b32 {sWV}, v1
    s_and_b32 {sJ}, s2, 7
    s_lshl_b32 {sJ}, {sJ}, 1
    s_bfe_u32 s30, s2, 0x10003
    s_or_b32 {sJ}, {sJ}, s30
    s_mul_i32 {sC0}, s30, {cfg.rot[0]}
    s_and_b32 s30, {sP}, 1
    s_mul_i32 s30, s30, {cfg.rot[1]}
    s_add_u32 {sC0}, {sC0}, s30
    s_lshr_b32 s30, {sP}, 1
    s_mul_i32 s30, s30, {cfg.rot[2]}
    s_add_u32 {sC0}, {sC0}, s30
    s_and_b32 s30, s2, {cfg.rot[3]}
    s_add_u32 {sC0}, {sC0}, s30
    s_and_b32 {sC0}, {sC0}, 7
    s_and_b32 {sT}, {sWV}, 3
    s_mov_b32 {sONE}, 0x3f803f80
    s_cmp_lt_u32 {sWV}, 4
    s_cbranch_scc1 L_helper""")
    if cfg.cpf:
        a(f"""s_cmp_lg_u32 {sWV}, 8
        s_cbranch_scc1 L_nocpf
        s_getpc_b64 s[50:51]
    L_pc:
        s_lshr_b32 s30, s2, 3
        s_lshl_b32 s30, s30, 10
        v_lshl_add_u32 v1, v0, 7, s30
        v_min_u32 v1, L_exit-L_pc, v1
        v_mov_b32 v7, s51
        v_add_co_u32 v6, vcc, s50, v1
        v_addc_co_u32 v7, vcc, 0, v7, vcc
        s_mov_b64 exec, 0xff
        global_load_dword v136, v[6:7], off
        s_mov_b64 exec, -1
    L_nocpf:""")
    a(f"""{'s_barrier                             ; Bz' if cfg.bz else ''}
    s_branch L_compute
L_helper:""")

    hZ, hONE, hT = 17, 18, 19
    a(f"""v_lshrrev_b32 v1, 2, v0
    s_lshl_b32 s30, {sT}, 4
    v_add_u32 v1, s30, v1
    v_mul_u32_u24 v1, 3072, v1
    v_and_b32 v2, 3, v0
    v_lshl_add_u32 v1, v2, 4, v1
    s_lshl_b32 s30, {sP}, 6
    v_add_u32 v14, s30, v1
    v_lshrrev_b32 v1, 3, v0
    v_lshrrev_b32 v2, 4, v0
    v_and_b32 v3, 7, v0
    v_xor_b32 v4, v3, v2
    v_xor_b32 v5, 4, v4
    s_lshl_b32 s30, {sJ}, 17
    s_lshl_b32 s31, {sT}, 15
    s_add_u32 s30, s30, s31
    v_lshl_add_u32 v6, v1, 10, s30
    v_lshl_add_u32 v10, v4, 4, v6
    v_lshl_add_u32 v11, v5, 4, v6
    v_add_u32 v12, {2*7168}, v10
    v_add_u32 v13, {3*7168}, v11
    v_add_u32 v11, 7168, v11
    s_lshl_b32 s57, {sT}, 12
    s_lshl_b32 s49, {sT}, 10
    s_waitcnt lgkmcnt(0)""")
    if cfg.stamps:
        a("s_mov_b32 s80, s78")
    if cfg.early:
        stamp(2)
    srd(36, 10, 1572864)
    srd(32, 8, 2097152)
    a(f"""s_sub_u32 s73, 384, s10
    s_bfe_u32 s73, s73, 0x30007
    s_lshr_b32 s74, {sP}, 1
    v_xor_b32 v15, 64, v14""")

    def kc(n, dst):
        a(f"s_add_u32 {dst}, {sC0}, {n}\ns_and_b32 {dst}, {dst}, 7")

    def issue_w(n):
        kc(n, "s50")
        a(f"""s_mul_i32 s51, s50, {64*3072}
              s_add_u32 m0, s49, {L_WK + n*4096}
              s_add_u32 s52, s51, 1024
              buffer_load_dwordx4 v14, {SW}, s52 offen lds
              s_add_u32 m0, s49, {L_WV + n*4096}
              s_add_u32 s53, s51, 2048
              buffer_load_dwordx4 v14, {SW}, s53 offen lds""")
        if n < cfg.both:
            a(f"""s_cmp_lg_u32 s73, s74
                  s_cbranch_scc1 L_nb{n}
                  buffer_load_dword v16, v15, {SW}, s52 offen
                  buffer_load_dword v16, v15, {SW}, s53 offen
            L_nb{n}:""")

    def issue(item):
        if item < 8:
            n = item
            kc(n, "s50")
            a(f"""s_add_u32 m0, s57, {L_RING + (n % 5)*16384}
                  s_lshl_b32 s50, s50, 7""")
            for q in range(4):
                a(f"buffer_load_dwordx4 v{10+q}, {SX}, s50 offen offset:{1024*q} {cfg.ntx} lds")
            if n < 7:
                issue_w(n + 1)
        else:
            for n in {8: range(cfg.wq1), 9: range(cfg.wq1, cfg.wq1 + cfg.wq2), 10: range(cfg.wq1 + cfg.wq2, 8)}[item]:
                kc(n, "s50")
                if item == 10:
                    a(f"s_waitcnt vmcnt({cfg.wqwin - 1})")
                a(f"""s_add_u32 m0, s49, {L_WQ + n*4096}
                      s_mul_i32 s51, s50, {64*3072}
                      buffer_load_dwordx4 v14, {SW}, s51 offen lds""")
                if n < cfg.both:
                    a(f"""s_cmp_lg_u32 s73, s74
                          s_cbranch_scc1 L_nq{n}
                          buffer_load_dword v16, v15, {SW}, s51 offen
                    L_nq{n}:""")

    cnt = lambda item: 6 if item < 7 else {7: 4, 8: cfg.wq1, 9: cfg.wq2}[item]
    a(f"""s_cmp_lg_u32 {sT}, 0
    s_cbranch_scc1 L_h_nowr""")
    srd(44, 16, 1024)
    a(f"""v_add_u32 v1, {sC0}, v1
    v_and_b32 v1, 7, v1
    v_lshlrev_b32 v1, 7, v1
    s_mov_b32 m0, {L_WR}
    v_lshl_add_u32 v1, v3, 4, v1
    buffer_load_dwordx4 v1, {SAUX}, 0 offen lds
L_h_nowr:""")
    issue_w(0)
    if cfg.early:
        stamp(6)
        if cfg.early == 2:
            a("s_waitcnt vmcnt(0)")
            stamp(7)
    for it in range(L):
        issue(it)
        if it == 0 and cfg.bz:
            a("s_barrier                             ; Bz")
        if cfg.early and it == 0:
            stamp(8)
    if cfg.early:
        stamp(9)
    if cfg.kvpf:
        a(f"""s_lshr_b32 s30, s2, 3
        s_lshl_b32 s30, s30, 2
        s_add_u32 s30, s30, {sT}
        s_mul_i32 s30, s30, {4*3072}
        s_sub_u32 s31, 384, s10
        s_and_b32 s31, s31, 0x380
        s_add_u32 s30, s30, s31
        s_add_u32 s54, s10, s30
        s_addc_u32 s55, s11, 0""")
        for i in range(16):
            a(f"s_load_dword s76, s[54:55], {1024 + 1024*(i >> 3) + 3072*((i & 7) >> 1) + 64*(i & 1)}")
    srd(40, 28, WS_SIZE)
    hXP, hXN, hG = 136, 144, 152
    hOA = 20
    hCT, hTR, hWO, hGU, hDN, hL4, hL8, hL16, hFR, hM4, hM16, hM2, hH4 = 6, 30, 33, 34, 35, 36, 37, 38, 39, 40, 41, 42, 43
    a(f"""v_mov_b32 v{hZ}, 0
    v_mov_b32 v{hONE}, 1
    v_mov_b32 v{hCT}, {L_CTR}
    s_lshr_b32 s58, {sP}, 3
    s_and_b32 s59, {sP}, 7
    s_lshl_b32 s60, {sJ}, 1
    s_add_u32 s60, s60, s58
    v_lshrrev_b32 v1, 3, v0
    s_lshl_b32 s30, {sT}, 4
    v_add_u32 v22, s30, v1
    s_lshl_b32 s30, s60, 16
    s_lshl_b32 s31, s59, 7
    s_add_u32 s30, s30, s31
    v_lshl_add_u32 v1, v22, 10, s30
    v_lshl_add_u32 v{hOA}, v3, 4, v1
    v_add_u32 v{hOA+1}, 8192, v{hOA}
    s_lshl_b32 s30, s58, 6
    v_add_lshl_u32 v1, v22, s30, 3
    v_add_u32 v23, {L_STAT}, v1""")
    tr_addr(hTR, 0, 1, 2)
    a(f"""v_add_u32 v{hTR}, {L_GU}, v{hTR}
    v_lshrrev_b32 v31, 2, v0
    v_and_b32 v1, 3, v0
    v_lshlrev_b32 v32, 4, v1             ; piece
    v_lshl_add_u32 v{hDN}, v31, 10, v32
    v_add_u32 v{hWO}, s31, v{hDN}
    v_mul_u32_u24 v1, 3584, v31
    v_add_u32 v{hGU}, v1, v32
    v_lshlrev_b32 v{hL4}, 2, v0
    v_lshlrev_b32 v{hL8}, 3, v0
    v_lshlrev_b32 v{hL16}, 4, v0
    v_add_u32 v{hM4}, {L_MISC}, v{hL4}
    v_add_u32 v{hM16}, {L_MISC}, v{hL16}
    v_lshlrev_b32 v1, 1, v0
    v_add_u32 v{hM2}, {L_MISC}, v1
    v_and_b32 v{hH4}, 124, v{hL4}
    v_and_b32 v1, 1, v0
    v_lshrrev_b32 v2, 5, v0
    v_lshlrev_b32 v2, 4, v2
    v_lshl_add_u32 v1, v1, 7, v2
    v_add_u32 v{hFR}, {L_XS}, v1
    s_lshl_b32 s75, {sP}, 4
    s_and_b32 s30, s2, 15
    s_or_b32 s75, s75, s30
    s_sub_u32 s30, s75, 32
    s_cmp_gt_u32 s74, s73
    s_cselect_b32 s75, s30, s75
    s_cmp_eq_u32 s74, s73
    s_cselect_b32 s75, 255, s75
    s_lshr_b32 s61, s75, 3
    s_and_b32 s62, s75, 7
    s_waitcnt vmcnt({sum(cnt(i) for i in range(L))})""")
    if cfg.early:
        stamp(12)
    a("s_barrier")
    if cfg.early:
        stamp(13)
    issued = L
    for n in range(8):
        pend = sum(cnt(i) for i in range(n + 1, issued))
        a(f"s_waitcnt vmcnt({pend})")
        a(f"s_barrier                             ; B{n}")
        if n in (0, 1, 7):
            stamp({0: 1, 1: 10, 3: 2, 7: 3}[n])
        if n == cfg.qpfn and cfg.qpf & 2:
            a(f"""s_lshr_b32 s30, s2, 3
            s_lshl_b32 s30, s30, 2
            s_add_u32 s30, s30, {sT}
            s_mul_i32 s30, s30, {4*3072}
            s_sub_u32 s31, 384, s10
            s_and_b32 s31, s31, 0x380
            s_add_u32 s30, s30, s31
            s_add_u32 s54, s10, s30
            s_addc_u32 s55, s11, 0""")
            for i in range(8):
                a(f"s_load_dword s76, s[54:55], {3072*(i >> 1) + 64*(i & 1)}")
        if n == 1 and cfg.qpf & 1:
            a(f"""s_lshl_b32 s30, s2, 1
            s_lshr_b32 s31, {sT}, 1
            s_add_u32 s30, s30, s31
            s_mul_i32 s30, s30, 3072
            s_and_b32 s31, {sT}, 1
            s_lshl_b32 s31, s31, 9
            s_add_u32 s30, s30, s31
            s_add_u32 s54, s10, s30
            s_addc_u32 s55, s11, 0""")
            for i in range(8):
                a(f"s_load_dword s76, s[54:55], {64*i}")
        if issued < 8:
            issue(issued)
            issued += 1
            if issued == 8:
                issue(8)
                issued += 1
        elif issued == 9 and n == 6:
            issue(9)
            issued += 1
    issue(10)
    a(f"""buffer_load_dwordx4 v[{hXP}:{hXP+3}], v{hOA}, {SX}, 0 offen
    buffer_load_dwordx4 v[{hXP+4}:{hXP+7}], v{hOA+1}, {SX}, 0 offen
    s_waitcnt vmcnt(2)""")
    stamp(11)
    a("s_barrier")
    stamp(4)
    def normrows():
        a(f"""ds_read_b64 v[24:25], v23
    ds_read_b64 v[26:27], v23 offset:64
    s_waitcnt lgkmcnt(0)
    s_waitcnt vmcnt(0)""")
        for i in range(8):
            m, rs = (24, 25) if i < 4 else (26, 27)
            a(f"""v_lshlrev_b32 v28, 16, v{hXP+i}
                  v_and_b32 v29, 0xffff0000, v{hXP+i}
                  v_sub_f32 v28, v28, v{m}
                  v_sub_f32 v29, v29, v{m}
                  v_cvt_pk_bf16_f32 v28, 0, v28
                  v_cvt_pk_bf16_f32 v29, 0, v29
                  v_mul_f32 v28, v28, v{rs}
                  v_mul_f32 v29, v29, v{rs}
                  v_cvt_pk_bf16_f32 v{hXN+i}, v28, v29""")

    def gate(lo, hi):
        for i in range(lo, hi):
            g0, g1 = hG + 2 * i, hG + 2 * i + 1
            a(f"""v_lshlrev_b32 v28, 16, v{hXN+i}
                  v_and_b32 v29, 0xffff0000, v{hXN+i}
                  v_mul_f32 v{g0}, {f32(-LOG2E)}, v28
                  v_mul_f32 v{g1}, {f32(-LOG2E)}, v29
                  v_exp_f32 v{g0}, v{g0}
                  v_exp_f32 v{g1}, v{g1}
                  v_add_f32 v{g0}, 1.0, v{g0}
                  v_add_f32 v{g1}, 1.0, v{g1}
                  v_rcp_f32 v{g0}, v{g0}
                  v_rcp_f32 v{g1}, v{g1}
                  v_mul_f32 v{g0}, v{g0}, v28
                  v_mul_f32 v{g1}, v{g1}, v29
                  v_cvt_pk_bf16_f32 v{g0}, 0, v{g0}
                  v_cvt_pk_bf16_f32 v{g1}, 0, v{g1}""")
    srd(36, 12, 0 if cfg.nocold & 2 else 524288)
    def ldswait(tag, off, cond, sleep):
        a(f"""s_mov_b32 s56, 0
        L_lw_{tag}:
              s_sleep {sleep}
              ds_read_b32 v{hT}, v{hCT} offset:{off}
              s_add_u32 s56, s56, 1
              s_waitcnt lgkmcnt(0)
              v_readfirstlane_b32 s30, v{hT}
              s_cmp_ge_u32 s56, {cfg.spin_max * 4}
              s_cbranch_scc1 L_lwd_{tag}
              {cond}
              s_cbranch_scc1 L_lw_{tag}
        L_lwd_{tag}:""")

    def mailbox(tag):
        ldswait(tag, 8, "s_cmp_eq_u32 s30, 0", 16)

    def allkv(tag):
        ldswait(tag, 20, f"s_bcnt1_i32_b32 s30, s30\ns_cmp_lt_u32 s30, {cfg.h1go}", 4)

    def halves(lo, hi):
        a(f"""s_mov_b32 exec_hi, 0
              {lo}
              s_not_b64 exec, exec
              {hi}
              s_mov_b64 exec, -1""")

    def f1_once(scalar=False, mid=None):
        a("s_mov_b64 exec, 1")
        if scalar:
            a("s_load_dword s50, s[28:29], s57 glc\ns_waitcnt lgkmcnt(0)")
        else:
            a(f"v_mov_b32 v{hT}, 0\nbuffer_atomic_add v{hT}, v{hZ}, {SWS}, s57 offen sc0 sc1" if cfg.apoll else
              f"buffer_load_dword v{hT}, v{hZ}, {SWS}, s57 offen sc1")
            a(f"""{mid or ''}
              s_waitcnt vmcnt(0)
              v_readfirstlane_b32 s50, v{hT}""")
        a(f"""s_andn2_b32 s30, s50, s55
              s_bcnt1_i32_b32 s31, s30
              s_cmp_ge_u32 s31, {cfg.minrdy}
              s_cselect_b32 s30, s30, 0
              s_mul_i32 s30, s30, 0x10001
              s_lshr_b32 s30, s30, s54
              s_and_b32 s30, s30, 0xffff
              v_mov_b32 v{hT}, s30
              ds_write_b32 v6, v{hT} offset:20
              s_mov_b64 exec, -1""")

    normrows()
    a(f"""s_setprio 3
    s_lshl_b32 s57, {sP}, 7
    s_add_u32 s57, s57, {WS_FLAG + F1*128}
    s_or_b32 s54, {sJ}, {cfg.sib}
    s_add_u32 s54, s54, 1
    s_and_b32 s54, s54, 15
    s_lshl_b32 s55, 1, {sJ}""")
    a(f"""s_cmp_lg_u32 {sT}, 0
    s_cbranch_scc1 L_h_b10""")
    if cfg.prepoll:
        ldswait("sig", 0, "s_cmp_lt_u32 s30, 4", 1)
        if cfg.prepoll == 2:
            f1_once()
        f1_once(mid="s_barrier                             ; B10\ns_barrier                             ; B11")
    else:
        a("s_barrier                             ; B10")
        f1_once(mid="s_barrier                             ; B11")
    a("""s_mov_b32 s56, 0
    s_branch L_f1c
L_h_b10:
    s_barrier""")
    stamp(5)
    a(f"""s_barrier
    s_cmp_eq_u32 {sT}, 1
    s_cbranch_scc1 L_h1
    s_cmp_eq_u32 {sT}, 2
    s_cbranch_scc1 L_h2
    s_cmp_eq_u32 {sT}, 3
    s_cbranch_scc1 L_h3""")

    a("s_mov_b32 s56, 0\nL_f1:")
    f1_once(cfg.spoll)
    a(f"""L_f1c:
    s_add_u32 s56, s56, 1
    s_cmpk_eq_u32 s50, 0xffff
    s_cbranch_scc1 L_f1d
    s_sleep {cfg.f1sleep}
    s_cmp_lt_u32 s56, {cfg.spin_max}
    s_cbranch_scc1 L_f1
L_f1d:""")
    stamp(13)
    a(f"""s_getreg_b32 s50, hwreg(HW_REG_XCC_ID, 0, 4)
    s_or_b32 s50, s50, 0x100
    v_mov_b32 v8, s50
    s_lshl_b32 s63, {sJ}, 7
    s_add_u32 s63, s63, {WS_FLAG + FX*128}
    s_lshl_b32 s51, {sP}, 2
    s_add_u32 s51, s51, s63
    s_mov_b64 exec, 1
    buffer_store_dword v8, v{hZ}, {SWS}, s51 offen sc1
    s_mov_b64 exec, -1""")
    if cfg.nomoe & 1:
        a("s_sleep 64")
    else:
        mailbox("h0")
    a(f"""s_mov_b32 s54, 0
L_wo:
    s_add_u32 s50, s54, s60
    s_and_b32 s50, s50, 31
    s_lshl_b32 s51, s50, 10
    s_lshl_b32 s50, s50, 14
    s_add_u32 m0, s51, {L_WO}
    s_add_u32 s52, s50, 64
    buffer_load_dwordx4 v33, {SW}, s50 offen lds
    s_add_u32 m0, s51, {L_WO + 32768}
    s_add_u32 s54, s54, 1
    buffer_load_dwordx4 v33, {SW}, s52 offen lds
    s_waitcnt vmcnt({cfg.wo_win})
    s_cmp_lt_u32 s54, 32
    s_cbranch_scc1 L_wo
    s_mov_b32 s56, 0
    s_mov_b64 exec, 0xffff
L_xid:
    buffer_load_dword v10, v{hL4}, {SWS}, s63 offen sc1
    s_add_u32 s56, s56, 1
    s_waitcnt vmcnt(0)
    v_cmp_eq_u32 vcc, 0, v10
    s_cmp_ge_u32 s56, {cfg.spin_max}
    s_cbranch_scc1 L_xidd
    s_cbranch_vccnz L_xid
L_xidd:
    v_cmp_ne_u32 vcc, v8, v10
    s_mov_b64 exec, -1
    s_cmp_eq_u64 vcc, 0
    s_cselect_b32 s50, {cfg.local}, 0
    v_mov_b32 v10, s50
    ds_write_b32 v6, v10 offset:16""")
    stamp(6)
    a("s_branch L_h_tail")

    XSF, WFR, AC0, AC1 = 48, 64, 72, 88

    def two_row_mfma(acc, s, block):
        read_w(WFR, hTR, block * 1024)
        a("s_waitcnt lgkmcnt(0)")
        mfma32(acc, XSF + 4 * s, WFR, None if s == 0 else acc)

    a(f"""L_h1:
    {'s_branch L_h_tail' if cfg.nomoe & 1 else ''}
    s_cmpk_lt_u32 s75, 0xe0
    s_cbranch_scc0 L_h_tail""")
    if cfg.early3 == 1:
        allkv("h1a")
    else:
        ldswait("h1a", 28, "s_cmp_eq_u32 s30, 0", 4)
    a(f"""s_mul_i32 s50, s62, {64*3584}
    s_lshl_b32 s51, s61, 7
    s_add_u32 s50, s50, s51""")
    for mtx in range(2):
        srd(44, 18 + 2 * mtx, 1835008)
        for s in range(4):
            for ct in range(2):
                a(f"""s_mov_b32 m0, {L_GU + ((2*mtx + ct)*4 + s)*1024}
                      s_add_u32 s51, s50, {s*16*3584 + ct*64}
                      {'s_nop 0' if cfg.nocold & 1 else f'buffer_load_dwordx4 v{hGU}, {SAUX}, s51 offen {cfg.ntw} lds'}""")
            a(f"s_waitcnt vmcnt({cfg.gu_win})")
    a(f"""s_lshl_b32 s50, s75, 10
    s_add_u32 s50, s50, {WS_P1}
    s_lshl_b32 s65, s61, 7
    s_add_u32 s65, s65, {WS_FLAG + F3*128}
    s_waitcnt vmcnt(0)""")
    ldswait("h1b", 24, "s_cmp_eq_u32 s30, 0", 4)
    stamp(7)
    for s in range(4):
        a(f"ds_read_b128 v[{XSF+4*s}:{XSF+4*s+3}], v{hFR} offset:{32*s}")
    for mtx in range(2):
        for s in range(4):
            two_row_mfma(AC0 + 32 * mtx, s, (2 * mtx) * 4 + s)
            two_row_mfma(AC1 + 32 * mtx, s, (2 * mtx + 1) * 4 + s)
    st2 = lambda r, o: f"buffer_store_dwordx2 v[{r}:{r+1}], v{hL16}, {SWS}, s50 offen offset:{o} sc1"
    halves(st2(AC0, 0) + "\n" + st2(AC0 + 32, 8), st2(AC1, 0) + "\n" + st2(AC1 + 32, 8))
    a("s_waitcnt vmcnt(0)")
    signal("s65", hZ, hONE)
    stamp(8)
    a("s_branch L_h_tail")

    a(f"""L_h2:
    {'s_branch L_h_tail' if cfg.nomoe & 3 else ''}
    s_cmpk_lt_u32 s75, 0xe0
    s_cbranch_scc0 L_h_tail""")
    mailbox("h2")
    a(f"""s_lshl_b32 s50, s61, 16
    s_lshl_b32 s51, s62, 7
    s_add_u32 s50, s50, s51""")
    srd(44, 22, 1835008)
    for s in range(4):
        for ct in range(2):
            a(f"""s_mov_b32 m0, {L_DN + (ct*4 + s)*1024}
                  s_add_u32 s51, s50, {s*16384 + ct*64}
                  {'s_nop 0' if cfg.nocold & 1 else f'buffer_load_dwordx4 v{hDN}, {SAUX}, s51 offen {cfg.ntw} lds'}""")
    a(f"""s_lshl_b32 s65, s61, 7
    s_add_u32 s65, s65, {WS_FLAG + F3*128}""")
    poll("s65", 8, "f3", hZ, hT, sleep=cfg.psl[1])
    stamp(6)
    a(f"""s_lshl_b32 s50, s61, 13
    s_add_u32 s50, s50, {WS_P1}
    s_add_u32 s51, s50, 4096""")
    for k in range(8):
        a(f"buffer_load_dwordx4 v[{72+4*k}:{75+4*k}], v{hL16}, {SWS}, {'s50' if k < 4 else 's51'} offen offset:{1024*(k & 3)} sc1")
    a("s_waitcnt vmcnt(0)")
    for k in range(1, 8):
        a(f"""v_pk_add_f32 v[72:73], v[72:73], v[{72+4*k}:{73+4*k}]
              v_pk_add_f32 v[74:75], v[74:75], v[{74+4*k}:{75+4*k}]""")
    for i in range(4):
        rnd(72 + i, f"v{72+i}")
    a(f"""s_mov_b32 s50, {f32(-LOG2E)}
    v_pk_mul_f32 v[76:77], v[72:73], s[50:51] op_sel_hi:[1,0]
    v_exp_f32 v76, v76
    v_exp_f32 v77, v77
    v_pk_add_f32 v[76:77], v[76:77], 1.0 op_sel_hi:[1,0]
    v_rcp_f32 v76, v76
    v_rcp_f32 v77, v77
    v_pk_mul_f32 v[76:77], v[76:77], v[72:73]
    v_cvt_pk_bf16_f32 v76, 0, v76
    v_cvt_pk_bf16_f32 v77, 0, v77
    v_pk_mul_f32 v[76:77], v[76:77], v[74:75]
    v_cvt_pk_bf16_f32 v76, v76, v77
    ds_write_b16 v{hM2}, v76 offset:{L_XS + 256 - L_MISC}
    ds_write_b16_d16_hi v{hM2}, v76 offset:{L_XS + 384 - L_MISC}""")
    for s in range(4):
        a(f"ds_read_b128 v[{XSF+4*s}:{XSF+4*s+3}], v{hFR} offset:{256 + 32*s}")
    for s in range(4):
        two_row_mfma(AC0 + 32, s, 16 + s)
        two_row_mfma(AC1 + 32, s, 20 + s)
    a(f"""s_lshl_b32 s50, s61, 11
    s_lshl_b32 s51, s62, 8
    s_add_u32 s50, s50, s51
    s_add_u32 s50, s50, {WS_P2}
    s_add_u32 s51, s50, {28*2048}
    s_lshl_b32 s65, s62, 7
    s_add_u32 s65, s65, {WS_FLAG + F4*128}""")
    st1 = lambda r: f"buffer_store_dword v{r}, v{hL4}, {SWS}, s50 offen sc1\nbuffer_store_dword v{r+1}, v{hL4}, {SWS}, s51 offen sc1"
    halves(st1(AC0 + 32), st1(AC1 + 32))
    a("s_waitcnt vmcnt(0)")
    signal("s65", hZ, hONE)
    stamp(8)
    a("s_branch L_h_tail")

    def key_tok(dst, key):
        a(f"s_and_b32 {dst}, {key}, 0x7ff\ns_sub_u32 {dst}, 0x7ff, {dst}")

    a("L_h3:")
    if cfg.nomoe & 1:
        a("s_branch L_h_tail")
    a(f"""ds_read_b128 v[48:51], v{hM16} offset:{L_STAT - L_MISC}
    ds_read_b32 v52, v{hM4} offset:{L_KEY - L_MISC}
    s_lshl_b32 s50, {sP}, 14
    s_add_u32 s63, s50, {WS_STAT}
    s_lshl_b32 s50, {sJ}, 10
    s_add_u32 s50, s50, s63
    s_lshl_b32 s51, {sP}, 9
    s_add_u32 s64, s51, {WS_CAND}
    s_lshl_b32 s51, {sJ}, 5
    s_add_u32 s51, s51, s64
    s_lshl_b32 s65, {sP}, 7
    s_add_u32 s65, s65, {WS_FLAG + F2*128}""")
    if cfg.early3:
        a("s_waitcnt lgkmcnt(0)")
    else:
        allkv("h3")
    a(f"""buffer_store_dwordx4 v[48:51], v{hL16}, {SWS}, s50 offen sc1
    s_mov_b64 exec, 0xff
    buffer_store_dword v52, v{hL4}, {SWS}, s51 offen sc1
    s_mov_b64 exec, -1
    s_waitcnt vmcnt(0)""")
    signal("s65", hZ, hONE)
    if cfg.early3 == 0:
        a(f"ds_write_b32 v{hCT}, v{hONE} offset:28")
    if cfg.early3 == 1:
        allkv("h3")
    poll("s65", 16, "f2", hZ, hT, sleep=cfg.psl[0])
    if cfg.early3 == 2:
        a(f"ds_write_b32 v{hCT}, v{hONE} offset:28")
    stamp(6)
    a(f"""buffer_load_dwordx2 v[48:49], v{hL8}, {SWS}, s64 offen sc1
    s_waitcnt vmcnt(0)
    ds_max_u32 v{hCT}, v48 offset:32
    ds_read_b32 v50, v{hCT} offset:32
    s_waitcnt lgkmcnt(0)
    v_cmp_eq_u32 vcc, v50, v48
    v_readfirstlane_b32 s66, v50
    v_cndmask_b32 v48, v48, v49, vcc
    ds_max_u32 v{hCT}, v48 offset:36
    ds_read_b32 v51, v{hCT} offset:36
    s_waitcnt lgkmcnt(0)
    ds_write_b64 v{hCT}, v[50:51] offset:8      ; mailbox
    v_readfirstlane_b32 s67, v51
    s_cmpk_lt_u32 s75, 0xe0
    s_cbranch_scc0 L_h3_y""")
    key_tok("s50", "s66")
    key_tok("s51", "s67")
    a(f"""s_lshl_b32 s30, s62, 7
    s_lshl_b32 s52, s50, 10
    s_add_u32 s52, s52, s30
    s_lshl_b32 s53, s51, 10
    s_add_u32 s53, s53, s30
    s_lshl_b32 s50, s50, 3
    s_add_u32 s50, s50, s63
    s_lshl_b32 s51, s51, 3
    s_add_u32 s51, s51, s63""")
    ld2 = lambda ss, sx: f"buffer_load_dwordx2 v[48:49], v{hZ}, {SWS}, {ss} offen sc1\nbuffer_load_dword v50, v{hH4}, {SX}, {sx} offen"
    halves(ld2("s50", "s52"), ld2("s51", "s53"))
    a(f"""s_waitcnt vmcnt(0)
    v_lshlrev_b32 v52, 16, v50
    v_and_b32 v53, 0xffff0000, v50
    v_pk_add_f32 v[52:53], v[52:53], v[48:49] op_sel_hi:[1,0] neg_lo:[0,1] neg_hi:[0,1]
    v_cvt_pk_bf16_f32 v52, 0, v52
    v_cvt_pk_bf16_f32 v53, 0, v53
    v_pk_mul_f32 v[52:53], v[52:53], v[48:49] op_sel:[0,1]
    v_cvt_pk_bf16_f32 v52, v52, v53
    ds_write_b32 v{hM4}, v52 offset:{L_XS - L_MISC}
    ds_write_b32 v{hCT}, v{hONE} offset:24
L_h3_y:""")
    stamp(7)
    if cfg.nomoe & 2:
        a("s_branch L_h_tail")
    a(f"""s_lshl_b32 s65, s59, 7
    s_add_u32 s65, s65, {WS_FLAG + F4*128}
    s_mov_b32 s68, 0
L_h3_sel:""")
    key_tok("s50", "s66")
    a(f"""s_lshr_b32 s50, s50, 6
    s_cmp_lg_u32 s50, s60
    s_cbranch_scc1 L_h3_next""")
    poll("s65", 28, "f4", hZ, hT, sleep=cfg.psl[2])
    a(f"""s_mul_i32 s50, s68, {28*2048}
    s_lshl_b32 s51, s59, 8
    s_add_u32 s50, s50, s51
    s_add_u32 s50, s50, {WS_P2}""")
    for k in range(28):
        a(f"buffer_load_dword v{48+k}, v{hL4}, {SWS}, s50 offen offset:{2048*(k & 1)} sc1")
        if k & 1:
            a("s_add_u32 s50, s50, 4096")
    a(f"""s_and_b32 s51, s66, 0xffff0000
    s_xor_b32 s52, s51, 0x80000000
    s_xor_b32 s53, s51, 0xffff0000
    s_bitcmp1_b32 s51, 31
    s_cselect_b32 s51, s52, s53
    v_mov_b32 v4, {f32(-LOG2E)}
    v_mul_f32 v4, s51, v4
    v_exp_f32 v4, v4
    s_lshl_b32 s51, s68, 8
    v_add_u32 v7, s51, v{hM4}
    v_add_f32 v4, 1.0, v4
    v_rcp_f32 v4, v4
    s_waitcnt vmcnt(0)
    v_cvt_pk_bf16_f32 v4, 0, v4""")
    for k in range(1, 14):
        a(f"v_pk_add_f32 v[48:49], v[48:49], v[{48+2*k}:{49+2*k}]")
    a(f"""v_add_f32 v48, v48, v49
    v_cvt_pk_bf16_f32 v48, 0, v48
    v_mul_f32 v48, v48, v4
    v_cvt_pk_bf16_f32 v48, 0, v48
    ds_write_b32 v7, v48 offset:{L_Y - L_MISC}
L_h3_next:
    s_mov_b32 s66, s67
    s_add_u32 s68, s68, 1
    s_cmp_lt_u32 s68, 2
    s_cbranch_scc1 L_h3_sel""")
    stamp(8)

    a("L_h_tail:")
    srd(44, 24, 2097152)
    if cfg.outpf:
        a(f"""s_mov_b32 s50, {(0, 1, 0x01010101)[cfg.outpf]}
        s_mov_b32 s51, {(0, 0, 0x01010101)[cfg.outpf]}
        s_mov_b64 exec, s[50:51]
        buffer_load_dword v8, v{hOA}, {SAUX}, 0 offen sc1
        buffer_load_dword v8, v{hOA+1}, {SAUX}, 0 offen sc1
        s_mov_b64 exec, -1""")
    a(f"""s_setprio 0
    s_waitcnt vmcnt(0) lgkmcnt(0)
    s_barrier                             ; T1""")
    stamp(9)
    if cfg.t2early:
        a("s_barrier                             ; T2")
    a(f"""ds_read_b64 v[4:5], v6 offset:8
    ds_read_b32 v8, v6 offset:16
    v_and_b32 v1, 7, v0
    v_lshlrev_b32 v7, 5, v1
    v_add_u32 v7, {L_Y}, v7
    s_mov_b32 s68, 0
    s_waitcnt lgkmcnt(0)
    v_readfirstlane_b32 s66, v4
    v_readfirstlane_b32 s67, v5
    v_readfirstlane_b32 s70, v8
L_ht_sel:""")
    key_tok("s50", "s66")
    a(f"""s_lshr_b32 s51, s50, 6
    s_cmp_lg_u32 s51, s60
    s_cbranch_scc1 L_ht_next
    s_and_b32 s50, s50, 63
    ds_read_b128 v[8:11], v7
    ds_read_b128 v[12:15], v7 offset:16
    s_sub_u32 s51, s50, 8
    v_cmp_eq_u32 s[52:53], s50, v22
    v_cmp_eq_u32 s[54:55], s51, v22
    s_waitcnt lgkmcnt(0)""")
    for q in range(2):
        for i in range(4):
            r = hXN + 4 * q + i
            a(f"""v_lshlrev_b32 v28, 16, v{r}
                  v_and_b32 v29, 0xffff0000, v{r}
                  v_add_f32 v28, v28, v{8+2*i}
                  v_add_f32 v29, v29, v{9+2*i}
                  v_cvt_pk_bf16_f32 v28, v28, v29
                  v_cndmask_b32 v{r}, v{r}, v28, s[{52+2*q}:{53+2*q}]""")
    a(f"""L_ht_next:
    v_add_u32 v7, 256, v7
    s_mov_b32 s66, s67
    s_add_u32 s68, s68, 1
    s_cmp_lt_u32 s68, 2
    s_cbranch_scc1 L_ht_sel""")
    gate(0, cfg.gatepos)
    XU = 48
    def stage_setup():
        a(f"""s_lshr_b32 s30, {sP}, 3
              s_lshl_b32 s31, {sJ}, 1
              s_add_u32 s30, s30, s31
              s_lshl_b32 s72, s30, 8
              s_add_u32 s72, s72, {WS_FLAG + FO*128}
              s_lshl_b32 s30, s30, 16
              s_lshl_b32 s69, {sT}, 11
              s_add_u32 s68, s30, s69
              s_add_u32 s68, s68, {WS_OF}""")

    def stage_grp(g, addr):
        for tt in range(2):
            off = g * 8192 + tt * 32768
            a(f"""s_add_u32 m0, s69, {L_OST + off}
                  s_add_u32 s30, s68, {off}
                  buffer_load_dwordx4 v{addr}, {SWS}, s30 offen sc1 lds
                  buffer_load_dwordx4 v{addr}, {SWS}, s30 offen offset:1024 sc1 lds""")

    def poll_o(tag, addr4, tmp):
        a(f"""s_mov_b32 s56, 0
        L_po_{tag}:
              buffer_load_dword v{tmp}, v{addr4}, {SWS}, s72 offen sc1
              s_add_u32 s56, s56, 1
              s_waitcnt vmcnt(0)
              v_cmp_eq_u32 vcc, 0, v{tmp}
              s_cmp_ge_u32 s56, {cfg.spin_max}
              s_cbranch_vccz L_pod_{tag}
              s_cbranch_scc1 L_pod_{tag}
              s_cmp_lg_u32 s70, 0
              s_cbranch_scc1 L_po_{tag}
              s_sleep 32
              s_branch L_po_{tag}
        L_pod_{tag}:""")

    stage_setup()
    a(f"""v_and_b32 v2, 7, v22
    v_xor_b32 v2, v1, v2
    v_lshlrev_b32 v3, 7, v22
    v_lshl_add_u32 v4, v2, 4, v3
    v_add_u32 v4, {L_SST}, v4
    """)
    if not cfg.t2early:
        a("s_barrier                             ; T2")
    gate(cfg.gatepos, cfg.gatepos2)
    stamp(10)
    poll_o("h", hL4, 7)
    stamp(11)
    stage_grp(2, hL16)
    a("s_barrier                             ; T4a")
    stage_grp(3, hL16)
    a("s_barrier                             ; T4b")
    gate(cfg.gatepos2, 8)
    a("""s_waitcnt vmcnt(4)
    s_barrier                             ; T4c
    s_waitcnt vmcnt(0)
    s_barrier                             ; T4d""")
    for i in range(8):
        a(f"v_lshlrev_b32 v{XU+2*i}, 16, v{hXP+i}\nv_and_b32 v{XU+2*i+1}, 0xffff0000, v{hXP+i}")
    stamp(12)
    a(f"""s_barrier                             ; T5
    ds_read_b128 v[8:11], v4
    ds_read_b128 v[12:15], v4 offset:1024""")
    for q in range(2):
        a(f"s_waitcnt lgkmcnt({1-q})")
        for i in range(4):
            a(f"""v_lshlrev_b32 v{24+2*i}, 16, v{8+4*q+i}
                  v_and_b32 v{25+2*i}, 0xffff0000, v{8+4*q+i}""")
        for i in range(4):
            e = 8 * q + 2 * i
            a(f"v_pk_fma_f32 v[{24+2*i}:{25+2*i}], v[{24+2*i}:{25+2*i}], v[{hG+e}:{hG+e+1}], v[{XU+e}:{XU+e+1}]")
        for i in range(4):
            a(f"v_cvt_pk_bf16_f32 v{8+4*q+i}, v{24+2*i}, v{25+2*i}")
        if q == 0:
            stamp(13)
        a(f"buffer_store_dwordx4 v[{8+4*q}:{11+4*q}], v{hOA+q}, {SAUX}, 0 offen")
    stamp(14)
    if cfg.stamps:
        a("s_waitcnt vmcnt(0)")
    stamp(15)
    if cfg.light:
        a(f"""s_waitcnt vmcnt(0)
        s_memrealtime s[98:99]
        s_lshl_b32 s78, s2, 2
        s_add_u32 s78, s78, {sWV}
        s_lshl_b32 s78, s78, 6
        s_add_u32 s78, s78, {WS_DBG}
        v_mov_b32 v0, 0
        v_mov_b32 v4, s96
        s_waitcnt lgkmcnt(0)
        v_mov_b32 v5, s98
        v_mov_b32 v6, s80
        v_mov_b32 v7, s82
        v_mov_b32 v8, s84
        v_mov_b32 v9, s86
        v_mov_b32 v10, s88
        v_mov_b32 v11, s90
        v_mov_b32 v12, s92
        v_mov_b32 v13, s94
        buffer_store_dwordx4 v[4:7], v0, {SWS}, s78 offen
        buffer_store_dwordx4 v[8:11], v0, {SWS}, s78 offen offset:16
        buffer_store_dwordx2 v[12:13], v0, {SWS}, s78 offen offset:32""")
    if cfg.probe and len(cfg.probe) > 3:
        srd(44, 26, 256)
        a(f"""v_mov_b32 v0, 0
        v_mov_b32 v1, s98
        s_not_b32 s99, s98
        v_mov_b32 v2, s99
        s_getreg_b32 s30, hwreg(HW_REG_XCC_ID, 0, 4)
        s_lshl_b32 s30, 1, s30
        s_and_b32 s30, s30, {cfg.probe[4] if len(cfg.probe) > 4 else 255}
        s_mov_b64 exec, 1
        s_cbranch_scc0 L_pr_nomax
        buffer_atomic_umax v1, v0, {SAUX}, 0 offen offset:32 sc1
    L_pr_nomax:
        buffer_atomic_umax v2, v0, {SAUX}, 0 offen offset:160 sc1
        s_waitcnt vmcnt(0)
    L_probe0:
        s_sleep 4
        s_memrealtime s[100:101]
        s_waitcnt lgkmcnt(0)
        s_sub_u32 s100, s100, s96
        s_cmp_lt_u32 s100, {cfg.probe[1] - 500}
        s_cbranch_scc1 L_probe0
        buffer_load_dword v1, v0, {SAUX}, 0 offen offset:32 sc1
        buffer_load_dword v2, v0, {SAUX}, 0 offen offset:160 sc1
        s_waitcnt vmcnt(0)
        v_readfirstlane_b32 s98, v1
        v_readfirstlane_b32 s99, v2
        s_nop 1
        s_not_b32 s99, s99
        s_sub_u32 s98, s98, s99
        s_add_u32 s98, s98, s96""")
    if cfg.probe:
        a(f"""s_sub_u32 s98, s98, s96
        s_mul_i32 s98, s98, {cfg.probe[2]}
        s_add_u32 s98, s98, {cfg.probe[1]}
        s_min_u32 s98, s98, 100000
    L_probe:
        s_sleep 4
        s_memrealtime s[100:101]
        s_waitcnt lgkmcnt(0)
        s_sub_u32 s100, s100, s96
        s_cmp_lt_u32 s100, s98
        s_cbranch_scc1 L_probe""")
    dump_stamps()
    a("s_endpgm")

    vXA, vWA = 144, 148
    vM, vRS, vDEN = 149, 150, 151
    CS = 152
    MF = 156
    t = 160
    vLANE, vL16 = 166, 167

    class Lg:
        def __init__(self):
            self.q = []

        def rd(self, tag, text):
            for ln in text.strip().split("\n"):
                if len(self.q) >= 15:
                    a("s_waitcnt lgkmcnt(9)")
                    self.q = self.q[-9:]
                a(ln)
                self.q.append(tag)

        def wait(self, *tags):
            last = max((i for i, x in enumerate(self.q) if x in tags), default=-1)
            if last < 0:
                return
            n = len(self.q) - 1 - last
            a(f"s_waitcnt lgkmcnt({min(n, 15)})")
            self.q = self.q[last + 1:]

    def trs(dst, addr, off, second=256):
        return (f"ds_read_b64_tr_b16 v[{dst}:{dst+1}], v{addr} offset:{off}\n"
                f"ds_read_b64_tr_b16 v[{dst+2}:{dst+3}], v{addr} offset:{off + second}")

    a(f"""L_compute:
    v_mov_b32 v{vLANE}, v0
    v_lshlrev_b32 v{vL16}, 4, v0
    v_and_b32 v1, 31, v0
    v_lshrrev_b32 v2, 5, v0              ; half
    v_bfe_u32 v3, v0, 1, 3
    v_xor_b32 v3, v3, v2
    s_lshl_b32 s30, {sT}, 12
    s_add_u32 s30, s30, {L_RING}
    v_lshl_add_u32 v4, v1, 7, s30""")
    for s in range(4):
        a(f"v_xor_b32 v5, {2*s}, v3\nv_lshl_add_u32 v{vXA+s}, v5, 4, v4")
    tr_addr(vWA, 0, 3, 4)
    a(f"""v_lshrrev_b32 v3, 2, v0
    v_xor_b32 v3, v3, v0
    v_and_b32 v3, 4, v3
    v_cmp_eq_u32 vcc, 0, v3
    v_mov_b32 v4, {sONE}""")
    for i in range(4):
        a(f"v_cndmask_b32 v{CS+i}, 0, v4, vcc")
    a("s_waitcnt lgkmcnt(0)")
    if cfg.stamps:
        a("s_mov_b32 s80, s78")
    srd(40, 28, WS_SIZE)
    SA, SB, OO, QQ, RING = 0, 16, 32, 96, 112
    vIDX = 160
    vC = 154
    sHH, sKQ = "s58", sT
    sVM = "s[62:63]"

    def slot(s):
        b = RING + 12 * s
        return dict(K=b, V=[b + 4, b + 8])

    def const_rows(tmp):
        return [f"v_and_b32 v{tmp}, 27, v{vLANE}",
                f"v_cmp_eq_u32 vcc, 16, v{tmp}",
                f"v_mov_b32 v{tmp}, {sONE}",
                f"v_cndmask_b32 v{vC}, 0, v{tmp}, vcc\nv_cndmask_b32 v{vC+1}, 0, v{tmp}, vcc"]

    def attn_init_b(slots):
        for s in slots:
            for i in range(0, 8, 2):
                r = slot(s)["V"][0] + i
                if r != vC:
                    a(f"v_mov_b64 v[{r}:{r+1}], v[{vC}:{vC+1}]")

    a(f"""s_lshr_b32 {sHH}, {sWV}, 3
    s_mov_b32 s62, 0xffff
    s_mov_b32 s63, 0xffff
    s_lshl_b32 s64, {sP}, 1
    s_add_u32 s64, s64, {sHH}
    s_lshl_b32 s64, s64, 17
    s_or_b32 s61, {sJ}, {cfg.sib}
    s_add_u32 s61, s61, 1
    s_lshl_b32 s61, s61, 13
    s_lshl_b32 s31, {sKQ}, 11
    s_add_u32 s61, s61, s31
    s_mov_b32 s76, 0
    s_mov_b32 s77, 0
    s_lshl_b32 s30, {sHH}, 13
    s_add_u32 s71, s30, s31
    s_lshl_b32 s31, {sHH}, 12""")
    for i in range(4):
        a(f"""s_add_u32 s30, {sKQ}, {1 + i}
              s_and_b32 s30, s30, 3
              s_lshl_b32 s30, s30, 10
              s_add_u32 s{72+i}, s30, s31""")
    a(f"""s_cmp_ge_u32 {sWV}, 8
    s_cbranch_scc1 L_bwave""")

    XB, WK, WV, AK, AV, RB, ASX, SQ = (0, 16), 32, 48, 64, 80, 96, 112, 116
    SFK, SFV, RF, OF_ = 128, 132, 136, 140
    vKG, vVG = 164, 165
    EFA, vEA = RB, vM
    a(f"""v_and_b32 v1, 3, v0
    v_mov_b32 v5, {L_ZERO}
    v_mov_b32 v6, {L_ONES}
    v_mov_b32 v7, {L_WR}
    v_cmp_eq_u32 s[52:53], 0, v1
    v_cmp_eq_u32 s[54:55], 1, v1
    v_cndmask_b32 v6, v5, v6, s[52:53]
    v_cndmask_b32 v6, v6, v7, s[54:55]
    v_cndmask_b32 v6, v5, v6, vcc
    v_lshl_add_u32 v{vEA}, v2, 4, v6
    v_cmp_gt_u32 vcc, 32, v{vLANE}
    v_and_b32 v{t}, 0x33, v{vLANE}
    v_bfe_u32 v{t+1}, v{vLANE}, 2, 1
    v_lshl_add_u32 v{t}, v{t+1}, 3, v{t}
    v_bfe_u32 v{t+1}, v{vLANE}, 3, 1
    v_lshl_add_u32 v{t}, v{t+1}, 2, v{t}
    v_lshlrev_b32 v{vKG}, 4, v{t}
    v_and_b32 v{t}, 0x2f, v{vLANE}
    v_lshlrev_b32 v{t}, 4, v{t}
    v_bfe_u32 v{t+1}, v{vLANE}, 4, 1
    v_lshl_add_u32 v{vVG}, v{t+1}, 17, v{t}
    v_cndmask_b32 v{OF_}, 0, v4, vcc
    v_cndmask_b32 v{OF_+1}, 0, v4, vcc
    v_mov_b32 v{OF_+2}, 0
    v_mov_b32 v{OF_+3}, 0
    v_mov_b32 v{RF+2}, 0
    v_mov_b32 v{RF+3}, 0
    v_add_u32 v{t+3}, {L_SFR}, v{vL16}
    v_and_b32 v1, 31, v{vLANE}
    s_lshl_b32 s30, {sT}, 5
    v_add_lshl_u32 v{CS}, v1, s30, 3
    v_add_u32 v{CS}, {L_STAT}, v{CS}
    v_add_u32 v5, {L_WR}, v{vL16}
    v_mov_b32 v8, v4
    v_mov_b32 v9, v4
    v_mov_b32 v10, v4
    v_mov_b32 v11, v4
    s_lshl_b32 s50, {sP}, 18
    s_lshl_b32 s30, {sJ}, 13
    s_add_u32 s50, s50, s30
    s_lshl_b32 s49, {sT}, 11
    s_add_u32 s50, s50, s49
    s_add_u32 s51, s50, 0x20000
    s_mov_b32 s52, 0xaaaaaaaa
    s_mov_b32 s53, 0xaaaaaaaa
    s_mov_b32 s54, 0xcccccccc
    s_mov_b32 s55, 0xcccccccc
    """)
    for ins in const_rows(6):
        a(ins)
    a("""s_barrier                             ; Ba
    ds_read_b128 v[12:15], v5""")
    lg = Lg()

    def rdw(n, s, which):
        if cfg.x1 & 4 and n > 0:
            return
        if which == 0:
            lg.rd(("k", n, s), trs(WK + 4 * s, vWA, L_WK + n * 4096 + s * 1024))
        else:
            lg.rd(("v", n, s), trs(WV + 4 * s, vWA, L_WV + n * 4096 + s * 1024))

    def rdx(n, s):
        r = XB[n & 1] + 4 * s
        off = (n % 5) * 16384 - (16 if n == 4 else 0)
        lg.rd(("x", n, s), f"ds_read_b128 v[{r}:{r+3}], v{vXA+s} offset:{off}")

    def rde(n, s):
        lg.rd(("e", n, s), f"ds_read_b128 v[{EFA+4*s}:{EFA+4*s+3}], v{vEA} offset:{(4*n + s)*32}")

    def bigk(n, s):
        lg.wait(("k", n, s), ("x", n, s))
        if cfg.x1 & 8 and 0 < n < 7:
            return
        mfma32(AK, WK + 4 * s, XB[n & 1] + 4 * s, None if (n, s) == (0, 0) else AK)

    def bigv(n, s):
        lg.wait(("v", n, s), ("x", n, s))
        if cfg.x1 & 8 and 0 < n < 7:
            return
        mfma32(AV, XB[n & 1] + 4 * s, WV + 4 * s, None if (n, s) == (0, 0) else AV)

    def smalls(n, fill=()):
        fill = list(fill)
        lg.wait(*[(k_, n, s) for s in range(4) for k_ in "xe"])
        if cfg.x1 & 2 and n not in (0, 7):
            for f_ in fill: a(f_)
            return
        for s in range(4):
            mfma16(ASX, EFA + 4 * s, XB[n & 1] + 4 * s, None if (n, s) == (0, 0) else ASX)
            if fill:
                a(fill.pop(0))
        for i in range(8):
            d = SQ + 4 * (i % 3)
            r = XB[n & 1] + 2 * i
            c = "0" if (n == 0 and i < 3) else f"v[{d}:{d+3}]"
            a(f"v_mfma_f32_4x4x4_16b_bf16 v[{d}:{d+3}], v[{r}:{r+1}], v[{r}:{r+1}], {c}")
        assert not fill

    def head(n):
        rdx(n, 0); rdx(n, 1)
        if n:
            bigk(n - 1, 2)
        rdx(n, 2); rdx(n, 3); rde(n, 0); rde(n, 1)
        if n:
            bigv(n - 1, 2)
        rdw(n, 2, 0); rdw(n, 2, 1)
        if n:
            bigk(n - 1, 3)
        rdw(n, 3, 0); rde(n, 2); rde(n, 3)
        if n:
            bigv(n - 1, 3)
        rdw(n, 3, 1)

    for s in range(2):
        rdw(0, s, 0); rdw(0, s, 1)
    a("s_waitcnt lgkmcnt(8)")
    mfma16(16, 8, 12)
    for r in (8, 4, 2, 1):
        a(f"v_add_f32_dpp v16, v16, v16 row_ror:{r} row_mask:0xf bank_mask:0xf")
    a("v_readfirstlane_b32 s70, v16")
    for n in range(7):
        a(f"s_barrier                             ; B{n}")
        head(n)
        for s in range(2):
            bigk(n, s)
            rdw(n + 1, s, 0)
            bigv(n, s)
            rdw(n + 1, s, 1)
        fill = []
        if n == 3:
            fill = [f"v_add_u32 v{vXA+s}, 16, v{vXA+s}" for s in range(4)]
        if n == 4:
            fill = [f"v_add_u32 v{vXA+s}, -16, v{vXA+s}" for s in range(4)]
        smalls(n, fill)
    a("s_barrier                             ; B7")
    stamp(3)
    head(7)
    lg.rd("sf", f"ds_read_b128 v[{SFK}:{SFK+3}], v{t+3}\nds_read_b128 v[{SFV}:{SFV+3}], v{t+3} offset:1024")
    smalls(7)
    PK = XB[0]
    groups = [
        [],
        [f"v_mul_f32 v{t}, {f32(1/512)}, v{ASX}            ; mean"] +
        [f"v_pk_add_f32 v[{SQ+i}:{SQ+i+1}], v[{SQ+i}:{SQ+i+1}], v[{SQ+4+i}:{SQ+5+i}]" for i in (0, 2)] +
        [f"v_pk_add_f32 v[{SQ+i}:{SQ+i+1}], v[{SQ+i}:{SQ+i+1}], v[{SQ+8+i}:{SQ+9+i}]" for i in (0, 2)],
        [f"v_cvt_pk_bf16_f32 v{MF}, -v{t}, -v{t}",
         f"v_cndmask_b32 v{SQ}, v{SQ}, v{SQ+1}, s[52:53]",
         f"v_cndmask_b32 v{SQ+2}, v{SQ+2}, v{SQ+3}, s[52:53]",
         f"v_mov_b32 v{MF+1}, v{MF}",
         f"v_cndmask_b32 v{SQ}, v{SQ}, v{SQ+2}, s[54:55]",
         f"v_mov_b32 v{t+1}, v{SQ}"],
        [f"v_mov_b32 v{MF+2}, v{MF}",
         f"v_mov_b32 v{MF+3}, v{MF}",
         f"v_permlane32_swap_b32 v{t+1}, v{SQ}",
         f"v_add_f32 v{t+1}, v{t+1}, v{SQ}",
         f"v_mul_f32 v{t+1}, {f32(1/512)}, v{t+1}"],
        [f"v_fma_f32 v{t+1}, -v{t}, v{t}, v{t+1}         ; variance",
         f"v_max_f32 v{t+1}, 0, v{t+1}",
         f"v_cvt_pk_bf16_f32 v{t+1}, 0, v{t+1}",
         f"v_add_f32 v{t+1}, {f32(1e-5)}, v{t+1}",
         f"v_cvt_pk_bf16_f32 v{t+1}, 0, v{t+1}",
         f"v_sqrt_f32 v{t+1}, v{t+1}"],
        [f"v_cvt_pk_bf16_f32 v{vDEN}, 0, v{t+1}",
         f"v_rcp_f32 v{vRS}, v{vDEN}",
         f"v_cvt_pk_bf16_f32 v{vM}, 0, v{t}",
         f"v_and_b32 v{t}, 0xffff0000, v{vRS}",
         f"v_sub_f32 v{t+1}, v{vRS}, v{t}"],
        [f"v_and_b32 v{t+2}, 0xffff0000, v{t+1}",
         f"v_sub_f32 v{t+1}, v{t+1}, v{t+2}",
         f"v_lshrrev_b32 v{t}, 16, v{t}",
         f"v_or_b32 v{RF}, v{t}, v{t+2}",
         f"v_lshrrev_b32 v{RF+1}, 16, v{t+1}",
         f"v_mul_f32 v{AK}, v{vRS}, v{AK}"],
        [f"ds_write2_b32 v{CS}, v{vM}, v{vRS} offset1:1"] + [f"v_mul_f32 v{AK+i}, v{vRS}, v{AK+i}" for i in range(1, 7)],
        [f"v_mul_f32 v{AK+7}, v{vRS}, v{AK+7}"] +
        [f"v_cvt_pk_bf16_f32 v{PK+i}, v{AK+2*i}, v{AK+2*i+1}" for i in range(4)] +
        [f"buffer_store_dwordx4 v[{PK}:{PK+3}], v{vKG}, {SWS}, s50 offen sc1"],
        [f"v_mul_f32 v{AK+i}, v{vRS}, v{AK+i}" for i in range(8, 14)],
        [f"v_mul_f32 v{AK+i}, v{vRS}, v{AK+i}" for i in range(14, 16)] +
        [f"v_cvt_pk_bf16_f32 v{PK+i}, v{AK+2*i}, v{AK+2*i+1}" for i in range(4, 8)] +
        [f"buffer_store_dwordx4 v[{PK+4}:{PK+7}], v{vKG}, {SWS}, s51 offen sc1"],
    ]

    def augk():
        lg.wait("sf")
        mfma32(AK, SFK, MF, AK)
    seq = [lambda s=s: bigk(7, s) for s in range(4)] + [augk] + [lambda s=s: bigv(7, s) for s in range(3)]
    seq += [lambda: mfma32(RB, RF, OF_), lambda: bigv(7, 3), lambda: mfma32(AV, MF, SFV, AV)]
    assert len(seq) == len(groups)
    for m, g in zip(seq, groups):
        m()
        for ins in g:
            a(ins)
    for hf in range(2):
        for i in range(4 * hf, 4 * hf + 4):
            a(f"v_pk_mul_f32 v[{AV+2*i}:{AV+2*i+1}], v[{RB+2*i}:{RB+2*i+1}], v[{AV+2*i}:{AV+2*i+1}]")
        for i in range(4 * hf, 4 * hf + 4):
            a(f"v_cvt_pk_bf16_f32 v{PK+8+i}, v{AV+2*i}, v{AV+2*i+1}")
        a(f"buffer_store_dwordx4 v[{PK+8+4*hf}:{PK+11+4*hf}], v{vVG}, {SWS}, s50 offen offset:{1024 + 256*hf} sc1")
    stamp(2)

    def drain_signal():
        a(f"""s_waitcnt vmcnt(0)
        s_mov_b64 exec, 1
        ds_add_rtn_u32 v{t+3}, v{t+2}, v{t+4}
        s_mov_b64 exec, -1
        s_waitcnt lgkmcnt(0)
        v_readfirstlane_b32 s59, v{t+3}
        s_cmp_lg_u32 s59, 3
        s_cbranch_scc1 L_a_nosig""")
        a(f"""s_mov_b64 exec, 1
        buffer_atomic_add v{t+5}, v{t+1}, {SWS}, s57 offen {'sc0 ' if cfg.sigret else ''}sc1
        s_mov_b64 exec, -1""")
        stamp(1)
        a("L_a_nosig:")

    a(f"""s_waitcnt lgkmcnt(0)
    s_setprio 3
    s_barrier                             ; B8""")
    stamp(4)
    a(f"""v_add_u32 v28, s49, v{vKG}
    v_and_b32 v29, 0x3ff, v{vVG}
    v_lshrrev_b32 v30, 4, v{vVG}
    v_and_b32 v30, 0x2000, v30
    v_add3_u32 v29, v29, v30, s49
    v_mov_b32 v{t+1}, 0
    v_mov_b32 v{t+2}, {L_CTR}
    v_mov_b32 v{t+4}, 1
    v_lshlrev_b32 v{t+5}, {sJ}, v{t+4}
    s_lshl_b32 s57, {sP}, 7
    s_add_u32 s57, s57, {WS_FLAG + F1*128}
    ds_write_b128 v28, v[{PK}:{PK+3}] offset:{L_OWNKV}
    ds_write_b128 v28, v[{PK+4}:{PK+7}] offset:{L_OWNKV + 8192}
    ds_write_b128 v29, v[{PK+8}:{PK+11}] offset:{L_OWNKV + 1024}
    ds_write_b128 v29, v[{PK+12}:{PK+15}] offset:{L_OWNKV + 1280}
    s_setprio 1""")
    for r in range(OO, OO + 2 * cfg.azero, 2):
        a(f"v_mov_b64 v[{r}:{r+1}], 0")
    stamp(14)
    a("s_setprio 3")
    drain_signal()
    a(f"""s_setprio 1
    v_and_b32 v{t}, 31, v{vLANE}
    s_lshl_b32 s30, {sJ}, 7
    s_lshl_b32 s31, {sT}, 5
    s_add_u32 s30, s30, s31
    s_sub_u32 s53, 0x7ff, s30""")
    AR = ASX + 1
    a(f"""v_fma_f32 v{AR}, -v{vM}, s70, v{AR}
    v_mul_f32 v{AR}, v{vRS}, v{AR}
    v_cvt_pk_bf16_f32 v{AR}, 0, v{AR}
    v_ashrrev_i32 v{AR+1}, 31, v{AR}
    v_or_b32 v{AR+1}, 0x80000000, v{AR+1}
    v_xor_b32 v{AR}, v{AR}, v{AR+1}
    v_and_b32 v{AR}, 0xffff0000, v{AR}
    v_sub_u32 v{AR+1}, s53, v{t}
    v_or_b32 v{AR}, v{AR}, v{AR+1}""")
    wavemax_u32("s50", AR, AR + 1, 2)
    a(f"""v_cmp_eq_u32 vcc, s50, v{AR}
    v_cndmask_b32 v{AR}, v{AR}, v{t+1}, vcc""")
    wavemax_u32("s51", AR, AR + 1, 2)
    a(f"""s_lshl_b32 s30, {sT}, 3
    s_add_u32 s30, s30, {L_KEY}
    v_mov_b32 v16, s50
    v_mov_b32 v17, s51
    v_mov_b32 v18, s30
    ds_write_b64 v18, v[16:17]""")
    for r in range(OO + 2 * cfg.azero, OO + 64, 2):
        a(f"v_mov_b64 v[{r}:{r+1}], 0")
    attn_init_b((0,))
    if cfg.sigret:
        a(f"""s_cmp_lg_u32 s59, 3
        s_cbranch_scc1 L_attn_pre
        s_lshr_b32 s31, s61, 13
        s_and_b32 s31, s31, 15
        s_waitcnt vmcnt(0)
        v_readfirstlane_b32 s30, v{t+5}
        s_mul_i32 s30, s30, 0x10001
        s_lshr_b32 s30, s30, s31
        s_and_b32 s30, s30, 0xffff
        v_mov_b32 v{t+5}, s30
        ds_write_b32 v{t+2}, v{t+5} offset:20""")
    stamp(8)
    a("s_branch L_attn_pre")

    XF, WF, EF, ACC, ASK, ASV, AR = 0, 80, 96, 112, 128, 132, 136
    a(f"""L_bwave:
    s_cmp_lg_u32 {sT}, 0
    s_cbranch_scc1 L_b_noinit""")
    a(f"""v_mov_b32 v5, v4
    v_mov_b32 v6, v4
    v_mov_b32 v7, v4
    v_add_u32 v1, {L_ZERO}, v{vL16}
    v_mov_b32 v8, 0
    v_mov_b32 v9, 0
    v_mov_b32 v10, 0
    v_mov_b32 v11, 0
    ds_write_b128 v1, v[4:7] offset:{L_ONES - L_ZERO}
    ds_write_b128 v1, v[8:11]
    ds_write_b128 v1, v[8:11] offset:192
    s_waitcnt lgkmcnt(0)
L_b_noinit:""")
    srd(44, 26, 256)
    a(f"""s_lshl_b32 s52, s2, 2
    s_add_u32 s52, s52, {sT}
    s_cmp_lg_u32 s52, 1
    s_cbranch_scc1 L_b_noclear
    v_lshlrev_b32 v1, 7, v{vLANE}
    s_mov_b32 s30, {WS_FLAG}
    s_mov_b32 s31, {WS_FLAG + 64*128}
    v_mov_b32 v8, 0
    v_mov_b32 v9, 0
    v_mov_b32 v10, 0
    v_mov_b32 v11, 0
    buffer_store_dword v8, v1, {SWS}, s30 offen sc1""")
    for i in range(12):
        a(f"buffer_store_dwordx4 v[8:11], v{vL16}, {SWS}, s31 offen offset:{1024*(i & 3)} sc1")
        if i in (3, 7):
            a("s_add_u32 s31, s31, 4096")
    a(f"""
L_b_noclear:""")
    a(f"""s_lshl_b32 s30, {sT}, 10
    v_add_u32 v{t}, s30, v{vWA}
    v_cmp_gt_u32 vcc, 32, v{vLANE}
    v_and_b32 v{EF}, 31, v{vLANE}
    v_lshrrev_b32 v{EF+1}, 5, v{vLANE}
    v_lshlrev_b32 v{EF+1}, 10, v{EF+1}
    v_lshl_add_u32 v{EF}, v{EF}, 4, v{EF+1}
    s_lshr_b32 s30, {sT}, 1
    s_lshl_b32 s30, s30, 9
    s_and_b32 s31, {sT}, 1
    s_lshl_b32 s31, s31, 3
    s_add_u32 s30, s30, s31
    s_add_u32 s30, s30, {L_SFR}
    v_and_b32 v{vM}, 0x1ff, v{EF}
    v_add_u32 v{vM}, s30, v{vM}
    v_add_u32 v{EF}, s30, v{EF}
    s_lshl_b32 s30, {sT}, 5""")
    for s in range(4):
        a(f"v_xor_b32 v{vXA+s}, s30, v{vXA+s}")
    a("s_barrier                             ; Ba")

    def ssum(n):
        read_w(WF, t, L_WK + n * 4096)
        read_w(WF + 4, t, L_WV + n * 4096)

    def ssum2(n):
        mfma16(ASK, CS, WF, None if n == 0 else ASK)
        mfma16(ASV, CS, WF + 4, None if n == 0 else ASV)

    ssum(0)
    a("s_waitcnt lgkmcnt(0)")
    ssum2(0)
    for n in range(7):
        a(f"s_barrier                             ; B{n}")
        ssum(n + 1)
        if n < 5 and not cfg.x1 & 1:
            for s in range(4):
                r = XF + 20 * s + 4 * n
                if n < 4:
                    a(f"ds_read_b128 v[{r}:{r+3}], v{vXA+s} offset:{n*16384}")
                else:
                    a(f"v_add_u32 v{t+2}, 65536, v{vXA+s}\nds_read_b128 v[{r}:{r+3}], v{t+2}")
        if n == 0:
            a(f"""s_cmp_lg_u32 s52, 1
            s_cbranch_scc1 L_b_nosig
            s_waitcnt vmcnt(0)
            v_mov_b32 v{t+2}, 0
            v_mov_b32 v{t+3}, 1
            s_mov_b64 exec, 1
            buffer_store_dword v{t+3}, v{t+2}, {SAUX}, 0 offen sc1
            s_mov_b64 exec, -1
        L_b_nosig:""")
        if n == 4:
            a(f"""s_cmp_lg_u32 {sT}, 0
            s_cbranch_scc1 L_b_noclr
            v_mov_b32 v{t+2}, 0
            s_mov_b64 exec, 1
            buffer_load_dword v{t+5}, v{t+2}, {SAUX}, 0 offen sc1
            s_mov_b64 exec, -1
        L_b_noclr:""")
        if n == 6:
            a("s_setprio 2")
        a("s_waitcnt lgkmcnt(0)")
        ssum2(n + 1)
    a(f"v_cndmask_b32 v{EF+1}, v{ASV}, v{ASK}, vcc")
    split3(EF + 2, EF + 1, t + 2)
    a(f"""ds_write_b64 v{EF}, v[{EF+2}:{EF+3}]
    s_cmp_lg_u32 {sT}, 0
    s_cbranch_scc1 L_b_clrd
    s_waitcnt vmcnt(0)
    v_readfirstlane_b32 s30, v{t+5}
    v_mov_b32 v{t+2}, 0
    s_cmp_lg_u32 s30, 0
    s_cbranch_scc1 L_b_clrd""")
    poll("0", 1, "clr", t + 2, t + 5, sleep=1, srd_=SAUX)
    a(f"""L_b_clrd:
    s_setprio 0
    s_waitcnt vmcnt(0) lgkmcnt(0)
    s_barrier                             ; B7
    v_add_u32 v{vWA}, {L_WQ}, v{t}
    v_and_b32 v{t+4}, 31, v{vLANE}
    s_lshl_b32 s30, {sT}, 5
    v_add_lshl_u32 v{t+4}, v{t+4}, s30, 3
    v_add_u32 v{t+4}, {L_STAT}, v{t+4}
    s_lshl_b32 s30, {sT}, 10
    v_add_u32 v{t+5}, s30, v{vL16}
    v_add_u32 v{t+1}, {L_SFR}, v{vL16}
    v_mov_b32 v{t}, {L_CTR}
    v_mov_b32 v{vDEN}, 1""")
    xq = lambda n, s: XF + 20 * s + 4 * n if n < 5 else (128 if s % 2 == 0 else 0) + 4 * (n - 5)
    xrd = lambda n, s: f"ds_read_b128 v[{xq(n, s)}:{xq(n, s)+3}], v{vXA+s} offset:{(n - 5)*16384}"
    for n in range(5, 8):
        a(xrd(n, 0))
    a("""s_waitcnt lgkmcnt(0)
    s_setprio 2
    s_barrier                             ; B8""")
    stamp(4)
    lg = Lg()
    SQA = 140

    def qreads(k):
        s_, n = k >> 3, k & 7
        if n == 0 and s_:
            a(f"v_xor_b32 v{vWA}, {(s_ ^ (s_ - 1)) << 10}, v{vWA}")
        lg.rd(("q", k), trs(WF + 4 * (k % 8), vWA, n * 4096))
    for k in range(5):
        qreads(k)
    lg.rd("st", f"ds_read_b64 v[{t+2}:{t+3}], v{t+4}")
    z = lambda lo, hi: "\n".join(f"v_mov_b64 v[{r}:{r+1}], 0" for r in range(lo, hi, 2))
    cr = const_rows(t + 4)
    side = {8: f"v_cvt_pk_bf16_f32 v{MF}, -v{t+2}, -v{t+2}",
            9: f"v_mul_f32 v{vRS}, {f32(CQ)}, v{t+3}\nv_mov_b32 v{MF+1}, v{MF}",
            10: f"v_and_b32 v{t+2}, 0xffff0000, v{SQA}\nv_sub_f32 v{t+3}, v{SQA}, v{t+2}\nv_and_b32 v{t+4}, 0xffff0000, v{t+3}",
            11: f"v_sub_f32 v{t+3}, v{t+3}, v{t+4}\nv_lshrrev_b32 v{t+2}, 16, v{t+2}\nv_or_b32 v{t+2}, v{t+2}, v{t+4}",
            12: f"v_lshrrev_b32 v{t+3}, 16, v{t+3}",
            14: f"v_mov_b64 v[{MF+2}:{MF+3}], v[{MF}:{MF+1}]\n" + cr[0] + "\n" + cr[1],
            15: cr[2] + "\n" + z(32, 36), 16: cr[3], 19: z(36, 40),
            21: z(40, 46), 22: z(46, 52), 23: z(52, 56), 24: z(56, 60), 26: z(80, 84), 27: z(84, 88), 28: z(88, 96),
            29: z(60, 68), 30: z(68, 76), 31: z(76, 80)}
    for k in range(32):
        s, n = k >> 3, k & 7
        lg.wait(("q", k), ("x", k))
        mfma32(ACC, WF + 4 * (k % 8), xq(n, s), ACC if k else None)
        if k + 5 < 32:
            qreads(k + 5)
        if s < 3 and (3 <= n < 6 if s == 0 else n < 3):
            n2 = n + 2 if s == 0 else n + 5
            lg.rd(("x", 8 * (s + 1) + n2), xrd(n2, s + 1))
        if k in side:
            a(side[k])
        if k < 8:
            mfma16(SQA, CS, WF + 4 * k, SQA if k else None)
        if k == 13:
            lg.rd("w", f"ds_write_b64 v{vM}, v[{t+2}:{t+3}]")
            a("s_mov_b64 exec, 1")
            lg.rd("w", f"ds_add_u32 v{t}, v{vDEN} offset:4")
            a("s_mov_b64 exec, -1")
        if k == 25:
            lg.rd("sf", f"ds_read_b32 v{t+2}, v{t} offset:4\nds_read_b128 v[{SQA}:{SQA+3}], v{t+1}")
    a(f"""s_mov_b32 s56, 0
L_b_sq:
    s_waitcnt lgkmcnt(0)
    v_readfirstlane_b32 s30, v{t+2}
    s_add_u32 s56, s56, 1
    s_cmp_ge_u32 s30, 4
    s_cbranch_scc1 L_b_sqd
    ds_read_b32 v{t+2}, v{t} offset:4
    ds_read_b128 v[{SQA}:{SQA+3}], v{t+1}
    s_cmp_lt_u32 s56, {cfg.spin_max}
    s_cbranch_scc1 L_b_sq
L_b_sqd:""")
    stamp(8)
    mfma32(ACC, SQA, MF, ACC)
    for i in range(0, 16, 2):
        a(f"v_pk_mul_f32 v[{ACC+i}:{ACC+i+1}], v[{ACC+i}:{ACC+i+1}], v[{vRS}:{vRS+1}] op_sel_hi:[1,0]")
        a(f"v_cvt_pk_bf16_f32 v{4+i//2}, v{ACC+i}, v{ACC+i+1}")
        if i == 6:
            a(f"ds_write_b128 v{t+5}, v[4:7] offset:{L_Q}")
    a(f"ds_write_b128 v{t+5}, v[8:11] offset:{L_Q + 4096}")
    stamp(1)
    attn_init_b((0,))

    def exp(r):
        a(f"v_exp_f32 v{r}, v{r}")

    def smf(o, v, p):
        a(f"v_smfmac_f32_32x32x32_bf16 v[{o}:{o+15}], v[{v}:{v+3}], v[{p}:{p+7}], v{vIDX}")

    def step(i, S, prev, nxt, h1=None, h2=None, h3=None, hq=None, h4=None):
        cur, oth = (SA, SB) if i % 2 == 0 else (SB, SA)
        exp(cur); exp(cur + 1)
        if i or prev is not None:
            smf(OO + 16 * ((i - 1) & 3), (S if i else prev)["V"][1], oth + 8)
        if h1:
            h1()
        for e in range(2, 5):
            exp(cur + e)
        if i < 3:
            mfma32(oth, S["K"], QQ + 4 * (i + 1))
        elif nxt is not None:
            mfma32(oth, nxt["K"], QQ)
        if hq:
            hq()
        for e in range(5, 10):
            exp(cur + e)
        smf(OO + 16 * i, S["V"][0], cur)
        if h2:
            h2()
        for e in range(10, 16):
            exp(cur + e)
            if e == 12 and h3:
                h3()
            if e == 14 and h4:
                h4()

    stubs = []

    def gl_parts():
        n = len(stubs)
        stubs.append(n)
        return [f"s_cmp_eq_u32 s76, 0\ns_cbranch_scc1 L_more{n}\nL_have{n}:", "s_ff1_i32_b32 s65, s76",
                "s_bitset0_b32 s76, s65\ns_lshl_b32 s65, s65, 13", "s_add_u32 s65, s65, s61\ns_and_b32 s65, s65, 0x1ffff",
                "s_add_u32 s65, s65, s64"]

    def gl_addr():
        for x in gl_parts():
            a(x)

    def gl_stubs():
        for n in stubs:
            a(f"""L_more{n}:
              v_mov_b32 v{t+1}, {L_CTR}
              s_mov_b32 s56, 0
        L_morel{n}:
              ds_read_b32 v{t+2}, v{t+1} offset:20
              s_add_u32 s56, s56, 1
              s_waitcnt lgkmcnt(0)
              v_readfirstlane_b32 s30, v{t+2}
              s_nop 0
              s_andn2_b32 s76, s30, s77
              s_cselect_b32 s77, s30, s77
              s_cbranch_scc1 L_have{n}
              s_sleep {cfg.stubsleep}
              s_cmp_lt_u32 s56, {cfg.spin_max * 8}
              s_cbranch_scc1 L_morel{n}
              s_mov_b32 s76, 1
              s_branch L_have{n}""")

    def gl_k(s):
        S = slot(s)
        a(f"buffer_load_dwordx4 v[{S['K']}:{S['K']+3}], v{vL16}, {SWS}, s65 offen sc1")

    def gl_v(s):
        S = slot(s)
        a(f"s_mov_b64 exec, {sVM}")
        for i in range(2):
            r = S["V"][i]
            a(f"buffer_load_dwordx4 v[{r}:{r+3}], v{vL16}, {SWS}, s65 offen offset:{1024 + 256*i} sc1")
        a("s_mov_b64 exec, -1")

    def unit(s, load=True, wait=6, last=False, hooks={}, first=False):
        S, prev, nxt = slot(s), None if first else slot((s + 3) % 4), slot((s + 1) % 4)
        H = lambda k: hooks.get(k)
        ld = (s + 3) % 4
        if load and cfg.spread == 1:
            P = [lambda x=x: a(x) for x in gl_parts()]
            step(0, S, prev, nxt, h1=P[0], hq=P[1], h2=P[2])
            step(1, S, prev, nxt, h1=P[3], hq=P[4], h2=lambda: gl_k(ld))
            step(2, S, prev, nxt, h1=lambda: gl_v(ld))
        elif load and cfg.spread == 2:
            P = [lambda x=x: a(x) for x in gl_parts()]
            step(0, S, prev, nxt, h1=P[0], hq=P[1], h2=P[2])
            step(1, S, prev, nxt, h1=P[3], hq=P[4], h4=lambda: (gl_k(ld), gl_v(ld)))
            step(2, S, prev, nxt)
        elif load and cfg.spread == 3:
            step(0, S, prev, nxt, h4=lambda: (gl_addr(), gl_k(ld), gl_v(ld)))
            step(1, S, prev, nxt)
            step(2, S, prev, nxt)
        else:
            step(0, S, prev, nxt, h1=gl_addr if load else H("01"), h2=(lambda: gl_k(ld)) if load else H("02"), h3=H("03"))
            step(1, S, prev, nxt, h1=(lambda: gl_v(ld)) if load else H("11"), h2=H("12"), h3=H("13"))
            step(2, S, prev, nxt, h1=H("21"), h2=H("22"), h3=H("23"))
        step(3, S, prev, None if last else nxt, h1=(lambda: a(f"s_waitcnt vmcnt({wait})")) if not last else H("31"), h2=H("32"), h3=H("33"))

    a(f"""L_attn_pre:
    v_add_u32 v{t+1}, s71, v{vL16}
    v_mov_b32 v{vIDX}, 0xdddddddd""")
    for i in range(4):
        a(f"v_add_u32 v{t+2+i}, s{72+i}, v{vL16}")
    a(f"""s_setprio {3 if cfg.prio else 0}
    s_waitcnt lgkmcnt(0)
    s_barrier                             ; B10""")
    stamp(5)
    S0 = slot(0)
    a(f"""ds_read_b128 v[{QQ}:{QQ+3}], v{t+2} offset:{L_Q}
    ds_read_b128 v[{S0['K']}:{S0['K']+3}], v{t+1} offset:{L_OWNKV}""")
    for i in range(1, 4):
        a(f"ds_read_b128 v[{QQ+4*i}:{QQ+4*i+3}], v{t+2+i} offset:{L_Q}")
    a(f"s_mov_b64 exec, {sVM}")
    for i in range(2):
        r = S0["V"][i]
        a(f"ds_read_b128 v[{r}:{r+3}], v{t+1} offset:{L_OWNKV + 1024 + 256*i}")
    a("s_mov_b64 exec, -1\ns_waitcnt lgkmcnt(5)")
    mfma32(SA, S0["K"], QQ)
    attn_init_b((1, 2, 3))
    a("""s_waitcnt lgkmcnt(0)
    s_barrier                             ; B11""")
    first = {}
    for s_, where in zip((1, 2, 3), cfg.b11):
        first.setdefault(where, []).append(s_)

    def fetch(slots):
        for s_ in slots:
            gl_addr()
            gl_k(s_)
            gl_v(s_)
    unit(0, load=False, first=True, hooks={k: (lambda v=v: fetch(v)) for k, v in first.items()})
    stamp(15)
    a(f"s_mov_b32 s66, {cfg.iters}")
    a(".p2align 3\nL_attn:")
    for s in (1, 2, 3, 0):
        unit(s, hooks={"32": lambda: a("s_sub_u32 s66, s66, 1\ns_cmp_lg_u32 s66, 0")} if s == 0 else {})
    a("s_cbranch_scc1 L_attn")
    stamp(6)
    if cfg.prio:
        a("s_setprio 2")

    def mbaddr():
        a(f"s_mul_i32 s52, {sHH}, {4*3*2304}")
        for i in range(3):
            a(f"""s_add_u32 s30, {sKQ}, {1 + i}
                  s_and_b32 s30, s30, 3
                  s_mul_i32 s30, s30, {3*2304}
                  s_add_u32 s{53+i}, s30, s52""")
        a(f"""s_mul_i32 s30, {sKQ}, {3*2304}
              s_add_u32 s52, s52, s30""")

    def send(i):
        o = OO + 16 * i
        a(f"""v_add_u32 v{t+1}, s{53+i}, v{vL16}
              v_lshl_add_u32 v{t+2}, v{vLANE}, 2, s{53+i}
              ds_write_b128 v{t+1}, v[{o}:{o+3}] offset:{L_CMB + i*2304}
              ds_write_b128 v{t+1}, v[{o+4}:{o+7}] offset:{L_CMB + i*2304 + 1024}
              ds_write_b32 v{t+2}, v{o+8} offset:{L_CMB + i*2304 + 2048}""")
    def touch():
        a(f"""s_lshl_b32 s30, {sJ}, 2
              s_add_u32 s30, s30, {sKQ}
              s_lshl_b32 s30, s30, 15
              s_lshr_b32 s31, s64, 7               ; head * 1024
              s_add_u32 s30, s30, s31
              s_add_u32 s67, s30, {WS_OF}
              s_lshr_b32 s30, s30, 16
              s_lshl_b32 s30, s30, 8
              s_lshr_b32 s31, s64, 14              ; head * 8
              s_add_u32 s30, s30, s31
              s_and_b32 s31, {sKQ}, 1
              s_lshl_b32 s31, s31, 2
              s_add_u32 s30, s30, s31
              s_add_u32 s59, s30, {WS_FLAG + FO*128}
              s_mov_b32 s50, {(1, 0x01010101, 0x11111111)[cfg.otouch]}
              s_mov_b32 s51, {(0, 0x01010101, 0x11111111)[cfg.otouch]}
              s_mov_b64 exec, s[50:51]
              buffer_load_dword v{t+4}, v{vL16}, {SWS}, s67 offen sc1
              s_mov_b64 exec, 1
              buffer_load_dword v{t+5}, v{vL16}, {SWS}, s59 offen sc1
              s_mov_b64 exec, -1""")
    unit(1, load=False, wait=5, hooks={"01": touch, "11": mbaddr})
    unit(2, load=False, wait=2)
    if cfg.prio:
        a("s_setprio 1")
    unit(3, load=False, last=True, hooks={"21": lambda: send(0), "31": lambda: (send(1), a("s_setprio 0")), "33": lambda: send(2)})
    O3 = OO + 48
    a(f"""v_add_u32 v{t+1}, s52, v{vL16}
    v_lshl_add_u32 v{t+2}, v{vLANE}, 2, s52""")
    smf(O3, slot(3)["V"][1], SB + 8)
    stamp(7)
    a(f"""v_mov_b32 v{t+3}, {L_CTR}
    s_setprio 2
    s_waitcnt lgkmcnt(0)
    s_barrier                             ; T1""")
    stamp(9)
    a(f"ds_read_b32 v27, v{t+3} offset:16")
    for i in range(3):
        a(f"ds_read_b32 v{24+i}, v{t+2} offset:{L_CMB + i*2304 + 2048}")
    for i in range(3):
        a(f"""ds_read_b128 v[{8*i}:{8*i+3}], v{t+1} offset:{L_CMB + i*2304}
              ds_read_b128 v[{8*i+4}:{8*i+7}], v{t+1} offset:{L_CMB + i*2304 + 1024}""")
    a(f"""s_waitcnt lgkmcnt(6)
    v_readfirstlane_b32 s70, v27
    v_add_f32 v24, v24, v25
    v_add_f32 v26, v26, v{O3+8}
    v_add_f32 v{O3+8}, v24, v26
    v_cmp_nle_f32 vcc, {f32(2.0**-40)}, v{O3+8}
    v_rcp_f32 v28, v{O3+8}
    s_mov_b64 s[50:51], vcc
    v_cmp_nge_f32 vcc, {f32(2.0**40)}, v{O3+8}""")
    for i in range(3):
        a(f"s_waitcnt lgkmcnt({4 - 2*i})")
        for e in range(0, 8, 2):
            a(f"v_pk_add_f32 v[{O3+e}:{O3+e+1}], v[{O3+e}:{O3+e+1}], v[{8*i+e}:{8*i+e+1}]")
    a(f"""s_or_b64 s[50:51], s[50:51], vcc
    v_maximum3_f32 v0, |v{O3}|, |v{O3+1}|, |v{O3+2}|
    v_maximum3_f32 v1, |v{O3+3}|, |v{O3+4}|, |v{O3+5}|
    v_maximum3_f32 v0, |v{O3+6}|, |v{O3+7}|, v0
    v_maximum3_f32 v0, v0, v1, v1
    v_cmp_nge_f32 vcc, {f32(2.0**120)}, v0
    s_nop 0
    s_or_b64 s[50:51], s[50:51], vcc""")
    a("s_branch L_slow" if cfg.force_slow else "s_cbranch_scc1 L_slow")
    a("L_norm:")
    for e in range(0, 8, 2):
        a(f"v_pk_mul_f32 v[{O3+e}:{O3+e+1}], v[{O3+e}:{O3+e+1}], v[28:29] op_sel_hi:[1,0]")
    for i in range(4):
        a(f"v_cvt_pk_bf16_f32 v{156+i}, v{O3+2*i}, v{O3+2*i+1}")
    a(f"""s_cmp_eq_u32 s70, 0
    s_cbranch_scc1 L_ost_far
    buffer_store_dwordx4 v[156:159], v{vL16}, {SWS}, s67 offen
L_ost_done:""")
    stamp(10)

    def oflag(tag):
        a(f"""s_cmp_eq_u32 s70, 0
              s_waitcnt vmcnt(0)
              s_mov_b64 exec, 1
              s_cbranch_scc1 L_of_far_{tag}
              buffer_store_dword v{vIDX}, v{vL16}, {SWS}, s59 offen
              s_branch L_of_done_{tag}
        L_of_far_{tag}:
              buffer_store_dword v{vIDX}, v{vL16}, {SWS}, s59 offen sc1
        L_of_done_{tag}:
              s_mov_b64 exec, -1""")
    WOF, PACC, OFR = 0, 128, 144
    u = 144
    a(f"""s_cmp_ge_u32 {sWV}, 8
    s_barrier
    s_cbranch_scc1 L_tail_b
    v_lshrrev_b32 v{u}, 5, v{vLANE}
    v_bfe_u32 v{u+1}, v{vLANE}, 2, 2
    v_lshl_add_u32 v{u}, v{u}, 2, v{u+1}
    v_lshlrev_b32 v{u}, 6, v{u}           ; (4*half + r) * 64
    v_and_b32 v{u+1}, 1, v{vLANE}
    v_lshl_add_u32 v{u}, v{u+1}, 5, v{u}
    v_bfe_u32 v{u+1}, v{vLANE}, 4, 1
    v_lshl_add_u32 v{u}, v{u+1}, 4, v{u}
    v_bfe_u32 v{u+1}, v{vLANE}, 1, 1
    v_lshl_add_u32 v{u}, v{u+1}, 3, v{u}
    s_and_b32 s50, {sT}, 1
    s_lshr_b32 s51, {sT}, 1
    s_lshl_b32 s30, s50, 15
    s_add_u32 s30, s30, {L_WO}
    v_add_u32 v{u}, s30, v{u}""")
    for hd in range(32):
        read_w(WOF + 4 * hd, u, hd * 1024, second=512)
        if hd == 5:
            oflag("a")
            stamp(8)
        if hd % 6 == 5:
            a("s_waitcnt lgkmcnt(2)")
    a(f"""v_and_b32 v{u+1}, 31, v{vLANE}
    v_lshrrev_b32 v{u+2}, 5, v{vLANE}
    s_lshl_b32 s30, s50, 2
    v_lshl_add_u32 v{u+2}, v{u+2}, 1, s30
    v_and_b32 v{u+3}, 7, v{u+1}
    v_xor_b32 v{u+2}, v{u+2}, v{u+3}
    s_lshl_b32 s30, s51, 12
    s_add_u32 s30, s30, {L_SST}
    v_lshl_add_u32 v{u+1}, v{u+1}, 7, s30
    v_lshl_add_u32 v162, v{u+2}, 4, v{u+1}
    v_xor_b32 v163, 16, v162
    s_lshl_b32 s30, s51, 15
    s_add_u32 s30, s30, {L_OST}
    v_add_u32 v166, s30, v{vL16}
    s_waitcnt lgkmcnt(0)""")
    stamp(11)
    a("s_barrier                             ; T4a")
    stamp(12)
    for hd in range(3):
        a(f"ds_read_b128 v[{OFR+4*hd}:{OFR+4*hd+3}], v166 offset:{hd*1024}")
    for hd in range(32):
        a(f"s_waitcnt lgkmcnt({min(2, 31 - hd)})")
        mfma32(PACC, WOF + 4 * hd, OFR + 4 * (hd % 4), None if hd == 0 else PACC)
        if hd + 3 < 32:
            if (hd + 3) % 8 == 0:
                a("s_barrier                             ; T4b..d")
                if cfg.stamps:
                    a(f"{cfg.clk} s[{72 + (hd + 3) // 4}:{73 + (hd + 3) // 4}]")
            r = OFR + 4 * ((hd + 3) % 4)
            a(f"ds_read_b128 v[{r}:{r+3}], v166 offset:{(hd+3)*1024}")
    for i in range(8):
        a(f"v_cvt_pk_bf16_f32 v{i}, v{PACC+2*i}, v{PACC+2*i+1}")
    a(f"""ds_write_b128 v162, v[0:3]
    ds_write_b128 v163, v[4:7]
    s_waitcnt lgkmcnt(0)
    s_barrier                             ; T5""")
    if cfg.stamps:
        a("s_mov_b32 s81, s74\ns_mov_b32 s82, s76\ns_mov_b32 s83, s78")
    stamp(13)
    dump_stamps()
    a("s_endpgm")

    gl_stubs()
    a(f"""L_ost_far:
    buffer_store_dwordx4 v[156:159], v{vL16}, {SWS}, s67 offen sc1
    s_branch L_ost_done
L_tail_b:
    v_lshlrev_b32 v3, 2, v{vLANE}""")
    stage_setup()
    oflag("b")
    stamp(8)
    poll_o("b", 3, 2)
    stamp(11)
    stage_grp(0, vL16)
    stage_grp(1, vL16)
    a("""s_waitcnt vmcnt(4)
    s_barrier                             ; T4a
    s_waitcnt vmcnt(0)
    s_barrier                             ; T4b""")
    stamp(12)
    dump_stamps()
    a("s_endpgm")

    K_, V_, Q3 = slot(0)["K"], slot(0)["V"], QQ + 12
    a(f"""L_slow:
    v_mov_b32 v{t+1}, 0xff800000
    s_mov_b32 s61, 0
L_slow1:
    s_add_u32 s65, s61, s64
    buffer_load_dwordx4 v[{K_}:{K_+3}], v{vL16}, {SWS}, s65 offen sc1
    s_add_u32 s61, s61, 2048
    s_waitcnt vmcnt(0)""")
    mfma32(SA, K_, Q3)
    for i in range(8):
        a(f"v_max3_f32 v{t+1}, v{SA+2*i}, v{SA+2*i+1}, v{t+1}")
    a(f"""s_cmp_lt_u32 s61, 0x20000
    s_cbranch_scc1 L_slow1
    v_mov_b32 v{t+2}, v{t+1}
    v_permlane32_swap_b32 v{t+1}, v{t+2}
    v_max_f32 v{t+1}, v{t+1}, v{t+2}""")
    for i in range(16):
        a(f"v_sub_f32 v{SB+i}, 0, v{t+1}\nv_mov_b32 v{O3+i}, 0")
    a(f"""s_mov_b32 s61, 0
L_slow2:
    s_add_u32 s65, s61, s64
    buffer_load_dwordx4 v[{K_}:{K_+3}], v{vL16}, {SWS}, s65 offen sc1
    s_mov_b64 exec, {sVM}
    buffer_load_dwordx4 v[{V_[0]}:{V_[0]+3}], v{vL16}, {SWS}, s65 offen offset:1024 sc1
    buffer_load_dwordx4 v[{V_[1]}:{V_[1]+3}], v{vL16}, {SWS}, s65 offen offset:1280 sc1
    s_mov_b64 exec, -1
    s_add_u32 s61, s61, 2048
    s_waitcnt vmcnt(0)""")
    mfma32(SA, K_, Q3, SB)
    for i in range(16):
        exp(SA + i)
    smf(O3, V_[0], SA)
    smf(O3, V_[1], SA + 8)
    a(f"""s_cmp_lt_u32 s61, 0x20000
    s_cbranch_scc1 L_slow2
    s_nop 11
    v_rcp_f32 v28, v{O3+8}
    s_branch L_norm""")
    return finish(a, cfg)


def finish(a, cfg):
    a("L_exit:\ns_endpgm")
    if cfg.light == 2:
        marks = ["; B7", "; B10", "; B11", "; T1", "; T4a", "; T4c", "; T4d", "; T5"]
        out = []
        for ln in a.lines:
            out.append(ln)
            if marks and "s_barrier" in ln and (ln.rstrip().endswith(marks[0]) or marks[0] + ":" in ln):
                out.append(f"    s_memrealtime s[{96 - 2*len(marks)}:{97 - 2*len(marks)}]")
                marks.pop(0)
        assert not marks
        a.lines = out
    body, log = fix_hazards(a.text(), fix=True, verbose=cfg.verbose)
    head = open("cdna_kernels/" + NAME + ".s.ref").read().split("; Override launch")[0]
    head += f"; @launch grid=(256,1,1) block=(768,1,1) lds={LDS_BYTES}\n"
    tail = f""".section .rodata,"a"
.p2align 6
.amdhsa_kernel {NAME}_kernel
  .amdhsa_next_free_vgpr 168
  .amdhsa_next_free_sgpr 102
  .amdhsa_accum_offset 168
  .amdhsa_group_segment_fixed_size 0
  .amdhsa_kernarg_size 88
  .amdhsa_user_sgpr_count 2
  .amdhsa_user_sgpr_kernarg_segment_ptr 1
  .amdhsa_system_sgpr_workgroup_id_x 1
  .amdhsa_float_denorm_mode_32 3
.end_amdhsa_kernel
"""
    return head + body + tail


if __name__ == "__main__":
    cfg = Cfg()
    out = sys.argv[1]
    for kv in sys.argv[2:]:
        k, v = kv.split("=")
        setattr(cfg, k, eval(v))
    open(out, "w").write(gen(cfg))
```

```python
import sys
import struct
from asmlib import Asm, fix_hazards

NAME = "recurrent_scan__softmax_full_mha__moe_arch_mod__prompt"

WS_KV = 0
WS_OF = 4 << 20
WS_FLAG = 6 << 20
WS_CAND = (6 << 20) + 0x10000
WS_STAT = (6 << 20) + 0x20000
WS_P1 = (6 << 20) + 0x80000
WS_P2 = (6 << 20) + 0xC0000
WS_DBG = 8 << 20
WS_SIZE = 268435456
F1, F2, F3, F4, FX, FO = 0, 16, 32, 64, 72, 96

L_WK, L_WV, L_RING = 0, 32768, 65536
L_WQ = L_RING + 3 * 16384
L_OWNKV = 0
L_Q = 32768
L_WO = 65536
L_GU = 128 * 1024
L_DN = 144 * 1024
L_CMB = 0
L_OST = 0
L_SST = 128 * 1024
L_MISC = 152 * 1024
L_WR = L_MISC
L_ZERO = L_MISC + 1088
L_ONES = L_MISC + 6784
L_CTR = L_MISC + 2112
L_STAT = L_MISC + 2304
L_SFR = L_MISC + 3328
L_KEY = L_CTR + 64
L_XS = L_MISC + 5440
L_Y = L_MISC + 6144
LDS_BYTES = 163840

CQ = 0.25 * 1.4426950408889634
LOG2E = 1.4426950408889634


def f32(x):
    return "0x%08x" % struct.unpack("<I", struct.pack("<f", x))[0]


class Cfg:
    stamps = False
    L = 2
    rot = (4, 2, 1, 1)
    rotj = 1
    rotp = 1
    rotx = 1
    wq1 = 4
    wq2 = 4
    x2 = 1
    light = 0
    bz = 0
    early = 0
    kvpf = 0
    cpf = 1
    qpf = 2
    qpfn = 3
    b11 = ('11', '21', '22')
    b11at = '02'
    gatepos = 2
    gatepos2 = 8
    t2early = 1
    prepoll = 0
    apoll = 1
    early3 = 0
    psl = (8, 16, 16)
    spread = 1
    mpoll = 1
    sigret = 1
    nomoe = 0
    npk = 5
    stages = (1,) * 8
    ahead = (3, 3)
    poll2 = 15
    sigsl = 0
    marks = None
    hprio = 0
    nonorm = 0
    wide = 1
    aprio = 1
    exempt = 1
    both = 0
    mspace = ''
    h1go = 15
    midpoll = 1
    minrdy = 0
    spoll = 0
    sib = 1
    stubsleep = 1
    f1sleep = 8
    otouch = 1
    outpf = 0
    wqwin = 4
    sigfirst = 0
    ntx = ''
    spin_max = 200000
    verbose = False
    force_slow = False
    prio = 1
    x1 = 0
    pxor = 0
    local = 1
    wo_win = 6
    gu_win = 4
    nocold = 0
    ntw = ''
    probe = None
    clk = 's_memtime'
    iters = 3


def gen(cfg):
    a = Asm()
    L = cfg.L
    sP, sJ, sWV, sT, sC0 = "s3", "s4", "s5", "s6", "s7"
    SX, SW, SWS, SAUX = "s[32:35]", "s[36:39]", "s[40:43]", "s[44:47]"
    sONE = "s48"

    def srd(base, ptr, size):
        a(f"""s_mov_b32 s{base}, s{ptr}
              s_mov_b32 s{base+1}, s{ptr+1}
              s_mov_b32 s{base+2}, {size}
              s_mov_b32 s{base+3}, 0x20000""")

    early_done = []

    def stamp(i):
        mark(i)
        if cfg.early and i in (2, 6, 7, 8, 9, 12, 13):
            if i in early_done or 13 in early_done:
                return
            early_done.append(i)
        if cfg.probe and cfg.probe[0] == i:
            a("s_memrealtime s[98:99]\ns_waitcnt lgkmcnt(0)")
        if cfg.stamps:
            a(f"{cfg.clk} s[78:79]\ns_waitcnt lgkmcnt(0)\ns_mov_b32 s{80+i}, s78")

    def mark(name):
        if cfg.marks and name in cfg.marks:
            i = cfg.marks.index(name)
            a(f"{cfg.clk} s[{80+2*i}:{81+2*i}]")

    def dump_stamps():
        if cfg.marks:
            a(f"""s_mul_i32 s78, s2, 12
                  s_add_u32 s78, s78, {sWV}
                  s_lshl_b32 s78, s78, 6
                  s_add_u32 s78, s78, {WS_DBG}
                  v_mov_b32 v0, 0
                  s_waitcnt lgkmcnt(0)""")
            for g in range(4):
                for i in range(4):
                    a(f"v_mov_b32 v{4+i}, {'s%d' % (80+8*g+2*i) if g < 2 else 0}")
                a(f"buffer_store_dwordx4 v[4:7], v0, {SWS}, s78 offen offset:{16*g}")
                a("s_nop 1")
            a("s_waitcnt vmcnt(0)")
        if cfg.stamps:
            a(f"""s_mul_i32 s78, s2, 12
                  s_add_u32 s78, s78, {sWV}
                  s_lshl_b32 s78, s78, 6
                  s_add_u32 s78, s78, {WS_DBG}
                  v_mov_b32 v0, 0""")
            for g in range(4):
                for i in range(4):
                    a(f"v_mov_b32 v{4+i}, s{80+4*g+i}")
                a(f"buffer_store_dwordx4 v[4:7], v0, {SWS}, s78 offen offset:{16*g}")
                a("s_nop 1")
            a("s_waitcnt vmcnt(0)")

    def signal(line_sgpr, vz, vone):
        a(f"""s_mov_b64 exec, 1
              buffer_atomic_add v{vone}, v{vz}, {SWS}, {line_sgpr} offen sc1
              s_mov_b64 exec, -1""")

    def poll(line_sgpr, target, tag, vz, vt, sleep=2, srd_=None):
        kind = 0 if srd_ else cfg.mpoll
        rd = (f"buffer_load_dword v{vt}, v{vz}, {srd_ or SWS}, {line_sgpr} offen sc1\ns_waitcnt vmcnt(0)\nv_readfirstlane_b32 s30, v{vt}",
              f"v_mov_b32 v{vt}, 0\nbuffer_atomic_add v{vt}, v{vz}, {SWS}, {line_sgpr} offen sc0 sc1\ns_waitcnt vmcnt(0)\nv_readfirstlane_b32 s30, v{vt}",
              f"s_load_dword s30, s[28:29], {line_sgpr} glc\ns_waitcnt vmcnt(0) lgkmcnt(0)")[kind]
        a(f"""s_mov_b32 s56, 0
              s_mov_b64 exec, 1
        L_poll_{tag}:
              {rd}
              s_add_u32 s56, s56, 1
              s_cmp_ge_u32 s30, {target}
              s_cbranch_scc1 L_polld_{tag}
              s_sleep {sleep}
              s_cmp_lt_u32 s56, {cfg.spin_max}
              s_cbranch_scc1 L_poll_{tag}
        L_polld_{tag}:
              s_mov_b64 exec, -1""")

    def rowmax_u32(dst, src):
        a(f"v_max_u32_dpp v{dst}, v{src}, v{src} row_ror:8 row_mask:0xf bank_mask:0xf")
        for r in (4, 2, 1):
            a(f"v_max_u32_dpp v{dst}, v{dst}, v{dst} row_ror:{r} row_mask:0xf bank_mask:0xf")

    def wavemax_u32(sdst, src, tmp, rows):
        rowmax_u32(tmp, src)
        a(f"v_readlane_b32 {sdst}, v{tmp}, 0")
        for r in range(1, rows):
            a(f"v_readlane_b32 s30, v{tmp}, {16*r}\ns_max_u32 {sdst}, {sdst}, s30")

    def tr_addr(dst, lane, t1, t2, rowshift=3):
        a(f"""v_lshrrev_b32 v{t1}, 5, v{lane}
              v_bfe_u32 v{t2}, v{lane}, 2, 2
              v_lshl_add_u32 v{t1}, v{t1}, {rowshift}, v{t2}
              v_lshlrev_b32 v{t1}, 6, v{t1}
              v_bfe_u32 v{t2}, v{lane}, 4, 1
              v_lshl_add_u32 v{t1}, v{t2}, 5, v{t1}
              v_and_b32 v{t2}, 3, v{lane}
              v_lshl_add_u32 v{dst}, v{t2}, 3, v{t1}""")

    def read_w(dst, addr, off, second=256):
        a(f"""ds_read_b64_tr_b16 v[{dst}:{dst+1}], v{addr} offset:{off}
              ds_read_b64_tr_b16 v[{dst+2}:{dst+3}], v{addr} offset:{off + second}""")

    def mfma32(d, A, B, c=None):
        cs = "0" if c is None else f"v[{c}:{c+15}]"
        a(f"v_mfma_f32_32x32x16_bf16 v[{d}:{d+15}], v[{A}:{A+3}], v[{B}:{B+3}], {cs}")

    def mfma16(d, A, B, c=None):
        cs = "0" if c is None else f"v[{c}:{c+3}]"
        a(f"v_mfma_f32_16x16x32_bf16 v[{d}:{d+3}], v[{A}:{A+3}], v[{B}:{B+3}], {cs}")

    def rnd(dst, src):
        a(f"v_cvt_pk_bf16_f32 v{dst}, 0, {src}")

    def split3(dst, src, t):
        a(f"""v_and_b32 v{t}, 0xffff0000, v{src}
              v_sub_f32 v{t+1}, v{src}, v{t}
              v_and_b32 v{t+2}, 0xffff0000, v{t+1}
              v_sub_f32 v{t+1}, v{t+1}, v{t+2}
              v_lshrrev_b32 v{t}, 16, v{t}
              v_or_b32 v{dst}, v{t}, v{t+2}
              v_lshrrev_b32 v{dst+1}, 16, v{t+1}""")

    a(f""".amdgcn_target "amdgcn-amd-amdhsa--gfx950"
.text
.globl {NAME}_kernel
.p2align 12
.p2align 8
.type {NAME}_kernel,@function
{NAME}_kernel:
    s_cmp_ge_u32 s2, 256
    s_cbranch_scc1 L_exit
    s_load_dwordx16 s[8:23], s[0:1], 0
    s_load_dwordx4 s[24:27], s[0:1], 64
    s_load_dwordx2 s[28:29], s[0:1], 80""")
    if cfg.probe:
        a("s_memrealtime s[96:97]\ns_memrealtime s[98:99]")
    if cfg.light:
        a("s_memrealtime s[96:97]")
    if cfg.marks:
        for i in range(8):
            a(f"s_mov_b32 s{80+2*i}, 0")
    if cfg.stamps:
        for i in range(16):
            a(f"s_mov_b32 s{80+i}, 0")
        a(f"{cfg.clk} s[78:79]")
    a(f"""v_lshrrev_b32 v1, 6, v0
    v_and_b32 v0, 63, v0                 ; lane
    s_lshr_b32 {sP}, s2, 4
    s_xor_b32 {sP}, {sP}, {cfg.pxor}
    v_readfirstlane_b32 {sWV}, v1
    s_and_b32 {sJ}, s2, 7
    s_lshl_b32 {sJ}, {sJ}, 1
    s_bfe_u32 s30, s2, 0x10003
    s_or_b32 {sJ}, {sJ}, s30
    s_mul_i32 {sC0}, s30, {cfg.rot[0]}
    s_and_b32 s30, {sP}, 1
    s_mul_i32 s30, s30, {cfg.rot[1]}
    s_add_u32 {sC0}, {sC0}, s30
    s_lshr_b32 s30, {sP}, 1
    s_mul_i32 s30, s30, {cfg.rot[2]}
    s_add_u32 {sC0}, {sC0}, s30
    s_and_b32 s30, s2, {cfg.rot[3]}
    s_add_u32 {sC0}, {sC0}, s30
    s_and_b32 {sC0}, {sC0}, 7
    s_and_b32 {sT}, {sWV}, 3
    s_mov_b32 {sONE}, 0x3f803f80
    s_cmp_lt_u32 {sWV}, 4
    s_cbranch_scc1 L_helper""")
    if cfg.cpf:
        a(f"""s_cmp_lg_u32 {sWV}, 8
        s_cbranch_scc1 L_nocpf
        s_getpc_b64 s[50:51]
    L_pc:
        s_lshr_b32 s30, s2, 3
        s_lshl_b32 s30, s30, 10
        v_lshl_add_u32 v1, v0, 7, s30
        v_min_u32 v1, L_exit-L_pc, v1
        v_mov_b32 v7, s51
        v_add_co_u32 v6, vcc, s50, v1
        v_addc_co_u32 v7, vcc, 0, v7, vcc
        s_mov_b64 exec, 0xff
        global_load_dword v136, v[6:7], off
        s_mov_b64 exec, -1
    L_nocpf:""")
    a(f"""{'s_barrier                             ; Bz' if cfg.bz else ''}
    s_branch L_compute
L_helper:""")

    hZ, hONE, hT = 17, 18, 19
    a(f"""v_lshrrev_b32 v1, 2, v0
    s_lshl_b32 s30, {sT}, 4
    v_add_u32 v1, s30, v1
    v_mul_u32_u24 v1, 3072, v1
    v_and_b32 v2, 3, v0
    v_lshl_add_u32 v1, v2, 4, v1
    s_lshl_b32 s30, {sP}, 6
    v_add_u32 v14, s30, v1
    v_lshrrev_b32 v1, 3, v0
    v_lshrrev_b32 v2, 4, v0
    v_and_b32 v3, 7, v0
    v_xor_b32 v4, v3, v2
    v_xor_b32 v5, 4, v4
    s_lshl_b32 s30, {sJ}, 17
    s_lshl_b32 s31, {sT}, 15
    s_add_u32 s30, s30, s31
    v_lshl_add_u32 v6, v1, 10, s30
    v_lshl_add_u32 v10, v4, 4, v6
    v_lshl_add_u32 v11, v5, 4, v6
    v_add_u32 v12, {2*7168}, v10
    v_add_u32 v13, {3*7168}, v11
    v_add_u32 v11, 7168, v11
    s_lshl_b32 s57, {sT}, 12
    s_lshl_b32 s49, {sT}, 10
    s_waitcnt lgkmcnt(0)""")
    if cfg.stamps:
        a("s_mov_b32 s80, s78")
    if cfg.early:
        stamp(2)
    srd(36, 10, 1572864)
    srd(32, 8, 2097152)
    a(f"""s_sub_u32 s73, 384, s10
    s_bfe_u32 s73, s73, 0x30007
    s_lshr_b32 s74, {sP}, 1
    v_xor_b32 v15, 64, v14""")

    def kc(n, dst):
        a(f"s_add_u32 {dst}, {sC0}, {n}\ns_and_b32 {dst}, {dst}, 7")

    def issue_w(n):
        kc(n, "s50")
        a(f"""s_mul_i32 s51, s50, {64*3072}
              s_add_u32 m0, s49, {L_WK + n*4096}
              s_add_u32 s52, s51, 1024
              buffer_load_dwordx4 v14, {SW}, s52 offen lds
              s_add_u32 m0, s49, {L_WV + n*4096}
              s_add_u32 s53, s51, 2048
              buffer_load_dwordx4 v14, {SW}, s53 offen lds""")
        if n < cfg.both:
            a(f"""s_cmp_lg_u32 s73, s74
                  s_cbranch_scc1 L_nb{n}
                  buffer_load_dword v16, v15, {SW}, s52 offen
                  buffer_load_dword v16, v15, {SW}, s53 offen
            L_nb{n}:""")

    def issue(item):
        if item < 8:
            n = item
            kc(n, "s50")
            a(f"""s_add_u32 m0, s57, {L_RING + (n % 5)*16384}
                  s_lshl_b32 s50, s50, 7""")
            for q in range(4):
                a(f"buffer_load_dwordx4 v{10+q}, {SX}, s50 offen offset:{1024*q} {cfg.ntx} lds")
            if n < 7:
                issue_w(n + 1)
        else:
            for n in {8: range(cfg.wq1), 9: range(cfg.wq1, cfg.wq1 + cfg.wq2), 10: range(cfg.wq1 + cfg.wq2, 8)}[item]:
                kc(n, "s50")
                if item == 10:
                    a(f"s_waitcnt vmcnt({cfg.wqwin - 1})")
                a(f"""s_add_u32 m0, s49, {L_WQ + n*4096}
                      s_mul_i32 s51, s50, {64*3072}
                      buffer_load_dwordx4 v14, {SW}, s51 offen lds""")
                if n < cfg.both:
                    a(f"""s_cmp_lg_u32 s73, s74
                          s_cbranch_scc1 L_nq{n}
                          buffer_load_dword v16, v15, {SW}, s51 offen
                    L_nq{n}:""")

    cnt = lambda item: 6 if item < 7 else {7: 4, 8: cfg.wq1, 9: cfg.wq2}[item]
    a(f"""s_cmp_lg_u32 {sT}, 0
    s_cbranch_scc1 L_h_nowr""")
    srd(44, 16, 1024)
    a(f"""v_add_u32 v1, {sC0}, v1
    v_and_b32 v1, 7, v1
    v_lshlrev_b32 v1, 7, v1
    s_mov_b32 m0, {L_WR}
    v_lshl_add_u32 v1, v3, 4, v1
    buffer_load_dwordx4 v1, {SAUX}, 0 offen lds
L_h_nowr:""")
    issue_w(0)
    if cfg.early:
        stamp(6)
        if cfg.early == 2:
            a("s_waitcnt vmcnt(0)")
            stamp(7)
    for it in range(L):
        issue(it)
        if it == 0 and cfg.bz:
            a("s_barrier                             ; Bz")
        if cfg.early and it == 0:
            stamp(8)
    if cfg.early:
        stamp(9)
    if cfg.kvpf:
        a(f"""s_lshr_b32 s30, s2, 3
        s_lshl_b32 s30, s30, 2
        s_add_u32 s30, s30, {sT}
        s_mul_i32 s30, s30, {4*3072}
        s_sub_u32 s31, 384, s10
        s_and_b32 s31, s31, 0x380
        s_add_u32 s30, s30, s31
        s_add_u32 s54, s10, s30
        s_addc_u32 s55, s11, 0""")
        for i in range(16):
            a(f"s_load_dword s76, s[54:55], {1024 + 1024*(i >> 3) + 3072*((i & 7) >> 1) + 64*(i & 1)}")
    srd(40, 28, WS_SIZE)
    hXP, hXN, hG = 136, 144, 152
    hOA = 20
    hCT, hTR, hWO, hGU, hDN, hL4, hL8, hL16, hFR, hM4, hM16, hM2, hH4 = 6, 30, 33, 34, 35, 36, 37, 38, 39, 40, 41, 42, 43
    a(f"""v_mov_b32 v{hZ}, 0
    v_mov_b32 v{hONE}, 1
    v_mov_b32 v{hCT}, {L_CTR}
    s_lshr_b32 s58, {sP}, 3
    s_and_b32 s59, {sP}, 7
    s_lshl_b32 s60, {sJ}, 1
    s_add_u32 s60, s60, s58
    v_lshrrev_b32 v1, 3, v0
    s_lshl_b32 s30, {sT}, 4
    v_add_u32 v22, s30, v1
    s_lshl_b32 s30, s60, 16
    s_lshl_b32 s31, s59, 7
    s_add_u32 s30, s30, s31
    v_lshl_add_u32 v1, v22, 10, s30
    v_lshl_add_u32 v{hOA}, v3, 4, v1
    v_add_u32 v{hOA+1}, 8192, v{hOA}
    s_lshl_b32 s30, s58, 6
    v_add_lshl_u32 v1, v22, s30, 3
    v_add_u32 v23, {L_STAT}, v1""")
    tr_addr(hTR, 0, 1, 2)
    a(f"""v_add_u32 v{hTR}, {L_GU}, v{hTR}
    v_lshrrev_b32 v31, 2, v0
    v_and_b32 v1, 3, v0
    v_lshlrev_b32 v32, 4, v1             ; piece
    v_lshl_add_u32 v{hDN}, v31, 10, v32
    v_add_u32 v{hWO}, s31, v{hDN}
    v_mul_u32_u24 v1, 3584, v31
    v_add_u32 v{hGU}, v1, v32
    v_lshlrev_b32 v{hL4}, 2, v0
    v_lshlrev_b32 v{hL8}, 3, v0
    v_lshlrev_b32 v{hL16}, 4, v0
    v_add_u32 v{hM4}, {L_MISC}, v{hL4}
    v_add_u32 v{hM16}, {L_MISC}, v{hL16}
    v_lshlrev_b32 v1, 1, v0
    v_add_u32 v{hM2}, {L_MISC}, v1
    v_and_b32 v{hH4}, 124, v{hL4}
    v_and_b32 v1, 1, v0
    v_lshrrev_b32 v2, 5, v0
    v_lshlrev_b32 v2, 4, v2
    v_lshl_add_u32 v1, v1, 7, v2
    v_add_u32 v{hFR}, {L_XS}, v1
    s_lshl_b32 s75, {sP}, 4
    s_and_b32 s30, s2, 15
    s_or_b32 s75, s75, s30
    s_sub_u32 s30, s75, 32
    s_cmp_gt_u32 s74, s73
    s_cselect_b32 s75, s30, s75
    s_cmp_eq_u32 s74, s73
    s_cselect_b32 s75, 255, s75
    s_lshr_b32 s61, s75, 3
    s_and_b32 s62, s75, 7
    s_waitcnt vmcnt({sum(cnt(i) for i in range(L))})""")
    if cfg.early:
        stamp(12)
    a("s_barrier")
    if cfg.early:
        stamp(13)
    issued = L
    for n in range(8):
        pend = sum(cnt(i) for i in range(n + 1, issued))
        a(f"s_waitcnt vmcnt({pend})")
        a(f"s_barrier                             ; B{n}")
        if n in (0, 1, 7):
            stamp({0: 1, 1: 10, 3: 2, 7: 3}[n])
        if n == cfg.qpfn and cfg.qpf & 2:
            a(f"""s_lshr_b32 s30, s2, 3
            s_lshl_b32 s30, s30, 2
            s_add_u32 s30, s30, {sT}
            s_mul_i32 s30, s30, {4*3072}
            s_sub_u32 s31, 384, s10
            s_and_b32 s31, s31, 0x380
            s_add_u32 s30, s30, s31
            s_add_u32 s54, s10, s30
            s_addc_u32 s55, s11, 0""")
            for i in range(8):
                a(f"s_load_dword s76, s[54:55], {3072*(i >> 1) + 64*(i & 1)}")
        if n == 1 and cfg.qpf & 1:
            a(f"""s_lshl_b32 s30, s2, 1
            s_lshr_b32 s31, {sT}, 1
            s_add_u32 s30, s30, s31
            s_mul_i32 s30, s30, 3072
            s_and_b32 s31, {sT}, 1
            s_lshl_b32 s31, s31, 9
            s_add_u32 s30, s30, s31
            s_add_u32 s54, s10, s30
            s_addc_u32 s55, s11, 0""")
            for i in range(8):
                a(f"s_load_dword s76, s[54:55], {64*i}")
        if issued < 8:
            issue(issued)
            issued += 1
            if issued == 8:
                issue(8)
                issued += 1
        elif issued == 9 and n == 6:
            issue(9)
            issued += 1
    issue(10)
    a("s_waitcnt vmcnt(0)")
    stamp(11)
    a("s_barrier")
    stamp(4)
    XU, XN = 48, 64
    P8 = lambda b: [(b + 2 * i, i) for i in range(8)]

    def normrows():
        for r, i in P8(XU):
            a(f"v_lshlrev_b32 v{r}, 16, v{hXP+i}\nv_and_b32 v{r+1}, 0xffff0000, v{hXP+i}")
        for r, i in P8(XN):
            m = 24 if i < 4 else 26
            a(f"v_pk_add_f32 v[{r}:{r+1}], v[{XU+2*i}:{XU+2*i+1}], v[{m}:{m+1}] op_sel_hi:[1,0] neg_lo:[0,1] neg_hi:[0,1]")
        for e in range(16):
            rnd(XN + e, f"v{XN+e}")
        for r, i in P8(XN):
            m = 24 if i < 4 else 26
            a(f"v_pk_mul_f32 v[{r}:{r+1}], v[{m}:{m+1}], v[{r}:{r+1}] op_sel:[1,0]")
        for e in range(16):
            rnd(XN + e, f"v{XN+e}")

    def gate():
        a(f"s_mov_b32 s50, {f32(-LOG2E)}")
        for r, i in P8(hG):
            a(f"v_pk_mul_f32 v[{r}:{r+1}], v[{XN+2*i}:{XN+2*i+1}], s[50:51] op_sel_hi:[1,0]")
        for e in range(16):
            a(f"v_exp_f32 v{hG+e}, v{hG+e}")
        for r, i in P8(hG):
            a(f"v_pk_add_f32 v[{r}:{r+1}], v[{r}:{r+1}], 1.0 op_sel_hi:[1,0]")
        for e in range(16):
            a(f"v_rcp_f32 v{hG+e}, v{hG+e}")
        for r, i in P8(hG):
            a(f"v_pk_mul_f32 v[{r}:{r+1}], v[{r}:{r+1}], v[{XN+2*i}:{XN+2*i+1}]")

    def gate_round():
        for e in range(16):
            rnd(hG + e, f"v{hG+e}")

    srd(36, 12, 0 if cfg.nocold & 2 else 524288)
    def ldswait(tag, off, cond, sleep):
        a(f"""s_mov_b32 s56, 0
        L_lw_{tag}:
              {f's_sleep {sleep}' if sleep else ''}
              ds_read_b32 v{hT}, v{hCT} offset:{off}
              s_add_u32 s56, s56, 1
              s_waitcnt lgkmcnt(0)
              v_readfirstlane_b32 s30, v{hT}
              s_cmp_ge_u32 s56, {cfg.spin_max * 4}
              s_cbranch_scc1 L_lwd_{tag}
              {cond}
              s_cbranch_scc1 L_lw_{tag}
        L_lwd_{tag}:""")

    def mailbox(tag):
        ldswait(tag, 8, "s_cmp_eq_u32 s30, 0", 16)

    def allkv(tag):
        ldswait(tag, 20, f"s_bcnt1_i32_b32 s30, s30\ns_cmp_lt_u32 s30, {cfg.h1go}", 4)

    def halves(lo, hi):
        a(f"""s_mov_b32 exec_hi, 0
              {lo}
              s_not_b64 exec, exec
              {hi}
              s_mov_b64 exec, -1""")

    def f1_once(scalar=False, mid=None, add='0'):
        a("s_mov_b64 exec, 1")
        if scalar:
            a("s_load_dword s50, s[28:29], s57 glc\ns_waitcnt lgkmcnt(0)")
        else:
            a(f"v_mov_b32 v{hT}, {add}\nbuffer_atomic_add v{hT}, v{hZ}, {SWS}, s57 offen sc0 sc1" if cfg.apoll else
              f"buffer_load_dword v{hT}, v{hZ}, {SWS}, s57 offen sc1")
            a(f"""{mid or ''}
              s_waitcnt vmcnt(0)
              v_readfirstlane_b32 s50, v{hT}""")
        a(f"""s_andn2_b32 s30, s50, s55
              s_bcnt1_i32_b32 s31, s30
              s_cmp_ge_u32 s31, {cfg.minrdy}
              s_cselect_b32 s30, s30, 0
              s_mul_i32 s30, s30, 0x10001
              s_lshr_b32 s30, s30, s54
              s_and_b32 s30, s30, 0xffff
              v_mov_b32 v{hT}, s30
              ds_write_b32 v6, v{hT} offset:20
              s_mov_b64 exec, -1""")

    a(f"""s_setprio 3
    s_lshl_b32 s57, {sP}, 7
    s_add_u32 s57, s57, {WS_FLAG + F1*128}
    s_or_b32 s54, {sJ}, {cfg.sib}
    s_add_u32 s54, s54, 1
    s_and_b32 s54, s54, 15
    s_lshl_b32 s55, 1, {sJ}""")
    a(f"""s_cmp_lg_u32 {sT}, 0
    s_cbranch_scc1 L_h_b10""")
    ldswait("sig", 0, "s_cmp_lt_u32 s30, 4", cfg.sigsl)
    stamp(12)
    f1_once(mid="s_barrier                             ; B10", add="s55")
    f1_once(mid="s_barrier                             ; B11")
    a("""s_mov_b32 s56, 0
    s_branch L_f1c
L_h_b10:
    s_barrier""")
    stamp(5)
    a(f"""s_barrier
    s_cmp_eq_u32 {sT}, 1
    s_cbranch_scc1 L_h1
    s_cmp_eq_u32 {sT}, 2
    s_cbranch_scc1 L_h2
    s_cmp_eq_u32 {sT}, 3
    s_cbranch_scc1 L_h3""")

    a("s_mov_b32 s56, 0\nL_f1:")
    f1_once(cfg.spoll)
    a(f"""L_f1c:
    s_add_u32 s56, s56, 1
    s_cmpk_eq_u32 s50, 0xffff
    s_cbranch_scc1 L_f1d
    s_sleep {cfg.f1sleep}
    s_cmp_lt_u32 s56, {cfg.spin_max}
    s_cbranch_scc1 L_f1
L_f1d:""")
    stamp(13)
    a(f"""s_getreg_b32 s50, hwreg(HW_REG_XCC_ID, 0, 4)
    s_or_b32 s50, s50, 0x100
    v_mov_b32 v8, s50
    s_lshl_b32 s63, {sJ}, 7
    s_add_u32 s63, s63, {WS_FLAG + FX*128}
    s_lshl_b32 s51, {sP}, 2
    s_add_u32 s51, s51, s63
    s_mov_b64 exec, 1
    buffer_store_dword v8, v{hZ}, {SWS}, s51 offen sc1
    s_mov_b64 exec, -1""")
    if cfg.nomoe & 1:
        a("s_sleep 64")
    else:
        mailbox("h0")
    a(f"""s_mov_b32 s54, 0
L_wo:
    s_add_u32 s50, s54, s60
    s_and_b32 s50, s50, 31
    s_lshl_b32 s51, s50, 10
    s_lshl_b32 s50, s50, 14
    s_add_u32 m0, s51, {L_WO}
    s_add_u32 s52, s50, 64
    buffer_load_dwordx4 v33, {SW}, s50 offen lds
    s_add_u32 m0, s51, {L_WO + 32768}
    s_add_u32 s54, s54, 1
    buffer_load_dwordx4 v33, {SW}, s52 offen lds
    s_waitcnt vmcnt({cfg.wo_win})
    s_cmp_lt_u32 s54, 32
    s_cbranch_scc1 L_wo
    s_mov_b32 s56, 0
    s_mov_b64 exec, 0xffff
L_xid:
    buffer_load_dword v10, v{hL4}, {SWS}, s63 offen sc1
    s_add_u32 s56, s56, 1
    s_waitcnt vmcnt(0)
    v_cmp_eq_u32 vcc, 0, v10
    s_cmp_ge_u32 s56, {cfg.spin_max}
    s_cbranch_scc1 L_xidd
    s_cbranch_vccnz L_xid
L_xidd:
    v_cmp_ne_u32 vcc, v8, v10
    s_mov_b64 exec, -1
    s_cmp_eq_u64 vcc, 0
    s_cselect_b32 s50, {cfg.local}, 0
    v_mov_b32 v10, s50
    ds_write_b32 v6, v10 offset:16""")
    stamp(6)
    a("s_branch L_h_tail")

    XSF, WFR, AC0, AC1 = 48, 64, 72, 88

    def two_row_mfma(acc, s, block):
        read_w(WFR, hTR, block * 1024)
        a("s_waitcnt lgkmcnt(0)")
        mfma32(acc, XSF + 4 * s, WFR, None if s == 0 else acc)

    a(f"""L_h1:
    {'s_branch L_h_tail' if cfg.nomoe & 1 else ''}
    s_cmpk_lt_u32 s75, 0xe0
    s_cbranch_scc0 L_h_tail""")
    if cfg.early3 == 1:
        allkv("h1a")
    else:
        ldswait("h1a", 28, "s_cmp_eq_u32 s30, 0", 4)
    a(f"""s_mul_i32 s50, s62, {64*3584}
    s_lshl_b32 s51, s61, 7
    s_add_u32 s50, s50, s51""")
    for mtx in range(2):
        srd(44, 18 + 2 * mtx, 1835008)
        for s in range(4):
            for ct in range(2):
                a(f"""s_mov_b32 m0, {L_GU + ((2*mtx + ct)*4 + s)*1024}
                      s_add_u32 s51, s50, {s*16*3584 + ct*64}
                      {'s_nop 0' if cfg.nocold & 1 else f'buffer_load_dwordx4 v{hGU}, {SAUX}, s51 offen {cfg.ntw} lds'}""")
            a(f"s_waitcnt vmcnt({cfg.gu_win})")
    a(f"""s_lshl_b32 s50, s75, 10
    s_add_u32 s50, s50, {WS_P1}
    s_lshl_b32 s65, s61, 7
    s_add_u32 s65, s65, {WS_FLAG + F3*128}
    s_waitcnt vmcnt(0)""")
    ldswait("h1b", 24, "s_cmp_eq_u32 s30, 0", 4)
    stamp(7)
    for s in range(4):
        a(f"ds_read_b128 v[{XSF+4*s}:{XSF+4*s+3}], v{hFR} offset:{32*s}")
    for mtx in range(2):
        for s in range(4):
            two_row_mfma(AC0 + 32 * mtx, s, (2 * mtx) * 4 + s)
            two_row_mfma(AC1 + 32 * mtx, s, (2 * mtx + 1) * 4 + s)
    st2 = lambda r, o: f"buffer_store_dwordx2 v[{r}:{r+1}], v{hL16}, {SWS}, s50 offen offset:{o} sc1"
    halves(st2(AC0, 0) + "\n" + st2(AC0 + 32, 8), st2(AC1, 0) + "\n" + st2(AC1 + 32, 8))
    a("s_waitcnt vmcnt(0)")
    signal("s65", hZ, hONE)
    stamp(8)
    a("s_branch L_h_tail")

    a(f"""L_h2:
    {'s_branch L_h_tail' if cfg.nomoe & 3 else ''}
    s_cmpk_lt_u32 s75, 0xe0
    s_cbranch_scc0 L_h_tail""")
    mailbox("h2")
    a(f"""s_lshl_b32 s50, s61, 16
    s_lshl_b32 s51, s62, 7
    s_add_u32 s50, s50, s51""")
    srd(44, 22, 1835008)
    for s in range(4):
        for ct in range(2):
            a(f"""s_mov_b32 m0, {L_DN + (ct*4 + s)*1024}
                  s_add_u32 s51, s50, {s*16384 + ct*64}
                  {'s_nop 0' if cfg.nocold & 1 else f'buffer_load_dwordx4 v{hDN}, {SAUX}, s51 offen {cfg.ntw} lds'}""")
    a(f"""s_lshl_b32 s65, s61, 7
    s_add_u32 s65, s65, {WS_FLAG + F3*128}""")
    poll("s65", 8, "f3", hZ, hT, sleep=cfg.psl[1])
    stamp(6)
    a(f"""s_lshl_b32 s50, s61, 13
    s_add_u32 s50, s50, {WS_P1}
    s_add_u32 s51, s50, 4096""")
    for k in range(8):
        a(f"buffer_load_dwordx4 v[{72+4*k}:{75+4*k}], v{hL16}, {SWS}, {'s50' if k < 4 else 's51'} offen offset:{1024*(k & 3)} sc1")
    a("s_waitcnt vmcnt(0)")
    for k in range(1, 8):
        a(f"""v_pk_add_f32 v[72:73], v[72:73], v[{72+4*k}:{73+4*k}]
              v_pk_add_f32 v[74:75], v[74:75], v[{74+4*k}:{75+4*k}]""")
    for i in range(4):
        rnd(72 + i, f"v{72+i}")
    a(f"""s_mov_b32 s50, {f32(-LOG2E)}
    v_pk_mul_f32 v[76:77], v[72:73], s[50:51] op_sel_hi:[1,0]
    v_exp_f32 v76, v76
    v_exp_f32 v77, v77
    v_pk_add_f32 v[76:77], v[76:77], 1.0 op_sel_hi:[1,0]
    v_rcp_f32 v76, v76
    v_rcp_f32 v77, v77
    v_pk_mul_f32 v[76:77], v[76:77], v[72:73]
    v_cvt_pk_bf16_f32 v76, 0, v76
    v_cvt_pk_bf16_f32 v77, 0, v77
    v_pk_mul_f32 v[76:77], v[76:77], v[74:75]
    v_cvt_pk_bf16_f32 v76, v76, v77
    ds_write_b16 v{hM2}, v76 offset:{L_XS + 256 - L_MISC}
    ds_write_b16_d16_hi v{hM2}, v76 offset:{L_XS + 384 - L_MISC}""")
    for s in range(4):
        a(f"ds_read_b128 v[{XSF+4*s}:{XSF+4*s+3}], v{hFR} offset:{256 + 32*s}")
    for s in range(4):
        two_row_mfma(AC0 + 32, s, 16 + s)
        two_row_mfma(AC1 + 32, s, 20 + s)
    a(f"""s_lshl_b32 s50, s61, 11
    s_lshl_b32 s51, s62, 8
    s_add_u32 s50, s50, s51
    s_add_u32 s50, s50, {WS_P2}
    s_add_u32 s51, s50, {28*2048}
    s_lshl_b32 s65, s62, 7
    s_add_u32 s65, s65, {WS_FLAG + F4*128}""")
    st1 = lambda r: f"buffer_store_dword v{r}, v{hL4}, {SWS}, s50 offen sc1\nbuffer_store_dword v{r+1}, v{hL4}, {SWS}, s51 offen sc1"
    halves(st1(AC0 + 32), st1(AC1 + 32))
    a("s_waitcnt vmcnt(0)")
    signal("s65", hZ, hONE)
    stamp(8)
    a("s_branch L_h_tail")

    def key_tok(dst, key):
        a(f"s_and_b32 {dst}, {key}, 0x7ff\ns_sub_u32 {dst}, 0x7ff, {dst}")

    a("L_h3:")
    if cfg.nomoe & 1:
        a("s_branch L_h_tail")
    a(f"""ds_read_b128 v[48:51], v{hM16} offset:{L_STAT - L_MISC}
    ds_read_b32 v52, v{hM4} offset:{L_KEY - L_MISC}
    s_lshl_b32 s50, {sP}, 14
    s_add_u32 s63, s50, {WS_STAT}
    s_lshl_b32 s50, {sJ}, 10
    s_add_u32 s50, s50, s63
    s_lshl_b32 s51, {sP}, 9
    s_add_u32 s64, s51, {WS_CAND}
    s_lshl_b32 s51, {sJ}, 5
    s_add_u32 s51, s51, s64
    s_lshl_b32 s65, {sP}, 7
    s_add_u32 s65, s65, {WS_FLAG + F2*128}""")
    if cfg.early3:
        a("s_waitcnt lgkmcnt(0)")
    else:
        allkv("h3")
    a(f"""buffer_store_dwordx4 v[48:51], v{hL16}, {SWS}, s50 offen sc1
    s_mov_b64 exec, 0xff
    buffer_store_dword v52, v{hL4}, {SWS}, s51 offen sc1
    s_mov_b64 exec, -1
    s_waitcnt vmcnt(0)""")
    signal("s65", hZ, hONE)
    if cfg.early3 == 0:
        a(f"ds_write_b32 v{hCT}, v{hONE} offset:28")
    if cfg.early3 == 1:
        allkv("h3")
    poll("s65", 16, "f2", hZ, hT, sleep=cfg.psl[0])
    if cfg.early3 == 2:
        a(f"ds_write_b32 v{hCT}, v{hONE} offset:28")
    stamp(6)
    a(f"""buffer_load_dwordx2 v[48:49], v{hL8}, {SWS}, s64 offen sc1
    s_waitcnt vmcnt(0)
    ds_max_u32 v{hCT}, v48 offset:32
    ds_read_b32 v50, v{hCT} offset:32
    s_waitcnt lgkmcnt(0)
    v_cmp_eq_u32 vcc, v50, v48
    v_readfirstlane_b32 s66, v50
    v_cndmask_b32 v48, v48, v49, vcc
    ds_max_u32 v{hCT}, v48 offset:36
    ds_read_b32 v51, v{hCT} offset:36
    s_waitcnt lgkmcnt(0)
    ds_write_b64 v{hCT}, v[50:51] offset:8      ; mailbox
    v_readfirstlane_b32 s67, v51
    s_cmpk_lt_u32 s75, 0xe0
    s_cbranch_scc0 L_h3_y""")
    key_tok("s50", "s66")
    key_tok("s51", "s67")
    a(f"""s_lshl_b32 s30, s62, 7
    s_lshl_b32 s52, s50, 10
    s_add_u32 s52, s52, s30
    s_lshl_b32 s53, s51, 10
    s_add_u32 s53, s53, s30
    s_lshl_b32 s50, s50, 3
    s_add_u32 s50, s50, s63
    s_lshl_b32 s51, s51, 3
    s_add_u32 s51, s51, s63""")
    ld2 = lambda ss, sx: f"buffer_load_dwordx2 v[48:49], v{hZ}, {SWS}, {ss} offen sc1\nbuffer_load_dword v50, v{hH4}, {SX}, {sx} offen"
    halves(ld2("s50", "s52"), ld2("s51", "s53"))
    a(f"""s_waitcnt vmcnt(0)
    v_lshlrev_b32 v52, 16, v50
    v_and_b32 v53, 0xffff0000, v50
    v_pk_add_f32 v[52:53], v[52:53], v[48:49] op_sel_hi:[1,0] neg_lo:[0,1] neg_hi:[0,1]
    v_cvt_pk_bf16_f32 v52, 0, v52
    v_cvt_pk_bf16_f32 v53, 0, v53
    v_mul_f32 v52, v52, v49
    v_mul_f32 v53, v53, v49
    v_cvt_pk_bf16_f32 v52, v52, v53
    ds_write_b32 v{hM4}, v52 offset:{L_XS - L_MISC}
    ds_write_b32 v{hCT}, v{hONE} offset:24
L_h3_y:""")
    stamp(7)
    if cfg.nomoe & 2:
        a("s_branch L_h_tail")
    a(f"""s_lshl_b32 s65, s59, 7
    s_add_u32 s65, s65, {WS_FLAG + F4*128}
    s_mov_b32 s68, 0
L_h3_sel:""")
    key_tok("s50", "s66")
    a(f"""s_lshr_b32 s50, s50, 6
    s_cmp_lg_u32 s50, s60
    s_cbranch_scc1 L_h3_next""")
    poll("s65", 28, "f4", hZ, hT, sleep=cfg.psl[2])
    a(f"""s_mul_i32 s50, s68, {28*2048}
    s_lshl_b32 s51, s59, 8
    s_add_u32 s50, s50, s51
    s_add_u32 s50, s50, {WS_P2}""")
    for k in range(28):
        a(f"buffer_load_dword v{48+k}, v{hL4}, {SWS}, s50 offen offset:{2048*(k & 1)} sc1")
        if k & 1:
            a("s_add_u32 s50, s50, 4096")
    a(f"""s_and_b32 s51, s66, 0xffff0000
    s_xor_b32 s52, s51, 0x80000000
    s_xor_b32 s53, s51, 0xffff0000
    s_bitcmp1_b32 s51, 31
    s_cselect_b32 s51, s52, s53
    v_mov_b32 v4, {f32(-LOG2E)}
    v_mul_f32 v4, s51, v4
    v_exp_f32 v4, v4
    s_lshl_b32 s51, s68, 8
    v_add_u32 v7, s51, v{hM4}
    v_add_f32 v4, 1.0, v4
    v_rcp_f32 v4, v4
    s_waitcnt vmcnt(0)
    v_cvt_pk_bf16_f32 v4, 0, v4""")
    for k in range(1, 14):
        a(f"v_pk_add_f32 v[48:49], v[48:49], v[{48+2*k}:{49+2*k}]")
    a(f"""v_add_f32 v48, v48, v49
    v_cvt_pk_bf16_f32 v48, 0, v48
    v_mul_f32 v48, v48, v4
    v_cvt_pk_bf16_f32 v48, 0, v48
    ds_write_b32 v7, v48 offset:{L_Y - L_MISC}
L_h3_next:
    s_mov_b32 s66, s67
    s_add_u32 s68, s68, 1
    s_cmp_lt_u32 s68, 2
    s_cbranch_scc1 L_h3_sel""")
    stamp(8)

    tail_marks = lambda: None
    a(f"""L_h_tail:
    buffer_load_dwordx4 v[{hXP}:{hXP+3}], v{hOA}, {SX}, 0 offen
    buffer_load_dwordx4 v[{hXP+4}:{hXP+7}], v{hOA+1}, {SX}, 0 offen
    ds_read_b64 v[24:25], v23
    ds_read_b64 v[26:27], v23 offset:64""")
    srd(44, 24, 2097152)
    if cfg.outpf:
        a(f"""s_mov_b32 s50, {(0, 1, 0x01010101)[cfg.outpf]}
        s_mov_b32 s51, {(0, 0, 0x01010101)[cfg.outpf]}
        s_mov_b64 exec, s[50:51]
        buffer_load_dword v8, v{hOA}, {SAUX}, 0 offen sc1
        buffer_load_dword v8, v{hOA+1}, {SAUX}, 0 offen sc1
        s_mov_b64 exec, -1""")
    a(f"""s_setprio 0
    s_waitcnt vmcnt(0) lgkmcnt(0)
    s_barrier                             ; T1""")
    stamp(9)
    a("""ds_read_b64 v[4:5], v6 offset:8
    s_barrier                             ; T2""")
    normrows()
    a(f"""

    v_and_b32 v1, 7, v0
    v_lshlrev_b32 v7, 5, v1
    v_add_u32 v7, {L_Y}, v7
    s_mov_b32 s68, 0
    s_waitcnt lgkmcnt(0)
    v_readfirstlane_b32 s66, v4
    v_readfirstlane_b32 s67, v5
L_ht_sel:""")
    key_tok("s50", "s66")
    a(f"""s_lshr_b32 s51, s50, 6
    s_cmp_lg_u32 s51, s60
    s_cbranch_scc1 L_ht_next
    s_and_b32 s50, s50, 63
    ds_read_b128 v[8:11], v7
    ds_read_b128 v[12:15], v7 offset:16
    s_sub_u32 s51, s50, 8
    v_cmp_eq_u32 s[52:53], s50, v22
    v_cmp_eq_u32 s[54:55], s51, v22
    s_waitcnt lgkmcnt(0)""")
    for q in range(2):
        a(f"s_mov_b64 exec, s[{52+2*q}:{53+2*q}]")
        for e in range(8):
            a(f"v_add_f32 v{XN+8*q+e}, v{XN+8*q+e}, v{8+e}")
        for e in range(8):
            rnd(XN + 8 * q + e, f"v{XN+8*q+e}")
    a("s_mov_b64 exec, -1")
    a(f"""L_ht_next:
    v_add_u32 v7, 256, v7
    s_mov_b32 s66, s67
    s_add_u32 s68, s68, 1
    s_cmp_lt_u32 s68, 2
    s_cbranch_scc1 L_ht_sel""")
    gate()
    def stage_setup():
        a(f"""s_lshr_b32 s30, {sP}, 3
              s_lshl_b32 s31, {sJ}, 1
              s_add_u32 s30, s30, s31
              s_lshl_b32 s72, s30, 8
              s_add_u32 s72, s72, {WS_FLAG + FO*128}
              s_lshl_b32 s30, s30, 16
              s_lshl_b32 s69, {sT}, 10
              s_add_u32 s68, s30, s69
              s_add_u32 s68, s68, {WS_OF}""")

    def stage_quad(g, addr):
        for tt in range(2):
            off = g * 4096 + tt * 32768
            a(f"""s_add_u32 m0, s69, {L_OST + off}
                  s_add_u32 s30, s68, {off}
                  buffer_load_dwordx4 v{addr}, {SWS}, s30 offen sc1 lds""")

    def poll_o(tag, addr4, tmp):
        if cfg.poll2:
            a(f"""s_cmp_eq_u32 s70, 0
              s_cbranch_scc1 L_po1_{tag}
              s_mov_b32 s56, 0
              buffer_load_dword v{tmp}, v{addr4}, {SWS}, s72 offen sc1
              s_nop {cfg.poll2}
        L_po2_{tag}:
              buffer_load_dword v{tmp+2}, v{addr4}, {SWS}, s72 offen sc1
              s_waitcnt vmcnt(1)
              v_cmp_eq_u32 vcc, 0, v{tmp}
              s_add_u32 s56, s56, 1
              s_cbranch_vccz L_pod_{tag}
              buffer_load_dword v{tmp}, v{addr4}, {SWS}, s72 offen sc1
              s_waitcnt vmcnt(1)
              v_cmp_eq_u32 vcc, 0, v{tmp+2}
              s_cmp_lt_u32 s56, {cfg.spin_max}
              s_cbranch_vccz L_pod_{tag}
              s_cbranch_scc1 L_po2_{tag}
        L_po1_{tag}:""")
        a(f"""s_mov_b32 s56, 0
        L_po_{tag}:
              buffer_load_dword v{tmp}, v{addr4}, {SWS}, s72 offen sc1
              s_add_u32 s56, s56, 1
              s_waitcnt vmcnt(0)
              v_cmp_eq_u32 vcc, 0, v{tmp}
              s_cmp_ge_u32 s56, {cfg.spin_max}
              s_cbranch_vccz L_pod_{tag}
              s_cbranch_scc1 L_pod_{tag}
              s_cmp_lg_u32 s70, 0
              s_cbranch_scc1 L_po_{tag}
              s_sleep 32
              s_branch L_po_{tag}
        L_pod_{tag}:""")

    a(f"""v_and_b32 v2, 7, v22
    v_xor_b32 v2, v1, v2
    v_lshlrev_b32 v3, 7, v22
    v_lshl_add_u32 v4, v2, 4, v3
    v_add_u32 v4, {L_SST}, v4""")
    stamp(10)
    for g in range(len(cfg.stages)):
        a(f"s_barrier")
    gate_round()
    stamp(12)
    a(f"""s_barrier                             ; T5
    ds_read_b128 v[8:11], v4
    ds_read_b128 v[12:15], v4 offset:1024""")
    for q in range(2):
        a(f"s_waitcnt lgkmcnt({1-q})")
        for i in range(4):
            a(f"""v_lshlrev_b32 v{24+2*i}, 16, v{8+4*q+i}
                  v_and_b32 v{25+2*i}, 0xffff0000, v{8+4*q+i}""")
        for i in range(4):
            e = 8 * q + 2 * i
            a(f"v_pk_fma_f32 v[{24+2*i}:{25+2*i}], v[{24+2*i}:{25+2*i}], v[{hG+e}:{hG+e+1}], v[{XU+e}:{XU+e+1}]")
        for i in range(4):
            a(f"v_cvt_pk_bf16_f32 v{8+4*q+i}, v{24+2*i}, v{25+2*i}")
        if q == 0:
            stamp(13)
        a(f"buffer_store_dwordx4 v[{8+4*q}:{11+4*q}], v{hOA+q}, {SAUX}, 0 offen")
    stamp(14)
    if cfg.stamps:
        a("s_waitcnt vmcnt(0)")
    stamp(15)
    if cfg.light:
        a(f"""s_waitcnt vmcnt(0)
        s_memrealtime s[98:99]
        s_lshl_b32 s78, s2, 2
        s_add_u32 s78, s78, {sWV}
        s_lshl_b32 s78, s78, 6
        s_add_u32 s78, s78, {WS_DBG}
        v_mov_b32 v0, 0
        v_mov_b32 v4, s96
        s_waitcnt lgkmcnt(0)
        v_mov_b32 v5, s98
        v_mov_b32 v6, s80
        v_mov_b32 v7, s82
        v_mov_b32 v8, s84
        v_mov_b32 v9, s86
        v_mov_b32 v10, s88
        v_mov_b32 v11, s90
        v_mov_b32 v12, s92
        v_mov_b32 v13, s94
        buffer_store_dwordx4 v[4:7], v0, {SWS}, s78 offen
        buffer_store_dwordx4 v[8:11], v0, {SWS}, s78 offen offset:16
        buffer_store_dwordx2 v[12:13], v0, {SWS}, s78 offen offset:32""")
    if cfg.probe and len(cfg.probe) > 3:
        srd(44, 26, 256)
        a(f"""v_mov_b32 v0, 0
        v_mov_b32 v1, s98
        s_not_b32 s99, s98
        v_mov_b32 v2, s99
        s_getreg_b32 s30, hwreg(HW_REG_XCC_ID, 0, 4)
        s_lshl_b32 s30, 1, s30
        s_and_b32 s30, s30, {cfg.probe[4] if len(cfg.probe) > 4 else 255}
        s_mov_b64 exec, 1
        s_cbranch_scc0 L_pr_nomax
        buffer_atomic_umax v1, v0, {SAUX}, 0 offen offset:32 sc1
    L_pr_nomax:
        buffer_atomic_umax v2, v0, {SAUX}, 0 offen offset:160 sc1
        s_waitcnt vmcnt(0)
    L_probe0:
        s_sleep 4
        s_memrealtime s[100:101]
        s_waitcnt lgkmcnt(0)
        s_sub_u32 s100, s100, s96
        s_cmp_lt_u32 s100, {cfg.probe[1] - 500}
        s_cbranch_scc1 L_probe0
        buffer_load_dword v1, v0, {SAUX}, 0 offen offset:32 sc1
        buffer_load_dword v2, v0, {SAUX}, 0 offen offset:160 sc1
        s_waitcnt vmcnt(0)
        v_readfirstlane_b32 s98, v1
        v_readfirstlane_b32 s99, v2
        s_nop 1
        s_not_b32 s99, s99
        s_sub_u32 s98, s98, s99
        s_add_u32 s98, s98, s96""")
    if cfg.probe:
        a(f"""s_sub_u32 s98, s98, s96
        s_mul_i32 s98, s98, {cfg.probe[2]}
        s_add_u32 s98, s98, {cfg.probe[1]}
        s_min_u32 s98, s98, 100000
    L_probe:
        s_sleep 4
        s_memrealtime s[100:101]
        s_waitcnt lgkmcnt(0)
        s_sub_u32 s100, s100, s96
        s_cmp_lt_u32 s100, s98
        s_cbranch_scc1 L_probe""")
    dump_stamps()
    a("s_endpgm")

    vXA, vWA = 144, 148
    vM, vRS, vDEN = 149, 150, 151
    CS = 152
    MF = 156
    t = 160
    vLANE, vL16 = 166, 167

    class Lg:
        def __init__(self):
            self.q = []

        def rd(self, tag, text):
            for ln in text.strip().split("\n"):
                if len(self.q) >= 15:
                    a("s_waitcnt lgkmcnt(9)")
                    self.q = self.q[-9:]
                a(ln)
                self.q.append(tag)

        def wait(self, *tags):
            last = max((i for i, x in enumerate(self.q) if x in tags), default=-1)
            if last < 0:
                return
            n = len(self.q) - 1 - last
            a(f"s_waitcnt lgkmcnt({min(n, 15)})")
            self.q = self.q[last + 1:]

    def trs(dst, addr, off, second=256):
        return (f"ds_read_b64_tr_b16 v[{dst}:{dst+1}], v{addr} offset:{off}\n"
                f"ds_read_b64_tr_b16 v[{dst+2}:{dst+3}], v{addr} offset:{off + second}")

    a(f"""L_compute:
    v_mov_b32 v{vLANE}, v0
    v_lshlrev_b32 v{vL16}, 4, v0
    v_and_b32 v1, 31, v0
    v_lshrrev_b32 v2, 5, v0              ; half
    v_bfe_u32 v3, v0, 1, 3
    v_xor_b32 v3, v3, v2
    s_lshl_b32 s30, {sT}, 12
    s_add_u32 s30, s30, {L_RING}
    v_lshl_add_u32 v4, v1, 7, s30""")
    for s in range(4):
        a(f"v_xor_b32 v5, {2*s}, v3\nv_lshl_add_u32 v{vXA+s}, v5, 4, v4")
    tr_addr(vWA, 0, 3, 4)
    a(f"""v_lshrrev_b32 v3, 2, v0
    v_xor_b32 v3, v3, v0
    v_and_b32 v3, 4, v3
    v_cmp_eq_u32 vcc, 0, v3
    v_mov_b32 v4, {sONE}""")
    for i in range(4):
        a(f"v_cndmask_b32 v{CS+i}, 0, v4, vcc")
    a("s_waitcnt lgkmcnt(0)")
    if cfg.stamps:
        a("s_mov_b32 s80, s78")
    srd(40, 28, WS_SIZE)
    SA, SB, OO, QQ, RING = 0, 16, 32, 96, 112
    vIDX = 160
    vC = 154
    sHH, sKQ = "s58", sT
    sVM = "s[62:63]"

    def slot(s):
        b = RING + 12 * s
        return dict(K=b, V=[b + 4, b + 8])

    def const_rows(tmp):
        return [f"v_and_b32 v{tmp}, 27, v{vLANE}",
                f"v_cmp_eq_u32 vcc, 16, v{tmp}",
                f"v_mov_b32 v{tmp}, {sONE}",
                f"v_cndmask_b32 v{vC}, 0, v{tmp}, vcc\nv_cndmask_b32 v{vC+1}, 0, v{tmp}, vcc"]

    def attn_init_b(slots, wide=cfg.wide):
        for s in slots:
            for i in range(0, 8, 2):
                r = slot(s)["V"][0] + i
                if r != vC:
                    a(f"v_mov_b64 v[{r}:{r+1}], v[{vC}:{vC+1}]" if wide else f"v_mov_b32 v{r}, v{vC}\nv_mov_b32 v{r+1}, v{vC}")

    a(f"""s_lshr_b32 {sHH}, {sWV}, 3
    s_mov_b32 s62, 0xffff
    s_mov_b32 s63, 0xffff
    s_lshl_b32 s64, {sP}, 1
    s_add_u32 s64, s64, {sHH}
    s_lshl_b32 s64, s64, 17
    s_or_b32 s61, {sJ}, {cfg.sib}
    s_add_u32 s61, s61, 1
    s_lshl_b32 s61, s61, 13
    s_lshl_b32 s31, {sKQ}, 11
    s_add_u32 s61, s61, s31
    s_mov_b32 s76, 0
    s_mov_b32 s77, 0
    s_lshl_b32 s30, {sHH}, 13
    s_add_u32 s71, s30, s31
    s_lshl_b32 s31, {sHH}, 12""")
    for i in range(4):
        a(f"""s_add_u32 s30, {sKQ}, {1 + i}
              s_and_b32 s30, s30, 3
              s_lshl_b32 s30, s30, 10
              s_add_u32 s{72+i}, s30, s31""")
    a(f"""s_cmp_ge_u32 {sWV}, 8
    s_cbranch_scc1 L_bwave""")

    XB, WK, WV, AK, AV, RB, ASX, SQ = (0, 16), 32, 48, 64, 80, 96, 112, 116
    SFK, SFV, RF, OF_ = 128, 132, 136, 140
    vKG, vVG = 164, 165
    EFA, vEA = RB, vM
    a(f"""v_and_b32 v1, 3, v0
    v_mov_b32 v5, {L_ZERO}
    v_mov_b32 v6, {L_ONES}
    v_mov_b32 v7, {L_WR}
    v_cmp_eq_u32 s[52:53], 0, v1
    v_cmp_eq_u32 s[54:55], 1, v1
    v_cndmask_b32 v6, v5, v6, s[52:53]
    v_cndmask_b32 v6, v6, v7, s[54:55]
    v_cndmask_b32 v6, v5, v6, vcc
    v_lshl_add_u32 v{vEA}, v2, 4, v6
    v_cmp_gt_u32 vcc, 32, v{vLANE}
    v_and_b32 v{t}, 0x33, v{vLANE}
    v_bfe_u32 v{t+1}, v{vLANE}, 2, 1
    v_lshl_add_u32 v{t}, v{t+1}, 3, v{t}
    v_bfe_u32 v{t+1}, v{vLANE}, 3, 1
    v_lshl_add_u32 v{t}, v{t+1}, 2, v{t}
    v_lshlrev_b32 v{vKG}, 4, v{t}
    v_and_b32 v{t}, 0x2f, v{vLANE}
    v_lshlrev_b32 v{t}, 4, v{t}
    v_bfe_u32 v{t+1}, v{vLANE}, 4, 1
    v_lshl_add_u32 v{vVG}, v{t+1}, 17, v{t}
    v_cndmask_b32 v{OF_}, 0, v4, vcc
    v_cndmask_b32 v{OF_+1}, 0, v4, vcc
    v_mov_b32 v{OF_+2}, 0
    v_mov_b32 v{OF_+3}, 0
    v_mov_b32 v{RF+2}, 0
    v_mov_b32 v{RF+3}, 0
    v_add_u32 v{t+3}, {L_SFR}, v{vL16}
    v_and_b32 v1, 31, v{vLANE}
    s_lshl_b32 s30, {sT}, 5
    v_add_lshl_u32 v{CS}, v1, s30, 3
    v_add_u32 v{CS}, {L_STAT}, v{CS}
    v_add_u32 v5, {L_WR}, v{vL16}
    v_mov_b32 v8, v4
    v_mov_b32 v9, v4
    v_mov_b32 v10, v4
    v_mov_b32 v11, v4
    s_lshl_b32 s50, {sP}, 18
    s_lshl_b32 s30, {sJ}, 13
    s_add_u32 s50, s50, s30
    s_lshl_b32 s49, {sT}, 11
    s_add_u32 s50, s50, s49
    s_add_u32 s51, s50, 0x20000
    s_mov_b32 s52, 0xaaaaaaaa
    s_mov_b32 s53, 0xaaaaaaaa
    s_mov_b32 s54, 0xcccccccc
    s_mov_b32 s55, 0xcccccccc
    """)
    for ins in const_rows(6):
        a(ins)
    a("""s_barrier                             ; Ba
    ds_read_b128 v[12:15], v5""")
    lg = Lg()

    def rdw(n, s, which):
        if cfg.x1 & 4 and n > 0:
            return
        if which == 0:
            lg.rd(("k", n, s), trs(WK + 4 * s, vWA, L_WK + n * 4096 + s * 1024))
        else:
            lg.rd(("v", n, s), trs(WV + 4 * s, vWA, L_WV + n * 4096 + s * 1024))

    def rdx(n, s):
        r = XB[n & 1] + 4 * s
        off = (n % 5) * 16384 - (16 if n == 4 else 0)
        lg.rd(("x", n, s), f"ds_read_b128 v[{r}:{r+3}], v{vXA+s} offset:{off}")

    def rde(n, s):
        lg.rd(("e", n, s), f"ds_read_b128 v[{EFA+4*s}:{EFA+4*s+3}], v{vEA} offset:{(4*n + s)*32}")

    def bigk(n, s):
        lg.wait(("k", n, s), ("x", n, s))
        if cfg.x1 & 8 and 0 < n < 7:
            return
        mfma32(AK, WK + 4 * s, XB[n & 1] + 4 * s, None if (n, s) == (0, 0) else AK)

    def bigv(n, s):
        lg.wait(("v", n, s), ("x", n, s))
        if cfg.x1 & 8 and 0 < n < 7:
            return
        mfma32(AV, XB[n & 1] + 4 * s, WV + 4 * s, None if (n, s) == (0, 0) else AV)

    def smalls(n, fill=()):
        fill = list(fill)
        lg.wait(*[(k_, n, s) for s in range(4) for k_ in "xe"])
        if cfg.x1 & 2 and n not in (0, 7):
            for f_ in fill: a(f_)
            return
        for s in range(4):
            mfma16(ASX, EFA + 4 * s, XB[n & 1] + 4 * s, None if (n, s) == (0, 0) else ASX)
            if fill:
                a(fill.pop(0))
        for i in range(8):
            d = SQ + 4 * (i % 3)
            r = XB[n & 1] + 2 * i
            c = "0" if (n == 0 and i < 3) else f"v[{d}:{d+3}]"
            a(f"v_mfma_f32_4x4x4_16b_bf16 v[{d}:{d+3}], v[{r}:{r+1}], v[{r}:{r+1}], {c}")
        assert not fill

    def head(n):
        rdx(n, 0); rdx(n, 1)
        if n:
            bigk(n - 1, 2)
        rdx(n, 2); rdx(n, 3); rde(n, 0); rde(n, 1)
        if n:
            bigv(n - 1, 2)
        rdw(n, 2, 0); rdw(n, 2, 1)
        if n:
            bigk(n - 1, 3)
        rdw(n, 3, 0); rde(n, 2); rde(n, 3)
        if n:
            bigv(n - 1, 3)
        rdw(n, 3, 1)

    for s in range(2):
        rdw(0, s, 0); rdw(0, s, 1)
    a("s_waitcnt lgkmcnt(8)")
    mfma16(16, 8, 12)
    for r in (8, 4, 2, 1):
        a(f"v_add_f32_dpp v16, v16, v16 row_ror:{r} row_mask:0xf bank_mask:0xf")
    a("v_readfirstlane_b32 s70, v16")
    for n in range(7):
        a(f"s_barrier                             ; B{n}")
        head(n)
        for s in range(2):
            bigk(n, s)
            rdw(n + 1, s, 0)
            bigv(n, s)
            rdw(n + 1, s, 1)
        fill = []
        if n == 3:
            fill = [f"v_add_u32 v{vXA+s}, 16, v{vXA+s}" for s in range(4)]
        if n == 4:
            fill = [f"v_add_u32 v{vXA+s}, -16, v{vXA+s}" for s in range(4)]
        smalls(n, fill)
    a("s_barrier                             ; B7")
    stamp(3)
    head(7)
    lg.rd("sf", f"ds_read_b128 v[{SFK}:{SFK+3}], v{t+3}\nds_read_b128 v[{SFV}:{SFV+3}], v{t+3} offset:1024")
    smalls(7)
    PK = XB[0]
    groups = [
        [],
        [f"v_mul_f32 v{t}, {f32(1/512)}, v{ASX}            ; mean"] +
        [f"v_pk_add_f32 v[{SQ+i}:{SQ+i+1}], v[{SQ+i}:{SQ+i+1}], v[{SQ+4+i}:{SQ+5+i}]" for i in (0, 2)] +
        [f"v_pk_add_f32 v[{SQ+i}:{SQ+i+1}], v[{SQ+i}:{SQ+i+1}], v[{SQ+8+i}:{SQ+9+i}]" for i in (0, 2)],
        [f"v_cvt_pk_bf16_f32 v{MF}, -v{t}, -v{t}",
         f"v_cndmask_b32 v{SQ}, v{SQ}, v{SQ+1}, s[52:53]",
         f"v_cndmask_b32 v{SQ+2}, v{SQ+2}, v{SQ+3}, s[52:53]",
         f"v_mov_b32 v{MF+1}, v{MF}",
         f"v_cndmask_b32 v{SQ}, v{SQ}, v{SQ+2}, s[54:55]",
         f"v_mov_b32 v{t+1}, v{SQ}"],
        [f"v_mov_b32 v{MF+2}, v{MF}",
         f"v_mov_b32 v{MF+3}, v{MF}",
         f"v_permlane32_swap_b32 v{t+1}, v{SQ}",
         f"v_add_f32 v{t+1}, v{t+1}, v{SQ}",
         f"v_mul_f32 v{t+1}, {f32(1/512)}, v{t+1}"],
        [f"v_fma_f32 v{t+1}, -v{t}, v{t}, v{t+1}         ; variance",
         f"v_max_f32 v{t+1}, 0, v{t+1}",
         f"v_cvt_pk_bf16_f32 v{t+1}, 0, v{t+1}",
         f"v_add_f32 v{t+1}, {f32(1e-5)}, v{t+1}",
         f"v_cvt_pk_bf16_f32 v{t+1}, 0, v{t+1}",
         f"v_sqrt_f32 v{t+1}, v{t+1}"],
        [f"v_cvt_pk_bf16_f32 v{vDEN}, 0, v{t+1}",
         f"v_rcp_f32 v{vRS}, v{vDEN}",
         f"v_cvt_pk_bf16_f32 v{vM}, 0, v{t}",
         f"v_and_b32 v{t}, 0xffff0000, v{vRS}",
         f"v_sub_f32 v{t+1}, v{vRS}, v{t}"],
        [f"v_and_b32 v{t+2}, 0xffff0000, v{t+1}",
         f"v_sub_f32 v{t+1}, v{t+1}, v{t+2}",
         f"v_lshrrev_b32 v{t}, 16, v{t}",
         f"v_or_b32 v{RF}, v{t}, v{t+2}",
         f"v_lshrrev_b32 v{RF+1}, 16, v{t+1}",
         f"v_mul_f32 v{AK}, v{vRS}, v{AK}"],
        [f"ds_write2_b32 v{CS}, v{vM}, v{vRS} offset1:1"] + [f"v_mul_f32 v{AK+i}, v{vRS}, v{AK+i}" for i in range(1, 7)],
        [f"v_mul_f32 v{AK+7}, v{vRS}, v{AK+7}"] +
        [f"v_cvt_pk_bf16_f32 v{PK+i}, v{AK+2*i}, v{AK+2*i+1}" for i in range(4)] +
        [f"buffer_store_dwordx4 v[{PK}:{PK+3}], v{vKG}, {SWS}, s50 offen sc1"],
        [f"v_mul_f32 v{AK+i}, v{vRS}, v{AK+i}" for i in range(8, 14)],
        [f"v_mul_f32 v{AK+i}, v{vRS}, v{AK+i}" for i in range(14, 16)] +
        [f"v_cvt_pk_bf16_f32 v{PK+i}, v{AK+2*i}, v{AK+2*i+1}" for i in range(4, 8)] +
        [f"buffer_store_dwordx4 v[{PK+4}:{PK+7}], v{vKG}, {SWS}, s51 offen sc1"],
    ]

    def augk():
        lg.wait("sf")
        mfma32(AK, SFK, MF, AK)
    seq = [lambda s=s: bigk(7, s) for s in range(4)] + [augk] + [lambda s=s: bigv(7, s) for s in range(3)]
    seq += [lambda: mfma32(RB, RF, OF_), lambda: bigv(7, 3), lambda: mfma32(AV, MF, SFV, AV)]
    assert len(seq) == len(groups)
    for m, g in zip(seq, groups):
        m()
        for ins in g:
            a(ins)
    for hf in range(2):
        for i in range(4 * hf, 4 * hf + 4):
            a(f"v_pk_mul_f32 v[{AV+2*i}:{AV+2*i+1}], v[{RB+2*i}:{RB+2*i+1}], v[{AV+2*i}:{AV+2*i+1}]")
        for i in range(4 * hf, 4 * hf + 4):
            a(f"v_cvt_pk_bf16_f32 v{PK+8+i}, v{AV+2*i}, v{AV+2*i+1}")
        a(f"buffer_store_dwordx4 v[{PK+8+4*hf}:{PK+11+4*hf}], v{vVG}, {SWS}, s50 offen offset:{1024 + 256*hf} sc1")
    stamp(2)

    def own_kv_reads():
        S0 = slot(0)
        a(f"""ds_read_b128 v[{S0['K']}:{S0['K']+3}], v{t+1} offset:{L_OWNKV}
              s_mov_b64 exec, {sVM}""")
        for i in range(2):
            r = S0["V"][i]
            a(f"ds_read_b128 v[{r}:{r+3}], v{t+1} offset:{L_OWNKV + 1024 + 256*i}")
        a("s_mov_b64 exec, -1")

    def q_reads():
        for i in range(4):
            a(f"ds_read_b128 v[{QQ+4*i}:{QQ+4*i+3}], v{QQ+4*i} offset:{L_Q}")

    q_addr = [f"v_add_u32 v{QQ+4*i}, s{72+i}, v{vL16}" for i in range(4)]

    def drain_signal():
        a(f"""s_waitcnt vmcnt(0)
        s_mov_b64 exec, 1
        ds_add_u32 v{t+2}, v{t+4}
        s_mov_b64 exec, -1""")
        stamp(1)

    a(f"""s_waitcnt lgkmcnt(0)
    s_setprio {cfg.aprio}
    s_barrier                             ; B8""")
    stamp(4)
    a(f"""v_add_u32 v28, s49, v{vKG}
    v_and_b32 v29, 0x3ff, v{vVG}
    v_lshrrev_b32 v30, 4, v{vVG}
    v_and_b32 v30, 0x2000, v30
    v_add3_u32 v29, v29, v30, s49
    v_mov_b32 v{t+1}, 0
    v_mov_b32 v{t+2}, {L_CTR}
    v_mov_b32 v{t+4}, 1
    """)
    kvw = f"""ds_write_b128 v28, v[{PK}:{PK+3}] offset:{L_OWNKV}
    ds_write_b128 v28, v[{PK+4}:{PK+7}] offset:{L_OWNKV + 8192}
    ds_write_b128 v29, v[{PK+8}:{PK+11}] offset:{L_OWNKV + 1024}
    ds_write_b128 v29, v[{PK+12}:{PK+15}] offset:{L_OWNKV + 1280}"""
    if not cfg.x2 & 1:
        a(kvw)
    if not cfg.x2 & 2:
        attn_init_b((1, 2, 3))
    a("v_mov_b64 v[20:21], 0\nv_mov_b64 v[22:23], 0")
    for x in q_addr:
        a(x)
    stamp(14)
    drain_signal()
    if cfg.x2 & 2:
        attn_init_b((1, 2, 3))
    a(f"""v_and_b32 v{t}, 31, v{vLANE}
    s_lshl_b32 s30, {sJ}, 7
    s_lshl_b32 s31, {sT}, 5
    s_add_u32 s30, s30, s31
    s_sub_u32 s53, 0x7ff, s30""")
    AR = ASX + 1
    a(f"""v_fma_f32 v{AR}, -v{vM}, s70, v{AR}
    v_mul_f32 v{AR}, v{vRS}, v{AR}
    v_cvt_pk_bf16_f32 v{AR}, 0, v{AR}
    v_ashrrev_i32 v{AR+1}, 31, v{AR}
    v_or_b32 v{AR+1}, 0x80000000, v{AR+1}
    v_xor_b32 v{AR}, v{AR}, v{AR+1}
    v_and_b32 v{AR}, 0xffff0000, v{AR}
    v_sub_u32 v{AR+1}, s53, v{t}
    v_or_b32 v{AR}, v{AR}, v{AR+1}""")
    wavemax_u32("s50", AR, AR + 1, 2)
    a(f"""v_cmp_eq_u32 vcc, s50, v{AR}
    s_lshl_b32 s31, {sT}, 3
    v_add_u32 v18, s31, v{t+2}
    v_cndmask_b32 v{AR}, v{AR}, v{t+1}, vcc""")
    wavemax_u32("s51", AR, AR + 1, 2)
    a(f"""v_mov_b32 v16, s50
    v_mov_b32 v17, s51
    ds_write_b64 v18, v[16:17] offset:{L_KEY - L_CTR}""")
    attn_init_b((0,))
    a(f"""v_add_u32 v{t+1}, s71, v{vL16}
    v_mov_b32 v{vIDX}, 0xdddddddd""")
    if cfg.x2 & 1:
        a(kvw)
    own_kv_reads()
    stamp(8)
    a(f"""s_setprio {3 if cfg.prio else 0}
    s_waitcnt lgkmcnt(0)
    s_barrier                             ; B10""")
    stamp(5)
    q_reads()
    for i in range(3):
        mfma32(OO + 16 * i, 20, 20)
    a("s_waitcnt lgkmcnt(3)")
    mfma32(SA, slot(0)["K"], QQ)
    mfma32(OO + 48, 20, 20)
    a("s_nop 8\ns_branch L_attn_go")

    XF, WF, EF, ACC, ASK, ASV, AR = 0, 80, 96, 112, 128, 132, 136
    a(f"""L_bwave:
    s_cmp_lg_u32 {sT}, 0
    s_cbranch_scc1 L_b_noinit""")
    a(f"""v_mov_b32 v5, v4
    v_mov_b32 v6, v4
    v_mov_b32 v7, v4
    v_add_u32 v1, {L_ZERO}, v{vL16}
    v_mov_b32 v8, 0
    v_mov_b32 v9, 0
    v_mov_b32 v10, 0
    v_mov_b32 v11, 0
    ds_write_b128 v1, v[4:7] offset:{L_ONES - L_ZERO}
    ds_write_b128 v1, v[8:11]
    ds_write_b128 v1, v[8:11] offset:192
    s_waitcnt lgkmcnt(0)
L_b_noinit:""")
    srd(44, 26, 256)
    a(f"""s_lshl_b32 s52, s2, 2
    s_add_u32 s52, s52, {sT}
    s_cmp_lg_u32 s52, 1
    s_cbranch_scc1 L_b_noclear
    v_lshlrev_b32 v1, 7, v{vLANE}
    s_mov_b32 s30, {WS_FLAG}
    s_mov_b32 s31, {WS_FLAG + 64*128}
    v_mov_b32 v8, 0
    v_mov_b32 v9, 0
    v_mov_b32 v10, 0
    v_mov_b32 v11, 0
    buffer_store_dword v8, v1, {SWS}, s30 offen sc1""")
    for i in range(12):
        a(f"buffer_store_dwordx4 v[8:11], v{vL16}, {SWS}, s31 offen offset:{1024*(i & 3)} sc1")
        if i in (3, 7):
            a("s_add_u32 s31, s31, 4096")
    a(f"""
L_b_noclear:""")
    a(f"""s_lshl_b32 s30, {sT}, 10
    v_add_u32 v{t}, s30, v{vWA}
    v_cmp_gt_u32 vcc, 32, v{vLANE}
    v_and_b32 v{EF}, 31, v{vLANE}
    v_lshrrev_b32 v{EF+1}, 5, v{vLANE}
    v_lshlrev_b32 v{EF+1}, 10, v{EF+1}
    v_lshl_add_u32 v{EF}, v{EF}, 4, v{EF+1}
    s_lshr_b32 s30, {sT}, 1
    s_lshl_b32 s30, s30, 9
    s_and_b32 s31, {sT}, 1
    s_lshl_b32 s31, s31, 3
    s_add_u32 s30, s30, s31
    s_add_u32 s30, s30, {L_SFR}
    v_and_b32 v{vM}, 0x1ff, v{EF}
    v_add_u32 v{vM}, s30, v{vM}
    v_add_u32 v{EF}, s30, v{EF}
    s_lshl_b32 s30, {sT}, 5""")
    for s in range(4):
        a(f"v_xor_b32 v{vXA+s}, s30, v{vXA+s}")
    a("s_barrier                             ; Ba")

    def ssum(n):
        read_w(WF, t, L_WK + n * 4096)
        read_w(WF + 4, t, L_WV + n * 4096)

    def ssum2(n):
        mfma16(ASK, CS, WF, None if n == 0 else ASK)
        mfma16(ASV, CS, WF + 4, None if n == 0 else ASV)

    ssum(0)
    a("s_waitcnt lgkmcnt(0)")
    ssum2(0)
    for n in range(7):
        a(f"s_barrier                             ; B{n}")
        ssum(n + 1)
        if n < 5 and not cfg.x1 & 1:
            for s in range(4):
                r = XF + 20 * s + 4 * n
                if n < 4:
                    a(f"ds_read_b128 v[{r}:{r+3}], v{vXA+s} offset:{n*16384}")
                else:
                    a(f"v_add_u32 v{t+2}, 65536, v{vXA+s}\nds_read_b128 v[{r}:{r+3}], v{t+2}")
        if n == 0:
            a(f"""s_cmp_lg_u32 s52, 1
            s_cbranch_scc1 L_b_nosig
            s_waitcnt vmcnt(0)
            v_mov_b32 v{t+2}, 0
            v_mov_b32 v{t+3}, 1
            s_mov_b64 exec, 1
            buffer_store_dword v{t+3}, v{t+2}, {SAUX}, 0 offen sc1
            s_mov_b64 exec, -1
        L_b_nosig:""")
        if n == 4:
            a(f"""s_cmp_lg_u32 {sT}, 0
            s_cbranch_scc1 L_b_noclr
            v_mov_b32 v{t+2}, 0
            s_mov_b64 exec, 1
            buffer_load_dword v{t+5}, v{t+2}, {SAUX}, 0 offen sc1
            s_mov_b64 exec, -1
        L_b_noclr:""")
        if n == 6:
            a("s_setprio 2")
        a("s_waitcnt lgkmcnt(0)")
        ssum2(n + 1)
    a(f"v_cndmask_b32 v{EF+1}, v{ASV}, v{ASK}, vcc")
    split3(EF + 2, EF + 1, t + 2)
    a(f"""ds_write_b64 v{EF}, v[{EF+2}:{EF+3}]
    s_cmp_lg_u32 {sT}, 0
    s_cbranch_scc1 L_b_clrd
    s_waitcnt vmcnt(0)
    v_readfirstlane_b32 s30, v{t+5}
    v_mov_b32 v{t+2}, 0
    s_cmp_lg_u32 s30, 0
    s_cbranch_scc1 L_b_clrd""")
    poll("0", 1, "clr", t + 2, t + 5, sleep=1, srd_=SAUX)
    a(f"""L_b_clrd:
    s_setprio 0
    s_waitcnt vmcnt(0) lgkmcnt(0)
    s_barrier                             ; B7""")
    stamp(3)
    a(f"""v_add_u32 v{vWA}, {L_WQ}, v{t}
    v_and_b32 v{t+4}, 31, v{vLANE}
    s_lshl_b32 s30, {sT}, 5
    v_add_lshl_u32 v{t+4}, v{t+4}, s30, 3
    v_add_u32 v{t+4}, {L_STAT}, v{t+4}
    s_lshl_b32 s30, {sT}, 10
    v_add_u32 v{t+5}, s30, v{vL16}
    v_add_u32 v{t+1}, {L_SFR}, v{vL16}
    v_mov_b32 v{t}, {L_CTR}
    v_mov_b32 v{vDEN}, 1""")
    xq = lambda n, s: XF + 20 * s + 4 * n if n < 5 else (128 if s % 2 == 0 else 0) + 4 * (n - 5)
    xrd = lambda n, s: f"ds_read_b128 v[{xq(n, s)}:{xq(n, s)+3}], v{vXA+s} offset:{(n - 5)*16384}"
    for n in range(5, 8):
        a(xrd(n, 0))
    a("""s_waitcnt lgkmcnt(0)
    s_setprio 2
    s_barrier                             ; B8""")
    stamp(4)
    lg = Lg()
    SQA = 140

    def qreads(k):
        s_, n = k >> 3, k & 7
        if n == 0 and s_:
            a(f"v_xor_b32 v{vWA}, {(s_ ^ (s_ - 1)) << 10}, v{vWA}")
        lg.rd(("q", k), trs(WF + 4 * (k % 8), vWA, n * 4096))
    for k in range(5):
        qreads(k)
    lg.rd("st", f"ds_read_b64 v[{t+2}:{t+3}], v{t+4}")
    z = lambda lo, hi: "\n".join(f"v_mov_b64 v[{r}:{r+1}], 0" for r in range(lo, hi, 2))
    cr = const_rows(t + 4)
    side = {8: f"v_cvt_pk_bf16_f32 v{MF}, -v{t+2}, -v{t+2}",
            9: f"v_mul_f32 v{vRS}, {f32(CQ)}, v{t+3}\nv_mov_b32 v{MF+1}, v{MF}",
            10: f"v_and_b32 v{t+2}, 0xffff0000, v{SQA}\nv_sub_f32 v{t+3}, v{SQA}, v{t+2}\nv_and_b32 v{t+4}, 0xffff0000, v{t+3}",
            11: f"v_sub_f32 v{t+3}, v{t+3}, v{t+4}\nv_lshrrev_b32 v{t+2}, 16, v{t+2}\nv_or_b32 v{t+2}, v{t+2}, v{t+4}",
            12: f"v_lshrrev_b32 v{t+3}, 16, v{t+3}",
            14: f"v_mov_b32 v{MF+2}, v{MF}\nv_mov_b32 v{MF+3}, v{MF}", 15: cr[0] + "\n" + cr[1], 19: cr[2], 20: cr[3],
            21: "\n".join(f"v_mov_b32 v{r}, 0" for r in (20, 21, 22)), 22: f"v_mov_b32 v23, 0\nv_mov_b32 v152, v{vC}\nv_mov_b32 v153, v{vC}",
            24: "\n".join(f"v_mov_b32 v{r}, v{vC}" for r in (128, 129, 130)), 25: "\n".join(f"v_mov_b32 v{r}, v{vC}" for r in (131, 132, 133)),
            26: "\n".join(f"v_mov_b32 v{r}, v{vC}" for r in (134, 135, 144)),
            28: "\n".join(f"v_mov_b32 v{r}, v{vC}" for r in (145, 146, 147, 140)),
            29: "\n".join(f"v_mov_b32 v{r}, v{vC}" for r in (141, 142, 143, 156, 157)),
            30: "\n".join(f"v_mov_b32 v{r}, v{vC}" for r in (158, 159)) + "\n" + q_addr[0] + "\n" + q_addr[1]}
    for k in range(32):
        s, n = k >> 3, k & 7
        lg.wait(("q", k), ("x", k))
        mfma32(ACC, WF + 4 * (k % 8), xq(n, s), ACC if k else None)
        if k + 5 < 32:
            qreads(k + 5)
        if s < 3 and (3 <= n < 6 if s == 0 else n < 3):
            n2 = n + 2 if s == 0 else n + 5
            lg.rd(("x", 8 * (s + 1) + n2), xrd(n2, s + 1))
        if k in side:
            a(side[k])
        mark(f"k{k}")
        if k < 8:
            mfma16(SQA, CS, WF + 4 * k, SQA if k else None)
        if k == 13:
            lg.rd("w", f"ds_write_b64 v{vM}, v[{t+2}:{t+3}]")
            a("s_mov_b64 exec, 1")
            lg.rd("w", f"ds_add_u32 v{t}, v{vDEN} offset:4")
            a("s_mov_b64 exec, -1")
        if k == 23:
            lg.rd("sf", f"ds_read_b32 v{t+2}, v{t} offset:4\nds_read_b128 v[{SQA}:{SQA+3}], v{t+1}")
        if k == 27:
            lg.wait("sf")
            a(f"""v_readfirstlane_b32 s30, v{t+2}
            s_mov_b32 s56, 0
            s_cmp_lt_u32 s30, 4
            s_cbranch_scc1 L_b_sq
        L_b_sqd:""")
            mfma32(ACC, SQA, MF, ACC)
    stamp(8)
    mfma32(OO, 20, 20)
    a(f"""{q_addr[2]}
    {q_addr[3]}
    v_add_u32 v{t+1}, s71, v{vL16}
    v_mov_b32 v{vIDX}, 0xdddddddd""")
    mfma32(OO + 16, 20, 20)
    for hf in range(2):
        for i in range(8 * hf, 8 * hf + 8):
            a(f"v_mul_f32 v{ACC+i}, v{vRS}, v{ACC+i}")
        for i in range(4 * hf, 4 * hf + 4):
            a(f"v_cvt_pk_bf16_f32 v{4+i}, v{ACC+2*i}, v{ACC+2*i+1}")
        a(f"ds_write_b128 v{t+5}, v[{4+4*hf}:{7+4*hf}] offset:{L_Q + 4096*hf}")
    stamp(1)
    mfma32(OO + 32, 20, 20)
    attn_init_b((0,), wide=False)
    a(f"""s_setprio {3 if cfg.prio else 0}
    s_waitcnt lgkmcnt(0)
    s_barrier                             ; B10""")
    stamp(5)
    own_kv_reads()
    q_reads()
    mfma32(OO + 48, 20, 20)
    a("s_waitcnt lgkmcnt(3)")
    mfma32(SA, slot(0)["K"], QQ)
    a("s_nop 10")

    def exp(r):
        a(f"v_exp_f32 v{r}, v{r}")

    def smf(o, v, p):
        a(f"v_smfmac_f32_32x32x32_bf16 v[{o}:{o+15}], v[{v}:{v+3}], v[{p}:{p+7}], v{vIDX}")

    def step(i, S, prev, nxt, h1=None, h2=None, h3=None, hq=None, h4=None):
        cur, oth = (SA, SB) if i % 2 == 0 else (SB, SA)
        exp(cur); exp(cur + 1)
        if i or prev is not None:
            smf(OO + 16 * ((i - 1) & 3), (S if i else prev)["V"][1], oth + 8)
        if h1:
            h1()
        for e in range(2, 5):
            exp(cur + e)
        if i < 3:
            mfma32(oth, S["K"], QQ + 4 * (i + 1))
        elif nxt is not None:
            mfma32(oth, nxt["K"], QQ)
        if hq:
            hq()
        for e in range(5, 10):
            exp(cur + e)
        smf(OO + 16 * i, S["V"][0], cur)
        if h2:
            h2()
        for e in range(10, 16):
            exp(cur + e)
            if e == 12 and h3:
                h3()
            if e == 14 and h4:
                h4()

    stubs = []

    def gl_parts():
        n = len(stubs)
        stubs.append(n)
        return [f"s_cmp_eq_u32 s76, 0\ns_cbranch_scc1 L_more{n}\nL_have{n}:", "s_ff1_i32_b32 s65, s76",
                "s_bitset0_b32 s76, s65\ns_lshl_b32 s65, s65, 13", "s_add_u32 s65, s65, s61\ns_and_b32 s65, s65, 0x1ffff",
                "s_add_u32 s65, s65, s64"]

    def gl_addr():
        for x in gl_parts():
            a(x)

    def gl_stubs():
        for n in stubs:
            a(f"""L_more{n}:
              v_mov_b32 v{t+1}, {L_CTR}
              s_mov_b32 s56, 0
        L_morel{n}:
              ds_read_b32 v{t+2}, v{t+1} offset:20
              s_add_u32 s56, s56, 1
              s_waitcnt lgkmcnt(0)
              v_readfirstlane_b32 s30, v{t+2}
              s_nop 0
              s_andn2_b32 s76, s30, s77
              s_cselect_b32 s77, s30, s77
              s_cbranch_scc1 L_have{n}
              s_sleep {cfg.stubsleep}
              s_cmp_lt_u32 s56, {cfg.spin_max * 8}
              s_cbranch_scc1 L_morel{n}
              s_mov_b32 s76, 1
              s_branch L_have{n}""")

    def gl_k(s):
        S = slot(s)
        a(f"buffer_load_dwordx4 v[{S['K']}:{S['K']+3}], v{vL16}, {SWS}, s65 offen sc1")

    def gl_v(s):
        S = slot(s)
        a(f"s_mov_b64 exec, {sVM}")
        for i in range(2):
            r = S["V"][i]
            a(f"buffer_load_dwordx4 v[{r}:{r+3}], v{vL16}, {SWS}, s65 offen offset:{1024 + 256*i} sc1")
        a("s_mov_b64 exec, -1")

    def unit(s, load=True, wait=6, last=False, hooks={}, first=False):
        S, prev, nxt = slot(s), None if first else slot((s + 3) % 4), slot((s + 1) % 4)
        H = lambda k: hooks.get(k)
        ld = (s + 3) % 4
        if load and cfg.spread == 1:
            P = [lambda x=x: a(x) for x in gl_parts()]
            step(0, S, prev, nxt, h1=P[0], hq=P[1], h2=P[2])
            step(1, S, prev, nxt, h1=P[3], hq=P[4], h2=lambda: gl_k(ld))
            step(2, S, prev, nxt, h1=lambda: gl_v(ld))
        elif load and cfg.spread == 2:
            P = [lambda x=x: a(x) for x in gl_parts()]
            step(0, S, prev, nxt, h1=P[0], hq=P[1], h2=P[2])
            step(1, S, prev, nxt, h1=P[3], hq=P[4], h4=lambda: (gl_k(ld), gl_v(ld)))
            step(2, S, prev, nxt)
        elif load and cfg.spread == 3:
            step(0, S, prev, nxt, h4=lambda: (gl_addr(), gl_k(ld), gl_v(ld)))
            step(1, S, prev, nxt)
            step(2, S, prev, nxt)
        else:
            step(0, S, prev, nxt, h1=gl_addr if load else H("01"), h2=(lambda: gl_k(ld)) if load else H("02"), h3=H("03"))
            step(1, S, prev, nxt, h1=(lambda: gl_v(ld)) if load else H("11"), h2=H("12"), h3=H("13"))
            step(2, S, prev, nxt, h1=H("21"), h2=H("22"), h3=H("23"))
        step(3, S, prev, None if last else nxt, h1=(lambda: a(f"s_waitcnt vmcnt({wait})")) if not last else H("31"), h2=H("32"), h3=H("33"))

    a("""L_attn_go:
    s_waitcnt lgkmcnt(0)""")
    first = {}
    for s_, where in zip((1, 2, 3), cfg.b11):
        first.setdefault(where, []).append(s_)

    def fetch(slots):
        for s_ in slots:
            gl_addr()
            gl_k(s_)
            gl_v(s_)
    hooks0 = {k: (lambda v=v: fetch(v)) for k, v in first.items()}
    assert cfg.b11at < min(hooks0)
    hooks0[cfg.b11at] = lambda: a("s_barrier                             ; B11")
    unit(0, load=False, first=True, hooks=hooks0)
    stamp(15)
    a(f"s_mov_b32 s66, {cfg.iters}")
    a(".p2align 3\nL_attn:")
    for s in (1, 2, 3, 0):
        unit(s, hooks={"32": lambda: a("s_sub_u32 s66, s66, 1\ns_cmp_lg_u32 s66, 0")} if s == 0 else {})
    a("s_cbranch_scc1 L_attn")
    stamp(6)
    if cfg.prio:
        a("s_setprio 2")

    def mbaddr():
        a(f"s_mul_i32 s52, {sHH}, {4*3*2304}")
        for i in range(3):
            a(f"""s_add_u32 s30, {sKQ}, {1 + i}
                  s_and_b32 s30, s30, 3
                  s_mul_i32 s30, s30, {3*2304}
                  s_add_u32 s{53+i}, s30, s52""")
        a(f"""s_mul_i32 s30, {sKQ}, {3*2304}
              s_add_u32 s52, s52, s30""")

    def send(i):
        o = OO + 16 * i
        a(f"""v_add_u32 v{t+1}, s{53+i}, v{vL16}
              v_lshl_add_u32 v{t+2}, v{vLANE}, 2, s{53+i}
              ds_write_b128 v{t+1}, v[{o}:{o+3}] offset:{L_CMB + i*2304}
              ds_write_b128 v{t+1}, v[{o+4}:{o+7}] offset:{L_CMB + i*2304 + 1024}
              ds_write_b32 v{t+2}, v{o+8} offset:{L_CMB + i*2304 + 2048}""")
    def touch():
        a(f"""s_lshl_b32 s30, {sJ}, 2
              s_add_u32 s30, s30, {sKQ}
              s_lshl_b32 s30, s30, 15
              s_lshr_b32 s31, s64, 7               ; head * 1024
              s_add_u32 s30, s30, s31
              s_add_u32 s67, s30, {WS_OF}
              s_lshr_b32 s30, s30, 16
              s_lshl_b32 s30, s30, 8
              s_lshr_b32 s31, s64, 14              ; head * 8
              s_add_u32 s30, s30, s31
              s_and_b32 s31, {sKQ}, 1
              s_lshl_b32 s31, s31, 2
              s_add_u32 s30, s30, s31
              s_add_u32 s59, s30, {WS_FLAG + FO*128}
              s_mov_b32 s50, {(1, 0x01010101, 0x11111111)[cfg.otouch]}
              s_mov_b32 s51, {(0, 0x01010101, 0x11111111)[cfg.otouch]}
              s_mov_b64 exec, s[50:51]
              buffer_load_dword v{t+4}, v{vL16}, {SWS}, s67 offen sc1
              s_mov_b64 exec, 1
              buffer_load_dword v{t+5}, v{vL16}, {SWS}, s59 offen sc1
              s_mov_b64 exec, -1""")
    unit(1, load=False, wait=5, hooks={"01": touch, "11": mbaddr})
    unit(2, load=False, wait=2)
    if cfg.prio:
        a("s_setprio 1")
    unit(3, load=False, last=True, hooks={"21": lambda: send(0), "31": lambda: (send(1), a("s_setprio 0")), "33": lambda: send(2)})
    O3 = OO + 48
    a(f"""v_add_u32 v{t+1}, s52, v{vL16}
    v_lshl_add_u32 v{t+2}, v{vLANE}, 2, s52""")
    smf(O3, slot(3)["V"][1], SB + 8)
    stamp(7)
    a(f"""v_mov_b32 v{t+3}, {L_CTR}
    s_setprio 2
    s_waitcnt lgkmcnt(0)
    s_barrier                             ; T1""")
    stamp(9)
    a(f"ds_read_b32 v27, v{t+3} offset:16")
    for i in range(3):
        a(f"ds_read_b32 v{24+i}, v{t+2} offset:{L_CMB + i*2304 + 2048}")
    for i in range(3):
        a(f"""ds_read_b128 v[{8*i}:{8*i+3}], v{t+1} offset:{L_CMB + i*2304}
              ds_read_b128 v[{8*i+4}:{8*i+7}], v{t+1} offset:{L_CMB + i*2304 + 1024}""")
    a(f"""s_waitcnt lgkmcnt(6)
    v_readfirstlane_b32 s70, v27
    v_add_f32 v24, v24, v25
    v_add_f32 v26, v26, v{O3+8}
    v_add_f32 v{O3+8}, v24, v26
    v_cmp_nle_f32 vcc, {f32(2.0**-40)}, v{O3+8}
    v_rcp_f32 v28, v{O3+8}
    s_mov_b64 s[50:51], vcc
    v_cmp_nge_f32 vcc, {f32(2.0**40)}, v{O3+8}""")
    for i in range(3):
        a(f"s_waitcnt lgkmcnt({4 - 2*i})")
        for e in range(0, 8, 2):
            a(f"v_pk_add_f32 v[{O3+e}:{O3+e+1}], v[{O3+e}:{O3+e+1}], v[{8*i+e}:{8*i+e+1}]")
    a(f"""s_or_b64 s[50:51], s[50:51], vcc
    v_maximum3_f32 v0, |v{O3}|, |v{O3+1}|, |v{O3+2}|
    v_maximum3_f32 v1, |v{O3+3}|, |v{O3+4}|, |v{O3+5}|
    v_maximum3_f32 v0, |v{O3+6}|, |v{O3+7}|, v0
    v_maximum3_f32 v0, v0, v1, v1
    v_cmp_nge_f32 vcc, {f32(2.0**120)}, v0
    s_nop 0
    s_or_b64 s[50:51], s[50:51], vcc""")
    a("s_branch L_slow" if cfg.force_slow else "s_cbranch_scc1 L_slow")
    a("L_norm:")
    for e in range(0, 8, 2):
        a(f"v_pk_mul_f32 v[{O3+e}:{O3+e+1}], v[{O3+e}:{O3+e+1}], v[28:29] op_sel_hi:[1,0]")
    for i in range(4):
        a(f"v_cvt_pk_bf16_f32 v{156+i}, v{O3+2*i}, v{O3+2*i+1}")
    a(f"""s_cmp_eq_u32 s70, 0
    s_cbranch_scc1 L_ost_far
    buffer_store_dwordx4 v[156:159], v{vL16}, {SWS}, s67 offen
L_ost_done:""")
    stamp(10)

    def oflag(tag):
        a(f"""s_cmp_eq_u32 s70, 0
              s_waitcnt vmcnt(0)
              s_mov_b64 exec, 1
              s_cbranch_scc1 L_of_far_{tag}
              buffer_store_dword v{vIDX}, v{vL16}, {SWS}, s59 offen
              s_branch L_of_done_{tag}
        L_of_far_{tag}:
              buffer_store_dword v{vIDX}, v{vL16}, {SWS}, s59 offen sc1
        L_of_done_{tag}:
              s_mov_b64 exec, -1""")
    WOF, PACC, OFR = 0, 128, 144
    u = 144
    a(f"""s_cmp_ge_u32 {sWV}, 8
    s_barrier""")
    mark("t2")
    a(f"""s_cbranch_scc1 L_tail_b
    v_lshrrev_b32 v{u}, 5, v{vLANE}
    v_bfe_u32 v{u+1}, v{vLANE}, 2, 2
    v_lshl_add_u32 v{u}, v{u}, 2, v{u+1}
    v_lshlrev_b32 v{u}, 6, v{u}           ; (4*half + r) * 64
    v_and_b32 v{u+1}, 1, v{vLANE}
    v_lshl_add_u32 v{u}, v{u+1}, 5, v{u}
    v_bfe_u32 v{u+1}, v{vLANE}, 4, 1
    v_lshl_add_u32 v{u}, v{u+1}, 4, v{u}
    v_bfe_u32 v{u+1}, v{vLANE}, 1, 1
    v_lshl_add_u32 v{u}, v{u+1}, 3, v{u}
    s_and_b32 s50, {sT}, 1
    s_lshr_b32 s51, {sT}, 1
    s_lshl_b32 s30, s50, 15
    s_add_u32 s30, s30, {L_WO}
    v_add_u32 v{u}, s30, v{u}""")
    for hd in range(32):
        read_w(WOF + 4 * hd, u, hd * 1024, second=512)
        if hd == 5:
            oflag("a")
            mark("fa")
        if hd % 6 == 5:
            a("s_waitcnt lgkmcnt(2)")
    a(f"""v_and_b32 v{u+1}, 31, v{vLANE}
    v_lshrrev_b32 v{u+2}, 5, v{vLANE}
    s_lshl_b32 s30, s50, 2
    v_lshl_add_u32 v{u+2}, v{u+2}, 1, s30
    v_and_b32 v{u+3}, 7, v{u+1}
    v_xor_b32 v{u+2}, v{u+2}, v{u+3}
    s_lshl_b32 s30, s51, 12
    s_add_u32 s30, s30, {L_SST}
    v_lshl_add_u32 v{u+1}, v{u+1}, 7, s30
    v_lshl_add_u32 v162, v{u+2}, 4, v{u+1}
    v_xor_b32 v163, 16, v162
    s_lshl_b32 s30, s51, 15
    s_add_u32 s30, s30, {L_OST}
    v_add_u32 v166, s30, v{vL16}
    s_waitcnt lgkmcnt(0)""")
    stamp(11)
    a("s_barrier                             ; T4a")
    stamp(12)
    for hd in range(3):
        a(f"ds_read_b128 v[{OFR+4*hd}:{OFR+4*hd+3}], v166 offset:{hd*1024}")
    for hd in range(32):
        a(f"s_waitcnt lgkmcnt({min(2, 31 - hd)})")
        mfma32(PACC, WOF + 4 * hd, OFR + 4 * (hd % 4), None if hd == 0 else PACC)
        if hd + 3 < 32:
            if hd + 3 in [4 * sum(cfg.stages[:g]) for g in range(1, len(cfg.stages))]:
                a("s_barrier                             ; T4b..d")
                if cfg.stamps:
                    a(f"{cfg.clk} s[{72 + (hd + 3) // 4}:{73 + (hd + 3) // 4}]")
            r = OFR + 4 * ((hd + 3) % 4)
            a(f"ds_read_b128 v[{r}:{r+3}], v166 offset:{(hd+3)*1024}")
    for i in range(8):
        a(f"v_cvt_pk_bf16_f32 v{i}, v{PACC+2*i}, v{PACC+2*i+1}")
    a(f"""ds_write_b128 v162, v[0:3]
    ds_write_b128 v163, v[4:7]
    s_waitcnt lgkmcnt(0)
    s_barrier                             ; T5""")
    if cfg.stamps:
        a("s_mov_b32 s81, s74\ns_mov_b32 s82, s76\ns_mov_b32 s83, s78")
    stamp(13)
    dump_stamps()
    a("s_endpgm")

    gl_stubs()
    a(f"""L_b_sq:
    ds_read_b32 v{t+2}, v{t} offset:4
    ds_read_b128 v[140:143], v{t+1}
    s_add_u32 s56, s56, 1
    s_waitcnt lgkmcnt(0)
    v_readfirstlane_b32 s30, v{t+2}
    s_cmp_ge_u32 s56, {cfg.spin_max}
    s_cbranch_scc1 L_b_sqd
    s_cmp_lt_u32 s30, 4
    s_cbranch_scc1 L_b_sq
    s_branch L_b_sqd""")
    a(f"""L_ost_far:
    buffer_store_dwordx4 v[156:159], v{vL16}, {SWS}, s67 offen sc1
    s_branch L_ost_done
L_tail_b:
    v_lshlrev_b32 v3, 2, v{vLANE}""")
    stage_setup()
    oflag("b")
    mark("fa")
    poll_o("b", 3, 2)
    stamp(11)
    done, sent = 0, 0
    for g, nq in enumerate(cfg.stages):
        done += nq
        while sent < min(8, done + cfg.ahead[min(g, len(cfg.ahead) - 1)]):
            stage_quad(sent, vL16)
            sent += 1
        if g == 0:
            mark("iss")
        a(f"""s_waitcnt vmcnt({2*(sent - done)})
        s_barrier                             ; T4""")
    stamp(12)
    dump_stamps()
    a("s_endpgm")

    K_, V_, Q3 = slot(0)["K"], slot(0)["V"], QQ + 12
    a(f"""L_slow:
    v_mov_b32 v{t+1}, 0xff800000
    s_mov_b32 s61, 0
L_slow1:
    s_add_u32 s65, s61, s64
    buffer_load_dwordx4 v[{K_}:{K_+3}], v{vL16}, {SWS}, s65 offen sc1
    s_add_u32 s61, s61, 2048
    s_waitcnt vmcnt(0)""")
    mfma32(SA, K_, Q3)
    for i in range(8):
        a(f"v_max3_f32 v{t+1}, v{SA+2*i}, v{SA+2*i+1}, v{t+1}")
    a(f"""s_cmp_lt_u32 s61, 0x20000
    s_cbranch_scc1 L_slow1
    v_mov_b32 v{t+2}, v{t+1}
    v_permlane32_swap_b32 v{t+1}, v{t+2}
    v_max_f32 v{t+1}, v{t+1}, v{t+2}""")
    for i in range(16):
        a(f"v_sub_f32 v{SB+i}, 0, v{t+1}\nv_mov_b32 v{O3+i}, 0")
    a(f"""s_mov_b32 s61, 0
L_slow2:
    s_add_u32 s65, s61, s64
    buffer_load_dwordx4 v[{K_}:{K_+3}], v{vL16}, {SWS}, s65 offen sc1
    s_mov_b64 exec, {sVM}
    buffer_load_dwordx4 v[{V_[0]}:{V_[0]+3}], v{vL16}, {SWS}, s65 offen offset:1024 sc1
    buffer_load_dwordx4 v[{V_[1]}:{V_[1]+3}], v{vL16}, {SWS}, s65 offen offset:1280 sc1
    s_mov_b64 exec, -1
    s_add_u32 s61, s61, 2048
    s_waitcnt vmcnt(0)""")
    mfma32(SA, K_, Q3, SB)
    for i in range(16):
        exp(SA + i)
    smf(O3, V_[0], SA)
    smf(O3, V_[1], SA + 8)
    a(f"""s_cmp_lt_u32 s61, 0x20000
    s_cbranch_scc1 L_slow2
    s_nop 11
    v_rcp_f32 v28, v{O3+8}
    s_branch L_norm""")
    return finish(a, cfg)


def finish(a, cfg):
    a("L_exit:\ns_endpgm")
    if cfg.light == 2:
        marks = ["; B7", "; B10", "; B11", "; T1", "; T4a", "; T4c", "; T4d", "; T5"]
        out = []
        for ln in a.lines:
            out.append(ln)
            if marks and "s_barrier" in ln and (ln.rstrip().endswith(marks[0]) or marks[0] + ":" in ln):
                out.append(f"    s_memrealtime s[{96 - 2*len(marks)}:{97 - 2*len(marks)}]")
                marks.pop(0)
        assert not marks
        a.lines = out
    body, log = fix_hazards(a.text(), fix=True, verbose=cfg.verbose)
    head = open("cdna_kernels/" + NAME + ".s.ref").read().split("; Override launch")[0]
    head += f"; @launch grid=(256,1,1) block=(768,1,1) lds={LDS_BYTES}\n"
    tail = f""".section .rodata,"a"
.p2align 6
.amdhsa_kernel {NAME}_kernel
  .amdhsa_next_free_vgpr 168
  .amdhsa_next_free_sgpr 102
  .amdhsa_accum_offset 168
  .amdhsa_group_segment_fixed_size 0
  .amdhsa_kernarg_size 88
  .amdhsa_user_sgpr_count 2
  .amdhsa_user_sgpr_kernarg_segment_ptr 1
  .amdhsa_system_sgpr_workgroup_id_x 1
  .amdhsa_float_denorm_mode_32 3
.end_amdhsa_kernel
"""
    return head + body + tail


if __name__ == "__main__":
    cfg = Cfg()
    out = sys.argv[1]
    for kv in sys.argv[2:]:
        k, v = kv.split("=")
        setattr(cfg, k, eval(v))
    open(out, "w").write(gen(cfg))
```

```python
import sys
import struct
from asmlib import Asm, fix_hazards

NAME = "recurrent_scan__softmax_full_mha__moe_arch_mod__prompt"

WS_KV = 0
WS_OF = 4 << 20
WS_FLAG = 6 << 20
WS_CAND = (6 << 20) + 0x10000
WS_STAT = (6 << 20) + 0x20000
WS_P1 = (6 << 20) + 0x80000
WS_P2 = (6 << 20) + 0xC0000
WS_DBG = 8 << 20
WS_SIZE = 268435456
F1, F2, F3, F4, FX, FO = 0, 16, 32, 64, 72, 96

L_WK, L_WV, L_RING = 0, 32768, 65536
L_WQ = L_RING + 3 * 16384
L_OWNKV = 0
L_Q = 32768
L_WO = 65536
L_GU = 128 * 1024
L_DN = 144 * 1024
L_CMB = 0
L_OST = 0
L_SST = 128 * 1024
L_MISC = 152 * 1024
L_WR = L_MISC
L_ZERO = L_MISC + 1088
L_ONES = L_MISC + 6784
L_CTR = L_MISC + 2112
L_STAT = L_MISC + 2304
L_SFR = L_MISC + 3328
L_KEY = L_CTR + 64
L_XS = L_MISC + 5440
L_Y = L_MISC + 6144
LDS_BYTES = 163840

CQ = 0.25 * 1.4426950408889634
LOG2E = 1.4426950408889634


def f32(x):
    return "0x%08x" % struct.unpack("<I", struct.pack("<f", x))[0]


class Cfg:
    stamps = False
    L = 2
    rot = (4, 2, 1, 1)
    rotj = 1
    rotp = 1
    rotx = 1
    wq1 = 4
    wq2 = 4
    x2 = 1
    light = 0
    bz = 0
    early = 0
    kvpf = 0
    cpf = 1
    qpf = 2
    qpfn = 3
    b11 = ('11', '21', '22')
    b11at = '02'
    gatepos = 2
    gatepos2 = 8
    t2early = 1
    prepoll = 0
    apoll = 1
    early3 = 0
    psl = (8, 16, 16)
    spread = 1
    mpoll = 1
    sigret = 1
    nomoe = 0
    npk = 5
    poke = None
    stages = (1,) * 8
    ahead = (3, 3)
    poll2 = 15
    sigsl = 0
    marks = None
    hprio = 0
    nonorm = 0
    wide = 1
    aprio = 1
    exempt = 1
    both = 0
    mspace = ''
    h1go = 15
    midpoll = 1
    minrdy = 0
    spoll = 0
    sib = 1
    stubsleep = 1
    f1sleep = 8
    otouch = 1
    outpf = 0
    wqwin = 4
    sigfirst = 0
    ntx = ''
    spin_max = 200000
    verbose = False
    force_slow = False
    prio = 1
    x1 = 0
    pxor = 0
    local = 1
    wo_win = 6
    gu_win = 4
    nocold = 0
    ntw = ''
    probe = None
    clk = 's_memtime'
    iters = 3


def gen(cfg):
    a = Asm()
    L = cfg.L
    sP, sJ, sWV, sT, sC0 = "s3", "s4", "s5", "s6", "s7"
    SX, SW, SWS, SAUX = "s[32:35]", "s[36:39]", "s[40:43]", "s[44:47]"
    sONE = "s48"

    def srd(base, ptr, size):
        a(f"""s_mov_b32 s{base}, s{ptr}
              s_mov_b32 s{base+1}, s{ptr+1}
              s_mov_b32 s{base+2}, {size}
              s_mov_b32 s{base+3}, 0x20000""")

    early_done = []

    def stamp(i):
        mark(i)
        if cfg.early and i in (2, 6, 7, 8, 9, 12, 13):
            if i in early_done or 13 in early_done:
                return
            early_done.append(i)
        if cfg.probe and cfg.probe[0] == i:
            a("s_memrealtime s[98:99]\ns_waitcnt lgkmcnt(0)")
        if cfg.stamps:
            a(f"{cfg.clk} s[78:79]\ns_waitcnt lgkmcnt(0)\ns_mov_b32 s{80+i}, s78")

    def mark(name):
        if cfg.marks and name in cfg.marks:
            i = cfg.marks.index(name)
            a(f"{cfg.clk} s[{80+2*i}:{81+2*i}]")

    def dump_stamps():
        if cfg.marks:
            a(f"""s_mul_i32 s78, s2, 12
                  s_add_u32 s78, s78, {sWV}
                  s_lshl_b32 s78, s78, 6
                  s_add_u32 s78, s78, {WS_DBG}
                  v_mov_b32 v0, 0
                  s_waitcnt lgkmcnt(0)""")
            for g in range(4):
                for i in range(4):
                    a(f"v_mov_b32 v{4+i}, {'s%d' % (80+8*g+2*i) if g < 2 else 0}")
                a(f"buffer_store_dwordx4 v[4:7], v0, {SWS}, s78 offen offset:{16*g}")
                a("s_nop 1")
            a("s_waitcnt vmcnt(0)")
        if cfg.stamps:
            a(f"""s_mul_i32 s78, s2, 12
                  s_add_u32 s78, s78, {sWV}
                  s_lshl_b32 s78, s78, 6
                  s_add_u32 s78, s78, {WS_DBG}
                  v_mov_b32 v0, 0""")
            for g in range(4):
                for i in range(4):
                    a(f"v_mov_b32 v{4+i}, s{80+4*g+i}")
                a(f"buffer_store_dwordx4 v[4:7], v0, {SWS}, s78 offen offset:{16*g}")
                a("s_nop 1")
            a("s_waitcnt vmcnt(0)")

    def signal(line_sgpr, vz, vone):
        a(f"""s_mov_b64 exec, 1
              buffer_atomic_add v{vone}, v{vz}, {SWS}, {line_sgpr} offen sc1
              s_mov_b64 exec, -1""")

    def poll(line_sgpr, target, tag, vz, vt, sleep=2, srd_=None):
        kind = 0 if srd_ else cfg.mpoll
        rd = (f"buffer_load_dword v{vt}, v{vz}, {srd_ or SWS}, {line_sgpr} offen sc1\ns_waitcnt vmcnt(0)\nv_readfirstlane_b32 s30, v{vt}",
              f"v_mov_b32 v{vt}, 0\nbuffer_atomic_add v{vt}, v{vz}, {SWS}, {line_sgpr} offen sc0 sc1\ns_waitcnt vmcnt(0)\nv_readfirstlane_b32 s30, v{vt}",
              f"s_load_dword s30, s[28:29], {line_sgpr} glc\ns_waitcnt vmcnt(0) lgkmcnt(0)")[kind]
        a(f"""s_mov_b32 s56, 0
              s_mov_b64 exec, 1
        L_poll_{tag}:
              {rd}
              s_add_u32 s56, s56, 1
              s_cmp_ge_u32 s30, {target}
              s_cbranch_scc1 L_polld_{tag}
              s_sleep {sleep}
              s_cmp_lt_u32 s56, {cfg.spin_max}
              s_cbranch_scc1 L_poll_{tag}
        L_polld_{tag}:
              s_mov_b64 exec, -1""")

    def rowmax_u32(dst, src):
        a(f"v_max_u32_dpp v{dst}, v{src}, v{src} row_ror:8 row_mask:0xf bank_mask:0xf")
        for r in (4, 2, 1):
            a(f"v_max_u32_dpp v{dst}, v{dst}, v{dst} row_ror:{r} row_mask:0xf bank_mask:0xf")

    def wavemax_u32(sdst, src, tmp, rows):
        rowmax_u32(tmp, src)
        a(f"v_readlane_b32 {sdst}, v{tmp}, 0")
        for r in range(1, rows):
            a(f"v_readlane_b32 s30, v{tmp}, {16*r}\ns_max_u32 {sdst}, {sdst}, s30")

    def tr_addr(dst, lane, t1, t2, rowshift=3):
        a(f"""v_lshrrev_b32 v{t1}, 5, v{lane}
              v_bfe_u32 v{t2}, v{lane}, 2, 2
              v_lshl_add_u32 v{t1}, v{t1}, {rowshift}, v{t2}
              v_lshlrev_b32 v{t1}, 6, v{t1}
              v_bfe_u32 v{t2}, v{lane}, 4, 1
              v_lshl_add_u32 v{t1}, v{t2}, 5, v{t1}
              v_and_b32 v{t2}, 3, v{lane}
              v_lshl_add_u32 v{dst}, v{t2}, 3, v{t1}""")

    def read_w(dst, addr, off, second=256):
        a(f"""ds_read_b64_tr_b16 v[{dst}:{dst+1}], v{addr} offset:{off}
              ds_read_b64_tr_b16 v[{dst+2}:{dst+3}], v{addr} offset:{off + second}""")

    def mfma32(d, A, B, c=None):
        cs = "0" if c is None else f"v[{c}:{c+15}]"
        a(f"v_mfma_f32_32x32x16_bf16 v[{d}:{d+15}], v[{A}:{A+3}], v[{B}:{B+3}], {cs}")

    def mfma16(d, A, B, c=None):
        cs = "0" if c is None else f"v[{c}:{c+3}]"
        a(f"v_mfma_f32_16x16x32_bf16 v[{d}:{d+3}], v[{A}:{A+3}], v[{B}:{B+3}], {cs}")

    def rnd(dst, src):
        a(f"v_cvt_pk_bf16_f32 v{dst}, 0, {src}")

    def split3(dst, src, t):
        a(f"""v_and_b32 v{t}, 0xffff0000, v{src}
              v_sub_f32 v{t+1}, v{src}, v{t}
              v_and_b32 v{t+2}, 0xffff0000, v{t+1}
              v_sub_f32 v{t+1}, v{t+1}, v{t+2}
              v_lshrrev_b32 v{t}, 16, v{t}
              v_or_b32 v{dst}, v{t}, v{t+2}
              v_lshrrev_b32 v{dst+1}, 16, v{t+1}""")

    a(f""".amdgcn_target "amdgcn-amd-amdhsa--gfx950"
.text
.globl {NAME}_kernel
.p2align 12
.p2align 8
.type {NAME}_kernel,@function
{NAME}_kernel:
    s_cmp_ge_u32 s2, 256
    s_cbranch_scc1 L_exit
    s_load_dwordx16 s[8:23], s[0:1], 0
    s_load_dwordx4 s[24:27], s[0:1], 64
    s_load_dwordx2 s[28:29], s[0:1], 80""")
    if cfg.probe:
        a("s_memrealtime s[96:97]\ns_memrealtime s[98:99]")
    if cfg.light:
        a("s_memrealtime s[96:97]")
    if cfg.marks:
        for i in range(8):
            a(f"s_mov_b32 s{80+2*i}, 0")
    if cfg.stamps:
        for i in range(16):
            a(f"s_mov_b32 s{80+i}, 0")
        a(f"{cfg.clk} s[78:79]")
    a(f"""v_lshrrev_b32 v1, 6, v0
    v_and_b32 v0, 63, v0                 ; lane
    s_lshr_b32 {sP}, s2, 4
    s_xor_b32 {sP}, {sP}, {cfg.pxor}
    v_readfirstlane_b32 {sWV}, v1
    s_and_b32 {sJ}, s2, 7
    s_lshl_b32 {sJ}, {sJ}, 1
    s_bfe_u32 s30, s2, 0x10003
    s_or_b32 {sJ}, {sJ}, s30
    s_mul_i32 {sC0}, s30, {cfg.rot[0]}
    s_and_b32 s30, {sP}, 1
    s_mul_i32 s30, s30, {cfg.rot[1]}
    s_add_u32 {sC0}, {sC0}, s30
    s_lshr_b32 s30, {sP}, 1
    s_mul_i32 s30, s30, {cfg.rot[2]}
    s_add_u32 {sC0}, {sC0}, s30
    s_and_b32 s30, s2, {cfg.rot[3]}
    s_add_u32 {sC0}, {sC0}, s30
    s_and_b32 {sC0}, {sC0}, 7
    s_and_b32 {sT}, {sWV}, 3
    s_mov_b32 {sONE}, 0x3f803f80
    s_cmp_lt_u32 {sWV}, 4
    s_cbranch_scc1 L_helper""")
    if cfg.cpf:
        a(f"""s_cmp_lg_u32 {sWV}, 8
        s_cbranch_scc1 L_nocpf
        s_getpc_b64 s[50:51]
    L_pc:
        s_lshr_b32 s30, s2, 3
        s_lshl_b32 s30, s30, 10
        v_lshl_add_u32 v1, v0, 7, s30
        v_min_u32 v1, L_exit-L_pc, v1
        v_mov_b32 v7, s51
        v_add_co_u32 v6, vcc, s50, v1
        v_addc_co_u32 v7, vcc, 0, v7, vcc
        s_mov_b64 exec, 0xff
        global_load_dword v136, v[6:7], off
        s_mov_b64 exec, -1
    L_nocpf:""")
    a(f"""{'s_barrier                             ; Bz' if cfg.bz else ''}
    s_branch L_compute
L_helper:""")

    hZ, hONE, hT = 17, 18, 19
    a(f"""v_lshrrev_b32 v1, 2, v0
    s_lshl_b32 s30, {sT}, 4
    v_add_u32 v1, s30, v1
    v_mul_u32_u24 v1, 3072, v1
    v_and_b32 v2, 3, v0
    v_lshl_add_u32 v1, v2, 4, v1
    s_lshl_b32 s30, {sP}, 6
    v_add_u32 v14, s30, v1
    v_lshrrev_b32 v1, 3, v0
    v_lshrrev_b32 v2, 4, v0
    v_and_b32 v3, 7, v0
    v_xor_b32 v4, v3, v2
    v_xor_b32 v5, 4, v4
    s_lshl_b32 s30, {sJ}, 17
    s_lshl_b32 s31, {sT}, 15
    s_add_u32 s30, s30, s31
    v_lshl_add_u32 v6, v1, 10, s30
    v_lshl_add_u32 v10, v4, 4, v6
    v_lshl_add_u32 v11, v5, 4, v6
    v_add_u32 v12, {2*7168}, v10
    v_add_u32 v13, {3*7168}, v11
    v_add_u32 v11, 7168, v11
    s_lshl_b32 s57, {sT}, 12
    s_lshl_b32 s49, {sT}, 10
    s_waitcnt lgkmcnt(0)""")
    if cfg.stamps:
        a("s_mov_b32 s80, s78")
    if cfg.early:
        stamp(2)
    srd(36, 10, 1572864)
    srd(32, 8, 2097152)
    a(f"""s_sub_u32 s73, 384, s10
    s_bfe_u32 s73, s73, 0x30007
    s_lshr_b32 s74, {sP}, 1
    v_xor_b32 v15, 64, v14""")

    def kc(n, dst):
        a(f"s_add_u32 {dst}, {sC0}, {n}\ns_and_b32 {dst}, {dst}, 7")

    def issue_w(n):
        kc(n, "s50")
        a(f"""s_mul_i32 s51, s50, {64*3072}
              s_add_u32 m0, s49, {L_WK + n*4096}
              s_add_u32 s52, s51, 1024
              buffer_load_dwordx4 v14, {SW}, s52 offen lds
              s_add_u32 m0, s49, {L_WV + n*4096}
              s_add_u32 s53, s51, 2048
              buffer_load_dwordx4 v14, {SW}, s53 offen lds""")
        if n < cfg.both:
            a(f"""s_cmp_lg_u32 s73, s74
                  s_cbranch_scc1 L_nb{n}
                  buffer_load_dword v16, v15, {SW}, s52 offen
                  buffer_load_dword v16, v15, {SW}, s53 offen
            L_nb{n}:""")

    def issue(item):
        if item < 8:
            n = item
            kc(n, "s50")
            a(f"""s_add_u32 m0, s57, {L_RING + (n % 5)*16384}
                  s_lshl_b32 s50, s50, 7""")
            for q in range(4):
                a(f"buffer_load_dwordx4 v{10+q}, {SX}, s50 offen offset:{1024*q} {cfg.ntx} lds")
            if n < 7:
                issue_w(n + 1)
        else:
            for n in {8: range(cfg.wq1), 9: range(cfg.wq1, cfg.wq1 + cfg.wq2), 10: range(cfg.wq1 + cfg.wq2, 8)}[item]:
                kc(n, "s50")
                if item == 10:
                    a(f"s_waitcnt vmcnt({cfg.wqwin - 1})")
                a(f"""s_add_u32 m0, s49, {L_WQ + n*4096}
                      s_mul_i32 s51, s50, {64*3072}
                      buffer_load_dwordx4 v14, {SW}, s51 offen lds""")
                if n < cfg.both:
                    a(f"""s_cmp_lg_u32 s73, s74
                          s_cbranch_scc1 L_nq{n}
                          buffer_load_dword v16, v15, {SW}, s51 offen
                    L_nq{n}:""")

    cnt = lambda item: 6 if item < 7 else {7: 4, 8: cfg.wq1, 9: cfg.wq2}[item]
    a(f"""s_cmp_lg_u32 {sT}, 0
    s_cbranch_scc1 L_h_nowr""")
    srd(44, 16, 1024)
    a(f"""v_add_u32 v1, {sC0}, v1
    v_and_b32 v1, 7, v1
    v_lshlrev_b32 v1, 7, v1
    s_mov_b32 m0, {L_WR}
    v_lshl_add_u32 v1, v3, 4, v1
    buffer_load_dwordx4 v1, {SAUX}, 0 offen lds
L_h_nowr:""")
    issue_w(0)
    if cfg.early:
        stamp(6)
        if cfg.early == 2:
            a("s_waitcnt vmcnt(0)")
            stamp(7)
    for it in range(L):
        issue(it)
        if it == 0 and cfg.bz:
            a("s_barrier                             ; Bz")
        if cfg.early and it == 0:
            stamp(8)
    if cfg.early:
        stamp(9)
    if cfg.kvpf:
        a(f"""s_lshr_b32 s30, s2, 3
        s_lshl_b32 s30, s30, 2
        s_add_u32 s30, s30, {sT}
        s_mul_i32 s30, s30, {4*3072}
        s_sub_u32 s31, 384, s10
        s_and_b32 s31, s31, 0x380
        s_add_u32 s30, s30, s31
        s_add_u32 s54, s10, s30
        s_addc_u32 s55, s11, 0""")
        for i in range(16):
            a(f"s_load_dword s76, s[54:55], {1024 + 1024*(i >> 3) + 3072*((i & 7) >> 1) + 64*(i & 1)}")
    srd(40, 28, WS_SIZE)
    hXP, hXN, hG = 136, 144, 152
    hOA = 20
    hCT, hTR, hWO, hGU, hDN, hL4, hL8, hL16, hFR, hM4, hM16, hM2, hH4 = 6, 30, 33, 34, 35, 36, 37, 38, 39, 40, 41, 42, 43
    a(f"""v_mov_b32 v{hZ}, 0
    v_mov_b32 v{hONE}, 1
    v_mov_b32 v{hCT}, {L_CTR}
    s_lshr_b32 s58, {sP}, 3
    s_and_b32 s59, {sP}, 7
    s_lshl_b32 s60, {sJ}, 1
    s_add_u32 s60, s60, s58
    v_lshrrev_b32 v1, 3, v0
    s_lshl_b32 s30, {sT}, 4
    v_add_u32 v22, s30, v1
    s_lshl_b32 s30, s60, 16
    s_lshl_b32 s31, s59, 7
    s_add_u32 s30, s30, s31
    v_lshl_add_u32 v1, v22, 10, s30
    v_lshl_add_u32 v{hOA}, v3, 4, v1
    v_add_u32 v{hOA+1}, 8192, v{hOA}
    s_lshl_b32 s30, s58, 6
    v_add_lshl_u32 v1, v22, s30, 3
    v_add_u32 v23, {L_STAT}, v1""")
    tr_addr(hTR, 0, 1, 2)
    a(f"""v_add_u32 v{hTR}, {L_GU}, v{hTR}
    v_lshrrev_b32 v31, 2, v0
    v_and_b32 v1, 3, v0
    v_lshlrev_b32 v32, 4, v1             ; piece
    v_lshl_add_u32 v{hDN}, v31, 10, v32
    v_add_u32 v{hWO}, s31, v{hDN}
    v_mul_u32_u24 v1, 3584, v31
    v_add_u32 v{hGU}, v1, v32
    v_lshlrev_b32 v{hL4}, 2, v0
    v_lshlrev_b32 v{hL8}, 3, v0
    v_lshlrev_b32 v{hL16}, 4, v0
    v_add_u32 v{hM4}, {L_MISC}, v{hL4}
    v_add_u32 v{hM16}, {L_MISC}, v{hL16}
    v_lshlrev_b32 v1, 1, v0
    v_add_u32 v{hM2}, {L_MISC}, v1
    v_and_b32 v{hH4}, 124, v{hL4}
    v_and_b32 v1, 1, v0
    v_lshrrev_b32 v2, 5, v0
    v_lshlrev_b32 v2, 4, v2
    v_lshl_add_u32 v1, v1, 7, v2
    v_add_u32 v{hFR}, {L_XS}, v1
    s_lshl_b32 s75, {sP}, 4
    s_and_b32 s30, s2, 15
    s_or_b32 s75, s75, s30
    s_sub_u32 s30, s75, 32
    s_cmp_gt_u32 s74, s73
    s_cselect_b32 s75, s30, s75
    s_cmp_eq_u32 s74, s73
    s_cselect_b32 s75, 255, s75
    s_lshr_b32 s61, s75, 3
    s_and_b32 s62, s75, 7
    s_waitcnt vmcnt({sum(cnt(i) for i in range(L))})""")
    if cfg.early:
        stamp(12)
    a("s_barrier")
    if cfg.early:
        stamp(13)
    issued = L
    for n in range(8):
        pend = sum(cnt(i) for i in range(n + 1, issued))
        a(f"s_waitcnt vmcnt({pend})")
        a(f"s_barrier                             ; B{n}")
        if n in (0, 1, 7):
            stamp({0: 1, 1: 10, 3: 2, 7: 3}[n])
        if n == cfg.qpfn and cfg.qpf & 2:
            a(f"""s_lshr_b32 s30, s2, 3
            s_lshl_b32 s30, s30, 2
            s_add_u32 s30, s30, {sT}
            s_mul_i32 s30, s30, {4*3072}
            s_sub_u32 s31, 384, s10
            s_and_b32 s31, s31, 0x380
            s_add_u32 s30, s30, s31
            s_add_u32 s54, s10, s30
            s_addc_u32 s55, s11, 0""")
            for i in range(8):
                a(f"s_load_dword s76, s[54:55], {3072*(i >> 1) + 64*(i & 1)}")
        if n == 1 and cfg.qpf & 1:
            a(f"""s_lshl_b32 s30, s2, 1
            s_lshr_b32 s31, {sT}, 1
            s_add_u32 s30, s30, s31
            s_mul_i32 s30, s30, 3072
            s_and_b32 s31, {sT}, 1
            s_lshl_b32 s31, s31, 9
            s_add_u32 s30, s30, s31
            s_add_u32 s54, s10, s30
            s_addc_u32 s55, s11, 0""")
            for i in range(8):
                a(f"s_load_dword s76, s[54:55], {64*i}")
        if issued < 8:
            issue(issued)
            issued += 1
            if issued == 8:
                issue(8)
                issued += 1
        elif issued == 9 and n == 6:
            issue(9)
            issued += 1
    issue(10)
    a("s_waitcnt vmcnt(0)")
    stamp(11)
    a("s_barrier")
    stamp(4)
    XU, XN = 48, 64
    P8 = lambda b: [(b + 2 * i, i) for i in range(8)]

    def normrows():
        for r, i in P8(XU):
            a(f"v_lshlrev_b32 v{r}, 16, v{hXP+i}\nv_and_b32 v{r+1}, 0xffff0000, v{hXP+i}")
        for r, i in P8(XN):
            m = 24 if i < 4 else 26
            a(f"v_pk_add_f32 v[{r}:{r+1}], v[{XU+2*i}:{XU+2*i+1}], v[{m}:{m+1}] op_sel_hi:[1,0] neg_lo:[0,1] neg_hi:[0,1]")
        for e in range(16):
            rnd(XN + e, f"v{XN+e}")
        for r, i in P8(XN):
            m = 24 if i < 4 else 26
            a(f"v_pk_mul_f32 v[{r}:{r+1}], v[{m}:{m+1}], v[{r}:{r+1}] op_sel:[1,0]")
        for e in range(16):
            rnd(XN + e, f"v{XN+e}")

    def gate():
        a(f"s_mov_b32 s50, {f32(-LOG2E)}")
        for r, i in P8(hG):
            a(f"v_pk_mul_f32 v[{r}:{r+1}], v[{XN+2*i}:{XN+2*i+1}], s[50:51] op_sel_hi:[1,0]")
        for e in range(16):
            a(f"v_exp_f32 v{hG+e}, v{hG+e}")
        for r, i in P8(hG):
            a(f"v_pk_add_f32 v[{r}:{r+1}], v[{r}:{r+1}], 1.0 op_sel_hi:[1,0]")
        for e in range(16):
            a(f"v_rcp_f32 v{hG+e}, v{hG+e}")
        for r, i in P8(hG):
            a(f"v_pk_mul_f32 v[{r}:{r+1}], v[{r}:{r+1}], v[{XN+2*i}:{XN+2*i+1}]")

    def gate_round():
        for e in range(16):
            rnd(hG + e, f"v{hG+e}")

    srd(36, 12, 0 if cfg.nocold & 2 else 524288)
    def ldswait(tag, off, cond, sleep):
        a(f"""s_mov_b32 s56, 0
        L_lw_{tag}:
              {f's_sleep {sleep}' if sleep else ''}
              ds_read_b32 v{hT}, v{hCT} offset:{off}
              s_add_u32 s56, s56, 1
              s_waitcnt lgkmcnt(0)
              v_readfirstlane_b32 s30, v{hT}
              s_cmp_ge_u32 s56, {cfg.spin_max * 4}
              s_cbranch_scc1 L_lwd_{tag}
              {cond}
              s_cbranch_scc1 L_lw_{tag}
        L_lwd_{tag}:""")

    def mailbox(tag):
        ldswait(tag, 8, "s_cmp_eq_u32 s30, 0", 16)

    def allkv(tag):
        ldswait(tag, 20, f"s_bcnt1_i32_b32 s30, s30\ns_cmp_lt_u32 s30, {cfg.h1go}", 4)

    def halves(lo, hi):
        a(f"""s_mov_b32 exec_hi, 0
              {lo}
              s_not_b64 exec, exec
              {hi}
              s_mov_b64 exec, -1""")

    def f1_once(scalar=False, mid=None, add='0'):
        a("s_mov_b64 exec, 1")
        if scalar:
            a("s_load_dword s50, s[28:29], s57 glc\ns_waitcnt lgkmcnt(0)")
        else:
            a(f"v_mov_b32 v{hT}, {add}\nbuffer_atomic_add v{hT}, v{hZ}, {SWS}, s57 offen sc0 sc1" if cfg.apoll else
              f"buffer_load_dword v{hT}, v{hZ}, {SWS}, s57 offen sc1")
            a(f"""{mid or ''}
              s_waitcnt vmcnt(0)
              v_readfirstlane_b32 s50, v{hT}""")
        a(f"""s_andn2_b32 s30, s50, s55
              s_bcnt1_i32_b32 s31, s30
              s_cmp_ge_u32 s31, {cfg.minrdy}
              s_cselect_b32 s30, s30, 0
              s_mul_i32 s30, s30, 0x10001
              s_lshr_b32 s30, s30, s54
              s_and_b32 s30, s30, 0xffff
              v_mov_b32 v{hT}, s30
              ds_write_b32 v6, v{hT} offset:20
              s_mov_b64 exec, -1""")

    a(f"""s_setprio 3
    s_lshl_b32 s57, {sP}, 7
    s_add_u32 s57, s57, {WS_FLAG + F1*128}
    s_or_b32 s54, {sJ}, {cfg.sib}
    s_add_u32 s54, s54, 1
    s_and_b32 s54, s54, 15
    s_lshl_b32 s55, 1, {sJ}""")
    a(f"""s_cmp_lg_u32 {sT}, 0
    s_cbranch_scc1 L_h_b10""")
    ldswait("sig", 0, "s_cmp_lt_u32 s30, 4", cfg.sigsl)
    stamp(12)
    f1_once(mid="s_barrier                             ; B10", add="s55")
    f1_once(mid="s_barrier                             ; B11")
    a("""s_mov_b32 s56, 0
    s_branch L_f1c
L_h_b10:
    s_barrier""")
    stamp(5)
    a(f"""s_barrier
    s_cmp_eq_u32 {sT}, 1
    s_cbranch_scc1 L_h1
    s_cmp_eq_u32 {sT}, 2
    s_cbranch_scc1 L_h2
    s_cmp_eq_u32 {sT}, 3
    s_cbranch_scc1 L_h3""")

    a("s_mov_b32 s56, 0\nL_f1:")
    f1_once(cfg.spoll)
    a(f"""L_f1c:
    s_add_u32 s56, s56, 1
    s_cmpk_eq_u32 s50, 0xffff
    s_cbranch_scc1 L_f1d
    s_sleep {cfg.f1sleep}
    s_cmp_lt_u32 s56, {cfg.spin_max}
    s_cbranch_scc1 L_f1
L_f1d:""")
    stamp(13)
    a(f"""s_getreg_b32 s50, hwreg(HW_REG_XCC_ID, 0, 4)
    s_or_b32 s50, s50, 0x100
    v_mov_b32 v8, s50
    s_lshl_b32 s63, {sJ}, 7
    s_add_u32 s63, s63, {WS_FLAG + FX*128}
    s_lshl_b32 s51, {sP}, 2
    s_add_u32 s51, s51, s63
    s_mov_b64 exec, 1
    buffer_store_dword v8, v{hZ}, {SWS}, s51 offen sc1
    s_mov_b64 exec, -1""")
    if cfg.nomoe & 1:
        a("s_sleep 64")
    else:
        mailbox("h0")
    a(f"""s_mov_b32 s54, 0
L_wo:
    s_add_u32 s50, s54, s60
    s_and_b32 s50, s50, 31
    s_lshl_b32 s51, s50, 10
    s_lshl_b32 s50, s50, 14
    s_add_u32 m0, s51, {L_WO}
    s_add_u32 s52, s50, 64
    buffer_load_dwordx4 v33, {SW}, s50 offen lds
    s_add_u32 m0, s51, {L_WO + 32768}
    s_add_u32 s54, s54, 1
    buffer_load_dwordx4 v33, {SW}, s52 offen lds
    s_waitcnt vmcnt({cfg.wo_win})
    s_cmp_lt_u32 s54, 32
    s_cbranch_scc1 L_wo
    s_mov_b32 s56, 0
    s_mov_b64 exec, 0xffff
L_xid:
    buffer_load_dword v10, v{hL4}, {SWS}, s63 offen sc1
    s_add_u32 s56, s56, 1
    s_waitcnt vmcnt(0)
    v_cmp_eq_u32 vcc, 0, v10
    s_cmp_ge_u32 s56, {cfg.spin_max}
    s_cbranch_scc1 L_xidd
    s_cbranch_vccnz L_xid
L_xidd:
    v_cmp_ne_u32 vcc, v8, v10
    s_mov_b64 exec, -1
    s_cmp_eq_u64 vcc, 0
    s_cselect_b32 s50, {cfg.local}, 0
    v_mov_b32 v10, s50
    ds_write_b32 v6, v10 offset:16""")
    stamp(6)
    a("s_branch L_h_tail")

    XSF, WFR, AC0, AC1 = 48, 64, 72, 88

    def two_row_mfma(acc, s, block):
        read_w(WFR, hTR, block * 1024)
        a("s_waitcnt lgkmcnt(0)")
        mfma32(acc, XSF + 4 * s, WFR, None if s == 0 else acc)

    a(f"""L_h1:
    {'s_branch L_h_tail' if cfg.nomoe & 1 else ''}
    s_cmpk_lt_u32 s75, 0xe0
    s_cbranch_scc0 L_h_tail""")
    if cfg.early3 == 1:
        allkv("h1a")
    else:
        ldswait("h1a", 28, "s_cmp_eq_u32 s30, 0", 4)
    a(f"""s_mul_i32 s50, s62, {64*3584}
    s_lshl_b32 s51, s61, 7
    s_add_u32 s50, s50, s51""")
    for mtx in range(2):
        srd(44, 18 + 2 * mtx, 1835008)
        for s in range(4):
            for ct in range(2):
                a(f"""s_mov_b32 m0, {L_GU + ((2*mtx + ct)*4 + s)*1024}
                      s_add_u32 s51, s50, {s*16*3584 + ct*64}
                      {'s_nop 0' if cfg.nocold & 1 else f'buffer_load_dwordx4 v{hGU}, {SAUX}, s51 offen {cfg.ntw} lds'}""")
            a(f"s_waitcnt vmcnt({cfg.gu_win})")
    a(f"""s_lshl_b32 s50, s75, 10
    s_add_u32 s50, s50, {WS_P1}
    s_lshl_b32 s65, s61, 7
    s_add_u32 s65, s65, {WS_FLAG + F3*128}
    s_waitcnt vmcnt(0)""")
    ldswait("h1b", 24, "s_cmp_eq_u32 s30, 0", 4)
    stamp(7)
    for s in range(4):
        a(f"ds_read_b128 v[{XSF+4*s}:{XSF+4*s+3}], v{hFR} offset:{32*s}")
    for mtx in range(2):
        for s in range(4):
            two_row_mfma(AC0 + 32 * mtx, s, (2 * mtx) * 4 + s)
            two_row_mfma(AC1 + 32 * mtx, s, (2 * mtx + 1) * 4 + s)
    st2 = lambda r, o: f"buffer_store_dwordx2 v[{r}:{r+1}], v{hL16}, {SWS}, s50 offen offset:{o} sc1"
    halves(st2(AC0, 0) + "\n" + st2(AC0 + 32, 8), st2(AC1, 0) + "\n" + st2(AC1 + 32, 8))
    a("s_waitcnt vmcnt(0)")
    signal("s65", hZ, hONE)
    stamp(8)
    a("s_branch L_h_tail")

    a(f"""L_h2:
    {'s_branch L_h_tail' if cfg.nomoe & 3 else ''}
    s_cmpk_lt_u32 s75, 0xe0
    s_cbranch_scc0 L_h_tail""")
    mailbox("h2")
    a(f"""s_lshl_b32 s50, s61, 16
    s_lshl_b32 s51, s62, 7
    s_add_u32 s50, s50, s51""")
    srd(44, 22, 1835008)
    for s in range(4):
        for ct in range(2):
            a(f"""s_mov_b32 m0, {L_DN + (ct*4 + s)*1024}
                  s_add_u32 s51, s50, {s*16384 + ct*64}
                  {'s_nop 0' if cfg.nocold & 1 else f'buffer_load_dwordx4 v{hDN}, {SAUX}, s51 offen {cfg.ntw} lds'}""")
    a(f"""s_lshl_b32 s65, s61, 7
    s_add_u32 s65, s65, {WS_FLAG + F3*128}""")
    poll("s65", 8, "f3", hZ, hT, sleep=cfg.psl[1])
    stamp(6)
    a(f"""s_lshl_b32 s50, s61, 13
    s_add_u32 s50, s50, {WS_P1}
    s_add_u32 s51, s50, 4096""")
    for k in range(8):
        a(f"buffer_load_dwordx4 v[{72+4*k}:{75+4*k}], v{hL16}, {SWS}, {'s50' if k < 4 else 's51'} offen offset:{1024*(k & 3)} sc1")
    a("s_waitcnt vmcnt(0)")
    for k in range(1, 8):
        a(f"""v_pk_add_f32 v[72:73], v[72:73], v[{72+4*k}:{73+4*k}]
              v_pk_add_f32 v[74:75], v[74:75], v[{74+4*k}:{75+4*k}]""")
    for i in range(4):
        rnd(72 + i, f"v{72+i}")
    a(f"""s_mov_b32 s50, {f32(-LOG2E)}
    v_pk_mul_f32 v[76:77], v[72:73], s[50:51] op_sel_hi:[1,0]
    v_exp_f32 v76, v76
    v_exp_f32 v77, v77
    v_pk_add_f32 v[76:77], v[76:77], 1.0 op_sel_hi:[1,0]
    v_rcp_f32 v76, v76
    v_rcp_f32 v77, v77
    v_pk_mul_f32 v[76:77], v[76:77], v[72:73]
    v_cvt_pk_bf16_f32 v76, 0, v76
    v_cvt_pk_bf16_f32 v77, 0, v77
    v_pk_mul_f32 v[76:77], v[76:77], v[74:75]
    v_cvt_pk_bf16_f32 v76, v76, v77
    ds_write_b16 v{hM2}, v76 offset:{L_XS + 256 - L_MISC}
    ds_write_b16_d16_hi v{hM2}, v76 offset:{L_XS + 384 - L_MISC}""")
    for s in range(4):
        a(f"ds_read_b128 v[{XSF+4*s}:{XSF+4*s+3}], v{hFR} offset:{256 + 32*s}")
    for s in range(4):
        two_row_mfma(AC0 + 32, s, 16 + s)
        two_row_mfma(AC1 + 32, s, 20 + s)
    a(f"""s_lshl_b32 s50, s61, 11
    s_lshl_b32 s51, s62, 8
    s_add_u32 s50, s50, s51
    s_add_u32 s50, s50, {WS_P2}
    s_add_u32 s51, s50, {28*2048}
    s_lshl_b32 s65, s62, 7
    s_add_u32 s65, s65, {WS_FLAG + F4*128}""")
    st1 = lambda r: f"buffer_store_dword v{r}, v{hL4}, {SWS}, s50 offen sc1\nbuffer_store_dword v{r+1}, v{hL4}, {SWS}, s51 offen sc1"
    halves(st1(AC0 + 32), st1(AC1 + 32))
    a("s_waitcnt vmcnt(0)")
    signal("s65", hZ, hONE)
    stamp(8)
    a("s_branch L_h_tail")

    def key_tok(dst, key):
        a(f"s_and_b32 {dst}, {key}, 0x7ff\ns_sub_u32 {dst}, 0x7ff, {dst}")

    a("L_h3:")
    if cfg.nomoe & 1:
        a("s_branch L_h_tail")
    a(f"""ds_read_b128 v[48:51], v{hM16} offset:{L_STAT - L_MISC}
    ds_read_b32 v52, v{hM4} offset:{L_KEY - L_MISC}
    s_lshl_b32 s50, {sP}, 14
    s_add_u32 s63, s50, {WS_STAT}
    s_lshl_b32 s50, {sJ}, 10
    s_add_u32 s50, s50, s63
    s_lshl_b32 s51, {sP}, 9
    s_add_u32 s64, s51, {WS_CAND}
    s_lshl_b32 s51, {sJ}, 5
    s_add_u32 s51, s51, s64
    s_lshl_b32 s65, {sP}, 7
    s_add_u32 s65, s65, {WS_FLAG + F2*128}""")
    if cfg.early3:
        a("s_waitcnt lgkmcnt(0)")
    else:
        allkv("h3")
    a(f"""buffer_store_dwordx4 v[48:51], v{hL16}, {SWS}, s50 offen sc1
    s_mov_b64 exec, 0xff
    buffer_store_dword v52, v{hL4}, {SWS}, s51 offen sc1
    s_mov_b64 exec, -1
    s_waitcnt vmcnt(0)""")
    signal("s65", hZ, hONE)
    if cfg.early3 == 0:
        a(f"ds_write_b32 v{hCT}, v{hONE} offset:28")
    if cfg.early3 == 1:
        allkv("h3")
    poll("s65", 16, "f2", hZ, hT, sleep=cfg.psl[0])
    if cfg.early3 == 2:
        a(f"ds_write_b32 v{hCT}, v{hONE} offset:28")
    stamp(6)
    a(f"""buffer_load_dwordx2 v[48:49], v{hL8}, {SWS}, s64 offen sc1
    s_waitcnt vmcnt(0)
    ds_max_u32 v{hCT}, v48 offset:32
    ds_read_b32 v50, v{hCT} offset:32
    s_waitcnt lgkmcnt(0)
    v_cmp_eq_u32 vcc, v50, v48
    v_readfirstlane_b32 s66, v50
    v_cndmask_b32 v48, v48, v49, vcc
    ds_max_u32 v{hCT}, v48 offset:36
    ds_read_b32 v51, v{hCT} offset:36
    s_waitcnt lgkmcnt(0)
    ds_write_b64 v{hCT}, v[50:51] offset:8      ; mailbox
    v_readfirstlane_b32 s67, v51
    s_cmpk_lt_u32 s75, 0xe0
    s_cbranch_scc0 L_h3_y""")
    key_tok("s50", "s66")
    key_tok("s51", "s67")
    a(f"""s_lshl_b32 s30, s62, 7
    s_lshl_b32 s52, s50, 10
    s_add_u32 s52, s52, s30
    s_lshl_b32 s53, s51, 10
    s_add_u32 s53, s53, s30
    s_lshl_b32 s50, s50, 3
    s_add_u32 s50, s50, s63
    s_lshl_b32 s51, s51, 3
    s_add_u32 s51, s51, s63""")
    ld2 = lambda ss, sx: f"buffer_load_dwordx2 v[48:49], v{hZ}, {SWS}, {ss} offen sc1\nbuffer_load_dword v50, v{hH4}, {SX}, {sx} offen"
    halves(ld2("s50", "s52"), ld2("s51", "s53"))
    a(f"""s_waitcnt vmcnt(0)
    v_lshlrev_b32 v52, 16, v50
    v_and_b32 v53, 0xffff0000, v50
    v_pk_add_f32 v[52:53], v[52:53], v[48:49] op_sel_hi:[1,0] neg_lo:[0,1] neg_hi:[0,1]
    v_cvt_pk_bf16_f32 v52, 0, v52
    v_cvt_pk_bf16_f32 v53, 0, v53
    v_mul_f32 v52, v52, v49
    v_mul_f32 v53, v53, v49
    v_cvt_pk_bf16_f32 v52, v52, v53
    ds_write_b32 v{hM4}, v52 offset:{L_XS - L_MISC}
    ds_write_b32 v{hCT}, v{hONE} offset:24
L_h3_y:""")
    stamp(7)
    if cfg.nomoe & 2:
        a("s_branch L_h_tail")
    a(f"""s_lshl_b32 s65, s59, 7
    s_add_u32 s65, s65, {WS_FLAG + F4*128}
    s_mov_b32 s68, 0
L_h3_sel:""")
    key_tok("s50", "s66")
    a(f"""s_lshr_b32 s50, s50, 6
    s_cmp_lg_u32 s50, s60
    s_cbranch_scc1 L_h3_next""")
    poll("s65", 28, "f4", hZ, hT, sleep=cfg.psl[2])
    a(f"""s_mul_i32 s50, s68, {28*2048}
    s_lshl_b32 s51, s59, 8
    s_add_u32 s50, s50, s51
    s_add_u32 s50, s50, {WS_P2}""")
    for k in range(28):
        a(f"buffer_load_dword v{48+k}, v{hL4}, {SWS}, s50 offen offset:{2048*(k & 1)} sc1")
        if k & 1:
            a("s_add_u32 s50, s50, 4096")
    a(f"""s_and_b32 s51, s66, 0xffff0000
    s_xor_b32 s52, s51, 0x80000000
    s_xor_b32 s53, s51, 0xffff0000
    s_bitcmp1_b32 s51, 31
    s_cselect_b32 s51, s52, s53
    v_mov_b32 v4, {f32(-LOG2E)}
    v_mul_f32 v4, s51, v4
    v_exp_f32 v4, v4
    s_lshl_b32 s51, s68, 8
    v_add_u32 v7, s51, v{hM4}
    v_add_f32 v4, 1.0, v4
    v_rcp_f32 v4, v4
    s_waitcnt vmcnt(0)
    v_cvt_pk_bf16_f32 v4, 0, v4""")
    for k in range(1, 14):
        a(f"v_pk_add_f32 v[48:49], v[48:49], v[{48+2*k}:{49+2*k}]")
    a(f"""v_add_f32 v48, v48, v49
    v_cvt_pk_bf16_f32 v48, 0, v48
    v_mul_f32 v48, v48, v4
    v_cvt_pk_bf16_f32 v48, 0, v48
    ds_write_b32 v7, v48 offset:{L_Y - L_MISC}
L_h3_next:
    s_mov_b32 s66, s67
    s_add_u32 s68, s68, 1
    s_cmp_lt_u32 s68, 2
    s_cbranch_scc1 L_h3_sel""")
    stamp(8)

    tail_marks = lambda: None
    a(f"""L_h_tail:
    buffer_load_dwordx4 v[{hXP}:{hXP+3}], v{hOA}, {SX}, 0 offen
    buffer_load_dwordx4 v[{hXP+4}:{hXP+7}], v{hOA+1}, {SX}, 0 offen
    ds_read_b64 v[24:25], v23
    ds_read_b64 v[26:27], v23 offset:64""")
    srd(44, 24, 2097152)
    if cfg.outpf:
        a(f"""s_mov_b32 s50, {(0, 1, 0x01010101)[cfg.outpf]}
        s_mov_b32 s51, {(0, 0, 0x01010101)[cfg.outpf]}
        s_mov_b64 exec, s[50:51]
        buffer_load_dword v8, v{hOA}, {SAUX}, 0 offen sc1
        buffer_load_dword v8, v{hOA+1}, {SAUX}, 0 offen sc1
        s_mov_b64 exec, -1""")
    a(f"""s_setprio 0
    s_waitcnt vmcnt(0) lgkmcnt(0)
    s_barrier                             ; T1""")
    stamp(9)
    a("""ds_read_b64 v[4:5], v6 offset:8
    s_barrier                             ; T2""")
    normrows()
    a(f"""

    v_and_b32 v1, 7, v0
    v_lshlrev_b32 v7, 5, v1
    v_add_u32 v7, {L_Y}, v7
    s_mov_b32 s68, 0
    s_waitcnt lgkmcnt(0)
    v_readfirstlane_b32 s66, v4
    v_readfirstlane_b32 s67, v5
L_ht_sel:""")
    key_tok("s50", "s66")
    a(f"""s_lshr_b32 s51, s50, 6
    s_cmp_lg_u32 s51, s60
    s_cbranch_scc1 L_ht_next
    s_and_b32 s50, s50, 63
    ds_read_b128 v[8:11], v7
    ds_read_b128 v[12:15], v7 offset:16
    s_sub_u32 s51, s50, 8
    v_cmp_eq_u32 s[52:53], s50, v22
    v_cmp_eq_u32 s[54:55], s51, v22
    s_waitcnt lgkmcnt(0)""")
    for q in range(2):
        a(f"s_mov_b64 exec, s[{52+2*q}:{53+2*q}]")
        for e in range(8):
            a(f"v_add_f32 v{XN+8*q+e}, v{XN+8*q+e}, v{8+e}")
        for e in range(8):
            rnd(XN + 8 * q + e, f"v{XN+8*q+e}")
    a("s_mov_b64 exec, -1")
    a(f"""L_ht_next:
    v_add_u32 v7, 256, v7
    s_mov_b32 s66, s67
    s_add_u32 s68, s68, 1
    s_cmp_lt_u32 s68, 2
    s_cbranch_scc1 L_ht_sel""")
    gate()
    def stage_setup():
        a(f"""s_lshr_b32 s30, {sP}, 3
              s_lshl_b32 s31, {sJ}, 1
              s_add_u32 s30, s30, s31
              s_lshl_b32 s72, s30, 8
              s_add_u32 s72, s72, {WS_FLAG + FO*128}
              s_lshl_b32 s30, s30, 16
              s_lshl_b32 s69, {sT}, 10
              s_add_u32 s68, s30, s69
              s_add_u32 s68, s68, {WS_OF}""")

    def stage_quad(g, addr):
        for tt in range(2):
            off = g * 4096 + tt * 32768
            a(f"""s_add_u32 m0, s69, {L_OST + off}
                  s_add_u32 s30, s68, {off}
                  buffer_load_dwordx4 v{addr}, {SWS}, s30 offen sc1 lds""")

    def poll_o(tag, addr4, tmp):
        if cfg.poll2:
            a(f"""s_cmp_eq_u32 s70, 0
              s_cbranch_scc1 L_po1_{tag}
              s_mov_b32 s56, 0
              buffer_load_dword v{tmp}, v{addr4}, {SWS}, s72 offen sc1
              s_nop {cfg.poll2}
        L_po2_{tag}:
              buffer_load_dword v{tmp+2}, v{addr4}, {SWS}, s72 offen sc1
              s_waitcnt vmcnt(1)
              v_cmp_eq_u32 vcc, 0, v{tmp}
              s_add_u32 s56, s56, 1
              s_cbranch_vccz L_pod_{tag}
              buffer_load_dword v{tmp}, v{addr4}, {SWS}, s72 offen sc1
              s_waitcnt vmcnt(1)
              v_cmp_eq_u32 vcc, 0, v{tmp+2}
              s_cmp_lt_u32 s56, {cfg.spin_max}
              s_cbranch_vccz L_pod_{tag}
              s_cbranch_scc1 L_po2_{tag}
        L_po1_{tag}:""")
        a(f"""s_mov_b32 s56, 0
        L_po_{tag}:
              buffer_load_dword v{tmp}, v{addr4}, {SWS}, s72 offen sc1
              s_add_u32 s56, s56, 1
              s_waitcnt vmcnt(0)
              v_cmp_eq_u32 vcc, 0, v{tmp}
              s_cmp_ge_u32 s56, {cfg.spin_max}
              s_cbranch_vccz L_pod_{tag}
              s_cbranch_scc1 L_pod_{tag}
              s_cmp_lg_u32 s70, 0
              s_cbranch_scc1 L_po_{tag}
              s_sleep 32
              s_branch L_po_{tag}
        L_pod_{tag}:""")

    a(f"""v_and_b32 v2, 7, v22
    v_xor_b32 v2, v1, v2
    v_lshlrev_b32 v3, 7, v22
    v_lshl_add_u32 v4, v2, 4, v3
    v_add_u32 v4, {L_SST}, v4""")
    stamp(10)
    for g in range(len(cfg.stages)):
        a(f"s_barrier")
    gate_round()
    if cfg.poke:
        a(f"""s_lshl_b32 s30, s2, 2
        s_add_u32 s30, s30, {sT}
        s_cmp_lt_u32 s30, {cfg.poke[1]}
        s_cselect_b32 s30, {f32(cfg.poke[0])}, 0
        s_mov_b64 exec, {cfg.poke[2] if len(cfg.poke) > 2 else 1}
        v_add_f32 v{XU}, s30, v{XU}
        s_mov_b64 exec, -1""")
    stamp(12)
    a(f"""s_barrier                             ; T5
    ds_read_b128 v[8:11], v4
    ds_read_b128 v[12:15], v4 offset:1024""")
    for q in range(2):
        a(f"s_waitcnt lgkmcnt({1-q})")
        for i in range(4):
            a(f"""v_lshlrev_b32 v{24+2*i}, 16, v{8+4*q+i}
                  v_and_b32 v{25+2*i}, 0xffff0000, v{8+4*q+i}""")
        for i in range(4):
            e = 8 * q + 2 * i
            a(f"v_pk_fma_f32 v[{24+2*i}:{25+2*i}], v[{24+2*i}:{25+2*i}], v[{hG+e}:{hG+e+1}], v[{XU+e}:{XU+e+1}]")
        for i in range(4):
            a(f"v_cvt_pk_bf16_f32 v{8+4*q+i}, v{24+2*i}, v{25+2*i}")
        if q == 0:
            stamp(13)
        a(f"buffer_store_dwordx4 v[{8+4*q}:{11+4*q}], v{hOA+q}, {SAUX}, 0 offen")
    stamp(14)
    if cfg.stamps:
        a("s_waitcnt vmcnt(0)")
    stamp(15)
    if cfg.light:
        a(f"""s_waitcnt vmcnt(0)
        s_memrealtime s[98:99]
        s_lshl_b32 s78, s2, 2
        s_add_u32 s78, s78, {sWV}
        s_lshl_b32 s78, s78, 6
        s_add_u32 s78, s78, {WS_DBG}
        v_mov_b32 v0, 0
        v_mov_b32 v4, s96
        s_waitcnt lgkmcnt(0)
        v_mov_b32 v5, s98
        v_mov_b32 v6, s80
        v_mov_b32 v7, s82
        v_mov_b32 v8, s84
        v_mov_b32 v9, s86
        v_mov_b32 v10, s88
        v_mov_b32 v11, s90
        v_mov_b32 v12, s92
        v_mov_b32 v13, s94
        buffer_store_dwordx4 v[4:7], v0, {SWS}, s78 offen
        buffer_store_dwordx4 v[8:11], v0, {SWS}, s78 offen offset:16
        buffer_store_dwordx2 v[12:13], v0, {SWS}, s78 offen offset:32""")
    if cfg.probe and len(cfg.probe) > 3:
        srd(44, 26, 256)
        a(f"""v_mov_b32 v0, 0
        v_mov_b32 v1, s98
        s_not_b32 s99, s98
        v_mov_b32 v2, s99
        s_getreg_b32 s30, hwreg(HW_REG_XCC_ID, 0, 4)
        s_lshl_b32 s30, 1, s30
        s_and_b32 s30, s30, {cfg.probe[4] if len(cfg.probe) > 4 else 255}
        s_mov_b64 exec, 1
        s_cbranch_scc0 L_pr_nomax
        buffer_atomic_umax v1, v0, {SAUX}, 0 offen offset:32 sc1
    L_pr_nomax:
        buffer_atomic_umax v2, v0, {SAUX}, 0 offen offset:160 sc1
        s_waitcnt vmcnt(0)
    L_probe0:
        s_sleep 4
        s_memrealtime s[100:101]
        s_waitcnt lgkmcnt(0)
        s_sub_u32 s100, s100, s96
        s_cmp_lt_u32 s100, {cfg.probe[1] - 500}
        s_cbranch_scc1 L_probe0
        buffer_load_dword v1, v0, {SAUX}, 0 offen offset:32 sc1
        buffer_load_dword v2, v0, {SAUX}, 0 offen offset:160 sc1
        s_waitcnt vmcnt(0)
        v_readfirstlane_b32 s98, v1
        v_readfirstlane_b32 s99, v2
        s_nop 1
        s_not_b32 s99, s99
        s_sub_u32 s98, s98, s99
        s_add_u32 s98, s98, s96""")
    if cfg.probe:
        a(f"""s_sub_u32 s98, s98, s96
        s_mul_i32 s98, s98, {cfg.probe[2]}
        s_add_u32 s98, s98, {cfg.probe[1]}
        s_min_u32 s98, s98, 100000
    L_probe:
        s_sleep 4
        s_memrealtime s[100:101]
        s_waitcnt lgkmcnt(0)
        s_sub_u32 s100, s100, s96
        s_cmp_lt_u32 s100, s98
        s_cbranch_scc1 L_probe""")
    dump_stamps()
    a("s_endpgm")

    vXA, vWA = 144, 148
    vM, vRS, vDEN = 149, 150, 151
    CS = 152
    MF = 156
    t = 160
    vLANE, vL16 = 166, 167

    class Lg:
        def __init__(self):
            self.q = []

        def rd(self, tag, text):
            for ln in text.strip().split("\n"):
                if len(self.q) >= 15:
                    a("s_waitcnt lgkmcnt(9)")
                    self.q = self.q[-9:]
                a(ln)
                self.q.append(tag)

        def wait(self, *tags):
            last = max((i for i, x in enumerate(self.q) if x in tags), default=-1)
            if last < 0:
                return
            n = len(self.q) - 1 - last
            a(f"s_waitcnt lgkmcnt({min(n, 15)})")
            self.q = self.q[last + 1:]

    def trs(dst, addr, off, second=256):
        return (f"ds_read_b64_tr_b16 v[{dst}:{dst+1}], v{addr} offset:{off}\n"
                f"ds_read_b64_tr_b16 v[{dst+2}:{dst+3}], v{addr} offset:{off + second}")

    a(f"""L_compute:
    v_mov_b32 v{vLANE}, v0
    v_lshlrev_b32 v{vL16}, 4, v0
    v_and_b32 v1, 31, v0
    v_lshrrev_b32 v2, 5, v0              ; half
    v_bfe_u32 v3, v0, 1, 3
    v_xor_b32 v3, v3, v2
    s_lshl_b32 s30, {sT}, 12
    s_add_u32 s30, s30, {L_RING}
    v_lshl_add_u32 v4, v1, 7, s30""")
    for s in range(4):
        a(f"v_xor_b32 v5, {2*s}, v3\nv_lshl_add_u32 v{vXA+s}, v5, 4, v4")
    tr_addr(vWA, 0, 3, 4)
    a(f"""v_lshrrev_b32 v3, 2, v0
    v_xor_b32 v3, v3, v0
    v_and_b32 v3, 4, v3
    v_cmp_eq_u32 vcc, 0, v3
    v_mov_b32 v4, {sONE}""")
    for i in range(4):
        a(f"v_cndmask_b32 v{CS+i}, 0, v4, vcc")
    a("s_waitcnt lgkmcnt(0)")
    if cfg.stamps:
        a("s_mov_b32 s80, s78")
    srd(40, 28, WS_SIZE)
    SA, SB, OO, QQ, RING = 0, 16, 32, 96, 112
    vIDX = 160
    vC = 154
    sHH, sKQ = "s58", sT
    sVM = "s[62:63]"

    def slot(s):
        b = RING + 12 * s
        return dict(K=b, V=[b + 4, b + 8])

    def const_rows(tmp):
        return [f"v_and_b32 v{tmp}, 27, v{vLANE}",
                f"v_cmp_eq_u32 vcc, 16, v{tmp}",
                f"v_mov_b32 v{tmp}, {sONE}",
                f"v_cndmask_b32 v{vC}, 0, v{tmp}, vcc\nv_cndmask_b32 v{vC+1}, 0, v{tmp}, vcc"]

    def attn_init_b(slots, wide=cfg.wide):
        for s in slots:
            for i in range(0, 8, 2):
                r = slot(s)["V"][0] + i
                if r != vC:
                    a(f"v_mov_b64 v[{r}:{r+1}], v[{vC}:{vC+1}]" if wide else f"v_mov_b32 v{r}, v{vC}\nv_mov_b32 v{r+1}, v{vC}")

    a(f"""s_lshr_b32 {sHH}, {sWV}, 3
    s_mov_b32 s62, 0xffff
    s_mov_b32 s63, 0xffff
    s_lshl_b32 s64, {sP}, 1
    s_add_u32 s64, s64, {sHH}
    s_lshl_b32 s64, s64, 17
    s_or_b32 s61, {sJ}, {cfg.sib}
    s_add_u32 s61, s61, 1
    s_lshl_b32 s61, s61, 13
    s_lshl_b32 s31, {sKQ}, 11
    s_add_u32 s61, s61, s31
    s_mov_b32 s76, 0
    s_mov_b32 s77, 0
    s_lshl_b32 s30, {sHH}, 13
    s_add_u32 s71, s30, s31
    s_lshl_b32 s31, {sHH}, 12""")
    for i in range(4):
        a(f"""s_add_u32 s30, {sKQ}, {1 + i}
              s_and_b32 s30, s30, 3
              s_lshl_b32 s30, s30, 10
              s_add_u32 s{72+i}, s30, s31""")
    a(f"""s_cmp_ge_u32 {sWV}, 8
    s_cbranch_scc1 L_bwave""")

    XB, WK, WV, AK, AV, RB, ASX, SQ = (0, 16), 32, 48, 64, 80, 96, 112, 116
    SFK, SFV, RF, OF_ = 128, 132, 136, 140
    vKG, vVG = 164, 165
    EFA, vEA = RB, vM
    a(f"""v_and_b32 v1, 3, v0
    v_mov_b32 v5, {L_ZERO}
    v_mov_b32 v6, {L_ONES}
    v_mov_b32 v7, {L_WR}
    v_cmp_eq_u32 s[52:53], 0, v1
    v_cmp_eq_u32 s[54:55], 1, v1
    v_cndmask_b32 v6, v5, v6, s[52:53]
    v_cndmask_b32 v6, v6, v7, s[54:55]
    v_cndmask_b32 v6, v5, v6, vcc
    v_lshl_add_u32 v{vEA}, v2, 4, v6
    v_cmp_gt_u32 vcc, 32, v{vLANE}
    v_and_b32 v{t}, 0x33, v{vLANE}
    v_bfe_u32 v{t+1}, v{vLANE}, 2, 1
    v_lshl_add_u32 v{t}, v{t+1}, 3, v{t}
    v_bfe_u32 v{t+1}, v{vLANE}, 3, 1
    v_lshl_add_u32 v{t}, v{t+1}, 2, v{t}
    v_lshlrev_b32 v{vKG}, 4, v{t}
    v_and_b32 v{t}, 0x2f, v{vLANE}
    v_lshlrev_b32 v{t}, 4, v{t}
    v_bfe_u32 v{t+1}, v{vLANE}, 4, 1
    v_lshl_add_u32 v{vVG}, v{t+1}, 17, v{t}
    v_cndmask_b32 v{OF_}, 0, v4, vcc
    v_cndmask_b32 v{OF_+1}, 0, v4, vcc
    v_mov_b32 v{OF_+2}, 0
    v_mov_b32 v{OF_+3}, 0
    v_mov_b32 v{RF+2}, 0
    v_mov_b32 v{RF+3}, 0
    v_add_u32 v{t+3}, {L_SFR}, v{vL16}
    v_and_b32 v1, 31, v{vLANE}
    s_lshl_b32 s30, {sT}, 5
    v_add_lshl_u32 v{CS}, v1, s30, 3
    v_add_u32 v{CS}, {L_STAT}, v{CS}
    v_add_u32 v5, {L_WR}, v{vL16}
    v_mov_b32 v8, v4
    v_mov_b32 v9, v4
    v_mov_b32 v10, v4
    v_mov_b32 v11, v4
    s_lshl_b32 s50, {sP}, 18
    s_lshl_b32 s30, {sJ}, 13
    s_add_u32 s50, s50, s30
    s_lshl_b32 s49, {sT}, 11
    s_add_u32 s50, s50, s49
    s_add_u32 s51, s50, 0x20000
    s_mov_b32 s52, 0xaaaaaaaa
    s_mov_b32 s53, 0xaaaaaaaa
    s_mov_b32 s54, 0xcccccccc
    s_mov_b32 s55, 0xcccccccc
    """)
    for ins in const_rows(6):
        a(ins)
    a("""s_barrier                             ; Ba
    ds_read_b128 v[12:15], v5""")
    lg = Lg()

    def rdw(n, s, which):
        if cfg.x1 & 4 and n > 0:
            return
        if which == 0:
            lg.rd(("k", n, s), trs(WK + 4 * s, vWA, L_WK + n * 4096 + s * 1024))
        else:
            lg.rd(("v", n, s), trs(WV + 4 * s, vWA, L_WV + n * 4096 + s * 1024))

    def rdx(n, s):
        r = XB[n & 1] + 4 * s
        off = (n % 5) * 16384 - (16 if n == 4 else 0)
        lg.rd(("x", n, s), f"ds_read_b128 v[{r}:{r+3}], v{vXA+s} offset:{off}")

    def rde(n, s):
        lg.rd(("e", n, s), f"ds_read_b128 v[{EFA+4*s}:{EFA+4*s+3}], v{vEA} offset:{(4*n + s)*32}")

    def bigk(n, s):
        lg.wait(("k", n, s), ("x", n, s))
        if cfg.x1 & 8 and 0 < n < 7:
            return
        mfma32(AK, WK + 4 * s, XB[n & 1] + 4 * s, None if (n, s) == (0, 0) else AK)

    def bigv(n, s):
        lg.wait(("v", n, s), ("x", n, s))
        if cfg.x1 & 8 and 0 < n < 7:
            return
        mfma32(AV, XB[n & 1] + 4 * s, WV + 4 * s, None if (n, s) == (0, 0) else AV)

    def smalls(n, fill=()):
        fill = list(fill)
        lg.wait(*[(k_, n, s) for s in range(4) for k_ in "xe"])
        if cfg.x1 & 2 and n not in (0, 7):
            for f_ in fill: a(f_)
            return
        for s in range(4):
            mfma16(ASX, EFA + 4 * s, XB[n & 1] + 4 * s, None if (n, s) == (0, 0) else ASX)
            if fill:
                a(fill.pop(0))
        for i in range(8):
            d = SQ + 4 * (i % 3)
            r = XB[n & 1] + 2 * i
            c = "0" if (n == 0 and i < 3) else f"v[{d}:{d+3}]"
            a(f"v_mfma_f32_4x4x4_16b_bf16 v[{d}:{d+3}], v[{r}:{r+1}], v[{r}:{r+1}], {c}")
        assert not fill

    def head(n):
        rdx(n, 0); rdx(n, 1)
        if n:
            bigk(n - 1, 2)
        rdx(n, 2); rdx(n, 3); rde(n, 0); rde(n, 1)
        if n:
            bigv(n - 1, 2)
        rdw(n, 2, 0); rdw(n, 2, 1)
        if n:
            bigk(n - 1, 3)
        rdw(n, 3, 0); rde(n, 2); rde(n, 3)
        if n:
            bigv(n - 1, 3)
        rdw(n, 3, 1)

    for s in range(2):
        rdw(0, s, 0); rdw(0, s, 1)
    a("s_waitcnt lgkmcnt(8)")
    mfma16(16, 8, 12)
    for r in (8, 4, 2, 1):
        a(f"v_add_f32_dpp v16, v16, v16 row_ror:{r} row_mask:0xf bank_mask:0xf")
    a("v_readfirstlane_b32 s70, v16")
    for n in range(7):
        a(f"s_barrier                             ; B{n}")
        head(n)
        for s in range(2):
            bigk(n, s)
            rdw(n + 1, s, 0)
            bigv(n, s)
            rdw(n + 1, s, 1)
        fill = []
        if n == 3:
            fill = [f"v_add_u32 v{vXA+s}, 16, v{vXA+s}" for s in range(4)]
        if n == 4:
            fill = [f"v_add_u32 v{vXA+s}, -16, v{vXA+s}" for s in range(4)]
        smalls(n, fill)
    a("s_barrier                             ; B7")
    stamp(3)
    head(7)
    lg.rd("sf", f"ds_read_b128 v[{SFK}:{SFK+3}], v{t+3}\nds_read_b128 v[{SFV}:{SFV+3}], v{t+3} offset:1024")
    smalls(7)
    PK = XB[0]
    groups = [
        [],
        [f"v_mul_f32 v{t}, {f32(1/512)}, v{ASX}            ; mean"] +
        [f"v_pk_add_f32 v[{SQ+i}:{SQ+i+1}], v[{SQ+i}:{SQ+i+1}], v[{SQ+4+i}:{SQ+5+i}]" for i in (0, 2)] +
        [f"v_pk_add_f32 v[{SQ+i}:{SQ+i+1}], v[{SQ+i}:{SQ+i+1}], v[{SQ+8+i}:{SQ+9+i}]" for i in (0, 2)],
        [f"v_cvt_pk_bf16_f32 v{MF}, -v{t}, -v{t}",
         f"v_cndmask_b32 v{SQ}, v{SQ}, v{SQ+1}, s[52:53]",
         f"v_cndmask_b32 v{SQ+2}, v{SQ+2}, v{SQ+3}, s[52:53]",
         f"v_mov_b32 v{MF+1}, v{MF}",
         f"v_cndmask_b32 v{SQ}, v{SQ}, v{SQ+2}, s[54:55]",
         f"v_mov_b32 v{t+1}, v{SQ}"],
        [f"v_mov_b32 v{MF+2}, v{MF}",
         f"v_mov_b32 v{MF+3}, v{MF}",
         f"v_permlane32_swap_b32 v{t+1}, v{SQ}",
         f"v_add_f32 v{t+1}, v{t+1}, v{SQ}",
         f"v_mul_f32 v{t+1}, {f32(1/512)}, v{t+1}"],
        [f"v_fma_f32 v{t+1}, -v{t}, v{t}, v{t+1}         ; variance",
         f"v_max_f32 v{t+1}, 0, v{t+1}",
         f"v_cvt_pk_bf16_f32 v{t+1}, 0, v{t+1}",
         f"v_add_f32 v{t+1}, {f32(1e-5)}, v{t+1}",
         f"v_cvt_pk_bf16_f32 v{t+1}, 0, v{t+1}",
         f"v_sqrt_f32 v{t+1}, v{t+1}"],
        [f"v_cvt_pk_bf16_f32 v{vDEN}, 0, v{t+1}",
         f"v_rcp_f32 v{vRS}, v{vDEN}",
         f"v_cvt_pk_bf16_f32 v{vM}, 0, v{t}",
         f"v_and_b32 v{t}, 0xffff0000, v{vRS}",
         f"v_sub_f32 v{t+1}, v{vRS}, v{t}"],
        [f"v_and_b32 v{t+2}, 0xffff0000, v{t+1}",
         f"v_sub_f32 v{t+1}, v{t+1}, v{t+2}",
         f"v_lshrrev_b32 v{t}, 16, v{t}",
         f"v_or_b32 v{RF}, v{t}, v{t+2}",
         f"v_lshrrev_b32 v{RF+1}, 16, v{t+1}",
         f"v_mul_f32 v{AK}, v{vRS}, v{AK}"],
        [f"ds_write2_b32 v{CS}, v{vM}, v{vRS} offset1:1"] + [f"v_mul_f32 v{AK+i}, v{vRS}, v{AK+i}" for i in range(1, 7)],
        [f"v_mul_f32 v{AK+7}, v{vRS}, v{AK+7}"] +
        [f"v_cvt_pk_bf16_f32 v{PK+i}, v{AK+2*i}, v{AK+2*i+1}" for i in range(4)] +
        [f"buffer_store_dwordx4 v[{PK}:{PK+3}], v{vKG}, {SWS}, s50 offen sc1"],
        [f"v_mul_f32 v{AK+i}, v{vRS}, v{AK+i}" for i in range(8, 14)],
        [f"v_mul_f32 v{AK+i}, v{vRS}, v{AK+i}" for i in range(14, 16)] +
        [f"v_cvt_pk_bf16_f32 v{PK+i}, v{AK+2*i}, v{AK+2*i+1}" for i in range(4, 8)] +
        [f"buffer_store_dwordx4 v[{PK+4}:{PK+7}], v{vKG}, {SWS}, s51 offen sc1"],
    ]

    def augk():
        lg.wait("sf")
        mfma32(AK, SFK, MF, AK)
    seq = [lambda s=s: bigk(7, s) for s in range(4)] + [augk] + [lambda s=s: bigv(7, s) for s in range(3)]
    seq += [lambda: mfma32(RB, RF, OF_), lambda: bigv(7, 3), lambda: mfma32(AV, MF, SFV, AV)]
    assert len(seq) == len(groups)
    for m, g in zip(seq, groups):
        m()
        for ins in g:
            a(ins)
    for hf in range(2):
        for i in range(4 * hf, 4 * hf + 4):
            a(f"v_pk_mul_f32 v[{AV+2*i}:{AV+2*i+1}], v[{RB+2*i}:{RB+2*i+1}], v[{AV+2*i}:{AV+2*i+1}]")
        for i in range(4 * hf, 4 * hf + 4):
            a(f"v_cvt_pk_bf16_f32 v{PK+8+i}, v{AV+2*i}, v{AV+2*i+1}")
        a(f"buffer_store_dwordx4 v[{PK+8+4*hf}:{PK+11+4*hf}], v{vVG}, {SWS}, s50 offen offset:{1024 + 256*hf} sc1")
    stamp(2)

    def own_kv_reads():
        S0 = slot(0)
        a(f"""ds_read_b128 v[{S0['K']}:{S0['K']+3}], v{t+1} offset:{L_OWNKV}
              s_mov_b64 exec, {sVM}""")
        for i in range(2):
            r = S0["V"][i]
            a(f"ds_read_b128 v[{r}:{r+3}], v{t+1} offset:{L_OWNKV + 1024 + 256*i}")
        a("s_mov_b64 exec, -1")

    def q_reads():
        for i in range(4):
            a(f"ds_read_b128 v[{QQ+4*i}:{QQ+4*i+3}], v{QQ+4*i} offset:{L_Q}")

    q_addr = [f"v_add_u32 v{QQ+4*i}, s{72+i}, v{vL16}" for i in range(4)]

    def drain_signal():
        a(f"""s_waitcnt vmcnt(0)
        s_mov_b64 exec, 1
        ds_add_u32 v{t+2}, v{t+4}
        s_mov_b64 exec, -1""")
        stamp(1)

    a(f"""s_waitcnt lgkmcnt(0)
    s_setprio {cfg.aprio}
    s_barrier                             ; B8""")
    stamp(4)
    a(f"""v_add_u32 v28, s49, v{vKG}
    v_and_b32 v29, 0x3ff, v{vVG}
    v_lshrrev_b32 v30, 4, v{vVG}
    v_and_b32 v30, 0x2000, v30
    v_add3_u32 v29, v29, v30, s49
    v_mov_b32 v{t+1}, 0
    v_mov_b32 v{t+2}, {L_CTR}
    v_mov_b32 v{t+4}, 1
    """)
    kvw = f"""ds_write_b128 v28, v[{PK}:{PK+3}] offset:{L_OWNKV}
    ds_write_b128 v28, v[{PK+4}:{PK+7}] offset:{L_OWNKV + 8192}
    ds_write_b128 v29, v[{PK+8}:{PK+11}] offset:{L_OWNKV + 1024}
    ds_write_b128 v29, v[{PK+12}:{PK+15}] offset:{L_OWNKV + 1280}"""
    if not cfg.x2 & 1:
        a(kvw)
    if not cfg.x2 & 2:
        attn_init_b((1, 2, 3))
    a("v_mov_b64 v[20:21], 0\nv_mov_b64 v[22:23], 0")
    for x in q_addr:
        a(x)
    stamp(14)
    drain_signal()
    if cfg.x2 & 2:
        attn_init_b((1, 2, 3))
    a(f"""v_and_b32 v{t}, 31, v{vLANE}
    s_lshl_b32 s30, {sJ}, 7
    s_lshl_b32 s31, {sT}, 5
    s_add_u32 s30, s30, s31
    s_sub_u32 s53, 0x7ff, s30""")
    AR = ASX + 1
    a(f"""v_fma_f32 v{AR}, -v{vM}, s70, v{AR}
    v_mul_f32 v{AR}, v{vRS}, v{AR}
    v_cvt_pk_bf16_f32 v{AR}, 0, v{AR}
    v_ashrrev_i32 v{AR+1}, 31, v{AR}
    v_or_b32 v{AR+1}, 0x80000000, v{AR+1}
    v_xor_b32 v{AR}, v{AR}, v{AR+1}
    v_and_b32 v{AR}, 0xffff0000, v{AR}
    v_sub_u32 v{AR+1}, s53, v{t}
    v_or_b32 v{AR}, v{AR}, v{AR+1}""")
    wavemax_u32("s50", AR, AR + 1, 2)
    a(f"""v_cmp_eq_u32 vcc, s50, v{AR}
    s_lshl_b32 s31, {sT}, 3
    v_add_u32 v18, s31, v{t+2}
    v_cndmask_b32 v{AR}, v{AR}, v{t+1}, vcc""")
    wavemax_u32("s51", AR, AR + 1, 2)
    a(f"""v_mov_b32 v16, s50
    v_mov_b32 v17, s51
    ds_write_b64 v18, v[16:17] offset:{L_KEY - L_CTR}""")
    attn_init_b((0,))
    a(f"""v_add_u32 v{t+1}, s71, v{vL16}
    v_mov_b32 v{vIDX}, 0xdddddddd""")
    if cfg.x2 & 1:
        a(kvw)
    own_kv_reads()
    stamp(8)
    a(f"""s_setprio {3 if cfg.prio else 0}
    s_waitcnt lgkmcnt(0)
    s_barrier                             ; B10""")
    stamp(5)
    q_reads()
    for i in range(3):
        mfma32(OO + 16 * i, 20, 20)
    a("s_waitcnt lgkmcnt(3)")
    mfma32(SA, slot(0)["K"], QQ)
    mfma32(OO + 48, 20, 20)
    a("s_nop 8\ns_branch L_attn_go")

    XF, WF, EF, ACC, ASK, ASV, AR = 0, 80, 96, 112, 128, 132, 136
    a(f"""L_bwave:
    s_cmp_lg_u32 {sT}, 0
    s_cbranch_scc1 L_b_noinit""")
    a(f"""v_mov_b32 v5, v4
    v_mov_b32 v6, v4
    v_mov_b32 v7, v4
    v_add_u32 v1, {L_ZERO}, v{vL16}
    v_mov_b32 v8, 0
    v_mov_b32 v9, 0
    v_mov_b32 v10, 0
    v_mov_b32 v11, 0
    ds_write_b128 v1, v[4:7] offset:{L_ONES - L_ZERO}
    ds_write_b128 v1, v[8:11]
    ds_write_b128 v1, v[8:11] offset:192
    s_waitcnt lgkmcnt(0)
L_b_noinit:""")
    srd(44, 26, 256)
    a(f"""s_lshl_b32 s52, s2, 2
    s_add_u32 s52, s52, {sT}
    s_cmp_lg_u32 s52, 1
    s_cbranch_scc1 L_b_noclear
    v_lshlrev_b32 v1, 7, v{vLANE}
    s_mov_b32 s30, {WS_FLAG}
    s_mov_b32 s31, {WS_FLAG + 64*128}
    v_mov_b32 v8, 0
    v_mov_b32 v9, 0
    v_mov_b32 v10, 0
    v_mov_b32 v11, 0
    buffer_store_dword v8, v1, {SWS}, s30 offen sc1""")
    for i in range(12):
        a(f"buffer_store_dwordx4 v[8:11], v{vL16}, {SWS}, s31 offen offset:{1024*(i & 3)} sc1")
        if i in (3, 7):
            a("s_add_u32 s31, s31, 4096")
    a(f"""
L_b_noclear:""")
    a(f"""s_lshl_b32 s30, {sT}, 10
    v_add_u32 v{t}, s30, v{vWA}
    v_cmp_gt_u32 vcc, 32, v{vLANE}
    v_and_b32 v{EF}, 31, v{vLANE}
    v_lshrrev_b32 v{EF+1}, 5, v{vLANE}
    v_lshlrev_b32 v{EF+1}, 10, v{EF+1}
    v_lshl_add_u32 v{EF}, v{EF}, 4, v{EF+1}
    s_lshr_b32 s30, {sT}, 1
    s_lshl_b32 s30, s30, 9
    s_and_b32 s31, {sT}, 1
    s_lshl_b32 s31, s31, 3
    s_add_u32 s30, s30, s31
    s_add_u32 s30, s30, {L_SFR}
    v_and_b32 v{vM}, 0x1ff, v{EF}
    v_add_u32 v{vM}, s30, v{vM}
    v_add_u32 v{EF}, s30, v{EF}
    s_lshl_b32 s30, {sT}, 5""")
    for s in range(4):
        a(f"v_xor_b32 v{vXA+s}, s30, v{vXA+s}")
    a("s_barrier                             ; Ba")

    def ssum(n):
        read_w(WF, t, L_WK + n * 4096)
        read_w(WF + 4, t, L_WV + n * 4096)

    def ssum2(n):
        mfma16(ASK, CS, WF, None if n == 0 else ASK)
        mfma16(ASV, CS, WF + 4, None if n == 0 else ASV)

    ssum(0)
    a("s_waitcnt lgkmcnt(0)")
    ssum2(0)
    for n in range(7):
        a(f"s_barrier                             ; B{n}")
        ssum(n + 1)
        if n < 5 and not cfg.x1 & 1:
            for s in range(4):
                r = XF + 20 * s + 4 * n
                if n < 4:
                    a(f"ds_read_b128 v[{r}:{r+3}], v{vXA+s} offset:{n*16384}")
                else:
                    a(f"v_add_u32 v{t+2}, 65536, v{vXA+s}\nds_read_b128 v[{r}:{r+3}], v{t+2}")
        if n == 0:
            a(f"""s_cmp_lg_u32 s52, 1
            s_cbranch_scc1 L_b_nosig
            s_waitcnt vmcnt(0)
            v_mov_b32 v{t+2}, 0
            v_mov_b32 v{t+3}, 1
            s_mov_b64 exec, 1
            buffer_store_dword v{t+3}, v{t+2}, {SAUX}, 0 offen sc1
            s_mov_b64 exec, -1
        L_b_nosig:""")
        if n == 4:
            a(f"""s_cmp_lg_u32 {sT}, 0
            s_cbranch_scc1 L_b_noclr
            v_mov_b32 v{t+2}, 0
            s_mov_b64 exec, 1
            buffer_load_dword v{t+5}, v{t+2}, {SAUX}, 0 offen sc1
            s_mov_b64 exec, -1
        L_b_noclr:""")
        if n == 6:
            a("s_setprio 2")
        a("s_waitcnt lgkmcnt(0)")
        ssum2(n + 1)
    a(f"v_cndmask_b32 v{EF+1}, v{ASV}, v{ASK}, vcc")
    split3(EF + 2, EF + 1, t + 2)
    a(f"""ds_write_b64 v{EF}, v[{EF+2}:{EF+3}]
    s_cmp_lg_u32 {sT}, 0
    s_cbranch_scc1 L_b_clrd
    s_waitcnt vmcnt(0)
    v_readfirstlane_b32 s30, v{t+5}
    v_mov_b32 v{t+2}, 0
    s_cmp_lg_u32 s30, 0
    s_cbranch_scc1 L_b_clrd""")
    poll("0", 1, "clr", t + 2, t + 5, sleep=1, srd_=SAUX)
    a(f"""L_b_clrd:
    s_setprio 0
    s_waitcnt vmcnt(0) lgkmcnt(0)
    s_barrier                             ; B7""")
    stamp(3)
    a(f"""v_add_u32 v{vWA}, {L_WQ}, v{t}
    v_and_b32 v{t+4}, 31, v{vLANE}
    s_lshl_b32 s30, {sT}, 5
    v_add_lshl_u32 v{t+4}, v{t+4}, s30, 3
    v_add_u32 v{t+4}, {L_STAT}, v{t+4}
    s_lshl_b32 s30, {sT}, 10
    v_add_u32 v{t+5}, s30, v{vL16}
    v_add_u32 v{t+1}, {L_SFR}, v{vL16}
    v_mov_b32 v{t}, {L_CTR}
    v_mov_b32 v{vDEN}, 1""")
    xq = lambda n, s: XF + 20 * s + 4 * n if n < 5 else (128 if s % 2 == 0 else 0) + 4 * (n - 5)
    xrd = lambda n, s: f"ds_read_b128 v[{xq(n, s)}:{xq(n, s)+3}], v{vXA+s} offset:{(n - 5)*16384}"
    for n in range(5, 8):
        a(xrd(n, 0))
    a("""s_waitcnt lgkmcnt(0)
    s_setprio 2
    s_barrier                             ; B8""")
    stamp(4)
    lg = Lg()
    SQA = 140

    def qreads(k):
        s_, n = k >> 3, k & 7
        if n == 0 and s_:
            a(f"v_xor_b32 v{vWA}, {(s_ ^ (s_ - 1)) << 10}, v{vWA}")
        lg.rd(("q", k), trs(WF + 4 * (k % 8), vWA, n * 4096))
    for k in range(5):
        qreads(k)
    lg.rd("st", f"ds_read_b64 v[{t+2}:{t+3}], v{t+4}")
    z = lambda lo, hi: "\n".join(f"v_mov_b64 v[{r}:{r+1}], 0" for r in range(lo, hi, 2))
    cr = const_rows(t + 4)
    side = {8: f"v_cvt_pk_bf16_f32 v{MF}, -v{t+2}, -v{t+2}",
            9: f"v_mul_f32 v{vRS}, {f32(CQ)}, v{t+3}\nv_mov_b32 v{MF+1}, v{MF}",
            10: f"v_and_b32 v{t+2}, 0xffff0000, v{SQA}\nv_sub_f32 v{t+3}, v{SQA}, v{t+2}\nv_and_b32 v{t+4}, 0xffff0000, v{t+3}",
            11: f"v_sub_f32 v{t+3}, v{t+3}, v{t+4}\nv_lshrrev_b32 v{t+2}, 16, v{t+2}\nv_or_b32 v{t+2}, v{t+2}, v{t+4}",
            12: f"v_lshrrev_b32 v{t+3}, 16, v{t+3}",
            14: f"v_mov_b32 v{MF+2}, v{MF}\nv_mov_b32 v{MF+3}, v{MF}", 15: cr[0] + "\n" + cr[1], 19: cr[2], 20: cr[3],
            21: "\n".join(f"v_mov_b32 v{r}, 0" for r in (20, 21, 22)), 22: f"v_mov_b32 v23, 0\nv_mov_b32 v152, v{vC}\nv_mov_b32 v153, v{vC}",
            24: "\n".join(f"v_mov_b32 v{r}, v{vC}" for r in (128, 129, 130)), 25: "\n".join(f"v_mov_b32 v{r}, v{vC}" for r in (131, 132, 133)),
            26: "\n".join(f"v_mov_b32 v{r}, v{vC}" for r in (134, 135, 144)),
            28: "\n".join(f"v_mov_b32 v{r}, v{vC}" for r in (145, 146, 147, 140)),
            29: "\n".join(f"v_mov_b32 v{r}, v{vC}" for r in (141, 142, 143, 156, 157)),
            30: "\n".join(f"v_mov_b32 v{r}, v{vC}" for r in (158, 159)) + "\n" + q_addr[0] + "\n" + q_addr[1]}
    for k in range(32):
        s, n = k >> 3, k & 7
        lg.wait(("q", k), ("x", k))
        mfma32(ACC, WF + 4 * (k % 8), xq(n, s), ACC if k else None)
        if k + 5 < 32:
            qreads(k + 5)
        if s < 3 and (3 <= n < 6 if s == 0 else n < 3):
            n2 = n + 2 if s == 0 else n + 5
            lg.rd(("x", 8 * (s + 1) + n2), xrd(n2, s + 1))
        if k in side:
            a(side[k])
        mark(f"k{k}")
        if k < 8:
            mfma16(SQA, CS, WF + 4 * k, SQA if k else None)
        if k == 13:
            lg.rd("w", f"ds_write_b64 v{vM}, v[{t+2}:{t+3}]")
            a("s_mov_b64 exec, 1")
            lg.rd("w", f"ds_add_u32 v{t}, v{vDEN} offset:4")
            a("s_mov_b64 exec, -1")
        if k == 23:
            lg.rd("sf", f"ds_read_b32 v{t+2}, v{t} offset:4\nds_read_b128 v[{SQA}:{SQA+3}], v{t+1}")
        if k == 27:
            lg.wait("sf")
            a(f"""v_readfirstlane_b32 s30, v{t+2}
            s_mov_b32 s56, 0
            s_cmp_lt_u32 s30, 4
            s_cbranch_scc1 L_b_sq
        L_b_sqd:""")
            mfma32(ACC, SQA, MF, ACC)
    stamp(8)
    mfma32(OO, 20, 20)
    a(f"""{q_addr[2]}
    {q_addr[3]}
    v_add_u32 v{t+1}, s71, v{vL16}
    v_mov_b32 v{vIDX}, 0xdddddddd""")
    mfma32(OO + 16, 20, 20)
    for hf in range(2):
        for i in range(8 * hf, 8 * hf + 8):
            a(f"v_mul_f32 v{ACC+i}, v{vRS}, v{ACC+i}")
        for i in range(4 * hf, 4 * hf + 4):
            a(f"v_cvt_pk_bf16_f32 v{4+i}, v{ACC+2*i}, v{ACC+2*i+1}")
        a(f"ds_write_b128 v{t+5}, v[{4+4*hf}:{7+4*hf}] offset:{L_Q + 4096*hf}")
    stamp(1)
    mfma32(OO + 32, 20, 20)
    attn_init_b((0,), wide=False)
    a(f"""s_setprio {3 if cfg.prio else 0}
    s_waitcnt lgkmcnt(0)
    s_barrier                             ; B10""")
    stamp(5)
    own_kv_reads()
    q_reads()
    mfma32(OO + 48, 20, 20)
    a("s_waitcnt lgkmcnt(3)")
    mfma32(SA, slot(0)["K"], QQ)
    a("s_nop 10")

    def exp(r):
        a(f"v_exp_f32 v{r}, v{r}")

    def smf(o, v, p):
        a(f"v_smfmac_f32_32x32x32_bf16 v[{o}:{o+15}], v[{v}:{v+3}], v[{p}:{p+7}], v{vIDX}")

    def step(i, S, prev, nxt, h1=None, h2=None, h3=None, hq=None, h4=None):
        cur, oth = (SA, SB) if i % 2 == 0 else (SB, SA)
        exp(cur); exp(cur + 1)
        if i or prev is not None:
            smf(OO + 16 * ((i - 1) & 3), (S if i else prev)["V"][1], oth + 8)
        if h1:
            h1()
        for e in range(2, 5):
            exp(cur + e)
        if i < 3:
            mfma32(oth, S["K"], QQ + 4 * (i + 1))
        elif nxt is not None:
            mfma32(oth, nxt["K"], QQ)
        if hq:
            hq()
        for e in range(5, 10):
            exp(cur + e)
        smf(OO + 16 * i, S["V"][0], cur)
        if h2:
            h2()
        for e in range(10, 16):
            exp(cur + e)
            if e == 12 and h3:
                h3()
            if e == 14 and h4:
                h4()

    stubs = []

    def gl_parts():
        n = len(stubs)
        stubs.append(n)
        return [f"s_cmp_eq_u32 s76, 0\ns_cbranch_scc1 L_more{n}\nL_have{n}:", "s_ff1_i32_b32 s65, s76",
                "s_bitset0_b32 s76, s65\ns_lshl_b32 s65, s65, 13", "s_add_u32 s65, s65, s61\ns_and_b32 s65, s65, 0x1ffff",
                "s_add_u32 s65, s65, s64"]

    def gl_addr():
        for x in gl_parts():
            a(x)

    def gl_stubs():
        for n in stubs:
            a(f"""L_more{n}:
              v_mov_b32 v{t+1}, {L_CTR}
              s_mov_b32 s56, 0
        L_morel{n}:
              ds_read_b32 v{t+2}, v{t+1} offset:20
              s_add_u32 s56, s56, 1
              s_waitcnt lgkmcnt(0)
              v_readfirstlane_b32 s30, v{t+2}
              s_nop 0
              s_andn2_b32 s76, s30, s77
              s_cselect_b32 s77, s30, s77
              s_cbranch_scc1 L_have{n}
              s_sleep {cfg.stubsleep}
              s_cmp_lt_u32 s56, {cfg.spin_max * 8}
              s_cbranch_scc1 L_morel{n}
              s_mov_b32 s76, 1
              s_branch L_have{n}""")

    def gl_k(s):
        S = slot(s)
        a(f"buffer_load_dwordx4 v[{S['K']}:{S['K']+3}], v{vL16}, {SWS}, s65 offen sc1")

    def gl_v(s):
        S = slot(s)
        a(f"s_mov_b64 exec, {sVM}")
        for i in range(2):
            r = S["V"][i]
            a(f"buffer_load_dwordx4 v[{r}:{r+3}], v{vL16}, {SWS}, s65 offen offset:{1024 + 256*i} sc1")
        a("s_mov_b64 exec, -1")

    def unit(s, load=True, wait=6, last=False, hooks={}, first=False):
        S, prev, nxt = slot(s), None if first else slot((s + 3) % 4), slot((s + 1) % 4)
        H = lambda k: hooks.get(k)
        ld = (s + 3) % 4
        if load and cfg.spread == 1:
            P = [lambda x=x: a(x) for x in gl_parts()]
            step(0, S, prev, nxt, h1=P[0], hq=P[1], h2=P[2])
            step(1, S, prev, nxt, h1=P[3], hq=P[4], h2=lambda: gl_k(ld))
            step(2, S, prev, nxt, h1=lambda: gl_v(ld))
        elif load and cfg.spread == 2:
            P = [lambda x=x: a(x) for x in gl_parts()]
            step(0, S, prev, nxt, h1=P[0], hq=P[1], h2=P[2])
            step(1, S, prev, nxt, h1=P[3], hq=P[4], h4=lambda: (gl_k(ld), gl_v(ld)))
            step(2, S, prev, nxt)
        elif load and cfg.spread == 3:
            step(0, S, prev, nxt, h4=lambda: (gl_addr(), gl_k(ld), gl_v(ld)))
            step(1, S, prev, nxt)
            step(2, S, prev, nxt)
        else:
            step(0, S, prev, nxt, h1=gl_addr if load else H("01"), h2=(lambda: gl_k(ld)) if load else H("02"), h3=H("03"))
            step(1, S, prev, nxt, h1=(lambda: gl_v(ld)) if load else H("11"), h2=H("12"), h3=H("13"))
            step(2, S, prev, nxt, h1=H("21"), h2=H("22"), h3=H("23"))
        step(3, S, prev, None if last else nxt, h1=(lambda: a(f"s_waitcnt vmcnt({wait})")) if not last else H("31"), h2=H("32"), h3=H("33"))

    a("""L_attn_go:
    s_waitcnt lgkmcnt(0)""")
    first = {}
    for s_, where in zip((1, 2, 3), cfg.b11):
        first.setdefault(where, []).append(s_)

    def fetch(slots):
        for s_ in slots:
            gl_addr()
            gl_k(s_)
            gl_v(s_)
    hooks0 = {k: (lambda v=v: fetch(v)) for k, v in first.items()}
    assert cfg.b11at < min(hooks0)
    hooks0[cfg.b11at] = lambda: a("s_barrier                             ; B11")
    unit(0, load=False, first=True, hooks=hooks0)
    stamp(15)
    a(f"s_mov_b32 s66, {cfg.iters}")
    a(".p2align 3\nL_attn:")
    for s in (1, 2, 3, 0):
        unit(s, hooks={"32": lambda: a("s_sub_u32 s66, s66, 1\ns_cmp_lg_u32 s66, 0")} if s == 0 else {})
    a("s_cbranch_scc1 L_attn")
    stamp(6)
    if cfg.prio:
        a("s_setprio 2")

    def mbaddr():
        a(f"s_mul_i32 s52, {sHH}, {4*3*2304}")
        for i in range(3):
            a(f"""s_add_u32 s30, {sKQ}, {1 + i}
                  s_and_b32 s30, s30, 3
                  s_mul_i32 s30, s30, {3*2304}
                  s_add_u32 s{53+i}, s30, s52""")
        a(f"""s_mul_i32 s30, {sKQ}, {3*2304}
              s_add_u32 s52, s52, s30""")

    def send(i):
        o = OO + 16 * i
        a(f"""v_add_u32 v{t+1}, s{53+i}, v{vL16}
              v_lshl_add_u32 v{t+2}, v{vLANE}, 2, s{53+i}
              ds_write_b128 v{t+1}, v[{o}:{o+3}] offset:{L_CMB + i*2304}
              ds_write_b128 v{t+1}, v[{o+4}:{o+7}] offset:{L_CMB + i*2304 + 1024}
              ds_write_b32 v{t+2}, v{o+8} offset:{L_CMB + i*2304 + 2048}""")
    def touch():
        a(f"""s_lshl_b32 s30, {sJ}, 2
              s_add_u32 s30, s30, {sKQ}
              s_lshl_b32 s30, s30, 15
              s_lshr_b32 s31, s64, 7               ; head * 1024
              s_add_u32 s30, s30, s31
              s_add_u32 s67, s30, {WS_OF}
              s_lshr_b32 s30, s30, 16
              s_lshl_b32 s30, s30, 8
              s_lshr_b32 s31, s64, 14              ; head * 8
              s_add_u32 s30, s30, s31
              s_and_b32 s31, {sKQ}, 1
              s_lshl_b32 s31, s31, 2
              s_add_u32 s30, s30, s31
              s_add_u32 s59, s30, {WS_FLAG + FO*128}
              s_mov_b32 s50, {(1, 0x01010101, 0x11111111)[cfg.otouch]}
              s_mov_b32 s51, {(0, 0x01010101, 0x11111111)[cfg.otouch]}
              s_mov_b64 exec, s[50:51]
              buffer_load_dword v{t+4}, v{vL16}, {SWS}, s67 offen sc1
              s_mov_b64 exec, 1
              buffer_load_dword v{t+5}, v{vL16}, {SWS}, s59 offen sc1
              s_mov_b64 exec, -1""")
    unit(1, load=False, wait=5, hooks={"01": touch, "11": mbaddr})
    unit(2, load=False, wait=2)
    if cfg.prio:
        a("s_setprio 1")
    unit(3, load=False, last=True, hooks={"21": lambda: send(0), "31": lambda: (send(1), a("s_setprio 0")), "33": lambda: send(2)})
    O3 = OO + 48
    a(f"""v_add_u32 v{t+1}, s52, v{vL16}
    v_lshl_add_u32 v{t+2}, v{vLANE}, 2, s52""")
    smf(O3, slot(3)["V"][1], SB + 8)
    stamp(7)
    a(f"""v_mov_b32 v{t+3}, {L_CTR}
    s_setprio 2
    s_waitcnt lgkmcnt(0)
    s_barrier                             ; T1""")
    stamp(9)
    a(f"ds_read_b32 v27, v{t+3} offset:16")
    for i in range(3):
        a(f"ds_read_b32 v{24+i}, v{t+2} offset:{L_CMB + i*2304 + 2048}")
    for i in range(3):
        a(f"""ds_read_b128 v[{8*i}:{8*i+3}], v{t+1} offset:{L_CMB + i*2304}
              ds_read_b128 v[{8*i+4}:{8*i+7}], v{t+1} offset:{L_CMB + i*2304 + 1024}""")
    a(f"""s_waitcnt lgkmcnt(6)
    v_readfirstlane_b32 s70, v27
    v_add_f32 v24, v24, v25
    v_add_f32 v26, v26, v{O3+8}
    v_add_f32 v{O3+8}, v24, v26
    v_cmp_nle_f32 vcc, {f32(2.0**-40)}, v{O3+8}
    v_rcp_f32 v28, v{O3+8}
    s_mov_b64 s[50:51], vcc
    v_cmp_nge_f32 vcc, {f32(2.0**40)}, v{O3+8}""")
    for i in range(3):
        a(f"s_waitcnt lgkmcnt({4 - 2*i})")
        for e in range(0, 8, 2):
            a(f"v_pk_add_f32 v[{O3+e}:{O3+e+1}], v[{O3+e}:{O3+e+1}], v[{8*i+e}:{8*i+e+1}]")
    a(f"""s_or_b64 s[50:51], s[50:51], vcc
    v_maximum3_f32 v0, |v{O3}|, |v{O3+1}|, |v{O3+2}|
    v_maximum3_f32 v1, |v{O3+3}|, |v{O3+4}|, |v{O3+5}|
    v_maximum3_f32 v0, |v{O3+6}|, |v{O3+7}|, v0
    v_maximum3_f32 v0, v0, v1, v1
    v_cmp_nge_f32 vcc, {f32(2.0**120)}, v0
    s_nop 0
    s_or_b64 s[50:51], s[50:51], vcc""")
    a("s_branch L_slow" if cfg.force_slow else "s_cbranch_scc1 L_slow")
    a("L_norm:")
    for e in range(0, 8, 2):
        a(f"v_pk_mul_f32 v[{O3+e}:{O3+e+1}], v[{O3+e}:{O3+e+1}], v[28:29] op_sel_hi:[1,0]")
    for i in range(4):
        a(f"v_cvt_pk_bf16_f32 v{156+i}, v{O3+2*i}, v{O3+2*i+1}")
    a(f"""s_cmp_eq_u32 s70, 0
    s_cbranch_scc1 L_ost_far
    buffer_store_dwordx4 v[156:159], v{vL16}, {SWS}, s67 offen
L_ost_done:""")
    stamp(10)

    def oflag(tag):
        a(f"""s_cmp_eq_u32 s70, 0
              s_waitcnt vmcnt(0)
              s_mov_b64 exec, 1
              s_cbranch_scc1 L_of_far_{tag}
              buffer_store_dword v{vIDX}, v{vL16}, {SWS}, s59 offen
              s_branch L_of_done_{tag}
        L_of_far_{tag}:
              buffer_store_dword v{vIDX}, v{vL16}, {SWS}, s59 offen sc1
        L_of_done_{tag}:
              s_mov_b64 exec, -1""")
    WOF, PACC, OFR = 0, 128, 144
    u = 144
    a(f"""s_cmp_ge_u32 {sWV}, 8
    s_barrier""")
    mark("t2")
    a(f"""s_cbranch_scc1 L_tail_b
    v_lshrrev_b32 v{u}, 5, v{vLANE}
    v_bfe_u32 v{u+1}, v{vLANE}, 2, 2
    v_lshl_add_u32 v{u}, v{u}, 2, v{u+1}
    v_lshlrev_b32 v{u}, 6, v{u}           ; (4*half + r) * 64
    v_and_b32 v{u+1}, 1, v{vLANE}
    v_lshl_add_u32 v{u}, v{u+1}, 5, v{u}
    v_bfe_u32 v{u+1}, v{vLANE}, 4, 1
    v_lshl_add_u32 v{u}, v{u+1}, 4, v{u}
    v_bfe_u32 v{u+1}, v{vLANE}, 1, 1
    v_lshl_add_u32 v{u}, v{u+1}, 3, v{u}
    s_and_b32 s50, {sT}, 1
    s_lshr_b32 s51, {sT}, 1
    s_lshl_b32 s30, s50, 15
    s_add_u32 s30, s30, {L_WO}
    v_add_u32 v{u}, s30, v{u}""")
    for hd in range(32):
        read_w(WOF + 4 * hd, u, hd * 1024, second=512)
        if hd == 5:
            oflag("a")
            mark("fa")
        if hd % 6 == 5:
            a("s_waitcnt lgkmcnt(2)")
    a(f"""v_and_b32 v{u+1}, 31, v{vLANE}
    v_lshrrev_b32 v{u+2}, 5, v{vLANE}
    s_lshl_b32 s30, s50, 2
    v_lshl_add_u32 v{u+2}, v{u+2}, 1, s30
    v_and_b32 v{u+3}, 7, v{u+1}
    v_xor_b32 v{u+2}, v{u+2}, v{u+3}
    s_lshl_b32 s30, s51, 12
    s_add_u32 s30, s30, {L_SST}
    v_lshl_add_u32 v{u+1}, v{u+1}, 7, s30
    v_lshl_add_u32 v162, v{u+2}, 4, v{u+1}
    v_xor_b32 v163, 16, v162
    s_lshl_b32 s30, s51, 15
    s_add_u32 s30, s30, {L_OST}
    v_add_u32 v166, s30, v{vL16}
    s_waitcnt lgkmcnt(0)""")
    stamp(11)
    a("s_barrier                             ; T4a")
    stamp(12)
    for hd in range(3):
        a(f"ds_read_b128 v[{OFR+4*hd}:{OFR+4*hd+3}], v166 offset:{hd*1024}")
    for hd in range(32):
        a(f"s_waitcnt lgkmcnt({min(2, 31 - hd)})")
        mfma32(PACC, WOF + 4 * hd, OFR + 4 * (hd % 4), None if hd == 0 else PACC)
        if hd + 3 < 32:
            if hd + 3 in [4 * sum(cfg.stages[:g]) for g in range(1, len(cfg.stages))]:
                a("s_barrier                             ; T4b..d")
                if cfg.stamps:
                    a(f"{cfg.clk} s[{72 + (hd + 3) // 4}:{73 + (hd + 3) // 4}]")
            r = OFR + 4 * ((hd + 3) % 4)
            a(f"ds_read_b128 v[{r}:{r+3}], v166 offset:{(hd+3)*1024}")
    for i in range(8):
        a(f"v_cvt_pk_bf16_f32 v{i}, v{PACC+2*i}, v{PACC+2*i+1}")
    a(f"""ds_write_b128 v162, v[0:3]
    ds_write_b128 v163, v[4:7]
    s_waitcnt lgkmcnt(0)
    s_barrier                             ; T5""")
    if cfg.stamps:
        a("s_mov_b32 s81, s74\ns_mov_b32 s82, s76\ns_mov_b32 s83, s78")
    stamp(13)
    dump_stamps()
    a("s_endpgm")

    gl_stubs()
    a(f"""L_b_sq:
    ds_read_b32 v{t+2}, v{t} offset:4
    ds_read_b128 v[140:143], v{t+1}
    s_add_u32 s56, s56, 1
    s_waitcnt lgkmcnt(0)
    v_readfirstlane_b32 s30, v{t+2}
    s_cmp_ge_u32 s56, {cfg.spin_max}
    s_cbranch_scc1 L_b_sqd
    s_cmp_lt_u32 s30, 4
    s_cbranch_scc1 L_b_sq
    s_branch L_b_sqd""")
    a(f"""L_ost_far:
    buffer_store_dwordx4 v[156:159], v{vL16}, {SWS}, s67 offen sc1
    s_branch L_ost_done
L_tail_b:
    v_lshlrev_b32 v3, 2, v{vLANE}""")
    stage_setup()
    oflag("b")
    mark("fa")
    poll_o("b", 3, 2)
    stamp(11)
    done, sent = 0, 0
    for g, nq in enumerate(cfg.stages):
        done += nq
        while sent < min(8, done + cfg.ahead[min(g, len(cfg.ahead) - 1)]):
            stage_quad(sent, vL16)
            sent += 1
        if g == 0:
            mark("iss")
        a(f"""s_waitcnt vmcnt({2*(sent - done)})
        s_barrier                             ; T4""")
    stamp(12)
    dump_stamps()
    a("s_endpgm")

    K_, V_, Q3 = slot(0)["K"], slot(0)["V"], QQ + 12
    a(f"""L_slow:
    v_mov_b32 v{t+1}, 0xff800000
    s_mov_b32 s61, 0
L_slow1:
    s_add_u32 s65, s61, s64
    buffer_load_dwordx4 v[{K_}:{K_+3}], v{vL16}, {SWS}, s65 offen sc1
    s_add_u32 s61, s61, 2048
    s_waitcnt vmcnt(0)""")
    mfma32(SA, K_, Q3)
    for i in range(8):
        a(f"v_max3_f32 v{t+1}, v{SA+2*i}, v{SA+2*i+1}, v{t+1}")
    a(f"""s_cmp_lt_u32 s61, 0x20000
    s_cbranch_scc1 L_slow1
    v_mov_b32 v{t+2}, v{t+1}
    v_permlane32_swap_b32 v{t+1}, v{t+2}
    v_max_f32 v{t+1}, v{t+1}, v{t+2}""")
    for i in range(16):
        a(f"v_sub_f32 v{SB+i}, 0, v{t+1}\nv_mov_b32 v{O3+i}, 0")
    a(f"""s_mov_b32 s61, 0
L_slow2:
    s_add_u32 s65, s61, s64
    buffer_load_dwordx4 v[{K_}:{K_+3}], v{vL16}, {SWS}, s65 offen sc1
    s_mov_b64 exec, {sVM}
    buffer_load_dwordx4 v[{V_[0]}:{V_[0]+3}], v{vL16}, {SWS}, s65 offen offset:1024 sc1
    buffer_load_dwordx4 v[{V_[1]}:{V_[1]+3}], v{vL16}, {SWS}, s65 offen offset:1280 sc1
    s_mov_b64 exec, -1
    s_add_u32 s61, s61, 2048
    s_waitcnt vmcnt(0)""")
    mfma32(SA, K_, Q3, SB)
    for i in range(16):
        exp(SA + i)
    smf(O3, V_[0], SA)
    smf(O3, V_[1], SA + 8)
    a(f"""s_cmp_lt_u32 s61, 0x20000
    s_cbranch_scc1 L_slow2
    s_nop 11
    v_rcp_f32 v28, v{O3+8}
    s_branch L_norm""")
    return finish(a, cfg)


def finish(a, cfg):
    a("L_exit:\ns_endpgm")
    if cfg.light == 2:
        marks = ["; B7", "; B10", "; B11", "; T1", "; T4a", "; T4c", "; T4d", "; T5"]
        out = []
        for ln in a.lines:
            out.append(ln)
            if marks and "s_barrier" in ln and (ln.rstrip().endswith(marks[0]) or marks[0] + ":" in ln):
                out.append(f"    s_memrealtime s[{96 - 2*len(marks)}:{97 - 2*len(marks)}]")
                marks.pop(0)
        assert not marks
        a.lines = out
    body, log = fix_hazards(a.text(), fix=True, verbose=cfg.verbose)
    head = open("cdna_kernels/" + NAME + ".s.ref").read().split("; Override launch")[0]
    head += f"; @launch grid=(256,1,1) block=(768,1,1) lds={LDS_BYTES}\n"
    tail = f""".section .rodata,"a"
.p2align 6
.amdhsa_kernel {NAME}_kernel
  .amdhsa_next_free_vgpr 168
  .amdhsa_next_free_sgpr 102
  .amdhsa_accum_offset 168
  .amdhsa_group_segment_fixed_size 0
  .amdhsa_kernarg_size 88
  .amdhsa_user_sgpr_count 2
  .amdhsa_user_sgpr_kernarg_segment_ptr 1
  .amdhsa_system_sgpr_workgroup_id_x 1
  .amdhsa_float_denorm_mode_32 3
.end_amdhsa_kernel
"""
    return head + body + tail


if __name__ == "__main__":
    cfg = Cfg()
    out = sys.argv[1]
    for kv in sys.argv[2:]:
        k, v = kv.split("=")
        setattr(cfg, k, eval(v))
    open(out, "w").write(gen(cfg))
```
